```python
import torch

def _softmax(x, axis=-1):
    return torch.softmax(x, dim=axis)
def _gelu(x):
    return torch.nn.functional.gelu(x, approximate="tanh")
def _silu(x):
    return torch.nn.functional.silu(x)
def _sigmoid(x):
    return torch.sigmoid(x)
def _layernorm(x, axis=-1, eps=1e-5):
    m = x.mean(dim=axis, keepdim=True)
    v = x.var(dim=axis, keepdim=True, unbiased=False)
    return (x - m) / torch.sqrt(v + eps)
def _scatter_add(tgt, idx, src, axis=0):
    return tgt.clone().index_add_(axis, idx, src)
def _segment_sum(src, seg, n):
    out = torch.zeros((n,) + src.shape[1:], dtype=src.dtype)
    return out.index_add_(0, seg, src)
def _pad(x, pw):
    flat = tuple(v for pair in reversed(pw) for v in pair)
    return torch.nn.functional.pad(x, flat)

kernel_name = 'standalone__glu_gated_swiglu__prompt'

def setup_inputs():

    _w = (lambda a: (lambda t: t.to(torch.bfloat16) if t.is_floating_point() else t)(torch.as_tensor(a)))
    B, S, D, F = 1, 2048, 512, 1376
    return {
        "x": _w((lambda *s: torch.randn(*s, dtype=torch.bfloat16) * 0.05)(B, S, D)),
        "w1": _w((lambda *s: torch.randn(*s, dtype=torch.bfloat16) * 0.05)(D, F) * (2.0 / D) ** 0.5),
        "w3": _w((lambda *s: torch.randn(*s, dtype=torch.bfloat16) * 0.05)(D, F) * (2.0 / D) ** 0.5),
        "w2": _w((lambda *s: torch.randn(*s, dtype=torch.bfloat16) * 0.05)(F, D) * (2.0 / F) ** 0.5),
    }

def reference(x, w1, w3, w2):
    gate = torch.einsum("bsd,df->bsf", x, w1)
    up = torch.einsum("bsd,df->bsf", x, w3)
    h = _silu(gate) * up
    out = torch.einsum("bsf,fd->bsd", h, w2)
    return out
```

```python
import sys, argparse

ap = argparse.ArgumentParser()
ap.add_argument("-o", default="standalone__glu_gated_swiglu__prompt.s")
ap.add_argument("--prof", action="store_true")
ap.add_argument("--rot1", type=int, default=2)
ap.add_argument("--rot2", type=int, default=1)
ap.add_argument("--hring", type=int, default=16)
ap.add_argument("--hst", default="sc1")
ap.add_argument("--hld", default="sc1")
ap.add_argument("--ost", default="none")
ap.add_argument("--sleep", type=int, default=1)
ap.add_argument("--cyc", action="store_true")
ap.add_argument("--amp", default="")
ap.add_argument("--codepf", type=int, default=1)
ap.add_argument("--tlb", type=int, default=1)
ap.add_argument("--early", type=int, default=11)
args = ap.parse_args()

NAME = "standalone__glu_gated_swiglu__prompt"
out = []
def e(s=""): out.append(s)
def I(s): out.append("    " + s)
def L(s): out.append(s + ":")

S, D, F = 2048, 512, 1376
XB, WB, W2B, OB = S * D * 2, D * F * 2, F * D * 2, S * D * 2
HSTR = 87
WS_REC = 8 << 20
PROF_OFF = 7 << 20
LDS_X = 0
LDS_W = 49152
LDS_E = 122880
LDS_SCR = 159744
LDS_TOTAL = 163840
RANGES = [(0, 9, LDS_E), (9, 4, LDS_X + 32768), (13, 6, LDS_W + 49152), (19, 4, LDS_X), (23, 6, LDS_W),
          (29, 4, LDS_X + 16384), (33, 6, LDS_W + 24576), (39, 4, LDS_E)]
def unit_addr(u):
    for u0, n, a in RANGES:
        if u0 <= u < u0 + n: return a + (u - u0) * 4096
    raise ValueError
XCH = LDS_E + 4 * 4096

sX, sW1, sW3, sW2, sH, sO, sD = 20, 24, 28, 32, 36, 40, 44
s_wave, s_xcd, s_slot, s_mt, s_sl, s_rb, s_cb = 48, 49, 50, 51, 52, 53, 54
s_t0, s_t1, s_t2, s_t3 = 55, 56, 57, 58
s_cnt, s_kst, s_sx, s_sw, s_ring = 59, 60, 61, 62, 63
s_lx, s_lw, s_rot2, s_fl = 64, 65, 66, 67
s_k = 68
s_one = 70
s_hoff = 72
s_p, s_pend, s_pbeg = 78, 79, 80
s_valid = 81
s_prof = 84
def srd(r): return f"s[{r}:{r+3}]"
STAMPS = args.prof or args.amp
def stamp(i):
    if STAMPS:
        I(f"{'s_memtime' if args.cyc else 's_memrealtime'} s[{s_prof+2*i}:{s_prof+2*i+1}]")

def prof_store():
    if not args.prof: return
    I("s_waitcnt lgkmcnt(0)")
    I(f"s_lshl_b32 s{s_t0}, s2, 3")
    I(f"s_add_u32 s{s_t0}, s{s_t0}, s{s_wave}")
    I(f"s_lshl_b32 s{s_t0}, s{s_t0}, 5")
    I(f"s_add_u32 s{s_t0}, s{s_t0}, {PROF_OFF}")
    for i in range(8):
        I(f"v_mov_b32 v{240+i}, s{s_prof+2*i}")
    I("v_mov_b32 v248, 0")
    I("s_mov_b64 exec, 1")
    I(f"buffer_store_dwordx4 v[240:243], v248, {srd(sH)}, s{s_t0} offen")
    I(f"buffer_store_dwordx4 v[244:247], v248, {srd(sH)}, s{s_t0} offen offset:16")
    I("s_mov_b64 exec, -1")

def make_srd(r, p, nbytes):
    I(f"s_mov_b32 s{r}, s{p}")
    I(f"s_and_b32 s{r+1}, s{p+1}, 0xffff")
    I(f"s_mov_b32 s{r+2}, {nbytes}")
    I(f"s_mov_b32 s{r+3}, 0x20000")
pol = lambda s: s.replace("_", " ").replace("none", "")
HST, HLD, OST = pol(args.hst), pol(args.hld), pol(args.ost)

label = NAME + "_kernel"
P = "K"
e(f"; @launch grid=(256,1,1) block=(512,1,1) lds={LDS_TOTAL}")
e('.amdgcn_target "amdgcn-amd-amdhsa--gfx950"')
e(".text")
e(f".globl {label}")
e(".p2align 8")
e(f".type {label},@function")
L(label)
I("s_cmp_ge_u32 s2, 256")
I(f"s_cbranch_scc1 {P}_end")
I("s_load_dwordx8 s[4:11], s[0:1], 0")
I("s_load_dwordx4 s[12:15], s[0:1], 32")
I("s_load_dwordx2 s[16:17], s[0:1], 48")
if STAMPS:
    for i in range(8): I(f"s_mov_b32 s{s_prof+2*i}, 0")
stamp(0)
I("v_lshrrev_b32 v2, 6, v0")
I("v_and_b32 v1, 63, v0")
I(f"v_readfirstlane_b32 s{s_wave}, v2")
I(f"s_and_b32 s{s_xcd}, s2, 7")
I(f"s_lshr_b32 s{s_slot}, s2, 3")
I(f"s_and_b32 s{s_t0}, s{s_xcd}, 3")
I(f"s_lshl_b32 s{s_t0}, s{s_t0}, 2")
I(f"s_lshr_b32 s{s_t1}, s{s_xcd}, 2")
I(f"s_and_b32 s{s_t2}, s{s_slot}, 3")
I(f"s_lshr_b32 s{s_t3}, s{s_slot}, 2")
I(f"s_add_u32 s{s_mt}, s{s_t0}, s{s_t2}")
I(f"s_mul_i32 s{s_sl}, s{s_t1}, 7")
I(f"s_add_u32 s{s_sl}, s{s_sl}, s{s_t3}")
I(f"s_add_u32 s{s_kst}, s{s_t2}, s{s_t3}")
I(f"s_and_b32 s{s_kst}, s{s_kst}, {args.rot1-1}")
I(f"s_mul_i32 s{s_kst}, s{s_kst}, {8//args.rot1}")
I(f"s_lshl_b32 s{s_t1}, s{s_t1}, 1")
I(f"s_add_u32 s{s_t0}, s{s_t0}, s{s_t1}")
I(f"s_add_u32 s{s_t1}, s{s_t0}, s{s_t2}")
I(f"s_cmp_ge_u32 s{s_slot}, 28")
I(f"s_cselect_b32 s{s_mt}, s{s_t1}, s{s_mt}")
I(f"s_cselect_b32 s{s_sl}, 14, s{s_sl}")
I(f"s_cmp_ge_u32 s{s_slot}, 30")
I(f"s_cselect_b32 s{s_sl}, 15, s{s_sl}")
I(f"s_cselect_b32 s{s_mt}, s{s_t0}, s{s_mt}")
I(f"s_lshl_b32 s{s_t0}, s{s_t0}, 1")
I(f"s_lshr_b32 s{s_t1}, s{s_slot}, 3")
I(f"s_add_u32 s{s_rb}, s{s_t0}, s{s_t1}")
I(f"s_and_b32 s{s_cb}, s{s_slot}, 7")
if args.rot2:
    I(f"s_add_u32 s{s_rot2}, s{s_t1}, s{s_cb}")
    I(f"s_and_b32 s{s_rot2}, s{s_rot2}, 3")
    I(f"s_mul_i32 s{s_rot2}, s{s_rot2}, 11")
else:
    I(f"s_mov_b32 s{s_rot2}, 0")
I(f"s_cmp_lt_u32 s{s_wave}, 4")
I(f"s_cbranch_scc1 {P}_compute")

I(f"s_sub_u32 s{s_t3}, s{s_wave}, 4")
vX = [2, 3, 4, 5]; vW = [6, 7, 8]; vU = [10, 11, 12]; vW2 = 13
vFA, vFS, vFN = 20, 21, 22
I("v_lshrrev_b32 v14, 3, v1")
I(f"s_lshl_b32 s{s_t0}, s{s_t3}, 5")
I(f"v_add_u32 v14, s{s_t0}, v14")
I("v_and_b32 v15, 7, v1")
for j in range(4):
    I(f"v_add_u32 v16, {8*j}, v14")
    I("v_lshrrev_b32 v17, 1, v16")
    I("v_and_b32 v17, 7, v17")
    I("v_xor_b32 v17, v17, v15")
    I(f"v_subrev_u32 v16, {j}, v16")
    I("v_lshlrev_b32 v16, 10, v16")
    I(f"v_lshl_add_u32 v{vX[j]}, v17, 4, v16")
I(f"s_and_b32 s{s_t0}, s{s_sl}, 1")
I(f"s_lshl_b32 s{s_t1}, s{s_t3}, 4")
I("v_lshrrev_b32 v14, 2, v1")
I("v_and_b32 v15, 3, v1")
I(f"s_cmp_eq_u32 s{s_t0}, 1")
I("s_cselect_b64 vcc, -1, 0")
I(f"s_cmp_eq_u32 s{s_sl}, 14")
I(f"s_cselect_b32 s{s_t2}, 0, 64")
for j in range(3):
    I(f"v_add_u32 v16, {16*j}, v14")
    I("v_mul_u32_u24 v17, 43, v16")
    I("v_lshrrev_b32 v17, 7, v17")
    I("v_mul_u32_u24 v18, 3, v17")
    I("v_sub_u32 v18, v16, v18")
    I("v_sub_u32 v19, 2, v18")
    I("v_cndmask_b32 v18, v18, v19, vcc")
    I(f"v_mul_u32_u24 v18, s{s_t2}, v18")
    I(f"v_add_u32 v17, s{s_t1}, v17")
    I("v_mul_u32_u24 v17, 2752, v17")
    I("v_add_u32 v17, v17, v18")
    I("v_lshl_add_u32 v17, v15, 4, v17")
    I(f"v_subrev_u32 v{vW[j]}, {1024*j}, v17")
    I(f"v_xor_b32 v{vU[j]}, 32, v{vW[j]}")
I(f"s_lshl_b32 s{s_lx}, s{s_t3}, 12")
I(f"s_mul_i32 s{s_lw}, s{s_t3}, 6144")
I(f"s_add_u32 s{s_lw}, s{s_lw}, {LDS_W}")
I("v_lshrrev_b32 v14, 3, v1")
I(f"s_and_b32 s{s_t0}, s{s_t3}, 1")
I(f"s_lshl_b32 s{s_t0}, s{s_t0}, 3")
I(f"s_lshr_b32 s{s_t1}, s{s_t3}, 1")
I(f"s_mul_i32 s{s_t1}, s{s_t1}, 688")
I(f"s_add_u32 s{s_t0}, s{s_t0}, s{s_t1}")
I(f"v_add_u32 v14, s{s_t0}, v14")
I("v_lshlrev_b32 v14, 10, v14")
I("v_lshrrev_b32 v15, 4, v1")
I("v_and_b32 v15, 1, v15")
I("v_lshlrev_b32 v15, 2, v15")
I("v_and_b32 v16, 7, v1")
I("v_xor_b32 v15, v15, v16")
I(f"v_lshl_add_u32 v{vW2}, v15, 4, v14")
I(f"s_lshl_b32 s{s_pbeg}, s{s_cb}, 7")
I(f"s_add_u32 s{s_pend}, s{s_pbeg}, {43*16384}")
I(f"s_lshl_b32 s{s_t0}, s{s_rot2}, 14")
I(f"s_add_u32 s{s_p}, s{s_pbeg}, s{s_t0}")
I(f"s_lshl_b32 s{s_hoff}, s{s_t3}, 10")
I(f"s_lshr_b32 s{s_t0}, s{s_rb}, 1")
I(f"s_mul_i32 s{s_fl}, s{s_t0}, {4*HSTR*1024}")
I(f"s_add_u32 s{s_fl}, s{s_fl}, {86*1024}")
I(f"v_and_b32 v{vFA}, 15, v1")
I(f"v_lshlrev_b32 v{vFA}, 2, v{vFA}")
I(f"s_lshl_b32 s{s_hoff+1}, s{s_mt}, 17")
I(f"s_mul_i32 s{s_hoff+2}, s{s_sl}, 192")
I(f"s_mov_b32 s{s_ring}, 0")
I(f"s_mov_b32 s{s_cnt}, 0")
I(f"s_mov_b32 s{sX+2}, {XB}"); I(f"s_mov_b32 s{sX+3}, 0x20000")
I(f"s_mov_b32 s{sW1+2}, {WB}"); I(f"s_mov_b32 s{sW1+3}, 0x20000")
I(f"s_mov_b32 s{sW3+2}, {WB}"); I(f"s_mov_b32 s{sW3+3}, 0x20000")
I(f"s_mov_b32 s{sW2+2}, {W2B}"); I(f"s_mov_b32 s{sW2+3}, 0x20000")
I(f"s_mov_b32 s{sH+2}, {WS_REC}"); I(f"s_mov_b32 s{sH+3}, 0x20000")
I(f"s_mov_b32 s{sD+2}, 256"); I(f"s_mov_b32 s{sD+3}, 0x20000")
I("s_waitcnt lgkmcnt(0)")
for r, p in ((sX, 4), (sW1, 6), (sW3, 8), (sW2, 10), (sH, 16), (sD, 14)):
    I(f"s_mov_b32 s{r}, s{p}")
    I(f"s_and_b32 s{r+1}, s{p+1}, 0xffff")
stamp(1)

wcount = [0]
def issueW(ua, ub):
    for u0, n, a in RANGES:
        lo, hi = max(ua, u0), min(ub, u0 + n)
        if lo >= hi: continue
        lab = f"{P}_l_w{wcount[0]}"; wcount[0] += 1
        I(f"s_add_u32 m0, s{s_hoff}, {unit_addr(lo)}")
        I(f"s_mov_b32 s{s_t0}, {hi-lo}")
        L(lab)
        I(f"buffer_load_dwordx4 v{vW2}, {srd(sW2)}, s{s_p} offen lds")
        I(f"s_add_u32 s{s_p}, s{s_p}, 16384")
        I(f"s_cmp_eq_u32 s{s_p}, s{s_pend}")
        I(f"s_cselect_b32 s{s_p}, s{s_pbeg}, s{s_p}")
        I("s_add_u32 m0, m0, 4096")
        I(f"s_sub_u32 s{s_t0}, s{s_t0}, 1")
        I(f"s_cmp_lg_u32 s{s_t0}, 0")
        I(f"s_cbranch_scc1 {lab}")

I(f"s_cmp_ge_u32 s{s_sl}, 15")
I(f"s_cbranch_scc1 {P}_l_idle")
L(f"{P}_l_loop")
I(f"s_lshl_b32 s{s_t0}, s{s_kst}, 7")
I(f"s_add_u32 s{s_sx}, s{s_hoff+1}, s{s_t0}")
I(f"s_lshl_b32 s{s_t0}, s{s_ring}, 14")
I(f"s_add_u32 m0, s{s_lx}, s{s_t0}")
I(f"s_mul_i32 s{s_sw}, s{s_kst}, {64*2752}")
for j in range(4):
    I(f"buffer_load_dwordx4 v{vX[j]}, {srd(sX)}, s{s_sx} offen offset:{1024*j} lds")
I(f"s_mul_i32 s{s_t1}, s{s_ring}, 24576")
I(f"s_add_u32 m0, s{s_lw}, s{s_t1}")
I(f"s_add_u32 s{s_sw}, s{s_sw}, s{s_hoff+2}")
for j in range(3):
    I(f"buffer_load_dwordx4 v{vW[j]}, {srd(sW1)}, s{s_sw} offen offset:{1024*j} lds")
I("s_add_u32 m0, m0, 3072")
I(f"s_add_u32 s{s_kst}, s{s_kst}, 1")
for j in range(3):
    I(f"buffer_load_dwordx4 v{vU[j]}, {srd(sW3)}, s{s_sw} offen offset:{1024*j} lds")
I(f"s_and_b32 s{s_kst}, s{s_kst}, 7")
I(f"s_add_u32 s{s_ring}, s{s_ring}, 1")
I(f"s_cmp_eq_u32 s{s_ring}, 3")
I(f"s_cselect_b32 s{s_ring}, 0, s{s_ring}")
I(f"s_cmp_eq_u32 s{s_cnt}, 0")
I(f"s_cbranch_scc0 {P}_l_nofirst")
I(f"buffer_load_dword v{vFS}, v{vFA}, {srd(sH)}, s{s_fl} offen sc1")
I(f"s_branch {P}_l_skip")
L(f"{P}_l_nofirst")
I("s_waitcnt vmcnt(10)")
I("s_barrier")
L(f"{P}_l_skip")
I(f"s_add_u32 s{s_cnt}, s{s_cnt}, 1")
I(f"s_cmp_lt_u32 s{s_cnt}, 8")
I(f"s_cbranch_scc1 {P}_l_loop")
stamp(2)
issueW(0, args.early)
I(f"s_waitcnt vmcnt({args.early})")
I("s_barrier")
I("s_barrier")
I(f"s_branch {P}_l_join")
L(f"{P}_l_idle")
I(f"buffer_load_dword v{vFS}, v{vFA}, {srd(sH)}, s{s_fl} offen sc1")
issueW(0, args.early)
L(f"{P}_l_join")
I("s_barrier")
stamp(3)
issueW(args.early, 39)
stamp(4)
I("s_waitcnt vmcnt(0)")
stamp(5)
I(f"s_cmp_lg_u32 s{s_wave}, 4")
I(f"s_cbranch_scc1 {P}_l_go")
I(f"s_lshr_b32 s{s_t1}, s{s_rb}, 1")
I(f"s_lshl_b32 s{s_t1}, s{s_t1}, 4")
I("v_mov_b32 v18, 0")
I(f"s_mov_b32 s{s_cnt}, 0")
L(f"{P}_l_poll")
I(f"buffer_load_dword v{vFN}, v{vFA}, {srd(sH)}, s{s_fl} offen sc1")
I(f"s_add_u32 s{s_cnt}, s{s_cnt}, 1")
I("s_waitcnt vmcnt(0)")
I(f"v_cmp_ne_u32 vcc, v{vFN}, v{vFS}")
I(f"s_and_b32 s{s_t0}, s{s_cnt}, 31")
I(f"s_and_b32 s{s_t2}, vcc_lo, 0x7fff")
I(f"s_cmp_eq_u32 s{s_t2}, 0x7fff")
I(f"s_cbranch_scc1 {P}_l_go")
if args.sleep: I(f"s_sleep {args.sleep}")
I(f"s_cmp_lg_u32 s{s_t0}, 0")
I(f"s_cbranch_scc1 {P}_l_poll")
I(f"buffer_load_dword v17, v18, {srd(sD)}, s{s_t1} offen sc1")
I("s_waitcnt vmcnt(0)")
I(f"v_readfirstlane_b32 s{s_t0}, v17")
I(f"s_cmp_ge_u32 s{s_cnt}, 400000")
I(f"s_cbranch_scc1 {P}_l_go")
I(f"s_or_b32 s{s_t2}, s{s_t2}, s{s_t0}")
I(f"s_cmp_lg_u32 s{s_t2}, 0x7fff")
I(f"s_cbranch_scc1 {P}_l_poll")
L(f"{P}_l_go")
stamp(6)
I("s_barrier")
I("s_barrier")
issueW(39, 43)
I(f"s_cmp_lg_u32 s{s_wave}, 5")
I(f"s_cbranch_scc1 {P}_l_nofb")
I(f"s_cmp_ge_u32 s{s_sl}, 15")
I(f"s_cbranch_scc1 {P}_l_nofb")
I(f"s_lshl_b32 s{s_t0}, 1, s{s_sl}")
I(f"s_lshl_b32 s{s_t1}, s{s_mt}, 4")
I(f"v_mov_b32 v17, s{s_t0}")
I("v_mov_b32 v18, 0")
I("s_mov_b64 exec, 1")
I(f"buffer_atomic_add v17, v18, {srd(sD)}, s{s_t1} offen sc1")
I("s_mov_b64 exec, -1")
I("s_waitcnt vmcnt(1)")
I(f"s_branch {P}_l_fin")
L(f"{P}_l_nofb")
I("s_waitcnt vmcnt(0)")
L(f"{P}_l_fin")
I("s_barrier")
prof_store()
L(f"{P}_end")
I("s_endpgm")

L(f"{P}_compute")
if args.codepf:
    I("s_getpc_b64 s[18:19]")
    L(f"{P}_pc")
    I(f"s_lshl_b32 s{s_t0}, s{s_wave}, 7")
    I(f"s_add_u32 s18, s18, s{s_t0}")
    I("s_addc_u32 s19, s19, 0")
    out.append("@CODEPF@")
vAX = [2, 3, 4, 5]; vAW = [6, 7, 8]
ACC = 64
FA, FB = 160, 180
vOLD = 20
I(f"s_and_b32 s{s_t0}, s{s_wave}, 1")
I(f"s_lshl_b32 s{s_t0}, s{s_t0}, 6")
I("v_and_b32 v10, 31, v1")
I(f"v_add_u32 v10, s{s_t0}, v10")
I("v_lshrrev_b32 v11, 1, v10")
I("v_and_b32 v11, 7, v11")
I("v_lshrrev_b32 v12, 5, v1")
I("v_lshlrev_b32 v10, 7, v10")
for ks in range(4):
    I(f"v_add_u32 v13, {2*ks}, v12")
    I("v_xor_b32 v13, v13, v11")
    I(f"v_lshl_add_u32 v{vAX[ks]}, v13, 4, v10")
I("v_lshrrev_b32 v10, 4, v1")
I("v_and_b32 v11, 1, v10")
I("v_lshrrev_b32 v10, 1, v10")
I("v_lshrrev_b32 v12, 2, v1")
I("v_and_b32 v12, 3, v12")
I("v_lshl_add_u32 v12, v10, 3, v12")
I("v_mul_u32_u24 v12, 192, v12")
I("v_mul_u32_u24 v13, 3072, v11")
I("v_add_u32 v12, v12, v13")
I("v_and_b32 v13, 1, v1")
I("v_lshl_add_u32 v12, v13, 4, v12")
I("v_lshrrev_b32 v13, 1, v1")
I("v_and_b32 v13, 1, v13")
I("v_lshl_add_u32 v12, v13, 3, v12")
I(f"v_add_u32 v12, {LDS_W}, v12")
I("v_lshlrev_b32 v11, 5, v11")
I(f"s_lshr_b32 s{s_t0}, s{s_wave}, 1")
I(f"s_mul_i32 s{s_t0}, s{s_t0}, 3")
for t in range(3):
    I(f"s_add_u32 s{s_t1}, s{s_t0}, {t}")
    I(f"s_lshr_b32 s{s_t2}, s{s_t1}, 1")
    I(f"s_lshl_b32 s{s_t2}, s{s_t2}, 6")
    I(f"s_and_b32 s{s_t1}, s{s_t1}, 1")
    I(f"s_lshl_b32 s{s_t1}, s{s_t1}, 5")
    I(f"v_xor_b32 v13, s{s_t1}, v11")
    I(f"v_add3_u32 v{vAW[t]}, v12, v13, s{s_t2}")
for r in range(96):
    I(f"v_mov_b32 v{ACC+r}, 0")
I(f"s_and_b32 s{s_t3}, s{s_sl}, 1")
I(f"s_and_b32 s{s_t1}, s{s_wave}, 1")
I(f"s_lshl_b32 s{s_t1}, s{s_t1}, 1")
I(f"s_lshl_b32 s{s_cnt}, s{s_mt}, 2")
I(f"s_add_u32 s{s_t1}, s{s_t1}, s{s_cnt}")
I(f"s_mul_i32 s{s_p}, s{s_t1}, {HSTR}")
I(f"s_mul_i32 s{s_cnt}, s{s_sl}, 6")
I(f"s_add_u32 s{s_p}, s{s_p}, s{s_cnt}")
for t in range(3):
    I(f"s_add_u32 s{s_t1}, s{s_t0}, {t}")
    I(f"s_lshr_b32 s{s_t2}, s{s_t1}, 1")
    I(f"s_sub_u32 s{s_cnt}, 2, s{s_t2}")
    I(f"s_cmp_eq_u32 s{s_t3}, 1")
    I(f"s_cselect_b32 s{s_t2}, s{s_cnt}, s{s_t2}")
    I(f"s_lshl_b32 s{s_t2}, s{s_t2}, 1")
    I(f"s_and_b32 s{s_t1}, s{s_t1}, 1")
    I(f"s_add_u32 s{s_t2}, s{s_t2}, s{s_t1}")
    I(f"s_add_u32 s{s_t2}, s{s_t2}, s{s_p}")
    I(f"s_lshl_b32 s{s_hoff+2*t}, s{s_t2}, 10")
    I(f"s_add_u32 s{s_hoff+2*t+1}, s{s_hoff+2*t}, {HSTR*1024}")
I(f"s_cmp_eq_u32 s{s_t0}, 0")
I(f"s_cselect_b32 s{s_t1}, 2, 0")
I(f"s_cmp_eq_u32 s{s_sl}, 14")
I(f"s_cselect_b32 s{s_valid}, s{s_t1}, 3")
I(f"s_mov_b32 s{s_k}, 0xbfb8aa3b")
I(f"s_mov_b32 s{s_k+1}, 0xbfb8aa3b")
I(f"s_mov_b32 s{s_one}, 1.0")
I(f"s_mov_b32 s{s_one+1}, 1.0")
I("v_lshlrev_b32 v9, 4, v1")
I(f"s_mul_i32 s{s_fl}, s{s_mt}, {4*HSTR*1024}")
I(f"s_lshl_b32 s{s_t1}, s{s_sl}, 2")
I(f"s_add_u32 s{s_fl}, s{s_fl}, s{s_t1}")
I(f"s_add_u32 s{s_fl}, s{s_fl}, {86*1024}")
I("v_mov_b32 v21, 0")
I(f"v_mov_b32 v22, {LDS_SCR}")
I("ds_write_b32 v22, v21")
vB = [[10, 11], [12, 13], [14, 15]]
WF = 128; HR = 160; R = args.hring
I("v_lshrrev_b32 v16, 4, v1")
I("v_lshrrev_b32 v17, 1, v16")
I("v_lshrrev_b32 v18, 2, v1")
I("v_and_b32 v18, 3, v18")
I("v_lshl_add_u32 v17, v17, 3, v18")
I("v_lshlrev_b32 v17, 7, v17")
I("v_and_b32 v16, 1, v16")
I("v_and_b32 v19, 1, v1")
I("v_lshl_add_u32 v16, v19, 1, v16")
I("v_lshrrev_b32 v18, 1, v18")
I("v_lshlrev_b32 v18, 2, v18")
I(f"s_lshr_b32 s{s_t0}, s{s_wave}, 1")
I(f"s_lshl_b32 s{s_t1}, s{s_t0}, 2")
I(f"v_xor_b32 v18, s{s_t1}, v18")
I("v_xor_b32 v16, v16, v18")
I("v_lshl_add_u32 v17, v16, 4, v17")
I("v_lshrrev_b32 v19, 1, v1")
I("v_and_b32 v19, 1, v19")
I("v_lshl_add_u32 v17, v19, 3, v17")
I(f"s_lshl_b32 s{s_t1}, s{s_t0}, 11")
I(f"v_add_u32 v{vB[0][0]}, s{s_t1}, v17")
I(f"v_xor_b32 v{vB[0][1]}, 64, v{vB[0][0]}")
for sg in (1, 2):
    for nb in range(2):
        I(f"v_add_u32 v{vB[sg][nb]}, {sg*65536}, v{vB[0][nb]}")
I(f"s_and_b32 s{s_t1}, s{s_wave}, 1")
I(f"s_lshl_b32 s{s_t2}, s{s_rb}, 1")
I(f"s_add_u32 s{s_t1}, s{s_t1}, s{s_t2}")
I(f"s_mul_i32 s{s_t2}, s{s_t1}, {HSTR}")
I(f"s_mul_i32 s{s_t3}, s{s_t0}, 43")
I(f"s_add_u32 s{s_t2}, s{s_t2}, s{s_t3}")
I(f"s_lshl_b32 s{s_pbeg}, s{s_t2}, 10")
I(f"s_add_u32 s{s_pend}, s{s_pbeg}, {43*1024}")
I(f"s_lshl_b32 s{s_t2}, s{s_rot2}, 10")
I(f"s_add_u32 s{s_p}, s{s_pbeg}, s{s_t2}")
I("v_and_b32 v16, 31, v1")
I("v_lshlrev_b32 v16, 10, v16")
I("v_lshrrev_b32 v17, 5, v1")
I("v_lshl_add_u32 v16, v17, 5, v16")
I(f"s_lshl_b32 s{s_t1}, s{s_t1}, 15")
I(f"s_lshl_b32 s{s_t2}, s{s_cb}, 7")
I(f"s_add_u32 s{s_t1}, s{s_t1}, s{s_t2}")
I(f"s_lshl_b32 s{s_t2}, s{s_t0}, 6")
I(f"s_add_u32 s{s_t1}, s{s_t1}, s{s_t2}")
I(f"v_add_u32 v16, s{s_t1}, v16")
I(f"s_lshl_b32 s{s_t1}, s{s_wave}, 12")
I(f"s_add_u32 s{s_t1}, s{s_t1}, {XCH}")
I(f"v_add_u32 v17, s{s_t1}, v9")
I(f"s_xor_b32 s{s_t2}, s{s_wave}, 2")
I(f"s_lshl_b32 s{s_t2}, s{s_t2}, 12")
I(f"s_add_u32 s{s_t2}, s{s_t2}, {XCH}")
I(f"v_add_u32 v18, s{s_t2}, v9")
I("s_waitcnt lgkmcnt(0)")
make_srd(sH, 16, WS_REC)
make_srd(sO, 12, OB)
make_srd(sD, 14, 256)
make_srd(sW2, 10, W2B)
I(f"buffer_load_dword v{vOLD}, v21, {srd(sH)}, s{s_fl} offen sc1")
if args.tlb:
    I(f"s_cmp_lg_u32 s{s_wave}, 0")
    I(f"s_cbranch_scc1 {P}_c_notlb")
    I("s_mov_b64 exec, 1")
    I(f"buffer_load_dword v28, v16, {srd(sO)}, 0 offen")
    I(f"buffer_load_dword v29, v21, {srd(sD)}, 0 offen sc1")
    I(f"buffer_load_dword v30, v21, {srd(sW2)}, 0 offen")
    I(f"s_mov_b32 s{s_t1}, {W2B-128}")
    I(f"buffer_load_dword v31, v21, {srd(sW2)}, s{s_t1} offen")
    I(f"s_add_u32 s{s_t1}, s{s_fl}, {3*HSTR*1024}")
    I(f"buffer_load_dword v32, v21, {srd(sH)}, s{s_t1} offen sc1")
    I("s_mov_b64 exec, -1")
    L(f"{P}_c_notlb")
I(f"s_cmp_ge_u32 s{s_sl}, 15")
I(f"s_cbranch_scc1 {P}_c_idle")

def reads(ks, fs):
    r = []
    r.append(f"ds_read_b128 v[{fs}:{fs+3}], v{vAX[ks]}")
    for h in range(2):
        r.append(f"ds_read_b64_tr_b16 v[{fs+8+2*h}:{fs+9+2*h}], v{vAW[0]} offset:{ks*6144+h*768}")
    r.append(f"ds_read_b128 v[{fs+4}:{fs+7}], v{vAX[ks]} offset:4096")
    for t in (1, 2):
        for h in range(2):
            r.append(f"ds_read_b64_tr_b16 v[{fs+8+4*t+2*h}:{fs+9+4*t+2*h}], v{vAW[t]} offset:{ks*6144+h*768}")
    return r
def mfmas(fs):
    m = []
    for t in range(3):
        for mb in range(2):
            a = ACC + (t * 2 + mb) * 16
            m.append(f"v_mfma_f32_32x32x16_bf16 v[{a}:{a+15}], v[{fs+8+4*t}:{fs+11+4*t}], v[{fs+4*mb}:{fs+4*mb+3}], v[{a}:{a+15}]")
    return m
I(f"s_mov_b32 s{s_cnt}, 0")
I(f"s_mov_b32 s{s_ring}, 0")
I(f"s_mov_b32 s{s_sx}, 16384")
I(f"s_mov_b32 s{s_sw}, 24576")
I("s_barrier")
stamp(1)
for r in reads(0, FA): I(r)
L(f"{P}_c_loop")
for ks in range(3):
    cur, nxt = (FA, FB) if ks % 2 == 0 else (FB, FA)
    I("s_waitcnt lgkmcnt(0)")
    m = mfmas(cur); r = reads(ks + 1, nxt)
    for i in range(6):
        I(m[i])
        if i < 4:
            I(r[2*i]); I(r[2*i+1])
I("s_waitcnt lgkmcnt(0)")
m = mfmas(FB)
I(m[0])
I(f"s_add_u32 s{s_ring}, s{s_ring}, 1")
I(f"s_cmp_eq_u32 s{s_ring}, 3")
I(f"s_cselect_b32 s{s_t0}, {-32768 & 0xffffffff}, s{s_sx}")
I(f"s_cselect_b32 s{s_t1}, {-49152 & 0xffffffff}, s{s_sw}")
I(f"s_cselect_b32 s{s_ring}, 0, s{s_ring}")
I(m[1])
for ks in range(4): I(f"v_add_u32 v{vAX[ks]}, s{s_t0}, v{vAX[ks]}")
I(m[2])
for t in range(3): I(f"v_add_u32 v{vAW[t]}, s{s_t1}, v{vAW[t]}")
I("s_barrier")
r = reads(0, FA)
I(r[0]); I(r[1]); I(r[2])
I(m[3])
I(r[3]); I(r[4]); I(r[5])
I(m[4])
I(r[6]); I(r[7])
I(m[5])
I(f"s_add_u32 s{s_cnt}, s{s_cnt}, 1")
I(f"s_cmp_lt_u32 s{s_cnt}, 8")
I(f"s_cbranch_scc1 {P}_c_loop")
stamp(2)
I("s_nop 7")
T = 200
for t in range(3):
    I(f"s_cmp_le_u32 s{s_valid}, {t}")
    I(f"s_cbranch_scc1 {P}_c_epidone")
    for mb in range(2):
        a = ACC + (t * 2 + mb) * 16
        tm = T + mb * 12
        o = tm + 8
        for p in range(4):
            I(f"v_pk_mul_f32 v[{tm+2*p}:{tm+2*p+1}], v[{a+2*p}:{a+2*p+1}], s[{s_k}:{s_k+1}]")
        for q in range(8):
            I(f"v_exp_f32 v{tm+q}, v{tm+q}")
        for p in range(4):
            I(f"v_pk_add_f32 v[{tm+2*p}:{tm+2*p+1}], v[{tm+2*p}:{tm+2*p+1}], s[{s_one}:{s_one+1}]")
        for q in range(8):
            I(f"v_rcp_f32 v{tm+q}, v{tm+q}")
        for p in range(4):
            I(f"v_pk_mul_f32 v[{tm+2*p}:{tm+2*p+1}], v[{tm+2*p}:{tm+2*p+1}], v[{a+2*p}:{a+2*p+1}]")
        for p in range(4):
            I(f"v_pk_mul_f32 v[{tm+2*p}:{tm+2*p+1}], v[{tm+2*p}:{tm+2*p+1}], v[{a+8+2*p}:{a+9+2*p}]")
        for p in range(4):
            I(f"v_cvt_pk_bf16_f32 v{o+p}, v{tm+2*p}, v{tm+2*p+1}")
        I(f"buffer_store_dwordx4 v[{o}:{o+3}], v9, {srd(sH)}, s{s_hoff+2*t+mb} offen {HST}")
L(f"{P}_c_epidone")
stamp(3)
I("s_waitcnt lgkmcnt(0)")
I("s_barrier")
I("v_mov_b32 v23, 1")
I("s_waitcnt vmcnt(0)")
I("s_mov_b64 exec, 1")
I("ds_add_rtn_u32 v24, v22, v23")
I(f"v_add_u32 v{vOLD}, 1, v{vOLD}")
I("s_waitcnt lgkmcnt(0)")
I(f"v_readfirstlane_b32 s{s_t0}, v24")
I("s_nop 0")
I(f"s_cmp_lg_u32 s{s_t0}, 3")
I(f"s_cbranch_scc1 {P}_c_nosig")
I(f"buffer_store_dword v{vOLD}, v21, {srd(sH)}, s{s_fl} offen sc1")
L(f"{P}_c_nosig")
I("s_mov_b64 exec, -1")
I(f"s_branch {P}_c_p2")
L(f"{P}_c_idle")
I("s_barrier")
L(f"{P}_c_p2")
stamp(4)
for r in range(32):
    I(f"v_mov_b32 v{ACC+r}, 0")
I("s_barrier")
stamp(5)
def wreads(u, dst):
    a = unit_addr(u); sg = a >> 16; off = a & 0xffff
    r = []
    for nb in range(2):
        for h in range(2):
            r.append(f"ds_read_b64_tr_b16 v[{dst+4*nb+2*h}:{dst+4*nb+2*h+1}], v{vB[sg][nb]} offset:{off+h*512}")
    return r
def hload(s):
    b = HR + 4 * (s % R)
    I(f"buffer_load_dwordx4 v[{b}:{b+3}], v9, {srd(sH)}, s{s_p} offen {HLD}")
    I(f"s_add_u32 s{s_p}, s{s_p}, 1024")
    if args.rot2:
        I(f"s_cmp_eq_u32 s{s_p}, s{s_pend}")
        I(f"s_cselect_b32 s{s_p}, s{s_pbeg}, s{s_p}")
for s in range(R): hload(s)
NW = 3
wdst = lambda u: WF + 8 * (u % NW)
for u in range(2):
    for r in wreads(u, wdst(u)): I(r)
for s in range(43):
    u = s + 2
    if u == 39: I("s_barrier")
    if u < 43:
        for r in wreads(u, wdst(u)): I(r)
    young = sum(1 for x in (s + 1, s + 2) if x < 43)
    vm = min(R - 1, 42 - s)
    I(f"s_waitcnt vmcnt({vm}) lgkmcnt({4*young})")
    if s == 3: I("s_barrier")
    hb = HR + 4 * (s % R); wd = wdst(s)
    for nb in range(2):
        a = ACC + 16 * nb
        I(f"v_mfma_f32_32x32x16_bf16 v[{a}:{a+15}], v[{wd+4*nb}:{wd+4*nb+3}], v[{hb}:{hb+3}], v[{a}:{a+15}]")
    if s + R < 43: hload(s + R)
stamp(6)
I("s_nop 7")
I("s_nop 3")
for q in range(4):
    I(f"ds_write_b128 v17, v[{ACC+16+4*q}:{ACC+19+4*q}] offset:{q*1024}")
I("s_waitcnt lgkmcnt(0)")
I("s_barrier")
for q in range(4):
    I(f"ds_read_b128 v[{128+4*q}:{131+4*q}], v18 offset:{q*1024}")
for q in range(4):
    I(f"s_waitcnt lgkmcnt({3-q})")
    for p in range(2):
        I(f"v_pk_add_f32 v[{ACC+4*q+2*p}:{ACC+4*q+2*p+1}], v[{ACC+4*q+2*p}:{ACC+4*q+2*p+1}], v[{128+4*q+2*p}:{129+4*q+2*p}]")
    for p in range(2):
        I(f"v_cvt_pk_bf16_f32 v{144+2*q+p}, v{ACC+4*q+2*p}, v{ACC+4*q+2*p+1}")
    if q == 1: I(f"buffer_store_dwordx4 v[144:147], v16, {srd(sO)}, 0 offen {OST}")
I(f"buffer_store_dwordx4 v[148:151], v16, {srd(sO)}, 0 offen offset:16 {OST}")
if STAMPS:
    I("s_waitcnt vmcnt(0)")
stamp(7)
if args.amp and args.amp != "none":
    ai, aj = [int(t) for t in args.amp.split(",")]
    I("s_waitcnt lgkmcnt(0)")
    I(f"s_sub_u32 s{s_t0}, s{s_prof+2*aj}, s{s_prof+2*ai}")
    I(f"s_cmp_eq_u32 s{s_prof+2*ai}, 0")
    I(f"s_cselect_b32 s{s_t0}, 0, s{s_t0}")
    I(f"s_cmp_eq_u32 s{s_prof+2*aj}, 0")
    I(f"s_cselect_b32 s{s_t0}, 0, s{s_t0}")
    I(f"s_min_u32 s{s_t0}, s{s_t0}, 20000")
    I(f"s_mul_i32 s{s_t0}, s{s_t0}, 10")
    I("s_memrealtime s[82:83]")
    I("s_waitcnt lgkmcnt(0)")
    I(f"s_mov_b32 s{s_t1}, s82")
    L(f"{P}_amp")
    I("s_memrealtime s[82:83]")
    I("s_waitcnt lgkmcnt(0)")
    I(f"s_sub_u32 s{s_t2}, s82, s{s_t1}")
    I(f"s_cmp_lt_u32 s{s_t2}, s{s_t0}")
    I(f"s_cbranch_scc1 {P}_amp")
prof_store()
I("s_endpgm")
L(f"{P}_codeend")
for i in range(128): I("s_nop 0")

e('.section .rodata,"a"')
e(".p2align 6")
e(f".amdhsa_kernel {label}")
e("  .amdhsa_next_free_vgpr 256")
e("  .amdhsa_next_free_sgpr 102")
e("  .amdhsa_accum_offset 256")
e("  .amdhsa_group_segment_fixed_size 0")
e("  .amdhsa_kernarg_size 56")
e("  .amdhsa_user_sgpr_count 2")
e("  .amdhsa_user_sgpr_kernarg_segment_ptr 1")
e("  .amdhsa_system_sgpr_workgroup_id_x 1")
e("  .amdhsa_float_denorm_mode_32 3")
e(".end_amdhsa_kernel")

text = "\n".join(out) + "\n"
if args.codepf:
    import subprocess, tempfile, re, os
    def build(t):
        with tempfile.TemporaryDirectory() as d:
            open(d + "/k.s", "w").write(t)
            subprocess.run(["clang", "-x", "assembler", "-target", "amdgcn-amd-amdhsa", "-mcpu=gfx950", "-c", d + "/k.s", "-o", d + "/k.o"], check=True)
            sym = subprocess.run(["llvm-objdump", "-t", d + "/k.o"], capture_output=True, text=True).stdout
        a = {m.group(2): int(m.group(1), 16) for m in re.finditer(r"^([0-9a-f]{16}) .*\s(\S+)$", sym, re.M)}
        return a
    a = build(text.replace("@CODEPF@\n", ""))
    size = a[f"{P}_codeend"] - a[f"{P}_pc"]
    n = size // 512
    pf = "".join(f"    s_load_dword s3, s[18:19], {512*i}\n" for i in range(1, n + 1))
    text = text.replace("@CODEPF@\n", pf)
    sys.stderr.write(f"compute code {size} B, {n} touches/wave; loader code {a[f'{P}_compute']} B\n")
open(args.o, "w").write(text)
```

```python
import sys, argparse

ap = argparse.ArgumentParser()
ap.add_argument("-o", default="standalone__glu_gated_swiglu__prompt.s")
ap.add_argument("--prof", action="store_true")
ap.add_argument("--rot1", type=int, default=1)
ap.add_argument("--rot2", type=int, default=2)
ap.add_argument("--hring", type=int, default=12)
ap.add_argument("--hpro", type=int, default=10)
ap.add_argument("--jobX", type=int, default=1)
ap.add_argument("--cbswap", type=int, default=1)
ap.add_argument("--flagsep", type=int, default=1)
ap.add_argument("--firstpoll", type=int, default=0)
ap.add_argument("--hst", default="sc1")
ap.add_argument("--hld", default="sc1")
ap.add_argument("--ost", default="none")
ap.add_argument("--sleep", type=int, default=1)
ap.add_argument("--cyc", action="store_true")
ap.add_argument("--amp", default="")
ap.add_argument("--codepf", type=int, default=0)
ap.add_argument("--tlb", type=int, default=0)
ap.add_argument("--jobA", type=int, default=0)
ap.add_argument("--jobB", type=int, default=0)
ap.add_argument("--prio", type=int, default=1)
ap.add_argument("--late", type=int, default=0)
ap.add_argument("--nopk", type=int, default=6)
ap.add_argument("--per", type=int, default=6)
ap.add_argument("--trickle", default="0,0,0,0,0,0,0,0")
ap.add_argument("--atb6", type=int, default=8)
ap.add_argument("--jobM", type=int, default=1)
ap.add_argument("--atb7", type=int, default=14)
ap.add_argument("--stouch", type=int, default=0)
ap.add_argument("--bmax", type=int, default=43)
ap.add_argument("--xrot", type=int, default=4)
ap.add_argument("--early", type=int, default=11)
ap.add_argument("--diag", default="")
args = ap.parse_args()

NAME = "standalone__glu_gated_swiglu__prompt"
out = []
def e(s=""): out.append(s)
def I(s): out.append("    " + s)
def L(s): out.append(s + ":")

S, D, F = 2048, 512, 1376
XB, WB, W2B, OB = S * D * 2, D * F * 2, F * D * 2, S * D * 2
HSTR = 87
WS_REC = 8 << 20
PROF_OFF = 7 << 20
LDS_X = 0
LDS_W = 49152
LDS_E = 122880
LDS_SCR = 159744
LDS_TOTAL = 163840
RANGES = [(0, 9, LDS_E), (9, 4, LDS_X + 32768), (13, 6, LDS_W + 49152), (19, 4, LDS_X), (23, 6, LDS_W),
          (29, 4, LDS_X + 16384), (33, 6, LDS_W + 24576), (39, 4, LDS_E)]
def unit_addr(u):
    for u0, n, a in RANGES:
        if u0 <= u < u0 + n: return a + (u - u0) * 4096
    raise ValueError
XCH = LDS_E + 4 * 4096

sX, sW1, sW3, sW2, sH, sO, sD = 20, 24, 28, 32, 36, 40, 44
s_wave, s_xcd, s_slot, s_mt, s_sl, s_rb, s_cb = 48, 49, 50, 51, 52, 53, 54
s_t0, s_t1, s_t2, s_t3 = 55, 56, 57, 58
s_cnt, s_kst, s_sx, s_sw, s_ring = 59, 60, 61, 62, 63
s_lx, s_lw, s_rot2, s_fl = 64, 65, 66, 67
s_k = 68
s_one = 70
s_hoff = 72
s_p, s_pend, s_pbeg = 78, 79, 80
s_valid = 81
s_prof = 84
def srd(r): return f"s[{r}:{r+3}]"
STAMPS = args.prof or args.amp
LOADER_STAGES = [False]
def stamp(i, force=False):
    if LOADER_STAGES[0] and not force: return
    if STAMPS:
        I(f"{'s_memtime' if args.cyc else 's_memrealtime'} s[{s_prof+2*i}:{s_prof+2*i+1}]")

def prof_store():
    if not args.prof: return
    I("s_waitcnt lgkmcnt(0)")
    I(f"s_lshl_b32 s{s_t0}, s2, 3")
    I(f"s_add_u32 s{s_t0}, s{s_t0}, s{s_wave}")
    I(f"s_lshl_b32 s{s_t0}, s{s_t0}, 5")
    I(f"s_add_u32 s{s_t0}, s{s_t0}, {PROF_OFF}")
    for i in range(8):
        I(f"v_mov_b32 v{240+i}, s{s_prof+2*i}")
    I("v_mov_b32 v248, 0")
    I("s_mov_b64 exec, 1")
    I(f"buffer_store_dwordx4 v[240:243], v248, {srd(sH)}, s{s_t0} offen")
    I(f"buffer_store_dwordx4 v[244:247], v248, {srd(sH)}, s{s_t0} offen offset:16")
    I("s_mov_b64 exec, -1")

def make_srd(r, p, nbytes):
    I(f"s_mov_b32 s{r}, s{p}")
    I(f"s_and_b32 s{r+1}, s{p+1}, 0xffff")
    I(f"s_mov_b32 s{r+2}, {nbytes}")
    I(f"s_mov_b32 s{r+3}, 0x20000")
pol = lambda s: s.replace("_", " ").replace("none", "")
HST, HLD, OST = pol(args.hst), pol(args.hld), pol(args.ost)

label = NAME + "_kernel"
P = "K"
e(f"; @launch grid=(256,1,1) block=(512,1,1) lds={LDS_TOTAL}")
e('.amdgcn_target "amdgcn-amd-amdhsa--gfx950"')
e(".text")
e(f".globl {label}")
e(".p2align 8")
e(f".type {label},@function")
L(label)
I("s_cmp_ge_u32 s2, 256")
I(f"s_cbranch_scc1 {P}_end")
I("s_load_dwordx8 s[4:11], s[0:1], 0")
I("s_load_dwordx4 s[12:15], s[0:1], 32")
I("s_load_dwordx2 s[16:17], s[0:1], 48")
if STAMPS:
    for i in range(8): I(f"s_mov_b32 s{s_prof+2*i}, 0")
stamp(0)
I("v_lshrrev_b32 v2, 6, v0")
I("v_and_b32 v1, 63, v0")
I(f"v_readfirstlane_b32 s{s_wave}, v2")
I(f"s_and_b32 s{s_xcd}, s2, 7")
I(f"s_lshr_b32 s{s_slot}, s2, 3")
I(f"s_and_b32 s{s_t0}, s{s_xcd}, 3")
I(f"s_lshl_b32 s{s_t0}, s{s_t0}, 2")
I(f"s_lshr_b32 s{s_t1}, s{s_xcd}, 2")
I(f"s_and_b32 s{s_t2}, s{s_slot}, 3")
I(f"s_lshr_b32 s{s_t3}, s{s_slot}, 2")
I(f"s_add_u32 s{s_mt}, s{s_t0}, s{s_t2}")
I(f"s_mul_i32 s{s_sl}, s{s_t1}, 7")
I(f"s_add_u32 s{s_sl}, s{s_sl}, s{s_t3}")
I(f"s_add_u32 s{s_kst}, s{s_t2}, s{s_t3}")
I(f"s_and_b32 s{s_kst}, s{s_kst}, {args.rot1-1}")
I(f"s_mul_i32 s{s_kst}, s{s_kst}, {8//args.rot1}")
if args.xrot == 2:
    I(f"s_add_u32 s{s_cnt}, s{s_xcd}, s{s_t1}")
    I(f"s_and_b32 s{s_cnt}, s{s_cnt}, 1")
    I(f"s_mul_i32 s{s_cnt}, s{s_cnt}, {max(1, 4//args.rot1)}")
    I(f"s_add_u32 s{s_kst}, s{s_kst}, s{s_cnt}")
elif args.xrot == 4:
    I(f"s_lshl_b32 s{s_cnt}, s{s_t1}, 1")
    I(f"s_add_u32 s{s_cnt}, s{s_cnt}, s{s_xcd}")
    I(f"s_and_b32 s{s_cnt}, s{s_cnt}, 3")
    I(f"s_mul_i32 s{s_cnt}, s{s_cnt}, {max(1, 2//args.rot1)}")
    I(f"s_add_u32 s{s_kst}, s{s_kst}, s{s_cnt}")
I(f"s_lshl_b32 s{s_t1}, s{s_t1}, 1")
I(f"s_add_u32 s{s_t0}, s{s_t0}, s{s_t1}")
I(f"s_add_u32 s{s_t1}, s{s_t0}, s{s_t2}")
I(f"s_cmp_ge_u32 s{s_slot}, 28")
I(f"s_cselect_b32 s{s_mt}, s{s_t1}, s{s_mt}")
I(f"s_cselect_b32 s{s_sl}, 14, s{s_sl}")
I(f"s_cmp_ge_u32 s{s_slot}, 30")
I(f"s_cselect_b32 s{s_sl}, 15, s{s_sl}")
I(f"s_cselect_b32 s{s_mt}, s{s_t0}, s{s_mt}")
I(f"s_lshl_b32 s{s_t0}, s{s_t0}, 1")
I(f"s_lshr_b32 s{s_t1}, s{s_slot}, 3")
I(f"s_add_u32 s{s_rb}, s{s_t0}, s{s_t1}")
I(f"s_and_b32 s{s_cb}, s{s_slot}, 7")
if args.cbswap:
    I(f"s_cmp_eq_u32 s{s_cb}, 3")
    I(f"s_cselect_b32 s{s_t2}, 6, s{s_cb}")
    I(f"s_cmp_eq_u32 s{s_cb}, 6")
    I(f"s_cselect_b32 s{s_cb}, 3, s{s_t2}")
if args.rot2 == 8:
    I(f"s_lshl_b32 s{s_rot2}, s{s_t1}, 1")
    I(f"s_add_u32 s{s_rot2}, s{s_rot2}, s{s_cb}")
    I(f"s_and_b32 s{s_rot2}, s{s_rot2}, 7")
    I(f"s_mul_i32 s{s_rot2}, s{s_rot2}, 43")
    I(f"s_lshr_b32 s{s_rot2}, s{s_rot2}, 3")
elif args.rot2 == 2:
    I(f"s_mul_i32 s{s_rot2}, s{s_t1}, 11")
elif args.rot2:
    I(f"s_add_u32 s{s_rot2}, s{s_t1}, s{s_cb}")
    I(f"s_and_b32 s{s_rot2}, s{s_rot2}, 3")
    I(f"s_mul_i32 s{s_rot2}, s{s_rot2}, 11")
else:
    I(f"s_mov_b32 s{s_rot2}, 0")
I(f"s_cmp_lt_u32 s{s_wave}, 4")
I(f"s_cbranch_scc1 {P}_compute")

LOADER_STAGES[0] = "stages" in args.diag
I(f"s_sub_u32 s{s_t3}, s{s_wave}, 4")
vX = [2, 3, 4, 5]; vW = [6, 7, 8]; vU = [10, 11, 12]; vW2 = 13
vFA, vFS, vFN = 20, 21, 22
I("v_lshrrev_b32 v14, 3, v1")
I(f"s_lshl_b32 s{s_t0}, s{s_t3}, 5")
I(f"v_add_u32 v14, s{s_t0}, v14")
I("v_and_b32 v15, 7, v1")
for j in range(4):
    I(f"v_add_u32 v16, {8*j}, v14")
    I("v_lshrrev_b32 v17, 1, v16")
    I("v_and_b32 v17, 7, v17")
    I("v_xor_b32 v17, v17, v15")
    I(f"v_subrev_u32 v16, {j}, v16")
    I("v_lshlrev_b32 v16, 10, v16")
    I(f"v_lshl_add_u32 v{vX[j]}, v17, 4, v16")
I(f"s_and_b32 s{s_t0}, s{s_sl}, 1")
I(f"s_lshl_b32 s{s_t1}, s{s_t3}, 4")
I("v_lshrrev_b32 v14, 2, v1")
I("v_and_b32 v15, 3, v1")
I(f"s_cmp_eq_u32 s{s_t0}, 1")
I("s_cselect_b64 vcc, -1, 0")
I(f"s_cmp_eq_u32 s{s_sl}, 14")
I(f"s_cselect_b32 s{s_t2}, 0, 64")
for j in range(3):
    I(f"v_add_u32 v16, {16*j}, v14")
    I("v_mul_u32_u24 v17, 43, v16")
    I("v_lshrrev_b32 v17, 7, v17")
    I("v_mul_u32_u24 v18, 3, v17")
    I("v_sub_u32 v18, v16, v18")
    I("v_sub_u32 v19, 2, v18")
    I("v_cndmask_b32 v18, v18, v19, vcc")
    I(f"v_mul_u32_u24 v18, s{s_t2}, v18")
    I(f"v_add_u32 v17, s{s_t1}, v17")
    I("v_mul_u32_u24 v17, 2752, v17")
    I("v_add_u32 v17, v17, v18")
    I("v_lshl_add_u32 v17, v15, 4, v17")
    I(f"v_subrev_u32 v{vW[j]}, {1024*j}, v17")
    I(f"v_xor_b32 v{vU[j]}, 32, v{vW[j]}")
I(f"s_lshl_b32 s{s_lx}, s{s_t3}, 12")
I(f"s_mul_i32 s{s_lw}, s{s_t3}, 6144")
I(f"s_add_u32 s{s_lw}, s{s_lw}, {LDS_W}")
I("v_lshrrev_b32 v14, 3, v1")
I(f"s_and_b32 s{s_t0}, s{s_t3}, 1")
I(f"s_lshl_b32 s{s_t0}, s{s_t0}, 3")
I(f"s_lshr_b32 s{s_t1}, s{s_t3}, 1")
I(f"s_mul_i32 s{s_t1}, s{s_t1}, 688")
I(f"s_add_u32 s{s_t0}, s{s_t0}, s{s_t1}")
I(f"v_add_u32 v14, s{s_t0}, v14")
I("v_lshlrev_b32 v14, 10, v14")
I("v_lshrrev_b32 v15, 4, v1")
I("v_and_b32 v15, 1, v15")
I("v_lshlrev_b32 v15, 2, v15")
I("v_and_b32 v16, 7, v1")
I("v_xor_b32 v15, v15, v16")
I(f"v_lshl_add_u32 v{vW2}, v15, 4, v14")
I(f"s_lshl_b32 s{s_pbeg}, s{s_cb}, 7")
I(f"s_add_u32 s{s_pend}, s{s_pbeg}, {43*16384}")
I(f"s_lshl_b32 s{s_t0}, s{s_rot2}, 14")
I(f"s_add_u32 s{s_p}, s{s_pbeg}, s{s_t0}")
I(f"s_lshl_b32 s{s_hoff}, s{s_t3}, 10")
I(f"s_lshr_b32 s{s_t0}, s{s_rb}, 1")
I(f"s_mul_i32 s{s_fl}, s{s_t0}, {4*HSTR*1024}")
I(f"s_add_u32 s{s_fl}, s{s_fl}, {86*1024}")
if args.flagsep:
    I(f"v_min_u32 v14, 15, v1")
    I(f"s_cmp_eq_u32 s{s_t0}, s{s_mt}")
    I(f"s_cselect_b32 s{s_t1}, s{s_sl}, 15")
    I(f"v_cmp_eq_u32 vcc, s{s_t1}, v14")
    I("v_mov_b32 v15, 15")
    I("s_nop 0")
    I("v_cndmask_b32 v14, v14, v15, vcc")
    I("v_lshrrev_b32 v15, 3, v14")
    I(f"v_mul_u32_u24 v15, {HSTR*1024}, v15")
    I("v_and_b32 v14, 7, v14")
    I(f"v_lshl_add_u32 v{vFA}, v14, 7, v15")
else:
    I(f"v_and_b32 v{vFA}, 15, v1")
    I(f"v_lshlrev_b32 v{vFA}, 2, v{vFA}")
I(f"s_lshl_b32 s{s_valid}, 1, s{s_sl}")
I(f"s_cmp_eq_u32 s{s_t0}, s{s_mt}")
I(f"s_cselect_b32 s{s_valid}, s{s_valid}, 0")
I(f"s_lshl_b32 s{s_hoff+1}, s{s_mt}, 17")
I(f"s_mul_i32 s{s_hoff+2}, s{s_sl}, 192")
I(f"s_mov_b32 s{s_ring}, 0")
I(f"s_mov_b32 s{s_cnt}, 0")
I(f"s_mov_b32 s{sX+2}, {XB}"); I(f"s_mov_b32 s{sX+3}, 0x20000")
I(f"s_mov_b32 s{sW1+2}, {WB}"); I(f"s_mov_b32 s{sW1+3}, 0x20000")
I(f"s_mov_b32 s{sW3+2}, {WB}"); I(f"s_mov_b32 s{sW3+3}, 0x20000")
I(f"s_mov_b32 s{sW2+2}, {W2B}"); I(f"s_mov_b32 s{sW2+3}, 0x20000")
I(f"s_mov_b32 s{sH+2}, {WS_REC}"); I(f"s_mov_b32 s{sH+3}, 0x20000")
I(f"s_mov_b32 s{sD+2}, 256"); I(f"s_mov_b32 s{sD+3}, 0x20000")
I("s_waitcnt lgkmcnt(0)")
for r, p in ((sX, 4), (sW1, 6), (sW3, 8), (sW2, 10), (sH, 16), (sD, 14)):
    I(f"s_mov_b32 s{r}, s{p}")
    I(f"s_and_b32 s{r+1}, s{p+1}, 0xffff")
stamp(1)

wcount = [0]
def issueW(ua, ub):
    for u0, n, a in RANGES:
        lo, hi = max(ua, u0), min(ub, u0 + n)
        if lo >= hi: continue
        lab = f"{P}_l_w{wcount[0]}"; wcount[0] += 1
        I(f"s_add_u32 m0, s{s_hoff}, {unit_addr(lo)}")
        I(f"s_mov_b32 s{s_t0}, {hi-lo}")
        L(lab)
        I(f"buffer_load_dwordx4 v{vW2}, {srd(sW2)}, s{s_p} offen lds")
        I(f"s_add_u32 s{s_p}, s{s_p}, 16384")
        I(f"s_cmp_eq_u32 s{s_p}, s{s_pend}")
        I(f"s_cselect_b32 s{s_p}, s{s_pbeg}, s{s_p}")
        I("s_add_u32 m0, m0, 4096")
        I(f"s_sub_u32 s{s_t0}, s{s_t0}, 1")
        I(f"s_cmp_lg_u32 s{s_t0}, 0")
        I(f"s_cbranch_scc1 {lab}")

pfc = [0]
def prefetch_jobs(is_loader):
    tag = pfc[0]; pfc[0] += 1
    I(f"s_and_b32 s{s_t2}, s{s_slot}, 1")
    if args.jobA:
        I(f"s_lshl_b32 s{s_t0}, s{s_xcd}, 1")
        I(f"s_add_u32 s{s_t0}, s{s_t0}, s{s_t2}")
        I("v_lshlrev_b32 v40, 10, v1")
        I("v_lshlrev_b32 v41, 7, v1")
        I(f"s_lshl_b32 s{s_t1}, s{s_t0}, 17")
        I(f"s_and_b32 s{s_t3}, s{s_wave}, 1")
        I(f"s_lshl_b32 s{s_cnt}, s{s_t3}, 16")
        I(f"s_add_u32 s{s_t1}, s{s_t1}, s{s_cnt}")
        I(f"s_lshr_b32 s{s_cnt}, s{s_wave}, 1")
        I(f"s_add_u32 s{s_kst}, s{s_cnt}, {args.jobA}")
        I(f"s_lshl_b32 s{s_kst}, s{s_kst}, 7")
        I(f"s_add_u32 s{s_sx}, s{s_t1}, s{s_kst}")
        i0 = (args.jobA * 43) // 2
        I(f"s_lshl_b32 s{s_cnt}, s{s_cnt}, 4")
        I(f"s_add_u32 s{s_cnt}, s{s_cnt}, s{s_t0}")
        I(f"s_add_u32 s{s_cnt}, s{s_cnt}, {i0}")
        I(f"s_lshl_b32 s{s_sw}, s{s_cnt}, 13")
        I(f"s_cmp_eq_u32 s{s_t3}, 0")
        I(f"s_cselect_b32 s{sW1}, s{sW1}, s{sW3}")
        I(f"s_cselect_b32 s{sW1+1}, s{sW1+1}, s{sW3+1}")
        nx = (8 - args.jobA + 3) // 4
        nw = (172 - i0 + 63) // 64
        for n in range(max(nx, nw)):
            if n < nx:
                if args.jobA + 4 * n + 3 >= 8:
                    I(f"s_cmp_ge_u32 s{s_kst}, {(8 - 4*n)*128}")
                    I(f"s_cbranch_scc1 {P}_pf{tag}_x{n}")
                I(f"buffer_load_dword v42, v40, {srd(sX)}, s{s_sx} offen offset:{512*n}")
                L(f"{P}_pf{tag}_x{n}")
            if n < nw:
                I(f"s_cmp_ge_u32 s{s_sw}, {WB}")
                I(f"s_cbranch_scc1 {P}_pf{tag}_w{n}")
                I(f"buffer_load_dword v43, v41, {srd(sW1)}, s{s_sw} offen")
                L(f"{P}_pf{tag}_w{n}")
                I(f"s_add_u32 s{s_sw}, s{s_sw}, {64*8192}")
    if args.jobX:
        I("v_lshlrev_b32 v40, 10, v1")
        I(f"s_and_b32 s{s_t0}, s{s_xcd}, 3")
        I(f"s_lshl_b32 s{s_t0}, s{s_t0}, 19")
        I(f"s_lshl_b32 s{s_t1}, s{s_wave}, 16")
        I(f"s_add_u32 s{s_t0}, s{s_t0}, s{s_t1}")
        I(f"s_add_u32 s{s_t1}, s{s_kst}, s{s_t2}")
        I(f"s_add_u32 s{s_t1}, s{s_t1}, 2")
        I(f"s_and_b32 s{s_t1}, s{s_t1}, 7")
        I(f"s_lshl_b32 s{s_t1}, s{s_t1}, 7")
        I(f"s_add_u32 s{s_t0}, s{s_t0}, s{s_t1}")
        I(f"buffer_load_dword v42, v40, {srd(sX)}, s{s_t0} offen")
    if args.jobM:
        I("v_lshlrev_b32 v41, 7, v1")
        I(f"s_lshl_b32 s{s_t0}, s{s_xcd}, 1")
        I(f"s_add_u32 s{s_t0}, s{s_t0}, s{s_t2}")
        I(f"s_lshl_b32 s{s_t1}, s{s_wave}, 4")
        I(f"s_add_u32 s{s_t0}, s{s_t0}, s{s_t1}")
        I(f"s_lshl_b32 s{s_t0}, s{s_t0}, 13")
        I(f"buffer_load_dword v43, v41, {srd(sW2)}, s{s_t0} offen")
        I(f"s_add_u32 s{s_t0}, s{s_t0}, {128*8192}")
        I(f"s_cmp_ge_u32 s{s_t0}, {W2B}")
        I(f"s_cbranch_scc1 {P}_pf{tag}_m")
        I(f"buffer_load_dword v43, v41, {srd(sW2)}, s{s_t0} offen")
        L(f"{P}_pf{tag}_m")
        I(f"s_cmp_ge_u32 s{s_wave}, 0")
        I(f"s_cbranch_scc1 {P}_pf{tag}_u")
        I(f"s_lshr_b32 s{s_t0}, s{s_wave}, 1")
        I(f"s_mul_i32 s{s_t0}, s{s_t0}, 11")
        I(f"s_and_b32 s{s_t1}, s{s_wave}, 1")
        I(f"s_add_u32 s{s_t0}, s{s_t0}, s{s_t1}")
        I(f"s_add_u32 s{s_t0}, s{s_t0}, 9")
        I(f"s_mul_i32 s{s_t1}, s{s_t2}, 43")
        I(f"s_add_u32 s{s_t0}, s{s_t0}, s{s_t1}")
        I(f"s_lshl_b32 s{s_t0}, s{s_t0}, 14")
        I(f"buffer_load_dword v43, v41, {srd(sW2)}, s{s_t0} offen")
        I(f"s_add_u32 s{s_t0}, s{s_t0}, 8192")
        I(f"buffer_load_dword v43, v41, {srd(sW2)}, s{s_t0} offen")
        L(f"{P}_pf{tag}_u")
    if is_loader:
        issueW(0, 39)
    if args.jobB:
        for j in range(3):
            I(f"v_add_u32 v44, {64*j}, v1")
            I("v_mul_u32_u24 v45, 171, v44")
            I("v_lshrrev_b32 v45, 10, v45")
            I("v_mul_u32_u24 v46, 6, v45")
            I("v_sub_u32 v46, v44, v46")
            I("v_lshlrev_b32 v45, 10, v45")
            I(f"v_lshl_add_u32 v{48+j}, v46, 7, v45")
        I(f"s_lshl_b32 s{s_t0}, s{s_wave}, 1")
        I(f"s_add_u32 s{s_t0}, s{s_t0}, s{s_t2}")
        I(f"s_lshl_b32 s{s_t0}, s{s_t0}, 15")
        for n in range(args.jobB):
            I(f"s_cmp_ge_u32 s{s_t0}, {args.bmax*32768}")
            I(f"s_cbranch_scc1 {P}_pf{tag}_b{n}")
            for j in range(3):
                I(f"buffer_load_dword v47, v{48+j}, {srd(sW2)}, s{s_t0} offen")
            L(f"{P}_pf{tag}_b{n}")
            I(f"s_add_u32 s{s_t0}, s{s_t0}, {16*32768}")

I(f"s_cmp_ge_u32 s{s_sl}, 15")
I(f"s_cbranch_scc1 {P}_l_idle")
if args.stouch:
    nst = 8 - args.stouch
    I(f"s_lshl_b32 s{s_t0}, s{s_slot}, 2")
    I(f"s_add_u32 s{s_t0}, s{s_t0}, s{s_wave}")
    I(f"s_add_u32 s{s_t0}, s{s_t0}, {1376 - nst*120 - 4}")
    I(f"s_lshl_b32 s{s_t0}, s{s_t0}, 10")
    I(f"s_add_u32 s18, s10, s{s_t0}")
    I("s_addc_u32 s19, s11, 0")
TR = [int(t) for t in args.trickle.split(",")]
assert sum(TR) <= 9
wdone = 0
for c in range(8):
    ring = c % 3
    if "nodma" in args.diag and c >= 3:
        I("s_barrier"); stamp(c - 1, True); continue
    I(f"s_lshl_b32 s{s_t0}, s{s_kst}, 7")
    I(f"s_add_u32 s{s_sx}, s{s_hoff+1}, s{s_t0}")
    I(f"s_add_u32 m0, s{s_lx}, {ring*16384}")
    I(f"s_mul_i32 s{s_sw}, s{s_kst}, {64*2752}")
    for j in range(4):
        I(f"buffer_load_dwordx4 v{vX[j]}, {srd(sX)}, s{s_sx} offen offset:{1024*j} lds")
    I(f"s_add_u32 m0, s{s_lw}, {ring*24576}")
    I(f"s_add_u32 s{s_sw}, s{s_sw}, s{s_hoff+2}")
    for j in range(3):
        I(f"buffer_load_dwordx4 v{vW[j]}, {srd(sW1)}, s{s_sw} offen offset:{1024*j} lds")
    I("s_add_u32 m0, m0, 3072")
    I(f"s_add_u32 s{s_kst}, s{s_kst}, 1")
    for j in range(3):
        I(f"buffer_load_dwordx4 v{vU[j]}, {srd(sW3)}, s{s_sw} offen offset:{1024*j} lds")
    I(f"s_and_b32 s{s_kst}, s{s_kst}, 7")
    if c == 0:
        I(f"buffer_load_dword v{vFS}, v{vFA}, {srd(sH)}, s{s_fl} offen sc1")
    if TR[c]:
        issueW(wdone, wdone + TR[c]); wdone += TR[c]
    if args.stouch and c >= args.stouch:
        for j in range(12):
            I(f"s_load_dword s3, s[18:19], {(c - args.stouch)*120*1024 + 64*j}")
    if c >= 1:
        I(f"s_waitcnt vmcnt({TR[c-1] + 10 + TR[c]})")
        if "pre" in args.diag and c >= 2: stamp(c - 1, True)
        I("s_barrier")
        if LOADER_STAGES[0] and "pre" not in args.diag and c >= 2: stamp(c - 1, True)
stamp(2)
issueW(wdone, wdone + args.atb6)
I(f"s_waitcnt vmcnt({TR[7] + args.atb6})")
wdone += args.atb6
assert wdone <= 19
if "pre" in args.diag: stamp(7, True)
I("s_barrier")
if LOADER_STAGES[0] and "pre" not in args.diag: stamp(7, True)
stamp(3)
issueW(wdone, wdone + args.atb7); wdone += args.atb7
assert wdone <= 29
I("s_waitcnt vmcnt(0)")
stamp(4)
I("s_barrier")
I(f"s_cmp_eq_u32 s{s_wave}, 4")
I(f"s_cbranch_scc1 {P}_l_first")
I("s_sleep 1")
issueW(wdone, 39)
stamp(5)
I(f"s_branch {P}_l_go")
L(f"{P}_l_idle")
I(f"buffer_load_dword v{vFS}, v{vFA}, {srd(sH)}, s{s_fl} offen sc1")
prefetch_jobs(True)
I("s_waitcnt vmcnt(0)")
I("s_barrier")
I(f"s_cmp_lg_u32 s{s_wave}, 4")
I(f"s_cbranch_scc1 {P}_l_go")
I(f"s_branch {P}_l_pollinit")
L(f"{P}_l_first")
I(f"s_mov_b32 s{s_ring}, 0")
if args.firstpoll:
    I(f"buffer_load_dword v{vFN}, v{vFA}, {srd(sH)}, s{s_fl} offen sc1")
    I(f"v_mov_b32 v17, {LDS_SCR+4}")
    I("v_mov_b32 v19, 1")
    I("s_waitcnt vmcnt(0)")
    I(f"v_cmp_ne_u32 vcc, v{vFN}, v{vFS}")
    I(f"s_or_b32 s{s_t2}, vcc_lo, s{s_valid}")
    I(f"s_and_b32 s{s_t2}, s{s_t2}, 0x7fff")
    I(f"s_cmp_eq_u32 s{s_t2}, 0x7fff")
    I(f"s_cselect_b32 s{s_ring}, 1, 0")
    I(f"s_cbranch_scc0 {P}_l_notyet")
    I("ds_write_b32 v17, v19")
else:
    I("s_sleep 1")
L(f"{P}_l_notyet")
issueW(wdone, 39)
stamp(5)
I(f"s_cmp_eq_u32 s{s_ring}, 1")
I(f"s_cbranch_scc1 {P}_l_go")
L(f"{P}_l_pollinit")
I(f"s_lshr_b32 s{s_t1}, s{s_rb}, 1")
I(f"s_lshl_b32 s{s_t1}, s{s_t1}, 4")
I("v_mov_b32 v18, 0")
I(f"v_mov_b32 v17, {LDS_SCR+4}")
I("v_mov_b32 v19, 1")
I(f"s_mov_b32 s{s_cnt}, 0")
L(f"{P}_l_poll")
I(f"buffer_load_dword v{vFN}, v{vFA}, {srd(sH)}, s{s_fl} offen sc1")
I(f"s_add_u32 s{s_cnt}, s{s_cnt}, 1")
I("s_waitcnt vmcnt(0)")
I(f"v_cmp_ne_u32 vcc, v{vFN}, v{vFS}")
I(f"s_and_b32 s{s_t0}, s{s_cnt}, 31")
I(f"s_or_b32 s{s_t2}, vcc_lo, s{s_valid}")
I(f"s_and_b32 s{s_t2}, s{s_t2}, 0x7fff")
I(f"s_cmp_eq_u32 s{s_t2}, 0x7fff")
I(f"s_cbranch_scc1 {P}_l_ok")
if args.sleep: I(f"s_sleep {args.sleep}")
I(f"s_cmp_lg_u32 s{s_t0}, 0")
I(f"s_cbranch_scc1 {P}_l_poll")
I(f"buffer_load_dword v16, v18, {srd(sD)}, s{s_t1} offen sc1")
I("s_waitcnt vmcnt(0)")
I(f"v_readfirstlane_b32 s{s_t0}, v16")
I(f"s_cmp_ge_u32 s{s_cnt}, 400000")
I(f"s_cbranch_scc1 {P}_l_ok")
I(f"s_or_b32 s{s_t2}, s{s_t2}, s{s_t0}")
I(f"s_cmp_lg_u32 s{s_t2}, 0x7fff")
I(f"s_cbranch_scc1 {P}_l_poll")
L(f"{P}_l_ok")
I("ds_write_b32 v17, v19")
L(f"{P}_l_go")
stamp(6)
I("s_barrier")
issueW(39, 43)
I(f"s_cmp_lg_u32 s{s_wave}, 5")
I(f"s_cbranch_scc1 {P}_l_nofb")
I(f"s_cmp_ge_u32 s{s_sl}, 15")
I(f"s_cbranch_scc1 {P}_l_nofb")
I(f"s_lshl_b32 s{s_t0}, 1, s{s_sl}")
I(f"s_lshl_b32 s{s_t1}, s{s_mt}, 4")
I(f"v_mov_b32 v17, s{s_t0}")
I("v_mov_b32 v18, 0")
I("s_mov_b64 exec, 1")
I(f"buffer_atomic_add v17, v18, {srd(sD)}, s{s_t1} offen sc1")
I("s_mov_b64 exec, -1")
I("s_waitcnt vmcnt(1)")
I(f"s_branch {P}_l_fin")
L(f"{P}_l_nofb")
I("s_waitcnt vmcnt(0)")
L(f"{P}_l_fin")
I("s_barrier")
prof_store()
L(f"{P}_end")
I("s_endpgm")

LOADER_STAGES[0] = "p2" in args.diag
L(f"{P}_compute")
if args.codepf:
    I("s_getpc_b64 s[18:19]")
    L(f"{P}_pc")
    I(f"s_lshl_b32 s{s_t0}, s{s_wave}, 7")
    I(f"s_add_u32 s18, s18, s{s_t0}")
    I("s_addc_u32 s19, s19, 0")
    out.append("@CODEPF@")
vAX = [2, 3, 4, 5]; vAW = [6, 7, 8]
ACC = 64
FA, FB = 160, 180
vOLD = 20
I(f"s_and_b32 s{s_t0}, s{s_wave}, 1")
I(f"s_lshl_b32 s{s_t0}, s{s_t0}, 6")
I("v_and_b32 v10, 31, v1")
I(f"v_add_u32 v10, s{s_t0}, v10")
I("v_lshrrev_b32 v11, 1, v10")
I("v_and_b32 v11, 7, v11")
I("v_lshrrev_b32 v12, 5, v1")
I("v_lshlrev_b32 v10, 7, v10")
for ks in range(4):
    I(f"v_add_u32 v13, {2*ks}, v12")
    I("v_xor_b32 v13, v13, v11")
    I(f"v_lshl_add_u32 v{vAX[ks]}, v13, 4, v10")
I("v_lshrrev_b32 v10, 4, v1")
I("v_and_b32 v11, 1, v10")
I("v_lshrrev_b32 v10, 1, v10")
I("v_lshrrev_b32 v12, 2, v1")
I("v_and_b32 v12, 3, v12")
I("v_lshl_add_u32 v12, v10, 3, v12")
I("v_mul_u32_u24 v12, 192, v12")
I("v_mul_u32_u24 v13, 3072, v11")
I("v_add_u32 v12, v12, v13")
I("v_and_b32 v13, 1, v1")
I("v_lshl_add_u32 v12, v13, 4, v12")
I("v_lshrrev_b32 v13, 1, v1")
I("v_and_b32 v13, 1, v13")
I("v_lshl_add_u32 v12, v13, 3, v12")
I(f"v_add_u32 v12, {LDS_W}, v12")
I("v_lshlrev_b32 v11, 5, v11")
I(f"s_lshr_b32 s{s_t0}, s{s_wave}, 1")
I(f"s_mul_i32 s{s_t0}, s{s_t0}, 3")
for t in range(3):
    I(f"s_add_u32 s{s_t1}, s{s_t0}, {t}")
    I(f"s_lshr_b32 s{s_t2}, s{s_t1}, 1")
    I(f"s_lshl_b32 s{s_t2}, s{s_t2}, 6")
    I(f"s_and_b32 s{s_t1}, s{s_t1}, 1")
    I(f"s_lshl_b32 s{s_t1}, s{s_t1}, 5")
    I(f"v_xor_b32 v13, s{s_t1}, v11")
    I(f"v_add3_u32 v{vAW[t]}, v12, v13, s{s_t2}")
for r in range(96):
    I(f"v_mov_b32 v{ACC+r}, 0")
I(f"s_and_b32 s{s_t3}, s{s_sl}, 1")
I(f"s_and_b32 s{s_t1}, s{s_wave}, 1")
I(f"s_lshl_b32 s{s_t1}, s{s_t1}, 1")
I(f"s_lshl_b32 s{s_cnt}, s{s_mt}, 2")
I(f"s_add_u32 s{s_t1}, s{s_t1}, s{s_cnt}")
I(f"s_mul_i32 s{s_p}, s{s_t1}, {HSTR}")
I(f"s_mul_i32 s{s_cnt}, s{s_sl}, 6")
I(f"s_add_u32 s{s_p}, s{s_p}, s{s_cnt}")
for t in range(3):
    I(f"s_add_u32 s{s_t1}, s{s_t0}, {t}")
    I(f"s_lshr_b32 s{s_t2}, s{s_t1}, 1")
    I(f"s_sub_u32 s{s_cnt}, 2, s{s_t2}")
    I(f"s_cmp_eq_u32 s{s_t3}, 1")
    I(f"s_cselect_b32 s{s_t2}, s{s_cnt}, s{s_t2}")
    I(f"s_lshl_b32 s{s_t2}, s{s_t2}, 1")
    I(f"s_and_b32 s{s_t1}, s{s_t1}, 1")
    I(f"s_add_u32 s{s_t2}, s{s_t2}, s{s_t1}")
    I(f"s_add_u32 s{s_t2}, s{s_t2}, s{s_p}")
    I(f"s_lshl_b32 s{s_hoff+2*t}, s{s_t2}, 10")
    I(f"s_add_u32 s{s_hoff+2*t+1}, s{s_hoff+2*t}, {HSTR*1024}")
I(f"s_cmp_eq_u32 s{s_t0}, 0")
I(f"s_cselect_b32 s{s_t1}, 2, 0")
I(f"s_cmp_eq_u32 s{s_sl}, 14")
I(f"s_cselect_b32 s{s_valid}, s{s_t1}, 3")
I(f"s_mov_b32 s{s_k}, 0xbfb8aa3b")
I(f"s_mov_b32 s{s_k+1}, 0xbfb8aa3b")
I(f"s_mov_b32 s{s_one}, 1.0")
I(f"s_mov_b32 s{s_one+1}, 1.0")
I("v_lshlrev_b32 v9, 4, v1")
I(f"s_mul_i32 s{s_fl}, s{s_mt}, {4*HSTR*1024}")
if args.flagsep:
    I(f"s_lshr_b32 s{s_t1}, s{s_sl}, 3")
    I(f"s_mul_i32 s{s_t1}, s{s_t1}, {HSTR*1024}")
    I(f"s_add_u32 s{s_fl}, s{s_fl}, s{s_t1}")
    I(f"s_and_b32 s{s_t1}, s{s_sl}, 7")
    I(f"s_lshl_b32 s{s_t1}, s{s_t1}, 7")
else:
    I(f"s_lshl_b32 s{s_t1}, s{s_sl}, 2")
I(f"s_add_u32 s{s_fl}, s{s_fl}, s{s_t1}")
I(f"s_add_u32 s{s_fl}, s{s_fl}, {86*1024}")
I("v_mov_b32 v21, 0")
I(f"v_mov_b32 v22, {LDS_SCR}")
I("ds_write_b32 v22, v21")
I("ds_write_b32 v22, v21 offset:4")
vB = [[10, 11], [12, 13], [14, 15]]
WF = 128; HR = 160; R = args.hring
I("v_lshrrev_b32 v16, 4, v1")
I("v_lshrrev_b32 v17, 1, v16")
I("v_lshrrev_b32 v18, 2, v1")
I("v_and_b32 v18, 3, v18")
I("v_lshl_add_u32 v17, v17, 3, v18")
I("v_lshlrev_b32 v17, 7, v17")
I("v_and_b32 v16, 1, v16")
I("v_and_b32 v19, 1, v1")
I("v_lshl_add_u32 v16, v19, 1, v16")
I("v_lshrrev_b32 v18, 1, v18")
I("v_lshlrev_b32 v18, 2, v18")
I(f"s_lshr_b32 s{s_t0}, s{s_wave}, 1")
I(f"s_lshl_b32 s{s_t1}, s{s_t0}, 2")
I(f"v_xor_b32 v18, s{s_t1}, v18")
I("v_xor_b32 v16, v16, v18")
I("v_lshl_add_u32 v17, v16, 4, v17")
I("v_lshrrev_b32 v19, 1, v1")
I("v_and_b32 v19, 1, v19")
I("v_lshl_add_u32 v17, v19, 3, v17")
I(f"s_lshl_b32 s{s_t1}, s{s_t0}, 11")
I(f"v_add_u32 v{vB[0][0]}, s{s_t1}, v17")
I(f"v_xor_b32 v{vB[0][1]}, 64, v{vB[0][0]}")
for sg in (1, 2):
    for nb in range(2):
        I(f"v_add_u32 v{vB[sg][nb]}, {sg*65536}, v{vB[0][nb]}")
I(f"s_and_b32 s{s_t1}, s{s_wave}, 1")
I(f"s_lshl_b32 s{s_t2}, s{s_rb}, 1")
I(f"s_add_u32 s{s_t1}, s{s_t1}, s{s_t2}")
I(f"s_mul_i32 s{s_t2}, s{s_t1}, {HSTR}")
I(f"s_mul_i32 s{s_t3}, s{s_t0}, 43")
I(f"s_add_u32 s{s_t2}, s{s_t2}, s{s_t3}")
I(f"s_lshl_b32 s{s_pbeg}, s{s_t2}, 10")
I(f"s_add_u32 s{s_pend}, s{s_pbeg}, {43*1024}")
I(f"s_lshl_b32 s{s_t2}, s{s_rot2}, 10")
I(f"s_add_u32 s{s_p}, s{s_pbeg}, s{s_t2}")
I("v_and_b32 v16, 31, v1")
I("v_lshlrev_b32 v16, 10, v16")
I("v_lshrrev_b32 v17, 5, v1")
I("v_lshl_add_u32 v16, v17, 5, v16")
I(f"s_lshl_b32 s{s_t1}, s{s_t1}, 15")
I(f"s_lshl_b32 s{s_t2}, s{s_cb}, 7")
I(f"s_add_u32 s{s_t1}, s{s_t1}, s{s_t2}")
I(f"s_lshl_b32 s{s_t2}, s{s_t0}, 6")
I(f"s_add_u32 s{s_t1}, s{s_t1}, s{s_t2}")
I(f"v_add_u32 v16, s{s_t1}, v16")
I(f"s_lshl_b32 s{s_t1}, s{s_wave}, 12")
I(f"s_add_u32 s{s_t1}, s{s_t1}, {XCH}")
I(f"v_add_u32 v17, s{s_t1}, v9")
I(f"s_xor_b32 s{s_t2}, s{s_wave}, 2")
I(f"s_lshl_b32 s{s_t2}, s{s_t2}, 12")
I(f"s_add_u32 s{s_t2}, s{s_t2}, {XCH}")
I(f"v_add_u32 v18, s{s_t2}, v9")
I("s_waitcnt lgkmcnt(0)")
make_srd(sH, 16, WS_REC)
make_srd(sO, 12, OB)
make_srd(sD, 14, 256)
make_srd(sW2, 10, W2B)
if args.jobA or args.jobX:
    make_srd(sX, 4, XB); make_srd(sW1, 6, WB); make_srd(sW3, 8, WB)
if args.prio: I(f"s_setprio {args.prio}")
I(f"buffer_load_dword v{vOLD}, v21, {srd(sH)}, s{s_fl} offen sc1")
if args.tlb:
    I(f"s_cmp_lg_u32 s{s_wave}, 0")
    I(f"s_cbranch_scc1 {P}_c_notlb")
    I("s_mov_b64 exec, 1")
    I(f"buffer_load_dword v28, v16, {srd(sO)}, 0 offen")
    I(f"buffer_load_dword v29, v21, {srd(sD)}, 0 offen sc1")
    I(f"buffer_load_dword v30, v21, {srd(sW2)}, 0 offen")
    I(f"s_mov_b32 s{s_t1}, {W2B-128}")
    I(f"buffer_load_dword v31, v21, {srd(sW2)}, s{s_t1} offen")
    I(f"s_add_u32 s{s_t1}, s{s_fl}, {3*HSTR*1024}")
    I(f"buffer_load_dword v32, v21, {srd(sH)}, s{s_t1} offen sc1")
    I("s_mov_b64 exec, -1")
    L(f"{P}_c_notlb")
I(f"s_cmp_ge_u32 s{s_sl}, 15")
I(f"s_cbranch_scc1 {P}_c_idle")

def reads(ks, fs):
    if "nolds" in args.diag: return ["s_nop 0"] * 8
    r = []
    r.append(f"ds_read_b128 v[{fs}:{fs+3}], v{vAX[ks]}")
    for h in range(2):
        r.append(f"ds_read_b64_tr_b16 v[{fs+8+2*h}:{fs+9+2*h}], v{vAW[0]} offset:{ks*6144+h*768}")
    r.append(f"ds_read_b128 v[{fs+4}:{fs+7}], v{vAX[ks]} offset:4096")
    for t in (1, 2):
        for h in range(2):
            r.append(f"ds_read_b64_tr_b16 v[{fs+8+4*t+2*h}:{fs+9+4*t+2*h}], v{vAW[t]} offset:{ks*6144+h*768}")
    return r
def mfmas(fs):
    m = []
    for t in range(3):
        for mb in range(2):
            a = ACC + (t * 2 + mb) * 16
            if "m16" in args.diag:
                o = 0 if fs == FA else 8
                m.append(f"v_mfma_f32_16x16x32_bf16 v[{a+o}:{a+o+3}], v[{fs+8+4*t}:{fs+11+4*t}], v[{fs+4*mb}:{fs+4*mb+3}], v[{a+o}:{a+o+3}]\n"
                         f"    v_mfma_f32_16x16x32_bf16 v[{a+o+4}:{a+o+7}], v[{fs+8+4*((t+1)%3)}:{fs+11+4*((t+1)%3)}], v[{fs+4*mb}:{fs+4*mb+3}], v[{a+o+4}:{a+o+7}]")
            elif "nomfma" in args.diag:
                m.append("s_nop 7")
            else:
                m.append(f"v_mfma_f32_32x32x16_bf16 v[{a}:{a+15}], v[{fs+8+4*t}:{fs+11+4*t}], v[{fs+4*mb}:{fs+4*mb+3}], v[{a}:{a+15}]")
    return m
I(f"s_mov_b32 s{s_cnt}, 0")
I(f"s_mov_b32 s{s_ring}, 0")
I(f"s_mov_b32 s{s_sx}, 16384")
I(f"s_mov_b32 s{s_sw}, 24576")
I("s_barrier")
stamp(1)
for r in reads(0, FA): I(r)
L(f"{P}_c_loop")
for ks in range(3):
    cur, nxt = (FA, FB) if ks % 2 == 0 else (FB, FA)
    I("s_waitcnt lgkmcnt(0)")
    m = mfmas(cur); r = reads(ks + 1, nxt)
    for i in range(6):
        I(m[i])
        if i < 4:
            I(r[2*i]); I(r[2*i+1])
I("s_waitcnt lgkmcnt(0)")
m = mfmas(FB)
I(m[0])
I(f"s_add_u32 s{s_ring}, s{s_ring}, 1")
I(f"s_cmp_eq_u32 s{s_ring}, 3")
I(f"s_cselect_b32 s{s_t0}, {-32768 & 0xffffffff}, s{s_sx}")
I(f"s_cselect_b32 s{s_t1}, {-49152 & 0xffffffff}, s{s_sw}")
I(f"s_cselect_b32 s{s_ring}, 0, s{s_ring}")
I(m[1])
for ks in range(4): I(f"v_add_u32 v{vAX[ks]}, s{s_t0}, v{vAX[ks]}")
I(m[2])
for t in range(3): I(f"v_add_u32 v{vAW[t]}, s{s_t1}, v{vAW[t]}")
I("s_barrier")
r = reads(0, FA)
I(r[0]); I(r[1]); I(r[2])
I(m[3])
I(r[3]); I(r[4]); I(r[5])
I(m[4])
I(r[6]); I(r[7])
I(m[5])
I(f"s_add_u32 s{s_cnt}, s{s_cnt}, 1")
I(f"s_cmp_lt_u32 s{s_cnt}, 7")
I(f"s_cbranch_scc1 {P}_c_loop")
stamp(2)
XL, WL, T = 180, 204, 32
def xreg(ks, mb): return FA + 4 * mb if ks == 0 else XL + 4 * ((ks - 1) * 2 + mb)
def wreg(ks, t): return FA + 8 + 4 * t if ks == 0 else WL + 4 * (t * 3 + ks - 1)
def xrd(ks, mb): return [f"ds_read_b128 v[{xreg(ks,mb)}:{xreg(ks,mb)+3}], v{vAX[ks]} offset:{4096*mb}"]
def wrd(ks, t): return [f"ds_read_b64_tr_b16 v[{wreg(ks,t)+2*h}:{wreg(ks,t)+2*h+1}], v{vAW[t]} offset:{ks*6144+h*768}" for h in range(2)]
def mf(t, mb, ks):
    a = ACC + (t * 2 + mb) * 16
    return f"v_mfma_f32_32x32x16_bf16 v[{a}:{a+15}], v[{wreg(ks,t)}:{wreg(ks,t)+3}], v[{xreg(ks,mb)}:{xreg(ks,mb)+3}], v[{a}:{a+15}]"
def epi(t, mb):
    a = ACC + (t * 2 + mb) * 16
    tm = T + mb * 12; o = tm + 8
    v = []
    for p in range(4): v.append(f"v_pk_mul_f32 v[{tm+2*p}:{tm+2*p+1}], v[{a+2*p}:{a+2*p+1}], s[{s_k}:{s_k+1}]")
    for q in range(8): v.append(f"v_exp_f32 v{tm+q}, v{tm+q}")
    for p in range(4): v.append(f"v_pk_add_f32 v[{tm+2*p}:{tm+2*p+1}], v[{tm+2*p}:{tm+2*p+1}], s[{s_one}:{s_one+1}]")
    for q in range(8): v.append(f"v_rcp_f32 v{tm+q}, v{tm+q}")
    for p in range(4): v.append(f"v_pk_mul_f32 v[{tm+2*p}:{tm+2*p+1}], v[{tm+2*p}:{tm+2*p+1}], v[{a+2*p}:{a+2*p+1}]")
    for p in range(4): v.append(f"v_pk_mul_f32 v[{tm+2*p}:{tm+2*p+1}], v[{tm+2*p}:{tm+2*p+1}], v[{a+8+2*p}:{a+9+2*p}]")
    for p in range(4): v.append(f"v_cvt_pk_bf16_f32 v{o+p}, v{tm+2*p}, v{tm+2*p+1}")
    v.append(("store", t, mb, o))
    if args.nopk and (t * 2 + mb) < args.nopk:
        v = []
        for q in range(8): v.append(f"v_mul_f32 v{tm+q}, s{s_k}, v{a+q}")
        for q in range(8): v.append(f"v_exp_f32 v{tm+q}, v{tm+q}")
        for q in range(8): v.append(f"v_add_f32 v{tm+q}, 1.0, v{tm+q}")
        for q in range(8): v.append(f"v_rcp_f32 v{tm+q}, v{tm+q}")
        for q in range(8): v.append(f"v_mul_f32 v{tm+q}, v{tm+q}, v{a+q}")
        for q in range(8): v.append(f"v_mul_f32 v{tm+q}, v{tm+q}, v{a+8+q}")
        for p in range(4): v.append(f"v_cvt_pk_bf16_f32 v{o+p}, v{tm+2*p}, v{tm+2*p+1}")
        v.append(("store", t, mb, o))
    return v
def emit_v(x):
    if isinstance(x, tuple):
        _, t, mb, o = x
        I(f"s_cmp_le_u32 s{s_valid}, {t}")
        I(f"s_cbranch_scc1 {P}_c_ns{t}{mb}")
        I(f"buffer_store_dwordx4 v[{o}:{o+3}], v9, {srd(sH)}, s{s_hoff+2*t+mb} offen {HST}")
        L(f"{P}_c_ns{t}{mb}")
    else:
        I(x)
g1 = []
for ks in (1, 2, 3): g1 += xrd(ks, 0) + wrd(ks, 0)
for r in g1[:6]: I(r)
I("s_waitcnt lgkmcnt(6)")
I(mf(0, 0, 0))
for r in g1[6:]: I(r)
for ks in (1, 2, 3): I(xrd(ks, 1)[0])
I("s_waitcnt lgkmcnt(9)")
I(mf(0, 0, 1))
for r in wrd(1, 1) + wrd(2, 1): I(r)
I("s_waitcnt lgkmcnt(10)")
I(mf(0, 0, 2))
for r in wrd(3, 1): I(r)
I("s_waitcnt lgkmcnt(9)")
I(mf(0, 0, 3))
for r in wrd(1, 2) + wrd(2, 2): I(r)
I(mf(0, 1, 0))
for r in wrd(3, 2): I(r)
I("s_waitcnt lgkmcnt(12)")
I(mf(0, 1, 1))
I("v_mov_b32 v23, 1")
I("s_nop 3")
tiles = [(t, mb) for t in range(3) for mb in range(2)]
rem = [(0, 1, 2), (0, 1, 3)] + [(t, mb, ks) for (t, mb) in tiles[2:] for ks in range(4)]
vq = []
avail = {0: 0}
vq += epi(0, 0)
nxt_tile = 1
PER = args.per
since = {}
for i, (t, mb, ks) in enumerate(rem):
    if (t, mb, ks) == (1, 0, 0):
        I("s_waitcnt lgkmcnt(0)")
    I(mf(t, mb, ks))
    if ks == 3: since[tiles.index((t, mb))] = i
    n = 0
    while n < PER:
        if not vq:
            if nxt_tile in since and i - since[nxt_tile] >= 2:
                vq += epi(*tiles[nxt_tile]); nxt_tile += 1
            else:
                break
        emit_v(vq.pop(0)); n += 1
while vq or nxt_tile < 6:
    if not vq:
        if nxt_tile == 5: I("s_nop 7"); I("s_nop 3")
        vq += epi(*tiles[nxt_tile]); nxt_tile += 1
    emit_v(vq.pop(0))
stamp(3)
I("s_waitcnt vmcnt(0)")
I(f"v_add_u32 v{vOLD}, 1, v{vOLD}")
I("s_barrier")
I(f"s_cmp_lg_u32 s{s_wave}, 0")
I(f"s_cbranch_scc1 {P}_c_p2")
I("s_mov_b64 exec, 1")
I(f"buffer_store_dword v{vOLD}, v21, {srd(sH)}, s{s_fl} offen sc1")
I("s_mov_b64 exec, -1")
I(f"s_branch {P}_c_p2")
L(f"{P}_c_idle")
prefetch_jobs(False)
I("s_barrier")
L(f"{P}_c_p2")
stamp(4)
def wreads(u, dst):
    a = unit_addr(u); sg = a >> 16; off = a & 0xffff
    r = []
    for nb in range(2):
        for h in range(2):
            r.append(f"ds_read_b64_tr_b16 v[{dst+4*nb+2*h}:{dst+4*nb+2*h+1}], v{vB[sg][nb]} offset:{off+h*512}")
    return r
NW = 3
wdst = lambda u: WF + 8 * (u % NW)
for u in range(2):
    for r in wreads(u, wdst(u)): I(r)
for r in range(32):
    I(f"v_mov_b32 v{ACC+r}, 0")
L(f"{P}_c_spin")
I("ds_read_b32 v24, v22 offset:4")
I("s_waitcnt lgkmcnt(0)")
I(f"v_readfirstlane_b32 s{s_t0}, v24")
I("s_nop 0")
I(f"s_cmp_eq_u32 s{s_t0}, 0")
I(f"s_cbranch_scc1 {P}_c_spin")
stamp(5)
if "p2" in args.diag: stamp(1, True)
def hload(s):
    b = HR + 4 * (s % R)
    return [f"buffer_load_dwordx4 v[{b}:{b+3}], v9, {srd(sH)}, s{s_p} offen {HLD}",
            f"s_add_u32 s{s_p}, s{s_p}, 1024",
            f"s_cmp_eq_u32 s{s_p}, s{s_pend}",
            f"s_cselect_b32 s{s_p}, s{s_pbeg}, s{s_p}"]
issued = 0
for s in range(args.hpro):
    for x in hload(s): I(x)
issued = args.hpro
for s in range(43):
    u = s + 2
    young = 1 if s + 1 < 43 else 0
    I(f"s_waitcnt vmcnt({issued - s - 1}) lgkmcnt({4*young})")
    if "p2" in args.diag and s in (0, 5, 11, 21, 32, 42): stamp({0:2, 5:3, 11:4, 21:5, 32:6, 42:7}[s], True)
    if s == 3: I("s_barrier")
    if u == wdone: I("s_barrier")
    hb = HR + 4 * (s % R); wd = wdst(s)
    wr = wreads(u, wdst(u)) if u < 43 else []
    mm = [f"v_mfma_f32_32x32x16_bf16 v[{ACC+16*nb}:{ACC+16*nb+15}], v[{wd+4*nb}:{wd+4*nb+3}], v[{hb}:{hb+3}], v[{ACC+16*nb}:{ACC+16*nb+15}]" for nb in range(2)]
    I(mm[0])
    for r in wr[:2]: I(r)
    if issued < 43 and issued - R < s:
        for x in hload(issued): I(x)
        issued += 1
    I(mm[1])
    for r in wr[2:]: I(r)
    if issued < 43 and issued - R < s and issued - s - 1 < R - 1:
        for x in hload(issued): I(x)
        issued += 1
stamp(6)
I("s_nop 7")
I("s_nop 3")
for q in range(4):
    I(f"ds_write_b128 v17, v[{ACC+16+4*q}:{ACC+19+4*q}] offset:{q*1024}")
I("s_waitcnt lgkmcnt(0)")
I("s_barrier")
for q in range(4):
    I(f"ds_read_b128 v[{128+4*q}:{131+4*q}], v18 offset:{q*1024}")
for q in range(4):
    I(f"s_waitcnt lgkmcnt({3-q})")
    for p in range(2):
        I(f"v_pk_add_f32 v[{ACC+4*q+2*p}:{ACC+4*q+2*p+1}], v[{ACC+4*q+2*p}:{ACC+4*q+2*p+1}], v[{128+4*q+2*p}:{129+4*q+2*p}]")
    for p in range(2):
        I(f"v_cvt_pk_bf16_f32 v{144+2*q+p}, v{ACC+4*q+2*p}, v{ACC+4*q+2*p+1}")
    if q == 1: I(f"buffer_store_dwordx4 v[144:147], v16, {srd(sO)}, 0 offen {OST}")
I(f"buffer_store_dwordx4 v[148:151], v16, {srd(sO)}, 0 offen offset:16 {OST}")
if STAMPS:
    I("s_waitcnt vmcnt(0)")
stamp(7)
if args.amp and args.amp != "none":
    ai, aj = [int(t) for t in args.amp.split(",")]
    I("s_waitcnt lgkmcnt(0)")
    I(f"s_sub_u32 s{s_t0}, s{s_prof+2*aj}, s{s_prof+2*ai}")
    I(f"s_cmp_eq_u32 s{s_prof+2*ai}, 0")
    I(f"s_cselect_b32 s{s_t0}, 0, s{s_t0}")
    I(f"s_cmp_eq_u32 s{s_prof+2*aj}, 0")
    I(f"s_cselect_b32 s{s_t0}, 0, s{s_t0}")
    I(f"s_min_u32 s{s_t0}, s{s_t0}, 20000")
    I(f"s_mul_i32 s{s_t0}, s{s_t0}, 10")
    I("s_memrealtime s[82:83]")
    I("s_waitcnt lgkmcnt(0)")
    I(f"s_mov_b32 s{s_t1}, s82")
    L(f"{P}_amp")
    I("s_memrealtime s[82:83]")
    I("s_waitcnt lgkmcnt(0)")
    I(f"s_sub_u32 s{s_t2}, s82, s{s_t1}")
    I(f"s_cmp_lt_u32 s{s_t2}, s{s_t0}")
    I(f"s_cbranch_scc1 {P}_amp")
prof_store()
I("s_endpgm")
L(f"{P}_codeend")
for i in range(128): I("s_nop 0")

e('.section .rodata,"a"')
e(".p2align 6")
e(f".amdhsa_kernel {label}")
e("  .amdhsa_next_free_vgpr 256")
e("  .amdhsa_next_free_sgpr 102")
e("  .amdhsa_accum_offset 256")
e("  .amdhsa_group_segment_fixed_size 0")
e("  .amdhsa_kernarg_size 56")
e("  .amdhsa_user_sgpr_count 2")
e("  .amdhsa_user_sgpr_kernarg_segment_ptr 1")
e("  .amdhsa_system_sgpr_workgroup_id_x 1")
e("  .amdhsa_float_denorm_mode_32 3")
e(".end_amdhsa_kernel")

text = "\n".join(out) + "\n"
if args.codepf:
    import subprocess, tempfile, re, os
    def build(t):
        with tempfile.TemporaryDirectory() as d:
            open(d + "/k.s", "w").write(t)
            subprocess.run(["clang", "-x", "assembler", "-target", "amdgcn-amd-amdhsa", "-mcpu=gfx950", "-c", d + "/k.s", "-o", d + "/k.o"], check=True)
            sym = subprocess.run(["llvm-objdump", "-t", d + "/k.o"], capture_output=True, text=True).stdout
        a = {m.group(2): int(m.group(1), 16) for m in re.finditer(r"^([0-9a-f]{16}) .*\s(\S+)$", sym, re.M)}
        return a
    a = build(text.replace("@CODEPF@\n", ""))
    size = a[f"{P}_codeend"] - a[f"{P}_pc"]
    n = size // 512
    pf = "".join(f"    s_load_dword s3, s[18:19], {512*i}\n" for i in range(1, n + 1))
    text = text.replace("@CODEPF@\n", pf)
    sys.stderr.write(f"compute code {size} B, {n} touches/wave; loader code {a[f'{P}_compute']} B\n")
open(args.o, "w").write(text)
```

```python
import sys, argparse

ap = argparse.ArgumentParser()
ap.add_argument("-o", default="standalone__glu_gated_swiglu__prompt.s")
ap.add_argument("--prof", action="store_true")
ap.add_argument("--rot1", type=int, default=1)
ap.add_argument("--rot2", type=int, default=2)
ap.add_argument("--hring", type=int, default=12)
ap.add_argument("--hpro", type=int, default=10)
ap.add_argument("--jobX", type=int, default=1)
ap.add_argument("--cbswap", type=int, default=1)
ap.add_argument("--flagsep", type=int, default=1)
ap.add_argument("--firstpoll", type=int, default=0)
ap.add_argument("--hst", default="sc1")
ap.add_argument("--hld", default="sc1")
ap.add_argument("--ost", default="none")
ap.add_argument("--sleep", type=int, default=1)
ap.add_argument("--cyc", action="store_true")
ap.add_argument("--amp", default="")
ap.add_argument("--codepf", type=int, default=0)
ap.add_argument("--tlb", type=int, default=0)
ap.add_argument("--jobA", type=int, default=0)
ap.add_argument("--jobB", type=int, default=0)
ap.add_argument("--prio", type=int, default=1)
ap.add_argument("--late", type=int, default=0)
ap.add_argument("--nopk", type=int, default=6)
ap.add_argument("--per", type=int, default=6)
ap.add_argument("--trickle", default="0,0,0,0,0,0,0,0")
ap.add_argument("--atb6", type=int, default=8)
ap.add_argument("--jobM", type=int, default=1)
ap.add_argument("--atb7", type=int, default=14)
ap.add_argument("--stouch", type=int, default=0)
ap.add_argument("--bmax", type=int, default=43)
ap.add_argument("--xrot", type=int, default=4)
ap.add_argument("--early", type=int, default=11)
ap.add_argument("--diag", default="")
args = ap.parse_args()

NAME = "standalone__glu_gated_swiglu__prompt"
out = []
def e(s=""): out.append(s)
def I(s): out.append("    " + s)
def L(s): out.append(s + ":")

S, D, F = 2048, 512, 1376
XB, WB, W2B, OB = S * D * 2, D * F * 2, F * D * 2, S * D * 2
HSTR = 87
WS_REC = 8 << 20
PROF_OFF = 7 << 20
LDS_X = 0
LDS_W = 49152
LDS_E = 122880
LDS_SCR = 159744
LDS_TOTAL = 163840
RANGES = [(0, 9, LDS_E), (9, 4, LDS_X + 32768), (13, 6, LDS_W + 49152), (19, 4, LDS_X), (23, 6, LDS_W),
          (29, 4, LDS_X + 16384), (33, 6, LDS_W + 24576), (39, 4, LDS_E)]
def unit_addr(u):
    for u0, n, a in RANGES:
        if u0 <= u < u0 + n: return a + (u - u0) * 4096
    raise ValueError
XCH = LDS_E + 4 * 4096

sX, sW1, sW3, sW2, sH, sO, sD = 20, 24, 28, 32, 36, 40, 44
s_wave, s_xcd, s_slot, s_mt, s_sl, s_rb, s_cb = 48, 49, 50, 51, 52, 53, 54
s_t0, s_t1, s_t2, s_t3 = 55, 56, 57, 58
s_cnt, s_kst, s_sx, s_sw, s_ring = 59, 60, 61, 62, 63
s_lx, s_lw, s_rot2, s_fl = 64, 65, 66, 67
s_k = 68
s_one = 70
s_hoff = 72
s_p, s_pend, s_pbeg = 78, 79, 80
s_valid = 81
s_prof = 84
def srd(r): return f"s[{r}:{r+3}]"
STAMPS = args.prof or args.amp
LOADER_STAGES = [False]
def stamp(i, force=False):
    if LOADER_STAGES[0] and not force: return
    if STAMPS:
        I(f"{'s_memtime' if args.cyc else 's_memrealtime'} s[{s_prof+2*i}:{s_prof+2*i+1}]")

def prof_store():
    if not args.prof: return
    I("s_waitcnt lgkmcnt(0)")
    I(f"s_lshl_b32 s{s_t0}, s2, 3")
    I(f"s_add_u32 s{s_t0}, s{s_t0}, s{s_wave}")
    I(f"s_lshl_b32 s{s_t0}, s{s_t0}, 5")
    I(f"s_add_u32 s{s_t0}, s{s_t0}, {PROF_OFF}")
    for i in range(8):
        I(f"v_mov_b32 v{240+i}, s{s_prof+2*i}")
    I("v_mov_b32 v248, 0")
    I("s_mov_b64 exec, 1")
    I(f"buffer_store_dwordx4 v[240:243], v248, {srd(sH)}, s{s_t0} offen")
    I(f"buffer_store_dwordx4 v[244:247], v248, {srd(sH)}, s{s_t0} offen offset:16")
    I("s_mov_b64 exec, -1")

def make_srd(r, p, nbytes):
    I(f"s_mov_b32 s{r}, s{p}")
    I(f"s_and_b32 s{r+1}, s{p+1}, 0xffff")
    I(f"s_mov_b32 s{r+2}, {nbytes}")
    I(f"s_mov_b32 s{r+3}, 0x20000")
pol = lambda s: s.replace("_", " ").replace("none", "")
HST, HLD, OST = pol(args.hst), pol(args.hld), pol(args.ost)

label = NAME + "_kernel"
P = "K"
e(f"; @launch grid=(256,1,1) block=(512,1,1) lds={LDS_TOTAL}")
e('.amdgcn_target "amdgcn-amd-amdhsa--gfx950"')
e(".text")
e(f".globl {label}")
e(".p2align 8")
e(f".type {label},@function")
L(label)
I("s_cmp_ge_u32 s2, 256")
I(f"s_cbranch_scc1 {P}_end")
I("s_load_dwordx8 s[4:11], s[0:1], 0")
I("s_load_dwordx4 s[12:15], s[0:1], 32")
I("s_load_dwordx2 s[16:17], s[0:1], 48")
if STAMPS:
    for i in range(8): I(f"s_mov_b32 s{s_prof+2*i}, 0")
stamp(0)
I("v_lshrrev_b32 v2, 6, v0")
I("v_and_b32 v1, 63, v0")
I(f"v_readfirstlane_b32 s{s_wave}, v2")
I(f"s_and_b32 s{s_xcd}, s2, 7")
I(f"s_lshr_b32 s{s_slot}, s2, 3")
I(f"s_and_b32 s{s_t0}, s{s_xcd}, 3")
I(f"s_lshl_b32 s{s_t0}, s{s_t0}, 2")
I(f"s_lshr_b32 s{s_t1}, s{s_xcd}, 2")
I(f"s_and_b32 s{s_t2}, s{s_slot}, 3")
I(f"s_lshr_b32 s{s_t3}, s{s_slot}, 2")
I(f"s_add_u32 s{s_mt}, s{s_t0}, s{s_t2}")
I(f"s_mul_i32 s{s_sl}, s{s_t1}, 7")
I(f"s_add_u32 s{s_sl}, s{s_sl}, s{s_t3}")
I(f"s_add_u32 s{s_kst}, s{s_t2}, s{s_t3}")
I(f"s_and_b32 s{s_kst}, s{s_kst}, {args.rot1-1}")
I(f"s_mul_i32 s{s_kst}, s{s_kst}, {8//args.rot1}")
if args.xrot == 2:
    I(f"s_add_u32 s{s_cnt}, s{s_xcd}, s{s_t1}")
    I(f"s_and_b32 s{s_cnt}, s{s_cnt}, 1")
    I(f"s_mul_i32 s{s_cnt}, s{s_cnt}, {max(1, 4//args.rot1)}")
    I(f"s_add_u32 s{s_kst}, s{s_kst}, s{s_cnt}")
elif args.xrot == 4:
    I(f"s_lshl_b32 s{s_cnt}, s{s_t1}, 1")
    I(f"s_add_u32 s{s_cnt}, s{s_cnt}, s{s_xcd}")
    I(f"s_and_b32 s{s_cnt}, s{s_cnt}, 3")
    I(f"s_mul_i32 s{s_cnt}, s{s_cnt}, {max(1, 2//args.rot1)}")
    I(f"s_add_u32 s{s_kst}, s{s_kst}, s{s_cnt}")
I(f"s_lshl_b32 s{s_t1}, s{s_t1}, 1")
I(f"s_add_u32 s{s_t0}, s{s_t0}, s{s_t1}")
I(f"s_add_u32 s{s_t1}, s{s_t0}, s{s_t2}")
I(f"s_cmp_ge_u32 s{s_slot}, 28")
I(f"s_cselect_b32 s{s_mt}, s{s_t1}, s{s_mt}")
I(f"s_cselect_b32 s{s_sl}, 14, s{s_sl}")
I(f"s_cmp_ge_u32 s{s_slot}, 30")
I(f"s_cselect_b32 s{s_sl}, 15, s{s_sl}")
I(f"s_cselect_b32 s{s_mt}, s{s_t0}, s{s_mt}")
I(f"s_lshl_b32 s{s_t0}, s{s_t0}, 1")
I(f"s_lshr_b32 s{s_t1}, s{s_slot}, 3")
I(f"s_add_u32 s{s_rb}, s{s_t0}, s{s_t1}")
I(f"s_and_b32 s{s_cb}, s{s_slot}, 7")
if args.cbswap:
    I(f"s_cmp_eq_u32 s{s_cb}, 3")
    I(f"s_cselect_b32 s{s_t2}, 6, s{s_cb}")
    I(f"s_cmp_eq_u32 s{s_cb}, 6")
    I(f"s_cselect_b32 s{s_cb}, 3, s{s_t2}")
if args.rot2 == 8:
    I(f"s_lshl_b32 s{s_rot2}, s{s_t1}, 1")
    I(f"s_add_u32 s{s_rot2}, s{s_rot2}, s{s_cb}")
    I(f"s_and_b32 s{s_rot2}, s{s_rot2}, 7")
    I(f"s_mul_i32 s{s_rot2}, s{s_rot2}, 43")
    I(f"s_lshr_b32 s{s_rot2}, s{s_rot2}, 3")
elif args.rot2 == 2:
    I(f"s_mul_i32 s{s_rot2}, s{s_t1}, 11")
elif args.rot2:
    I(f"s_add_u32 s{s_rot2}, s{s_t1}, s{s_cb}")
    I(f"s_and_b32 s{s_rot2}, s{s_rot2}, 3")
    I(f"s_mul_i32 s{s_rot2}, s{s_rot2}, 11")
else:
    I(f"s_mov_b32 s{s_rot2}, 0")
I(f"s_cmp_lt_u32 s{s_wave}, 4")
I(f"s_cbranch_scc1 {P}_compute")

LOADER_STAGES[0] = "stages" in args.diag
I(f"s_sub_u32 s{s_t3}, s{s_wave}, 4")
vX = [2, 3, 4, 5]; vW = [6, 7, 8]; vU = [10, 11, 12]; vW2 = 13
vFA, vFS, vFN = 20, 21, 22
I("v_lshrrev_b32 v14, 3, v1")
I(f"s_lshl_b32 s{s_t0}, s{s_t3}, 5")
I(f"v_add_u32 v14, s{s_t0}, v14")
I("v_and_b32 v15, 7, v1")
for j in range(4):
    I(f"v_add_u32 v16, {8*j}, v14")
    I("v_lshrrev_b32 v17, 1, v16")
    I("v_and_b32 v17, 7, v17")
    I("v_xor_b32 v17, v17, v15")
    I(f"v_subrev_u32 v16, {j}, v16")
    I("v_lshlrev_b32 v16, 10, v16")
    I(f"v_lshl_add_u32 v{vX[j]}, v17, 4, v16")
I(f"s_and_b32 s{s_t0}, s{s_sl}, 1")
I(f"s_lshl_b32 s{s_t1}, s{s_t3}, 4")
I("v_lshrrev_b32 v14, 2, v1")
I("v_and_b32 v15, 3, v1")
I(f"s_cmp_eq_u32 s{s_t0}, 1")
I("s_cselect_b64 vcc, -1, 0")
I(f"s_cmp_eq_u32 s{s_sl}, 14")
I(f"s_cselect_b32 s{s_t2}, 0, 64")
for j in range(3):
    I(f"v_add_u32 v16, {16*j}, v14")
    I("v_mul_u32_u24 v17, 43, v16")
    I("v_lshrrev_b32 v17, 7, v17")
    I("v_mul_u32_u24 v18, 3, v17")
    I("v_sub_u32 v18, v16, v18")
    I("v_sub_u32 v19, 2, v18")
    I("v_cndmask_b32 v18, v18, v19, vcc")
    I(f"v_mul_u32_u24 v18, s{s_t2}, v18")
    I(f"v_add_u32 v17, s{s_t1}, v17")
    I("v_mul_u32_u24 v17, 2752, v17")
    I("v_add_u32 v17, v17, v18")
    I("v_lshl_add_u32 v17, v15, 4, v17")
    I(f"v_subrev_u32 v{vW[j]}, {1024*j}, v17")
    I(f"v_xor_b32 v{vU[j]}, 32, v{vW[j]}")
I(f"s_lshl_b32 s{s_lx}, s{s_t3}, 12")
I(f"s_mul_i32 s{s_lw}, s{s_t3}, 6144")
I(f"s_add_u32 s{s_lw}, s{s_lw}, {LDS_W}")
I("v_lshrrev_b32 v14, 3, v1")
I(f"s_and_b32 s{s_t0}, s{s_t3}, 1")
I(f"s_lshl_b32 s{s_t0}, s{s_t0}, 3")
I(f"s_lshr_b32 s{s_t1}, s{s_t3}, 1")
I(f"s_mul_i32 s{s_t1}, s{s_t1}, 688")
I(f"s_add_u32 s{s_t0}, s{s_t0}, s{s_t1}")
I(f"v_add_u32 v14, s{s_t0}, v14")
I("v_lshlrev_b32 v14, 10, v14")
I("v_lshrrev_b32 v15, 4, v1")
I("v_and_b32 v15, 1, v15")
I("v_lshlrev_b32 v15, 2, v15")
I("v_and_b32 v16, 7, v1")
I("v_xor_b32 v15, v15, v16")
I(f"v_lshl_add_u32 v{vW2}, v15, 4, v14")
I(f"s_lshl_b32 s{s_pbeg}, s{s_cb}, 7")
I(f"s_add_u32 s{s_pend}, s{s_pbeg}, {43*16384}")
I(f"s_lshl_b32 s{s_t0}, s{s_rot2}, 14")
I(f"s_add_u32 s{s_p}, s{s_pbeg}, s{s_t0}")
I(f"s_lshl_b32 s{s_hoff}, s{s_t3}, 10")
I(f"s_lshr_b32 s{s_t0}, s{s_rb}, 1")
I(f"s_mul_i32 s{s_fl}, s{s_t0}, {4*HSTR*1024}")
I(f"s_add_u32 s{s_fl}, s{s_fl}, {86*1024}")
if args.flagsep:
    I(f"v_min_u32 v14, 15, v1")
    I(f"s_cmp_eq_u32 s{s_t0}, s{s_mt}")
    I(f"s_cselect_b32 s{s_t1}, s{s_sl}, 15")
    I(f"v_cmp_eq_u32 vcc, s{s_t1}, v14")
    I("v_mov_b32 v15, 15")
    I("s_nop 0")
    I("v_cndmask_b32 v14, v14, v15, vcc")
    I("v_lshrrev_b32 v15, 3, v14")
    I(f"v_mul_u32_u24 v15, {HSTR*1024}, v15")
    I("v_and_b32 v14, 7, v14")
    I(f"v_lshl_add_u32 v{vFA}, v14, 7, v15")
else:
    I(f"v_and_b32 v{vFA}, 15, v1")
    I(f"v_lshlrev_b32 v{vFA}, 2, v{vFA}")
I(f"s_lshl_b32 s{s_valid}, 1, s{s_sl}")
I(f"s_cmp_eq_u32 s{s_t0}, s{s_mt}")
I(f"s_cselect_b32 s{s_valid}, s{s_valid}, 0")
I(f"s_lshl_b32 s{s_hoff+1}, s{s_mt}, 17")
I(f"s_mul_i32 s{s_hoff+2}, s{s_sl}, 192")
I(f"s_mov_b32 s{s_ring}, 0")
I(f"s_mov_b32 s{s_cnt}, 0")
I(f"s_mov_b32 s{sX+2}, {XB}"); I(f"s_mov_b32 s{sX+3}, 0x20000")
I(f"s_mov_b32 s{sW1+2}, {WB}"); I(f"s_mov_b32 s{sW1+3}, 0x20000")
I(f"s_mov_b32 s{sW3+2}, {WB}"); I(f"s_mov_b32 s{sW3+3}, 0x20000")
I(f"s_mov_b32 s{sW2+2}, {W2B}"); I(f"s_mov_b32 s{sW2+3}, 0x20000")
I(f"s_mov_b32 s{sH+2}, {WS_REC}"); I(f"s_mov_b32 s{sH+3}, 0x20000")
I(f"s_mov_b32 s{sD+2}, 256"); I(f"s_mov_b32 s{sD+3}, 0x20000")
I("s_waitcnt lgkmcnt(0)")
for r, p in ((sX, 4), (sW1, 6), (sW3, 8), (sW2, 10), (sH, 16), (sD, 14)):
    I(f"s_mov_b32 s{r}, s{p}")
    I(f"s_and_b32 s{r+1}, s{p+1}, 0xffff")
stamp(1)

wcount = [0]
def issueW(ua, ub):
    for u0, n, a in RANGES:
        lo, hi = max(ua, u0), min(ub, u0 + n)
        if lo >= hi: continue
        lab = f"{P}_l_w{wcount[0]}"; wcount[0] += 1
        I(f"s_add_u32 m0, s{s_hoff}, {unit_addr(lo)}")
        I(f"s_mov_b32 s{s_t0}, {hi-lo}")
        L(lab)
        I(f"buffer_load_dwordx4 v{vW2}, {srd(sW2)}, s{s_p} offen lds")
        I(f"s_add_u32 s{s_p}, s{s_p}, 16384")
        I(f"s_cmp_eq_u32 s{s_p}, s{s_pend}")
        I(f"s_cselect_b32 s{s_p}, s{s_pbeg}, s{s_p}")
        I("s_add_u32 m0, m0, 4096")
        I(f"s_sub_u32 s{s_t0}, s{s_t0}, 1")
        I(f"s_cmp_lg_u32 s{s_t0}, 0")
        I(f"s_cbranch_scc1 {lab}")

pfc = [0]
def prefetch_jobs(is_loader):
    tag = pfc[0]; pfc[0] += 1
    I(f"s_and_b32 s{s_t2}, s{s_slot}, 1")
    if args.jobA:
        I(f"s_lshl_b32 s{s_t0}, s{s_xcd}, 1")
        I(f"s_add_u32 s{s_t0}, s{s_t0}, s{s_t2}")
        I("v_lshlrev_b32 v40, 10, v1")
        I("v_lshlrev_b32 v41, 7, v1")
        I(f"s_lshl_b32 s{s_t1}, s{s_t0}, 17")
        I(f"s_and_b32 s{s_t3}, s{s_wave}, 1")
        I(f"s_lshl_b32 s{s_cnt}, s{s_t3}, 16")
        I(f"s_add_u32 s{s_t1}, s{s_t1}, s{s_cnt}")
        I(f"s_lshr_b32 s{s_cnt}, s{s_wave}, 1")
        I(f"s_add_u32 s{s_kst}, s{s_cnt}, {args.jobA}")
        I(f"s_lshl_b32 s{s_kst}, s{s_kst}, 7")
        I(f"s_add_u32 s{s_sx}, s{s_t1}, s{s_kst}")
        i0 = (args.jobA * 43) // 2
        I(f"s_lshl_b32 s{s_cnt}, s{s_cnt}, 4")
        I(f"s_add_u32 s{s_cnt}, s{s_cnt}, s{s_t0}")
        I(f"s_add_u32 s{s_cnt}, s{s_cnt}, {i0}")
        I(f"s_lshl_b32 s{s_sw}, s{s_cnt}, 13")
        I(f"s_cmp_eq_u32 s{s_t3}, 0")
        I(f"s_cselect_b32 s{sW1}, s{sW1}, s{sW3}")
        I(f"s_cselect_b32 s{sW1+1}, s{sW1+1}, s{sW3+1}")
        nx = (8 - args.jobA + 3) // 4
        nw = (172 - i0 + 63) // 64
        for n in range(max(nx, nw)):
            if n < nx:
                if args.jobA + 4 * n + 3 >= 8:
                    I(f"s_cmp_ge_u32 s{s_kst}, {(8 - 4*n)*128}")
                    I(f"s_cbranch_scc1 {P}_pf{tag}_x{n}")
                I(f"buffer_load_dword v42, v40, {srd(sX)}, s{s_sx} offen offset:{512*n}")
                L(f"{P}_pf{tag}_x{n}")
            if n < nw:
                I(f"s_cmp_ge_u32 s{s_sw}, {WB}")
                I(f"s_cbranch_scc1 {P}_pf{tag}_w{n}")
                I(f"buffer_load_dword v43, v41, {srd(sW1)}, s{s_sw} offen")
                L(f"{P}_pf{tag}_w{n}")
                I(f"s_add_u32 s{s_sw}, s{s_sw}, {64*8192}")
    if args.jobX:
        I("v_lshlrev_b32 v40, 10, v1")
        I(f"s_and_b32 s{s_t0}, s{s_xcd}, 3")
        I(f"s_lshl_b32 s{s_t0}, s{s_t0}, 19")
        I(f"s_lshl_b32 s{s_t1}, s{s_wave}, 16")
        I(f"s_add_u32 s{s_t0}, s{s_t0}, s{s_t1}")
        I(f"s_add_u32 s{s_t1}, s{s_kst}, s{s_t2}")
        I(f"s_add_u32 s{s_t1}, s{s_t1}, 2")
        I(f"s_and_b32 s{s_t1}, s{s_t1}, 7")
        I(f"s_lshl_b32 s{s_t1}, s{s_t1}, 7")
        I(f"s_add_u32 s{s_t0}, s{s_t0}, s{s_t1}")
        I(f"buffer_load_dword v42, v40, {srd(sX)}, s{s_t0} offen")
    if args.jobM:
        I("v_lshlrev_b32 v41, 7, v1")
        I(f"s_lshl_b32 s{s_t0}, s{s_xcd}, 1")
        I(f"s_add_u32 s{s_t0}, s{s_t0}, s{s_t2}")
        I(f"s_lshl_b32 s{s_t1}, s{s_wave}, 4")
        I(f"s_add_u32 s{s_t0}, s{s_t0}, s{s_t1}")
        I(f"s_lshl_b32 s{s_t0}, s{s_t0}, 13")
        I(f"buffer_load_dword v43, v41, {srd(sW2)}, s{s_t0} offen")
        I(f"s_add_u32 s{s_t0}, s{s_t0}, {128*8192}")
        I(f"s_cmp_ge_u32 s{s_t0}, {W2B}")
        I(f"s_cbranch_scc1 {P}_pf{tag}_m")
        I(f"buffer_load_dword v43, v41, {srd(sW2)}, s{s_t0} offen")
        L(f"{P}_pf{tag}_m")
        I(f"s_cmp_ge_u32 s{s_wave}, 0")
        I(f"s_cbranch_scc1 {P}_pf{tag}_u")
        I(f"s_lshr_b32 s{s_t0}, s{s_wave}, 1")
        I(f"s_mul_i32 s{s_t0}, s{s_t0}, 11")
        I(f"s_and_b32 s{s_t1}, s{s_wave}, 1")
        I(f"s_add_u32 s{s_t0}, s{s_t0}, s{s_t1}")
        I(f"s_add_u32 s{s_t0}, s{s_t0}, 9")
        I(f"s_mul_i32 s{s_t1}, s{s_t2}, 43")
        I(f"s_add_u32 s{s_t0}, s{s_t0}, s{s_t1}")
        I(f"s_lshl_b32 s{s_t0}, s{s_t0}, 14")
        I(f"buffer_load_dword v43, v41, {srd(sW2)}, s{s_t0} offen")
        I(f"s_add_u32 s{s_t0}, s{s_t0}, 8192")
        I(f"buffer_load_dword v43, v41, {srd(sW2)}, s{s_t0} offen")
        L(f"{P}_pf{tag}_u")
    if is_loader:
        issueW(0, 39)
    if args.jobB:
        for j in range(3):
            I(f"v_add_u32 v44, {64*j}, v1")
            I("v_mul_u32_u24 v45, 171, v44")
            I("v_lshrrev_b32 v45, 10, v45")
            I("v_mul_u32_u24 v46, 6, v45")
            I("v_sub_u32 v46, v44, v46")
            I("v_lshlrev_b32 v45, 10, v45")
            I(f"v_lshl_add_u32 v{48+j}, v46, 7, v45")
        I(f"s_lshl_b32 s{s_t0}, s{s_wave}, 1")
        I(f"s_add_u32 s{s_t0}, s{s_t0}, s{s_t2}")
        I(f"s_lshl_b32 s{s_t0}, s{s_t0}, 15")
        for n in range(args.jobB):
            I(f"s_cmp_ge_u32 s{s_t0}, {args.bmax*32768}")
            I(f"s_cbranch_scc1 {P}_pf{tag}_b{n}")
            for j in range(3):
                I(f"buffer_load_dword v47, v{48+j}, {srd(sW2)}, s{s_t0} offen")
            L(f"{P}_pf{tag}_b{n}")
            I(f"s_add_u32 s{s_t0}, s{s_t0}, {16*32768}")

I(f"s_cmp_ge_u32 s{s_sl}, 15")
I(f"s_cbranch_scc1 {P}_l_idle")
if args.stouch:
    nst = 8 - args.stouch
    I(f"s_lshl_b32 s{s_t0}, s{s_slot}, 2")
    I(f"s_add_u32 s{s_t0}, s{s_t0}, s{s_wave}")
    I(f"s_add_u32 s{s_t0}, s{s_t0}, {1376 - nst*120 - 4}")
    I(f"s_lshl_b32 s{s_t0}, s{s_t0}, 10")
    I(f"s_add_u32 s18, s10, s{s_t0}")
    I("s_addc_u32 s19, s11, 0")
TR = [int(t) for t in args.trickle.split(",")]
assert sum(TR) <= 9
wdone = 0
for c in range(8):
    ring = c % 3
    if "nodma" in args.diag and c >= 3:
        I("s_barrier"); stamp(c - 1, True); continue
    I(f"s_lshl_b32 s{s_t0}, s{s_kst}, 7")
    I(f"s_add_u32 s{s_sx}, s{s_hoff+1}, s{s_t0}")
    I(f"s_add_u32 m0, s{s_lx}, {ring*16384}")
    I(f"s_mul_i32 s{s_sw}, s{s_kst}, {64*2752}")
    for j in range(4):
        I(f"buffer_load_dwordx4 v{vX[j]}, {srd(sX)}, s{s_sx} offen offset:{1024*j} lds")
    I(f"s_add_u32 m0, s{s_lw}, {ring*24576}")
    I(f"s_add_u32 s{s_sw}, s{s_sw}, s{s_hoff+2}")
    for j in range(3):
        I(f"buffer_load_dwordx4 v{vW[j]}, {srd(sW1)}, s{s_sw} offen offset:{1024*j} lds")
    I("s_add_u32 m0, m0, 3072")
    I(f"s_add_u32 s{s_kst}, s{s_kst}, 1")
    for j in range(3):
        I(f"buffer_load_dwordx4 v{vU[j]}, {srd(sW3)}, s{s_sw} offen offset:{1024*j} lds")
    I(f"s_and_b32 s{s_kst}, s{s_kst}, 7")
    if c == 0:
        I(f"buffer_load_dword v{vFS}, v{vFA}, {srd(sH)}, s{s_fl} offen sc1")
    if TR[c]:
        issueW(wdone, wdone + TR[c]); wdone += TR[c]
    if args.stouch and c >= args.stouch:
        for j in range(12):
            I(f"s_load_dword s3, s[18:19], {(c - args.stouch)*120*1024 + 64*j}")
    if c >= 1:
        I(f"s_waitcnt vmcnt({TR[c-1] + 10 + TR[c]})")
        if "pre" in args.diag and c >= 2: stamp(c - 1, True)
        I("s_barrier")
        if LOADER_STAGES[0] and "pre" not in args.diag and c >= 2: stamp(c - 1, True)
stamp(2)
issueW(wdone, wdone + args.atb6)
I(f"s_waitcnt vmcnt({TR[7] + args.atb6})")
wdone += args.atb6
assert wdone <= 19
if "pre" in args.diag: stamp(7, True)
I("s_barrier")
if LOADER_STAGES[0] and "pre" not in args.diag: stamp(7, True)
stamp(3)
issueW(wdone, wdone + args.atb7); wdone += args.atb7
assert wdone <= 29
I("s_waitcnt vmcnt(0)")
stamp(4)
I("s_barrier")
I(f"s_cmp_eq_u32 s{s_wave}, 4")
I(f"s_cbranch_scc1 {P}_l_first")
I("s_sleep 1")
issueW(wdone, 39)
stamp(5)
I(f"s_branch {P}_l_go")
L(f"{P}_l_idle")
I(f"buffer_load_dword v{vFS}, v{vFA}, {srd(sH)}, s{s_fl} offen sc1")
prefetch_jobs(True)
I("s_waitcnt vmcnt(0)")
I("s_barrier")
I(f"s_cmp_lg_u32 s{s_wave}, 4")
I(f"s_cbranch_scc1 {P}_l_go")
I(f"s_branch {P}_l_pollinit")
L(f"{P}_l_first")
I(f"s_mov_b32 s{s_ring}, 0")
if args.firstpoll:
    I(f"buffer_load_dword v{vFN}, v{vFA}, {srd(sH)}, s{s_fl} offen sc1")
    I(f"v_mov_b32 v17, {LDS_SCR+4}")
    I("v_mov_b32 v19, 1")
    I("s_waitcnt vmcnt(0)")
    I(f"v_cmp_ne_u32 vcc, v{vFN}, v{vFS}")
    I(f"s_or_b32 s{s_t2}, vcc_lo, s{s_valid}")
    I(f"s_and_b32 s{s_t2}, s{s_t2}, 0x7fff")
    I(f"s_cmp_eq_u32 s{s_t2}, 0x7fff")
    I(f"s_cselect_b32 s{s_ring}, 1, 0")
    I(f"s_cbranch_scc0 {P}_l_notyet")
    I("ds_write_b32 v17, v19")
else:
    I("s_sleep 1")
L(f"{P}_l_notyet")
issueW(wdone, 39)
stamp(5)
I(f"s_cmp_eq_u32 s{s_ring}, 1")
I(f"s_cbranch_scc1 {P}_l_go")
L(f"{P}_l_pollinit")
I(f"s_lshr_b32 s{s_t1}, s{s_rb}, 1")
I(f"s_lshl_b32 s{s_t1}, s{s_t1}, 4")
I("v_mov_b32 v18, 0")
I(f"v_mov_b32 v17, {LDS_SCR+4}")
I("v_mov_b32 v19, 1")
I(f"s_mov_b32 s{s_cnt}, 0")
L(f"{P}_l_poll")
I(f"buffer_load_dword v{vFN}, v{vFA}, {srd(sH)}, s{s_fl} offen sc1")
I(f"s_add_u32 s{s_cnt}, s{s_cnt}, 1")
I("s_waitcnt vmcnt(0)")
I(f"v_cmp_ne_u32 vcc, v{vFN}, v{vFS}")
I(f"s_and_b32 s{s_t0}, s{s_cnt}, 31")
I(f"s_or_b32 s{s_t2}, vcc_lo, s{s_valid}")
I(f"s_and_b32 s{s_t2}, s{s_t2}, 0x7fff")
I(f"s_cmp_eq_u32 s{s_t2}, 0x7fff")
I(f"s_cbranch_scc1 {P}_l_ok")
if args.sleep: I(f"s_sleep {args.sleep}")
I(f"s_cmp_lg_u32 s{s_t0}, 0")
I(f"s_cbranch_scc1 {P}_l_poll")
I(f"buffer_load_dword v16, v18, {srd(sD)}, s{s_t1} offen sc1")
I("s_waitcnt vmcnt(0)")
I(f"v_readfirstlane_b32 s{s_t0}, v16")
I(f"s_cmp_ge_u32 s{s_cnt}, 400000")
I(f"s_cbranch_scc1 {P}_l_ok")
I(f"s_or_b32 s{s_t2}, s{s_t2}, s{s_t0}")
I(f"s_cmp_lg_u32 s{s_t2}, 0x7fff")
I(f"s_cbranch_scc1 {P}_l_poll")
L(f"{P}_l_ok")
I("ds_write_b32 v17, v19")
L(f"{P}_l_go")
stamp(6)
I("s_barrier")
issueW(39, 43)
I(f"s_cmp_lg_u32 s{s_wave}, 5")
I(f"s_cbranch_scc1 {P}_l_nofb")
I(f"s_cmp_ge_u32 s{s_sl}, 15")
I(f"s_cbranch_scc1 {P}_l_nofb")
I(f"s_lshl_b32 s{s_t0}, 1, s{s_sl}")
I(f"s_lshl_b32 s{s_t1}, s{s_mt}, 4")
I(f"v_mov_b32 v17, s{s_t0}")
I("v_mov_b32 v18, 0")
I("s_mov_b64 exec, 1")
I(f"buffer_atomic_add v17, v18, {srd(sD)}, s{s_t1} offen sc1")
I("s_mov_b64 exec, -1")
I("s_waitcnt vmcnt(1)")
I(f"s_branch {P}_l_fin")
L(f"{P}_l_nofb")
I("s_waitcnt vmcnt(0)")
L(f"{P}_l_fin")
I("s_barrier")
prof_store()
L(f"{P}_end")
I("s_endpgm")

LOADER_STAGES[0] = "p2" in args.diag
L(f"{P}_compute")
if args.codepf:
    I("s_getpc_b64 s[18:19]")
    L(f"{P}_pc")
    I(f"s_lshl_b32 s{s_t0}, s{s_wave}, 7")
    I(f"s_add_u32 s18, s18, s{s_t0}")
    I("s_addc_u32 s19, s19, 0")
    out.append("@CODEPF@")
vAX = [2, 3, 4, 5]; vAW = [6, 7, 8]
ACC = 64
FA, FB = 160, 180
vOLD = 20
I(f"s_and_b32 s{s_t0}, s{s_wave}, 1")
I(f"s_lshl_b32 s{s_t0}, s{s_t0}, 6")
I("v_and_b32 v10, 31, v1")
I(f"v_add_u32 v10, s{s_t0}, v10")
I("v_lshrrev_b32 v11, 1, v10")
I("v_and_b32 v11, 7, v11")
I("v_lshrrev_b32 v12, 5, v1")
I("v_lshlrev_b32 v10, 7, v10")
for ks in range(4):
    I(f"v_add_u32 v13, {2*ks}, v12")
    I("v_xor_b32 v13, v13, v11")
    I(f"v_lshl_add_u32 v{vAX[ks]}, v13, 4, v10")
I("v_lshrrev_b32 v10, 4, v1")
I("v_and_b32 v11, 1, v10")
I("v_lshrrev_b32 v10, 1, v10")
I("v_lshrrev_b32 v12, 2, v1")
I("v_and_b32 v12, 3, v12")
I("v_lshl_add_u32 v12, v10, 3, v12")
I("v_mul_u32_u24 v12, 192, v12")
I("v_mul_u32_u24 v13, 3072, v11")
I("v_add_u32 v12, v12, v13")
I("v_and_b32 v13, 1, v1")
I("v_lshl_add_u32 v12, v13, 4, v12")
I("v_lshrrev_b32 v13, 1, v1")
I("v_and_b32 v13, 1, v13")
I("v_lshl_add_u32 v12, v13, 3, v12")
I(f"v_add_u32 v12, {LDS_W}, v12")
I("v_lshlrev_b32 v11, 5, v11")
I(f"s_lshr_b32 s{s_t0}, s{s_wave}, 1")
I(f"s_mul_i32 s{s_t0}, s{s_t0}, 3")
for t in range(3):
    I(f"s_add_u32 s{s_t1}, s{s_t0}, {t}")
    I(f"s_lshr_b32 s{s_t2}, s{s_t1}, 1")
    I(f"s_lshl_b32 s{s_t2}, s{s_t2}, 6")
    I(f"s_and_b32 s{s_t1}, s{s_t1}, 1")
    I(f"s_lshl_b32 s{s_t1}, s{s_t1}, 5")
    I(f"v_xor_b32 v13, s{s_t1}, v11")
    I(f"v_add3_u32 v{vAW[t]}, v12, v13, s{s_t2}")
for r in range(96):
    I(f"v_mov_b32 v{ACC+r}, 0")
I(f"s_and_b32 s{s_t3}, s{s_sl}, 1")
I(f"s_and_b32 s{s_t1}, s{s_wave}, 1")
I(f"s_lshl_b32 s{s_t1}, s{s_t1}, 1")
I(f"s_lshl_b32 s{s_cnt}, s{s_mt}, 2")
I(f"s_add_u32 s{s_t1}, s{s_t1}, s{s_cnt}")
I(f"s_mul_i32 s{s_p}, s{s_t1}, {HSTR}")
I(f"s_mul_i32 s{s_cnt}, s{s_sl}, 6")
I(f"s_add_u32 s{s_p}, s{s_p}, s{s_cnt}")
for t in range(3):
    I(f"s_add_u32 s{s_t1}, s{s_t0}, {t}")
    I(f"s_lshr_b32 s{s_t2}, s{s_t1}, 1")
    I(f"s_sub_u32 s{s_cnt}, 2, s{s_t2}")
    I(f"s_cmp_eq_u32 s{s_t3}, 1")
    I(f"s_cselect_b32 s{s_t2}, s{s_cnt}, s{s_t2}")
    I(f"s_lshl_b32 s{s_t2}, s{s_t2}, 1")
    I(f"s_and_b32 s{s_t1}, s{s_t1}, 1")
    I(f"s_add_u32 s{s_t2}, s{s_t2}, s{s_t1}")
    I(f"s_add_u32 s{s_t2}, s{s_t2}, s{s_p}")
    I(f"s_lshl_b32 s{s_hoff+2*t}, s{s_t2}, 10")
    I(f"s_add_u32 s{s_hoff+2*t+1}, s{s_hoff+2*t}, {HSTR*1024}")
I(f"s_cmp_eq_u32 s{s_t0}, 0")
I(f"s_cselect_b32 s{s_t1}, 2, 0")
I(f"s_cmp_eq_u32 s{s_sl}, 14")
I(f"s_cselect_b32 s{s_valid}, s{s_t1}, 3")
I(f"s_mov_b32 s{s_k}, 0xbfb8aa3b")
I(f"s_mov_b32 s{s_k+1}, 0xbfb8aa3b")
I(f"s_mov_b32 s{s_one}, 1.0")
I(f"s_mov_b32 s{s_one+1}, 1.0")
I("v_lshlrev_b32 v9, 4, v1")
I(f"s_mul_i32 s{s_fl}, s{s_mt}, {4*HSTR*1024}")
if args.flagsep:
    I(f"s_lshr_b32 s{s_t1}, s{s_sl}, 3")
    I(f"s_mul_i32 s{s_t1}, s{s_t1}, {HSTR*1024}")
    I(f"s_add_u32 s{s_fl}, s{s_fl}, s{s_t1}")
    I(f"s_and_b32 s{s_t1}, s{s_sl}, 7")
    I(f"s_lshl_b32 s{s_t1}, s{s_t1}, 7")
else:
    I(f"s_lshl_b32 s{s_t1}, s{s_sl}, 2")
I(f"s_add_u32 s{s_fl}, s{s_fl}, s{s_t1}")
I(f"s_add_u32 s{s_fl}, s{s_fl}, {86*1024}")
I("v_mov_b32 v21, 0")
I(f"v_mov_b32 v22, {LDS_SCR}")
I("ds_write_b32 v22, v21")
I("ds_write_b32 v22, v21 offset:4")
vB = [[10, 11], [12, 13], [14, 15]]
WF = 128; HR = 160; R = args.hring
I("v_lshrrev_b32 v16, 4, v1")
I("v_lshrrev_b32 v17, 1, v16")
I("v_lshrrev_b32 v18, 2, v1")
I("v_and_b32 v18, 3, v18")
I("v_lshl_add_u32 v17, v17, 3, v18")
I("v_lshlrev_b32 v17, 7, v17")
I("v_and_b32 v16, 1, v16")
I("v_and_b32 v19, 1, v1")
I("v_lshl_add_u32 v16, v19, 1, v16")
I("v_lshrrev_b32 v18, 1, v18")
I("v_lshlrev_b32 v18, 2, v18")
I(f"s_lshr_b32 s{s_t0}, s{s_wave}, 1")
I(f"s_lshl_b32 s{s_t1}, s{s_t0}, 2")
I(f"v_xor_b32 v18, s{s_t1}, v18")
I("v_xor_b32 v16, v16, v18")
I("v_lshl_add_u32 v17, v16, 4, v17")
I("v_lshrrev_b32 v19, 1, v1")
I("v_and_b32 v19, 1, v19")
I("v_lshl_add_u32 v17, v19, 3, v17")
I(f"s_lshl_b32 s{s_t1}, s{s_t0}, 11")
I(f"v_add_u32 v{vB[0][0]}, s{s_t1}, v17")
I(f"v_xor_b32 v{vB[0][1]}, 64, v{vB[0][0]}")
for sg in (1, 2):
    for nb in range(2):
        I(f"v_add_u32 v{vB[sg][nb]}, {sg*65536}, v{vB[0][nb]}")
I(f"s_and_b32 s{s_t1}, s{s_wave}, 1")
I(f"s_lshl_b32 s{s_t2}, s{s_rb}, 1")
I(f"s_add_u32 s{s_t1}, s{s_t1}, s{s_t2}")
I(f"s_mul_i32 s{s_t2}, s{s_t1}, {HSTR}")
I(f"s_mul_i32 s{s_t3}, s{s_t0}, 43")
I(f"s_add_u32 s{s_t2}, s{s_t2}, s{s_t3}")
I(f"s_lshl_b32 s{s_pbeg}, s{s_t2}, 10")
I(f"s_add_u32 s{s_pend}, s{s_pbeg}, {43*1024}")
I(f"s_lshl_b32 s{s_t2}, s{s_rot2}, 10")
I(f"s_add_u32 s{s_p}, s{s_pbeg}, s{s_t2}")
I("v_and_b32 v16, 31, v1")
I("v_lshlrev_b32 v16, 10, v16")
I("v_lshrrev_b32 v17, 5, v1")
I("v_lshl_add_u32 v16, v17, 5, v16")
I(f"s_lshl_b32 s{s_t1}, s{s_t1}, 15")
I(f"s_lshl_b32 s{s_t2}, s{s_cb}, 7")
I(f"s_add_u32 s{s_t1}, s{s_t1}, s{s_t2}")
I(f"s_lshl_b32 s{s_t2}, s{s_t0}, 6")
I(f"s_add_u32 s{s_t1}, s{s_t1}, s{s_t2}")
I(f"v_add_u32 v16, s{s_t1}, v16")
I(f"s_lshl_b32 s{s_t1}, s{s_wave}, 12")
I(f"s_add_u32 s{s_t1}, s{s_t1}, {XCH}")
I(f"v_add_u32 v17, s{s_t1}, v9")
I(f"s_xor_b32 s{s_t2}, s{s_wave}, 2")
I(f"s_lshl_b32 s{s_t2}, s{s_t2}, 12")
I(f"s_add_u32 s{s_t2}, s{s_t2}, {XCH}")
I(f"v_add_u32 v18, s{s_t2}, v9")
I("s_waitcnt lgkmcnt(0)")
make_srd(sH, 16, WS_REC)
make_srd(sO, 12, OB)
make_srd(sD, 14, 256)
make_srd(sW2, 10, W2B)
if args.jobA or args.jobX:
    make_srd(sX, 4, XB); make_srd(sW1, 6, WB); make_srd(sW3, 8, WB)
if args.prio: I(f"s_setprio {args.prio}")
I(f"buffer_load_dword v{vOLD}, v21, {srd(sH)}, s{s_fl} offen sc1")
if args.amp.startswith("g"):
    I(f"s_not_b32 s{s_t1}, s{s_prof}")
    I(f"v_mov_b32 v60, s{s_t1}")
    I("s_mov_b64 exec, 1")
    I(f"buffer_atomic_umax v60, v21, {srd(sD)}, 0 offen offset:252 sc1")
    I("s_mov_b64 exec, -1")
if args.tlb:
    I(f"s_cmp_lg_u32 s{s_wave}, 0")
    I(f"s_cbranch_scc1 {P}_c_notlb")
    I("s_mov_b64 exec, 1")
    I(f"buffer_load_dword v28, v16, {srd(sO)}, 0 offen")
    I(f"buffer_load_dword v29, v21, {srd(sD)}, 0 offen sc1")
    I(f"buffer_load_dword v30, v21, {srd(sW2)}, 0 offen")
    I(f"s_mov_b32 s{s_t1}, {W2B-128}")
    I(f"buffer_load_dword v31, v21, {srd(sW2)}, s{s_t1} offen")
    I(f"s_add_u32 s{s_t1}, s{s_fl}, {3*HSTR*1024}")
    I(f"buffer_load_dword v32, v21, {srd(sH)}, s{s_t1} offen sc1")
    I("s_mov_b64 exec, -1")
    L(f"{P}_c_notlb")
I(f"s_cmp_ge_u32 s{s_sl}, 15")
I(f"s_cbranch_scc1 {P}_c_idle")

def reads(ks, fs):
    if "nolds" in args.diag: return ["s_nop 0"] * 8
    r = []
    r.append(f"ds_read_b128 v[{fs}:{fs+3}], v{vAX[ks]}")
    for h in range(2):
        r.append(f"ds_read_b64_tr_b16 v[{fs+8+2*h}:{fs+9+2*h}], v{vAW[0]} offset:{ks*6144+h*768}")
    r.append(f"ds_read_b128 v[{fs+4}:{fs+7}], v{vAX[ks]} offset:4096")
    for t in (1, 2):
        for h in range(2):
            r.append(f"ds_read_b64_tr_b16 v[{fs+8+4*t+2*h}:{fs+9+4*t+2*h}], v{vAW[t]} offset:{ks*6144+h*768}")
    return r
def mfmas(fs):
    m = []
    for t in range(3):
        for mb in range(2):
            a = ACC + (t * 2 + mb) * 16
            if "m16" in args.diag:
                o = 0 if fs == FA else 8
                m.append(f"v_mfma_f32_16x16x32_bf16 v[{a+o}:{a+o+3}], v[{fs+8+4*t}:{fs+11+4*t}], v[{fs+4*mb}:{fs+4*mb+3}], v[{a+o}:{a+o+3}]\n"
                         f"    v_mfma_f32_16x16x32_bf16 v[{a+o+4}:{a+o+7}], v[{fs+8+4*((t+1)%3)}:{fs+11+4*((t+1)%3)}], v[{fs+4*mb}:{fs+4*mb+3}], v[{a+o+4}:{a+o+7}]")
            elif "nomfma" in args.diag:
                m.append("s_nop 7")
            else:
                m.append(f"v_mfma_f32_32x32x16_bf16 v[{a}:{a+15}], v[{fs+8+4*t}:{fs+11+4*t}], v[{fs+4*mb}:{fs+4*mb+3}], v[{a}:{a+15}]")
    return m
I(f"s_mov_b32 s{s_cnt}, 0")
I(f"s_mov_b32 s{s_ring}, 0")
I(f"s_mov_b32 s{s_sx}, 16384")
I(f"s_mov_b32 s{s_sw}, 24576")
I("s_barrier")
stamp(1)
for r in reads(0, FA): I(r)
L(f"{P}_c_loop")
for ks in range(3):
    cur, nxt = (FA, FB) if ks % 2 == 0 else (FB, FA)
    I("s_waitcnt lgkmcnt(0)")
    m = mfmas(cur); r = reads(ks + 1, nxt)
    for i in range(6):
        I(m[i])
        if i < 4:
            I(r[2*i]); I(r[2*i+1])
I("s_waitcnt lgkmcnt(0)")
m = mfmas(FB)
I(m[0])
I(f"s_add_u32 s{s_ring}, s{s_ring}, 1")
I(f"s_cmp_eq_u32 s{s_ring}, 3")
I(f"s_cselect_b32 s{s_t0}, {-32768 & 0xffffffff}, s{s_sx}")
I(f"s_cselect_b32 s{s_t1}, {-49152 & 0xffffffff}, s{s_sw}")
I(f"s_cselect_b32 s{s_ring}, 0, s{s_ring}")
I(m[1])
for ks in range(4): I(f"v_add_u32 v{vAX[ks]}, s{s_t0}, v{vAX[ks]}")
I(m[2])
for t in range(3): I(f"v_add_u32 v{vAW[t]}, s{s_t1}, v{vAW[t]}")
I("s_barrier")
r = reads(0, FA)
I(r[0]); I(r[1]); I(r[2])
I(m[3])
I(r[3]); I(r[4]); I(r[5])
I(m[4])
I(r[6]); I(r[7])
I(m[5])
I(f"s_add_u32 s{s_cnt}, s{s_cnt}, 1")
I(f"s_cmp_lt_u32 s{s_cnt}, 7")
I(f"s_cbranch_scc1 {P}_c_loop")
stamp(2)
XL, WL, T = 180, 204, 32
def xreg(ks, mb): return FA + 4 * mb if ks == 0 else XL + 4 * ((ks - 1) * 2 + mb)
def wreg(ks, t): return FA + 8 + 4 * t if ks == 0 else WL + 4 * (t * 3 + ks - 1)
def xrd(ks, mb): return [f"ds_read_b128 v[{xreg(ks,mb)}:{xreg(ks,mb)+3}], v{vAX[ks]} offset:{4096*mb}"]
def wrd(ks, t): return [f"ds_read_b64_tr_b16 v[{wreg(ks,t)+2*h}:{wreg(ks,t)+2*h+1}], v{vAW[t]} offset:{ks*6144+h*768}" for h in range(2)]
def mf(t, mb, ks):
    a = ACC + (t * 2 + mb) * 16
    return f"v_mfma_f32_32x32x16_bf16 v[{a}:{a+15}], v[{wreg(ks,t)}:{wreg(ks,t)+3}], v[{xreg(ks,mb)}:{xreg(ks,mb)+3}], v[{a}:{a+15}]"
def epi(t, mb):
    a = ACC + (t * 2 + mb) * 16
    tm = T + mb * 12; o = tm + 8
    v = []
    for p in range(4): v.append(f"v_pk_mul_f32 v[{tm+2*p}:{tm+2*p+1}], v[{a+2*p}:{a+2*p+1}], s[{s_k}:{s_k+1}]")
    for q in range(8): v.append(f"v_exp_f32 v{tm+q}, v{tm+q}")
    for p in range(4): v.append(f"v_pk_add_f32 v[{tm+2*p}:{tm+2*p+1}], v[{tm+2*p}:{tm+2*p+1}], s[{s_one}:{s_one+1}]")
    for q in range(8): v.append(f"v_rcp_f32 v{tm+q}, v{tm+q}")
    for p in range(4): v.append(f"v_pk_mul_f32 v[{tm+2*p}:{tm+2*p+1}], v[{tm+2*p}:{tm+2*p+1}], v[{a+2*p}:{a+2*p+1}]")
    for p in range(4): v.append(f"v_pk_mul_f32 v[{tm+2*p}:{tm+2*p+1}], v[{tm+2*p}:{tm+2*p+1}], v[{a+8+2*p}:{a+9+2*p}]")
    for p in range(4): v.append(f"v_cvt_pk_bf16_f32 v{o+p}, v{tm+2*p}, v{tm+2*p+1}")
    v.append(("store", t, mb, o))
    if args.nopk and (t * 2 + mb) < args.nopk:
        v = []
        for q in range(8): v.append(f"v_mul_f32 v{tm+q}, s{s_k}, v{a+q}")
        for q in range(8): v.append(f"v_exp_f32 v{tm+q}, v{tm+q}")
        for q in range(8): v.append(f"v_add_f32 v{tm+q}, 1.0, v{tm+q}")
        for q in range(8): v.append(f"v_rcp_f32 v{tm+q}, v{tm+q}")
        for q in range(8): v.append(f"v_mul_f32 v{tm+q}, v{tm+q}, v{a+q}")
        for q in range(8): v.append(f"v_mul_f32 v{tm+q}, v{tm+q}, v{a+8+q}")
        for p in range(4): v.append(f"v_cvt_pk_bf16_f32 v{o+p}, v{tm+2*p}, v{tm+2*p+1}")
        v.append(("store", t, mb, o))
    return v
def emit_v(x):
    if isinstance(x, tuple):
        _, t, mb, o = x
        I(f"s_cmp_le_u32 s{s_valid}, {t}")
        I(f"s_cbranch_scc1 {P}_c_ns{t}{mb}")
        I(f"buffer_store_dwordx4 v[{o}:{o+3}], v9, {srd(sH)}, s{s_hoff+2*t+mb} offen {HST}")
        L(f"{P}_c_ns{t}{mb}")
    else:
        I(x)
g1 = []
for ks in (1, 2, 3): g1 += xrd(ks, 0) + wrd(ks, 0)
for r in g1[:6]: I(r)
I("s_waitcnt lgkmcnt(6)")
I(mf(0, 0, 0))
for r in g1[6:]: I(r)
for ks in (1, 2, 3): I(xrd(ks, 1)[0])
I("s_waitcnt lgkmcnt(9)")
I(mf(0, 0, 1))
for r in wrd(1, 1) + wrd(2, 1): I(r)
I("s_waitcnt lgkmcnt(10)")
I(mf(0, 0, 2))
for r in wrd(3, 1): I(r)
I("s_waitcnt lgkmcnt(9)")
I(mf(0, 0, 3))
for r in wrd(1, 2) + wrd(2, 2): I(r)
I(mf(0, 1, 0))
for r in wrd(3, 2): I(r)
I("s_waitcnt lgkmcnt(12)")
I(mf(0, 1, 1))
I("v_mov_b32 v23, 1")
I("s_nop 3")
tiles = [(t, mb) for t in range(3) for mb in range(2)]
rem = [(0, 1, 2), (0, 1, 3)] + [(t, mb, ks) for (t, mb) in tiles[2:] for ks in range(4)]
vq = []
avail = {0: 0}
vq += epi(0, 0)
nxt_tile = 1
PER = args.per
since = {}
for i, (t, mb, ks) in enumerate(rem):
    if (t, mb, ks) == (1, 0, 0):
        I("s_waitcnt lgkmcnt(0)")
    I(mf(t, mb, ks))
    if ks == 3: since[tiles.index((t, mb))] = i
    n = 0
    while n < PER:
        if not vq:
            if nxt_tile in since and i - since[nxt_tile] >= 2:
                vq += epi(*tiles[nxt_tile]); nxt_tile += 1
            else:
                break
        emit_v(vq.pop(0)); n += 1
while vq or nxt_tile < 6:
    if not vq:
        if nxt_tile == 5: I("s_nop 7"); I("s_nop 3")
        vq += epi(*tiles[nxt_tile]); nxt_tile += 1
    emit_v(vq.pop(0))
stamp(3)
I("s_waitcnt vmcnt(0)")
I(f"v_add_u32 v{vOLD}, 1, v{vOLD}")
I("s_barrier")
I(f"s_cmp_lg_u32 s{s_wave}, 0")
I(f"s_cbranch_scc1 {P}_c_p2")
I("s_mov_b64 exec, 1")
I(f"buffer_store_dword v{vOLD}, v21, {srd(sH)}, s{s_fl} offen sc1")
I("s_mov_b64 exec, -1")
I(f"s_branch {P}_c_p2")
L(f"{P}_c_idle")
prefetch_jobs(False)
I("s_barrier")
L(f"{P}_c_p2")
stamp(4)
def wreads(u, dst):
    a = unit_addr(u); sg = a >> 16; off = a & 0xffff
    r = []
    for nb in range(2):
        for h in range(2):
            r.append(f"ds_read_b64_tr_b16 v[{dst+4*nb+2*h}:{dst+4*nb+2*h+1}], v{vB[sg][nb]} offset:{off+h*512}")
    return r
NW = 3
wdst = lambda u: WF + 8 * (u % NW)
for u in range(2):
    for r in wreads(u, wdst(u)): I(r)
for r in range(32):
    I(f"v_mov_b32 v{ACC+r}, 0")
L(f"{P}_c_spin")
I("ds_read_b32 v24, v22 offset:4")
I("s_waitcnt lgkmcnt(0)")
I(f"v_readfirstlane_b32 s{s_t0}, v24")
I("s_nop 0")
I(f"s_cmp_eq_u32 s{s_t0}, 0")
I(f"s_cbranch_scc1 {P}_c_spin")
stamp(5)
if "p2" in args.diag: stamp(1, True)
def hload(s):
    b = HR + 4 * (s % R)
    return [f"buffer_load_dwordx4 v[{b}:{b+3}], v9, {srd(sH)}, s{s_p} offen {HLD}",
            f"s_add_u32 s{s_p}, s{s_p}, 1024",
            f"s_cmp_eq_u32 s{s_p}, s{s_pend}",
            f"s_cselect_b32 s{s_p}, s{s_pbeg}, s{s_p}"]
issued = 0
for s in range(args.hpro):
    for x in hload(s): I(x)
issued = args.hpro
for s in range(43):
    u = s + 2
    young = 1 if s + 1 < 43 else 0
    I(f"s_waitcnt vmcnt({issued - s - 1}) lgkmcnt({4*young})")
    if "p2" in args.diag and s in (0, 5, 11, 21, 32, 42): stamp({0:2, 5:3, 11:4, 21:5, 32:6, 42:7}[s], True)
    if s == 3: I("s_barrier")
    if u == wdone: I("s_barrier")
    hb = HR + 4 * (s % R); wd = wdst(s)
    wr = wreads(u, wdst(u)) if u < 43 else []
    mm = [f"v_mfma_f32_32x32x16_bf16 v[{ACC+16*nb}:{ACC+16*nb+15}], v[{wd+4*nb}:{wd+4*nb+3}], v[{hb}:{hb+3}], v[{ACC+16*nb}:{ACC+16*nb+15}]" for nb in range(2)]
    I(mm[0])
    for r in wr[:2]: I(r)
    if issued < 43 and issued - R < s:
        for x in hload(issued): I(x)
        issued += 1
    I(mm[1])
    for r in wr[2:]: I(r)
    if issued < 43 and issued - R < s and issued - s - 1 < R - 1:
        for x in hload(issued): I(x)
        issued += 1
stamp(6)
I("s_nop 7")
I("s_nop 3")
for q in range(4):
    I(f"ds_write_b128 v17, v[{ACC+16+4*q}:{ACC+19+4*q}] offset:{q*1024}")
I("s_waitcnt lgkmcnt(0)")
I("s_barrier")
for q in range(4):
    I(f"ds_read_b128 v[{128+4*q}:{131+4*q}], v18 offset:{q*1024}")
for q in range(4):
    I(f"s_waitcnt lgkmcnt({3-q})")
    for p in range(2):
        I(f"v_pk_add_f32 v[{ACC+4*q+2*p}:{ACC+4*q+2*p+1}], v[{ACC+4*q+2*p}:{ACC+4*q+2*p+1}], v[{128+4*q+2*p}:{129+4*q+2*p}]")
    for p in range(2):
        I(f"v_cvt_pk_bf16_f32 v{144+2*q+p}, v{ACC+4*q+2*p}, v{ACC+4*q+2*p+1}")
    if q == 1: I(f"buffer_store_dwordx4 v[144:147], v16, {srd(sO)}, 0 offen {OST}")
I(f"buffer_store_dwordx4 v[148:151], v16, {srd(sO)}, 0 offen offset:16 {OST}")
if STAMPS:
    I("s_waitcnt vmcnt(0)")
stamp(7)
if args.amp and args.amp != "none":
    I("s_waitcnt lgkmcnt(0)")
    if args.amp.startswith("g"):
        aj = int(args.amp.split(",")[1]); ai = 1 if aj != 1 else 2
        I(f"buffer_load_dword v60, v21, {srd(sD)}, 0 offen offset:252 sc1")
        I("s_waitcnt vmcnt(0)")
        I(f"v_readfirstlane_b32 s{s_t1}, v60")
        I("s_nop 1")
        I(f"s_not_b32 s{s_prof+2*ai}, s{s_t1}")
    else:
        ai, aj = [int(t) for t in args.amp.split(",")]
    I(f"s_sub_u32 s{s_t0}, s{s_prof+2*aj}, s{s_prof+2*ai}")
    I(f"s_cmp_eq_u32 s{s_prof+2*ai}, 0")
    I(f"s_cselect_b32 s{s_t0}, 0, s{s_t0}")
    I(f"s_cmp_eq_u32 s{s_prof+2*aj}, 0")
    I(f"s_cselect_b32 s{s_t0}, 0, s{s_t0}")
    I(f"s_min_u32 s{s_t0}, s{s_t0}, 20000")
    I(f"s_mul_i32 s{s_t0}, s{s_t0}, 10")
    I("s_memrealtime s[82:83]")
    I("s_waitcnt lgkmcnt(0)")
    I(f"s_mov_b32 s{s_t1}, s82")
    L(f"{P}_amp")
    I("s_memrealtime s[82:83]")
    I("s_waitcnt lgkmcnt(0)")
    I(f"s_sub_u32 s{s_t2}, s82, s{s_t1}")
    I(f"s_cmp_lt_u32 s{s_t2}, s{s_t0}")
    I(f"s_cbranch_scc1 {P}_amp")
prof_store()
I("s_endpgm")
L(f"{P}_codeend")
for i in range(128): I("s_nop 0")

e('.section .rodata,"a"')
e(".p2align 6")
e(f".amdhsa_kernel {label}")
e("  .amdhsa_next_free_vgpr 256")
e("  .amdhsa_next_free_sgpr 102")
e("  .amdhsa_accum_offset 256")
e("  .amdhsa_group_segment_fixed_size 0")
e("  .amdhsa_kernarg_size 56")
e("  .amdhsa_user_sgpr_count 2")
e("  .amdhsa_user_sgpr_kernarg_segment_ptr 1")
e("  .amdhsa_system_sgpr_workgroup_id_x 1")
e("  .amdhsa_float_denorm_mode_32 3")
e(".end_amdhsa_kernel")

text = "\n".join(out) + "\n"
if args.codepf:
    import subprocess, tempfile, re, os
    def build(t):
        with tempfile.TemporaryDirectory() as d:
            open(d + "/k.s", "w").write(t)
            subprocess.run(["clang", "-x", "assembler", "-target", "amdgcn-amd-amdhsa", "-mcpu=gfx950", "-c", d + "/k.s", "-o", d + "/k.o"], check=True)
            sym = subprocess.run(["llvm-objdump", "-t", d + "/k.o"], capture_output=True, text=True).stdout
        a = {m.group(2): int(m.group(1), 16) for m in re.finditer(r"^([0-9a-f]{16}) .*\s(\S+)$", sym, re.M)}
        return a
    a = build(text.replace("@CODEPF@\n", ""))
    size = a[f"{P}_codeend"] - a[f"{P}_pc"]
    n = size // 512
    pf = "".join(f"    s_load_dword s3, s[18:19], {512*i}\n" for i in range(1, n + 1))
    text = text.replace("@CODEPF@\n", pf)
    sys.stderr.write(f"compute code {size} B, {n} touches/wave; loader code {a[f'{P}_compute']} B\n")
open(args.o, "w").write(text)
```

```python
import sys, argparse

ap = argparse.ArgumentParser()
ap.add_argument("-o", default="standalone__glu_gated_swiglu__prompt.s")
ap.add_argument("--prof", action="store_true")
ap.add_argument("--rot1", type=int, default=1)
ap.add_argument("--rot2", type=int, default=2)
ap.add_argument("--hring", type=int, default=12)
ap.add_argument("--hpro", type=int, default=10)
ap.add_argument("--jobX", type=int, default=1)
ap.add_argument("--barpos", type=int, default=16)
ap.add_argument("--skiplight", type=int, default=1)
ap.add_argument("--job3", type=int, default=1)
ap.add_argument("--fb", default="scalar")
ap.add_argument("--tailn", type=int, default=3)
ap.add_argument("--touch", type=int, default=0)
ap.add_argument("--pre", type=int, default=1)
ap.add_argument("--rpg", type=int, default=2)
ap.add_argument("--gapc", type=int, default=8)
ap.add_argument("--pace", type=int, default=10)
ap.add_argument("--pkfrom", type=int, default=2)
ap.add_argument("--fsat", type=int, default=0)
ap.add_argument("--oldlate", type=int, default=0)
ap.add_argument("--cbswap", type=int, default=0)
ap.add_argument("--flagsep", type=int, default=1)
ap.add_argument("--firstpoll", type=int, default=0)
ap.add_argument("--hst", default="sc1")
ap.add_argument("--hld", default="sc1")
ap.add_argument("--ost", default="none")
ap.add_argument("--sleep", type=int, default=1)
ap.add_argument("--cyc", action="store_true")
ap.add_argument("--amp", default="")
ap.add_argument("--codepf", type=int, default=0)
ap.add_argument("--tlb", type=int, default=0)
ap.add_argument("--jobA", type=int, default=0)
ap.add_argument("--jobB", type=int, default=0)
ap.add_argument("--prio", type=int, default=1)
ap.add_argument("--late", type=int, default=0)
ap.add_argument("--nopk", type=int, default=6)
ap.add_argument("--per", type=int, default=3)
ap.add_argument("--trickle", default="0,0,0,0,0,0,0,0")
ap.add_argument("--atb6", type=int, default=8)
ap.add_argument("--jobM", type=int, default=1)
ap.add_argument("--atb7", type=int, default=14)
ap.add_argument("--stouch", type=int, default=0)
ap.add_argument("--bmax", type=int, default=43)
ap.add_argument("--xrot", type=int, default=4)
ap.add_argument("--early", type=int, default=11)
ap.add_argument("--diag", default="")
args = ap.parse_args()

NAME = "standalone__glu_gated_swiglu__prompt"
out = []
def e(s=""): out.append(s)
def I(s): out.append("    " + s)
def L(s): out.append(s + ":")

S, D, F = 2048, 512, 1376
XB, WB, W2B, OB = S * D * 2, D * F * 2, F * D * 2, S * D * 2
HSTR = 87
WS_REC = 8 << 20
PROF_OFF = 7 << 20
LDS_X = 0
LDS_W = 49152
LDS_E = 122880
LDS_SCR = 159744
LDS_TOTAL = 163840
RANGES = [(0, 9, LDS_E), (9, 4, LDS_X + 32768), (13, 6, LDS_W + 49152), (19, 4, LDS_X), (23, 6, LDS_W),
          (29, 4, LDS_X + 16384), (33, 6, LDS_W + 24576), (39, 4, LDS_E)]
def unit_addr(u):
    for u0, n, a in RANGES:
        if u0 <= u < u0 + n: return a + (u - u0) * 4096
    raise ValueError
XCH = LDS_E + 4 * 4096

sX, sW1, sW3, sW2, sH, sO, sD = 20, 24, 28, 32, 36, 40, 44
s_wave, s_xcd, s_slot, s_mt, s_sl, s_rb, s_cb = 48, 49, 50, 51, 52, 53, 54
s_t0, s_t1, s_t2, s_t3 = 55, 56, 57, 58
s_cnt, s_kst, s_sx, s_sw, s_ring = 59, 60, 61, 62, 63
s_lx, s_lw, s_rot2, s_fl = 64, 65, 66, 67
s_k = 68
s_one = 70
s_hoff = 72
s_p, s_pend, s_pbeg = 78, 79, 80
s_valid = 81
s_prof = 84
def srd(r): return f"s[{r}:{r+3}]"
STAMPS = args.prof or args.amp
LOADER_STAGES = [False]
def stamp(i, force=False):
    if LOADER_STAGES[0] and not force: return
    if STAMPS:
        I(f"{'s_memtime' if args.cyc else 's_memrealtime'} s[{s_prof+2*i}:{s_prof+2*i+1}]")

def prof_store():
    if not args.prof: return
    I("s_waitcnt lgkmcnt(0)")
    I(f"s_lshl_b32 s{s_t0}, s2, 3")
    I(f"s_add_u32 s{s_t0}, s{s_t0}, s{s_wave}")
    I(f"s_lshl_b32 s{s_t0}, s{s_t0}, 5")
    I(f"s_add_u32 s{s_t0}, s{s_t0}, {PROF_OFF}")
    for i in range(8):
        I(f"v_mov_b32 v{240+i}, s{s_prof+2*i}")
    I("v_mov_b32 v248, 0")
    I("s_mov_b64 exec, 1")
    I(f"buffer_store_dwordx4 v[240:243], v248, {srd(sH)}, s{s_t0} offen")
    I(f"buffer_store_dwordx4 v[244:247], v248, {srd(sH)}, s{s_t0} offen offset:16")
    I("s_mov_b64 exec, -1")

def make_srd(r, p, nbytes):
    I(f"s_mov_b32 s{r}, s{p}")
    I(f"s_and_b32 s{r+1}, s{p+1}, 0xffff")
    I(f"s_mov_b32 s{r+2}, {nbytes}")
    I(f"s_mov_b32 s{r+3}, 0x20000")
pol = lambda s: s.replace("_", " ").replace("none", "")
HST, HLD, OST = pol(args.hst), pol(args.hld), pol(args.ost)

label = NAME + "_kernel"
P = "K"
e(f"; @launch grid=(256,1,1) block=(512,1,1) lds={LDS_TOTAL}")
e('.amdgcn_target "amdgcn-amd-amdhsa--gfx950"')
e(".text")
e(f".globl {label}")
e(".p2align 8")
e(f".type {label},@function")
L(label)
I("s_cmp_ge_u32 s2, 256")
I(f"s_cbranch_scc1 {P}_end")
I("s_load_dwordx8 s[4:11], s[0:1], 0")
I("s_load_dwordx4 s[12:15], s[0:1], 32")
I("s_load_dwordx2 s[16:17], s[0:1], 48")
if STAMPS:
    for i in range(8): I(f"s_mov_b32 s{s_prof+2*i}, 0")
stamp(0)
I("v_lshrrev_b32 v2, 6, v0")
I("v_and_b32 v1, 63, v0")
I(f"v_readfirstlane_b32 s{s_wave}, v2")
I(f"s_and_b32 s{s_xcd}, s2, 7")
I(f"s_lshr_b32 s{s_slot}, s2, 3")
I(f"s_and_b32 s{s_t0}, s{s_xcd}, 3")
I(f"s_lshl_b32 s{s_t0}, s{s_t0}, 2")
I(f"s_lshr_b32 s{s_t1}, s{s_xcd}, 2")
I(f"s_and_b32 s{s_t2}, s{s_slot}, 3")
I(f"s_lshr_b32 s{s_t3}, s{s_slot}, 2")
I(f"s_add_u32 s{s_mt}, s{s_t0}, s{s_t2}")
I(f"s_mul_i32 s{s_sl}, s{s_t1}, 7")
I(f"s_add_u32 s{s_sl}, s{s_sl}, s{s_t3}")
I(f"s_add_u32 s{s_kst}, s{s_t2}, s{s_t3}")
I(f"s_and_b32 s{s_kst}, s{s_kst}, {args.rot1-1}")
I(f"s_mul_i32 s{s_kst}, s{s_kst}, {8//args.rot1}")
if args.xrot == 2:
    I(f"s_add_u32 s{s_cnt}, s{s_xcd}, s{s_t1}")
    I(f"s_and_b32 s{s_cnt}, s{s_cnt}, 1")
    I(f"s_mul_i32 s{s_cnt}, s{s_cnt}, {max(1, 4//args.rot1)}")
    I(f"s_add_u32 s{s_kst}, s{s_kst}, s{s_cnt}")
elif args.xrot == 4:
    I(f"s_lshl_b32 s{s_cnt}, s{s_t1}, 1")
    I(f"s_add_u32 s{s_cnt}, s{s_cnt}, s{s_xcd}")
    I(f"s_and_b32 s{s_cnt}, s{s_cnt}, 3")
    I(f"s_mul_i32 s{s_cnt}, s{s_cnt}, {max(1, 2//args.rot1)}")
    I(f"s_add_u32 s{s_kst}, s{s_kst}, s{s_cnt}")
I(f"s_lshl_b32 s{s_t1}, s{s_t1}, 1")
I(f"s_add_u32 s{s_t0}, s{s_t0}, s{s_t1}")
I(f"s_add_u32 s{s_t1}, s{s_t0}, s{s_t2}")
I(f"s_cmp_ge_u32 s{s_slot}, 28")
I(f"s_cselect_b32 s{s_mt}, s{s_t1}, s{s_mt}")
I(f"s_cselect_b32 s{s_sl}, 14, s{s_sl}")
I(f"s_cmp_ge_u32 s{s_slot}, 30")
I(f"s_cselect_b32 s{s_sl}, 15, s{s_sl}")
I(f"s_cselect_b32 s{s_mt}, s{s_t0}, s{s_mt}")
I(f"s_lshl_b32 s{s_t0}, s{s_t0}, 1")
I(f"s_lshr_b32 s{s_t1}, s{s_slot}, 3")
I(f"s_add_u32 s{s_rb}, s{s_t0}, s{s_t1}")
I(f"s_and_b32 s{s_cb}, s{s_slot}, 7")
if args.cbswap:
    I(f"s_cmp_eq_u32 s{s_cb}, 3")
    I(f"s_cselect_b32 s{s_t2}, 6, s{s_cb}")
    I(f"s_cmp_eq_u32 s{s_cb}, 6")
    I(f"s_cselect_b32 s{s_cb}, 3, s{s_t2}")
if args.rot2 == 8:
    I(f"s_lshl_b32 s{s_rot2}, s{s_t1}, 1")
    I(f"s_add_u32 s{s_rot2}, s{s_rot2}, s{s_cb}")
    I(f"s_and_b32 s{s_rot2}, s{s_rot2}, 7")
    I(f"s_mul_i32 s{s_rot2}, s{s_rot2}, 43")
    I(f"s_lshr_b32 s{s_rot2}, s{s_rot2}, 3")
elif args.rot2 == 2:
    I(f"s_mul_i32 s{s_rot2}, s{s_t1}, 11")
elif args.rot2:
    I(f"s_add_u32 s{s_rot2}, s{s_t1}, s{s_cb}")
    I(f"s_and_b32 s{s_rot2}, s{s_rot2}, 3")
    I(f"s_mul_i32 s{s_rot2}, s{s_rot2}, 11")
else:
    I(f"s_mov_b32 s{s_rot2}, 0")
I(f"s_cmp_lt_u32 s{s_wave}, 4")
I(f"s_cbranch_scc1 {P}_compute")

LOADER_STAGES[0] = "stages" in args.diag
I(f"s_sub_u32 s{s_t3}, s{s_wave}, 4")
vX = [2, 3, 4, 5]; vW = [6, 7, 8]; vU = [10, 11, 12]; vW2 = 13
vFA, vFS, vFN = 20, 21, 22
I("v_lshrrev_b32 v14, 3, v1")
I(f"s_lshl_b32 s{s_t0}, s{s_t3}, 5")
I(f"v_add_u32 v14, s{s_t0}, v14")
I("v_and_b32 v15, 7, v1")
for j in range(4):
    I(f"v_add_u32 v16, {8*j}, v14")
    I("v_lshrrev_b32 v17, 1, v16")
    I("v_and_b32 v17, 7, v17")
    I("v_xor_b32 v17, v17, v15")
    I(f"v_subrev_u32 v16, {j}, v16")
    I("v_lshlrev_b32 v16, 10, v16")
    I(f"v_lshl_add_u32 v{vX[j]}, v17, 4, v16")
I(f"s_and_b32 s{s_t0}, s{s_sl}, 1")
I(f"s_lshl_b32 s{s_t1}, s{s_t3}, 4")
I("v_lshrrev_b32 v14, 2, v1")
I("v_and_b32 v15, 3, v1")
I(f"s_cmp_eq_u32 s{s_t0}, 1")
I("s_cselect_b64 vcc, -1, 0")
I(f"s_cmp_eq_u32 s{s_sl}, 14")
I(f"s_cselect_b32 s{s_t2}, 0, 64")
for j in range(3):
    I(f"v_add_u32 v16, {16*j}, v14")
    I("v_mul_u32_u24 v17, 43, v16")
    I("v_lshrrev_b32 v17, 7, v17")
    I("v_mul_u32_u24 v18, 3, v17")
    I("v_sub_u32 v18, v16, v18")
    I("v_sub_u32 v19, 2, v18")
    I("v_cndmask_b32 v18, v18, v19, vcc")
    I(f"v_mul_u32_u24 v18, s{s_t2}, v18")
    I("v_and_b32 v19, 8, v17")
    I("v_lshlrev_b32 v19, 2, v19")
    I(f"v_add_u32 v17, s{s_t1}, v17")
    I("v_mul_u32_u24 v17, 2752, v17")
    I("v_add_u32 v17, v17, v18")
    I("v_lshl_add_u32 v17, v15, 4, v17")
    I("v_xor_b32 v17, v17, v19")
    I(f"v_subrev_u32 v{vW[j]}, {1024*j}, v17")
I(f"s_lshl_b32 s{s_lx}, s{s_t3}, 12")
I(f"s_mul_i32 s{s_lw}, s{s_t3}, 6144")
I(f"s_add_u32 s{s_lw}, s{s_lw}, {LDS_W}")
I("v_lshrrev_b32 v14, 3, v1")
I(f"s_and_b32 s{s_t0}, s{s_t3}, 1")
I(f"s_lshl_b32 s{s_t0}, s{s_t0}, 3")
I(f"s_lshr_b32 s{s_t1}, s{s_t3}, 1")
I(f"s_mul_i32 s{s_t1}, s{s_t1}, 688")
I(f"s_add_u32 s{s_t0}, s{s_t0}, s{s_t1}")
I(f"v_add_u32 v14, s{s_t0}, v14")
I("v_lshlrev_b32 v14, 10, v14")
I("v_lshrrev_b32 v15, 4, v1")
I("v_and_b32 v15, 1, v15")
I("v_lshlrev_b32 v15, 2, v15")
I("v_and_b32 v16, 7, v1")
I("v_xor_b32 v15, v15, v16")
I(f"v_lshl_add_u32 v{vW2}, v15, 4, v14")
I(f"s_lshl_b32 s{s_pbeg}, s{s_cb}, 7")
I(f"s_add_u32 s{s_pend}, s{s_pbeg}, {43*16384}")
I(f"s_lshl_b32 s{s_t0}, s{s_rot2}, 14")
I(f"s_add_u32 s{s_p}, s{s_pbeg}, s{s_t0}")
I(f"s_lshl_b32 s{s_hoff}, s{s_t3}, 10")
I(f"s_lshr_b32 s{s_t0}, s{s_rb}, 1")
I(f"s_mul_i32 s{s_fl}, s{s_t0}, {4*HSTR*1024}")
I(f"s_add_u32 s{s_fl}, s{s_fl}, {86*1024}")
if args.flagsep:
    I(f"v_min_u32 v14, 15, v1")
    I(f"s_cmp_eq_u32 s{s_t0}, s{s_mt}")
    I(f"s_cselect_b32 s{s_t1}, s{s_sl}, 15")
    I(f"v_cmp_eq_u32 vcc, s{s_t1}, v14")
    I("v_mov_b32 v15, 15")
    I("s_nop 0")
    I("v_cndmask_b32 v14, v14, v15, vcc")
    I("v_lshrrev_b32 v15, 3, v14")
    I(f"v_mul_u32_u24 v15, {HSTR*1024}, v15")
    I("v_and_b32 v14, 7, v14")
    I(f"v_lshl_add_u32 v{vFA}, v14, 7, v15")
else:
    I(f"v_and_b32 v{vFA}, 15, v1")
    I(f"v_lshlrev_b32 v{vFA}, 2, v{vFA}")
I(f"s_lshl_b32 s{s_valid}, 1, s{s_sl}")
I(f"s_cmp_eq_u32 s{s_t0}, s{s_mt}")
I(f"s_cselect_b32 s{s_valid}, s{s_valid}, 0")
I(f"s_cmp_eq_u32 s{s_wave}, 5")
I(f"s_cselect_b32 s{s_t1}, 64, 43")
I(f"s_mul_i32 s{s_t2}, s2, s{s_t1}")
I(f"s_sub_u32 s{s_t1}, s{s_t1}, 1")
I(f"v_min_u32 v23, s{s_t1}, v1")
I(f"v_add_u32 v23, s{s_t2}, v23")
I("v_lshlrev_b32 v23, 7, v23")
if args.touch == 2:
    I("v_min_u32 v24, 31, v1")
    I("v_lshrrev_b32 v25, 2, v24")
    I(f"s_lshl_b32 s{s_t1}, s2, 3")
    I(f"v_add_u32 v25, s{s_t1}, v25")
    I("v_lshlrev_b32 v25, 3, v25")
    I("v_and_b32 v26, 1, v24")
    I("v_and_b32 v24, 2, v24")
    I("v_lshl_add_u32 v26, v24, 1, v26")
    I("v_add3_u32 v25, v25, v26, 2")
    I("v_min_u32 v24, 21, v1")
    I(f"s_mul_i32 s{s_t1}, s2, 22")
    I(f"v_add_u32 v24, s{s_t1}, v24")
    I("v_min_u32 v24, 5503, v24")
    I("v_cmp_gt_u32 vcc, 2752, v24")
    I("v_add_u32 v26, 2752, v24")
    I("v_add_u32 v24, 5504, v24")
    I("v_cndmask_b32 v24, v24, v26, vcc")
    I(f"s_cmp_eq_u32 s{s_wave}, 5")
    I("s_cselect_b64 vcc, -1, 0")
    I("v_cndmask_b32 v23, v24, v25, vcc")
    I("v_lshlrev_b32 v23, 7, v23")
I(f"s_lshl_b32 s{s_hoff+1}, s{s_mt}, 17")
I(f"s_mul_i32 s{s_hoff+2}, s{s_sl}, 192")
I(f"s_mov_b32 s{s_ring}, 0")
I(f"s_mov_b32 s{s_cnt}, 0")
I(f"s_mov_b32 s{sX+2}, {XB}"); I(f"s_mov_b32 s{sX+3}, 0x20000")
I(f"s_mov_b32 s{sW1+2}, {WB}"); I(f"s_mov_b32 s{sW1+3}, 0x20000")
I(f"s_mov_b32 s{sW3+2}, {WB}"); I(f"s_mov_b32 s{sW3+3}, 0x20000")
I(f"s_mov_b32 s{sW2+2}, {W2B}"); I(f"s_mov_b32 s{sW2+3}, 0x20000")
I(f"s_mov_b32 s{sH+2}, {WS_REC}"); I(f"s_mov_b32 s{sH+3}, 0x20000")
I(f"s_mov_b32 s{sD+2}, 256"); I(f"s_mov_b32 s{sD+3}, 0x20000")
I("s_waitcnt lgkmcnt(0)")
for r, p in ((sX, 4), (sW1, 6), (sW3, 8), (sW2, 10), (sH, 16), (sD, 14)):
    I(f"s_mov_b32 s{r}, s{p}")
    I(f"s_and_b32 s{r+1}, s{p+1}, 0xffff")
stamp(1)

wcount = [0]
def issueW(ua, ub, pace=0):
    for u0, n, a in RANGES:
        lo, hi = max(ua, u0), min(ub, u0 + n)
        if lo >= hi: continue
        lab = f"{P}_l_w{wcount[0]}"; wcount[0] += 1
        I(f"s_add_u32 m0, s{s_hoff}, {unit_addr(lo)}")
        I(f"s_mov_b32 s{s_t0}, {hi-lo}")
        L(lab)
        if pace: I(f"s_waitcnt vmcnt({pace-1})")
        I(f"buffer_load_dwordx4 v{vW2}, {srd(sW2)}, s{s_p} offen lds")
        I(f"s_add_u32 s{s_p}, s{s_p}, 16384")
        I(f"s_cmp_eq_u32 s{s_p}, s{s_pend}")
        I(f"s_cselect_b32 s{s_p}, s{s_pbeg}, s{s_p}")
        I("s_add_u32 m0, m0, 4096")
        I(f"s_sub_u32 s{s_t0}, s{s_t0}, 1")
        I(f"s_cmp_lg_u32 s{s_t0}, 0")
        I(f"s_cbranch_scc1 {lab}")

def aux_load(tag):
    if not args.touch:
        I(f"buffer_load_dword v{vFS}, v{vFA}, {srd(sH)}, s{s_fl} offen sc1")
        return
    I(f"s_cmp_eq_u32 s{s_wave}, 4")
    I(f"s_cbranch_scc0 {P}_ax{tag}1")
    I(f"buffer_load_dword v{vFS}, v{vFA}, {srd(sH)}, s{s_fl} offen sc1")
    I(f"s_branch {P}_ax{tag}e")
    L(f"{P}_ax{tag}1")
    I(f"s_cmp_eq_u32 s{s_wave}, 5")
    I(f"s_cbranch_scc0 {P}_ax{tag}2")
    I(f"buffer_load_dword v24, v23, {srd(sX)}, 0 offen")
    I(f"s_branch {P}_ax{tag}e")
    L(f"{P}_ax{tag}2")
    I(f"s_cmp_eq_u32 s{s_wave}, 6")
    I(f"s_cbranch_scc0 {P}_ax{tag}3")
    I(f"buffer_load_dword v24, v23, {srd(sW1)}, 0 offen")
    I(f"s_branch {P}_ax{tag}e")
    L(f"{P}_ax{tag}3")
    I(f"buffer_load_dword v24, v23, {srd(sW3)}, 0 offen")
    L(f"{P}_ax{tag}e")

pfc = [0]
def prefetch_jobs(is_loader):
    tag = pfc[0]; pfc[0] += 1
    I(f"s_and_b32 s{s_t2}, s{s_slot}, 1")
    if args.jobA:
        I(f"s_lshl_b32 s{s_t0}, s{s_xcd}, 1")
        I(f"s_add_u32 s{s_t0}, s{s_t0}, s{s_t2}")
        I("v_lshlrev_b32 v40, 10, v1")
        I("v_lshlrev_b32 v41, 7, v1")
        I(f"s_lshl_b32 s{s_t1}, s{s_t0}, 17")
        I(f"s_and_b32 s{s_t3}, s{s_wave}, 1")
        I(f"s_lshl_b32 s{s_cnt}, s{s_t3}, 16")
        I(f"s_add_u32 s{s_t1}, s{s_t1}, s{s_cnt}")
        I(f"s_lshr_b32 s{s_cnt}, s{s_wave}, 1")
        I(f"s_add_u32 s{s_kst}, s{s_cnt}, {args.jobA}")
        I(f"s_lshl_b32 s{s_kst}, s{s_kst}, 7")
        I(f"s_add_u32 s{s_sx}, s{s_t1}, s{s_kst}")
        i0 = (args.jobA * 43) // 2
        I(f"s_lshl_b32 s{s_cnt}, s{s_cnt}, 4")
        I(f"s_add_u32 s{s_cnt}, s{s_cnt}, s{s_t0}")
        I(f"s_add_u32 s{s_cnt}, s{s_cnt}, {i0}")
        I(f"s_lshl_b32 s{s_sw}, s{s_cnt}, 13")
        I(f"s_cmp_eq_u32 s{s_t3}, 0")
        I(f"s_cselect_b32 s{sW1}, s{sW1}, s{sW3}")
        I(f"s_cselect_b32 s{sW1+1}, s{sW1+1}, s{sW3+1}")
        nx = (8 - args.jobA + 3) // 4
        nw = (172 - i0 + 63) // 64
        for n in range(max(nx, nw)):
            if n < nx:
                if args.jobA + 4 * n + 3 >= 8:
                    I(f"s_cmp_ge_u32 s{s_kst}, {(8 - 4*n)*128}")
                    I(f"s_cbranch_scc1 {P}_pf{tag}_x{n}")
                I(f"buffer_load_dword v42, v40, {srd(sX)}, s{s_sx} offen offset:{512*n}")
                L(f"{P}_pf{tag}_x{n}")
            if n < nw:
                I(f"s_cmp_ge_u32 s{s_sw}, {WB}")
                I(f"s_cbranch_scc1 {P}_pf{tag}_w{n}")
                I(f"buffer_load_dword v43, v41, {srd(sW1)}, s{s_sw} offen")
                L(f"{P}_pf{tag}_w{n}")
                I(f"s_add_u32 s{s_sw}, s{s_sw}, {64*8192}")
    if args.jobX:
        I("v_lshlrev_b32 v40, 10, v1")
        I(f"s_and_b32 s{s_t0}, s{s_xcd}, 3")
        I(f"s_lshl_b32 s{s_t0}, s{s_t0}, 19")
        I(f"s_lshl_b32 s{s_t1}, s{s_wave}, 16")
        I(f"s_add_u32 s{s_t0}, s{s_t0}, s{s_t1}")
        I(f"s_add_u32 s{s_t1}, s{s_kst}, s{s_t2}")
        I(f"s_add_u32 s{s_t1}, s{s_t1}, 2")
        I(f"s_and_b32 s{s_t1}, s{s_t1}, 7")
        I(f"s_lshl_b32 s{s_t1}, s{s_t1}, 7")
        I(f"s_add_u32 s{s_t0}, s{s_t0}, s{s_t1}")
        I(f"buffer_load_dword v42, v40, {srd(sX)}, s{s_t0} offen")
    if args.jobM:
        I("v_lshlrev_b32 v41, 7, v1")
        I(f"s_lshl_b32 s{s_t0}, s{s_xcd}, 1")
        I(f"s_add_u32 s{s_t0}, s{s_t0}, s{s_t2}")
        I(f"s_lshl_b32 s{s_t1}, s{s_wave}, 4")
        I(f"s_add_u32 s{s_t0}, s{s_t0}, s{s_t1}")
        I(f"s_lshl_b32 s{s_t0}, s{s_t0}, 13")
        I(f"buffer_load_dword v43, v41, {srd(sW2)}, s{s_t0} offen")
        I(f"s_add_u32 s{s_t0}, s{s_t0}, {128*8192}")
        I(f"s_cmp_ge_u32 s{s_t0}, {W2B}")
        I(f"s_cbranch_scc1 {P}_pf{tag}_m")
        I(f"buffer_load_dword v43, v41, {srd(sW2)}, s{s_t0} offen")
        L(f"{P}_pf{tag}_m")
        I(f"s_cmp_ge_u32 s{s_wave}, 0")
        I(f"s_cbranch_scc1 {P}_pf{tag}_u")
        I(f"s_lshr_b32 s{s_t0}, s{s_wave}, 1")
        I(f"s_mul_i32 s{s_t0}, s{s_t0}, 11")
        I(f"s_and_b32 s{s_t1}, s{s_wave}, 1")
        I(f"s_add_u32 s{s_t0}, s{s_t0}, s{s_t1}")
        I(f"s_add_u32 s{s_t0}, s{s_t0}, 9")
        I(f"s_mul_i32 s{s_t1}, s{s_t2}, 43")
        I(f"s_add_u32 s{s_t0}, s{s_t0}, s{s_t1}")
        I(f"s_lshl_b32 s{s_t0}, s{s_t0}, 14")
        I(f"buffer_load_dword v43, v41, {srd(sW2)}, s{s_t0} offen")
        I(f"s_add_u32 s{s_t0}, s{s_t0}, 8192")
        I(f"buffer_load_dword v43, v41, {srd(sW2)}, s{s_t0} offen")
        L(f"{P}_pf{tag}_u")
    if args.job3:
        I("v_min_u32 v44, 42, v1")
        I("v_lshlrev_b32 v44, 10, v44")
        I(f"s_mul_i32 s{s_t0}, s{s_t2}, 688")
        I(f"s_mul_i32 s{s_t1}, s{s_wave}, 86")
        I(f"s_add_u32 s{s_t0}, s{s_t0}, s{s_t1}")
        I(f"s_lshl_b32 s{s_t0}, s{s_t0}, 10")
        I(f"buffer_load_dword v45, v44, {srd(sW2)}, s{s_t0} offen offset:384")
        I(f"s_add_u32 s{s_t0}, s{s_t0}, {43*1024}")
        I(f"buffer_load_dword v45, v44, {srd(sW2)}, s{s_t0} offen offset:384")
    if is_loader:
        issueW(0, 39)
    if args.jobB:
        for j in range(3):
            I(f"v_add_u32 v44, {64*j}, v1")
            I("v_mul_u32_u24 v45, 171, v44")
            I("v_lshrrev_b32 v45, 10, v45")
            I("v_mul_u32_u24 v46, 6, v45")
            I("v_sub_u32 v46, v44, v46")
            I("v_lshlrev_b32 v45, 10, v45")
            I(f"v_lshl_add_u32 v{48+j}, v46, 7, v45")
        I(f"s_lshl_b32 s{s_t0}, s{s_wave}, 1")
        I(f"s_add_u32 s{s_t0}, s{s_t0}, s{s_t2}")
        I(f"s_lshl_b32 s{s_t0}, s{s_t0}, 15")
        for n in range(args.jobB):
            I(f"s_cmp_ge_u32 s{s_t0}, {args.bmax*32768}")
            I(f"s_cbranch_scc1 {P}_pf{tag}_b{n}")
            for j in range(3):
                I(f"buffer_load_dword v47, v{48+j}, {srd(sW2)}, s{s_t0} offen")
            L(f"{P}_pf{tag}_b{n}")
            I(f"s_add_u32 s{s_t0}, s{s_t0}, {16*32768}")

I(f"s_cmp_ge_u32 s{s_sl}, 15")
I(f"s_cbranch_scc1 {P}_l_idle")
if args.stouch:
    nst = 8 - args.stouch
    I(f"s_lshl_b32 s{s_t0}, s{s_slot}, 2")
    I(f"s_add_u32 s{s_t0}, s{s_t0}, s{s_wave}")
    I(f"s_add_u32 s{s_t0}, s{s_t0}, {1376 - nst*120 - 4}")
    I(f"s_lshl_b32 s{s_t0}, s{s_t0}, 10")
    I(f"s_add_u32 s18, s10, s{s_t0}")
    I("s_addc_u32 s19, s11, 0")
TR = [int(t) for t in args.trickle.split(",")]
assert sum(TR) <= 9
wdone = 0
for c in range(8):
    ring = c % 3
    if c == 2 and args.touch == 2: aux_load("a")
    if "nodma" in args.diag and c >= 3:
        I("s_barrier"); stamp(c - 1, True); continue
    I(f"s_lshl_b32 s{s_t0}, s{s_kst}, 7")
    I(f"s_add_u32 s{s_sx}, s{s_hoff+1}, s{s_t0}")
    I(f"s_add_u32 m0, s{s_lx}, {ring*16384}")
    I(f"s_mul_i32 s{s_sw}, s{s_kst}, {64*2752}")
    for j in range(4):
        I(f"buffer_load_dwordx4 v{vX[j]}, {srd(sX)}, s{s_sx} offen offset:{1024*j} lds")
    I(f"s_add_u32 m0, s{s_lw}, {ring*24576}")
    I(f"s_add_u32 s{s_sw}, s{s_sw}, s{s_hoff+2}")
    for j in range(3):
        I(f"buffer_load_dwordx4 v{vW[j]}, {srd(sW1)}, s{s_sw} offen offset:{1024*j} lds")
    I("s_add_u32 m0, m0, 3072")
    I(f"s_add_u32 s{s_kst}, s{s_kst}, 1")
    for j in range(3):
        I(f"buffer_load_dwordx4 v{vW[j]}, {srd(sW3)}, s{s_sw} offen offset:{1024*j} lds")
    I(f"s_and_b32 s{s_kst}, s{s_kst}, 7")
    if c == 0 and "s0only" in args.diag:
        I("s_waitcnt vmcnt(0)")
    if c == 0 and args.touch != 2: aux_load("a")
    if TR[c]:
        issueW(wdone, wdone + TR[c]); wdone += TR[c]
    if args.stouch and c >= args.stouch:
        for j in range(12):
            I(f"s_load_dword s3, s[18:19], {(c - args.stouch)*120*1024 + 64*j}")
    if c >= 1:
        I(f"s_waitcnt vmcnt({TR[c-1] + 10 + TR[c] + (1 if c == (2 if args.touch == 2 else 1) else 0)})")
        if "pre" in args.diag and c >= 2: stamp(c - 1, True)
        I("s_barrier")
        if LOADER_STAGES[0] and "pre" not in args.diag and c >= 2: stamp(c - 1, True)
stamp(2)
issueW(wdone, wdone + args.atb6)
I(f"s_waitcnt vmcnt({TR[7] + args.atb6})")
wdone += args.atb6
assert wdone <= 19
if "pre" in args.diag: stamp(7, True)
I("s_barrier")
if LOADER_STAGES[0] and "pre" not in args.diag: stamp(7, True)
stamp(3)
issueW(wdone, wdone + args.atb7, args.pace); wdone += args.atb7
assert wdone <= 29
I("s_waitcnt vmcnt(0)")
stamp(4)
I("s_barrier")
if args.fb == "scalar":
    I(f"s_cmp_lg_u32 s{s_wave}, 5")
    I(f"s_cbranch_scc1 {P}_l_nofb")
    I(f"s_lshl_b32 s{s_sx}, 1, s{s_sl}")
    I(f"s_lshl_b32 s{s_sw}, s{s_mt}, 4")
    I(f"s_atomic_add s{s_sx}, s[14:15], s{s_sw}")
    I("s_waitcnt lgkmcnt(0)") if "fbwait" in args.diag else None
    L(f"{P}_l_nofb")
I("s_sleep 1")
if args.pre:
    issueW(wdone, wdone + 2)
    I("s_barrier")
    issueW(wdone + 2, 43)
else:
    issueW(wdone, 39)
stamp(5)
I(f"s_branch {P}_l_sel")
L(f"{P}_l_idle")
aux_load("b")
prefetch_jobs(True)
I("s_waitcnt vmcnt(0)")
I("s_barrier")
if args.pre:
    I("s_barrier")
    issueW(39, 43)
L(f"{P}_l_sel")
I(f"s_cmp_lg_u32 s{s_wave}, 4")
I(f"s_cbranch_scc1 {P}_l_go")
L(f"{P}_l_pollinit")
I(f"s_lshr_b32 s{s_t1}, s{s_rb}, 1")
I(f"s_lshl_b32 s{s_t1}, s{s_t1}, 4")
I("v_mov_b32 v18, 0")
I(f"v_mov_b32 v17, {LDS_SCR+4}")
I("v_mov_b32 v19, 1")
I(f"s_mov_b32 s{s_cnt}, 0")
L(f"{P}_l_poll")
I(f"buffer_load_dword v{vFN}, v{vFA}, {srd(sH)}, s{s_fl} offen sc1")
I(f"s_add_u32 s{s_cnt}, s{s_cnt}, 1")
I("s_waitcnt vmcnt(0)")
I(f"v_cmp_ne_u32 vcc, v{vFN}, v{vFS}")
I(f"s_and_b32 s{s_t0}, s{s_cnt}, {0 if 'fbonly' in args.diag else 31}")
if "fbonly" in args.diag: I("s_mov_b64 vcc, 0")
I(f"s_or_b32 s{s_t2}, vcc_lo, s{s_valid}")
I(f"s_and_b32 s{s_t2}, s{s_t2}, 0x7fff")
I(f"s_cmp_eq_u32 s{s_t2}, 0x7fff")
I(f"s_cbranch_scc1 {P}_l_ok")
if args.sleep: I(f"s_sleep {args.sleep}")
I(f"s_cmp_lg_u32 s{s_t0}, 0")
I(f"s_cbranch_scc1 {P}_l_poll")
I(f"buffer_load_dword v16, v18, {srd(sD)}, s{s_t1} offen sc1")
I("s_waitcnt vmcnt(0)")
I(f"v_readfirstlane_b32 s{s_t0}, v16")
I(f"s_cmp_ge_u32 s{s_cnt}, 400000")
I(f"s_cbranch_scc1 {P}_l_ok")
I(f"s_or_b32 s{s_t2}, s{s_t2}, s{s_t0}")
I(f"s_cmp_lg_u32 s{s_t2}, 0x7fff")
I(f"s_cbranch_scc1 {P}_l_poll")
L(f"{P}_l_ok")
I("ds_write_b32 v17, v19")
L(f"{P}_l_go")
stamp(6)
if not args.pre:
    I("s_barrier")
    issueW(39, 43)
if args.fb == "vector":
    I(f"s_cmp_lg_u32 s{s_wave}, 5")
    I(f"s_cbranch_scc1 {P}_l_nofb")
    I(f"s_cmp_ge_u32 s{s_sl}, 15")
    I(f"s_cbranch_scc1 {P}_l_nofb")
    I(f"s_lshl_b32 s{s_t0}, 1, s{s_sl}")
    I(f"s_lshl_b32 s{s_t1}, s{s_mt}, 4")
    I(f"v_mov_b32 v17, s{s_t0}")
    I("v_mov_b32 v18, 0")
    I("s_mov_b64 exec, 1")
    I(f"buffer_atomic_add v17, v18, {srd(sD)}, s{s_t1} offen sc1")
    I("s_mov_b64 exec, -1")
    I("s_waitcnt vmcnt(1)")
    I(f"s_branch {P}_l_fin")
    L(f"{P}_l_nofb")
    I("s_waitcnt vmcnt(0)")
    L(f"{P}_l_fin")
else:
    I("s_waitcnt vmcnt(0)")
I("s_barrier")
prof_store()
L(f"{P}_end")
I("s_endpgm")

LOADER_STAGES[0] = "p2" in args.diag
L(f"{P}_compute")
if args.codepf:
    I("s_getpc_b64 s[18:19]")
    L(f"{P}_pc")
    I(f"s_lshl_b32 s{s_t0}, s{s_wave}, 7")
    I(f"s_add_u32 s18, s18, s{s_t0}")
    I("s_addc_u32 s19, s19, 0")
    out.append("@CODEPF@")
vAX = [2, 3]; vAW = [6, 7, 8]
ACC = 64
FA, FB = 160, 200
vOLD = 20
I(f"s_and_b32 s{s_t0}, s{s_wave}, 1")
I(f"s_lshl_b32 s{s_t0}, s{s_t0}, 6")
I("v_and_b32 v10, 15, v1")
I("v_lshrrev_b32 v11, 1, v10")
I(f"v_add_u32 v10, s{s_t0}, v10")
I("v_lshrrev_b32 v12, 4, v1")
I("v_lshlrev_b32 v10, 7, v10")
for ks in range(2):
    I(f"v_add_u32 v13, {4*ks}, v12")
    I("v_xor_b32 v13, v13, v11")
    I(f"v_lshl_add_u32 v{vAX[ks]}, v13, 4, v10")
I("v_and_b32 v11, 1, v12")
I("v_lshrrev_b32 v10, 1, v12")
I("v_lshrrev_b32 v12, 2, v1")
I("v_and_b32 v12, 3, v12")
I("v_lshl_add_u32 v12, v11, 3, v12")
I("v_mul_u32_u24 v12, 192, v12")
I("v_mul_u32_u24 v13, 6144, v10")
I("v_add_u32 v12, v12, v13")
I("v_and_b32 v13, 3, v1")
I("v_lshl_add_u32 v12, v13, 3, v12")
I(f"v_add_u32 v12, {LDS_W}, v12")
I("v_lshlrev_b32 v11, 5, v11")
I(f"s_lshr_b32 s{s_t0}, s{s_wave}, 1")
I(f"s_mul_i32 s{s_t0}, s{s_t0}, 3")
for t in range(3):
    I(f"s_add_u32 s{s_t1}, s{s_t0}, {t}")
    I(f"s_lshr_b32 s{s_t2}, s{s_t1}, 1")
    I(f"s_lshl_b32 s{s_t2}, s{s_t2}, 6")
    I(f"s_and_b32 s{s_t1}, s{s_t1}, 1")
    I(f"s_lshl_b32 s{s_t1}, s{s_t1}, 5")
    I(f"v_xor_b32 v13, s{s_t1}, v11")
    I(f"v_add3_u32 v{vAW[t]}, v12, v13, s{s_t2}")
for r in range(96):
    I(f"v_mov_b32 v{ACC+r}, 0")
I(f"s_and_b32 s{s_t3}, s{s_sl}, 1")
I(f"s_and_b32 s{s_t1}, s{s_wave}, 1")
I(f"s_lshl_b32 s{s_t1}, s{s_t1}, 1")
I(f"s_lshl_b32 s{s_cnt}, s{s_mt}, 2")
I(f"s_add_u32 s{s_t1}, s{s_t1}, s{s_cnt}")
I(f"s_mul_i32 s{s_p}, s{s_t1}, {HSTR}")
I(f"s_mul_i32 s{s_cnt}, s{s_sl}, 6")
I(f"s_add_u32 s{s_p}, s{s_p}, s{s_cnt}")
for t in range(3):
    I(f"s_add_u32 s{s_t1}, s{s_t0}, {t}")
    I(f"s_lshr_b32 s{s_t2}, s{s_t1}, 1")
    I(f"s_sub_u32 s{s_cnt}, 2, s{s_t2}")
    I(f"s_cmp_eq_u32 s{s_t3}, 1")
    I(f"s_cselect_b32 s{s_t2}, s{s_cnt}, s{s_t2}")
    I(f"s_lshl_b32 s{s_t2}, s{s_t2}, 1")
    I(f"s_and_b32 s{s_t1}, s{s_t1}, 1")
    I(f"s_add_u32 s{s_t2}, s{s_t2}, s{s_t1}")
    I(f"s_add_u32 s{s_t2}, s{s_t2}, s{s_p}")
    I(f"s_lshl_b32 s{s_hoff+2*t}, s{s_t2}, 10")
    I(f"s_add_u32 s{s_hoff+2*t+1}, s{s_hoff+2*t}, {HSTR*1024}")
I(f"s_cmp_eq_u32 s{s_t0}, 0")
I(f"s_cselect_b32 s{s_t1}, 2, 0")
I(f"s_cmp_eq_u32 s{s_sl}, 14")
I(f"s_cselect_b32 s{s_valid}, s{s_t1}, 3")
I(f"s_mov_b32 s{s_k}, 0xbfb8aa3b")
I(f"s_mov_b32 s{s_k+1}, 0xbfb8aa3b")
I(f"s_mov_b32 s{s_one}, 1.0")
I(f"s_mov_b32 s{s_one+1}, 1.0")
I("v_lshlrev_b32 v9, 4, v1")
I(f"v_mov_b32 v56, s{s_k}"); I(f"v_mov_b32 v57, s{s_k}"); I("v_mov_b32 v58, 1.0"); I("v_mov_b32 v59, 1.0")
I(f"s_mul_i32 s{s_fl}, s{s_mt}, {4*HSTR*1024}")
if args.flagsep:
    I(f"s_lshr_b32 s{s_t1}, s{s_sl}, 3")
    I(f"s_mul_i32 s{s_t1}, s{s_t1}, {HSTR*1024}")
    I(f"s_add_u32 s{s_fl}, s{s_fl}, s{s_t1}")
    I(f"s_and_b32 s{s_t1}, s{s_sl}, 7")
    I(f"s_lshl_b32 s{s_t1}, s{s_t1}, 7")
else:
    I(f"s_lshl_b32 s{s_t1}, s{s_sl}, 2")
I(f"s_add_u32 s{s_fl}, s{s_fl}, s{s_t1}")
I(f"s_add_u32 s{s_fl}, s{s_fl}, {86*1024}")
I("v_mov_b32 v21, 0")
I(f"v_mov_b32 v22, {LDS_SCR}")
I("ds_write_b32 v22, v21")
I("ds_write_b32 v22, v21 offset:4")
vB = [[10, 11], [12, 13], [14, 15]]
WF = 128; HR = 160; R = args.hring
I("v_lshrrev_b32 v16, 4, v1")
I("v_lshrrev_b32 v17, 1, v16")
I("v_lshrrev_b32 v18, 2, v1")
I("v_and_b32 v18, 3, v18")
I("v_lshl_add_u32 v17, v17, 3, v18")
I("v_lshlrev_b32 v17, 7, v17")
I("v_and_b32 v16, 1, v16")
I("v_and_b32 v19, 1, v1")
I("v_lshl_add_u32 v16, v19, 1, v16")
I("v_lshrrev_b32 v18, 1, v18")
I("v_lshlrev_b32 v18, 2, v18")
I(f"s_lshr_b32 s{s_t0}, s{s_wave}, 1")
I(f"s_lshl_b32 s{s_t1}, s{s_t0}, 2")
I(f"v_xor_b32 v18, s{s_t1}, v18")
I("v_xor_b32 v16, v16, v18")
I("v_lshl_add_u32 v17, v16, 4, v17")
I("v_lshrrev_b32 v19, 1, v1")
I("v_and_b32 v19, 1, v19")
I("v_lshl_add_u32 v17, v19, 3, v17")
I(f"s_lshl_b32 s{s_t1}, s{s_t0}, 11")
I(f"v_add_u32 v{vB[0][0]}, s{s_t1}, v17")
I(f"v_xor_b32 v{vB[0][1]}, 64, v{vB[0][0]}")
for sg in (1, 2):
    for nb in range(2):
        I(f"v_add_u32 v{vB[sg][nb]}, {sg*65536}, v{vB[0][nb]}")
I(f"s_and_b32 s{s_t1}, s{s_wave}, 1")
I(f"s_lshl_b32 s{s_t2}, s{s_rb}, 1")
I(f"s_add_u32 s{s_t1}, s{s_t1}, s{s_t2}")
I(f"s_mul_i32 s{s_t2}, s{s_t1}, {HSTR}")
I(f"s_mul_i32 s{s_t3}, s{s_t0}, 43")
I(f"s_add_u32 s{s_t2}, s{s_t2}, s{s_t3}")
I(f"s_lshl_b32 s{s_pbeg}, s{s_t2}, 10")
I(f"s_add_u32 s{s_pend}, s{s_pbeg}, {43*1024}")
I(f"s_lshl_b32 s{s_t2}, s{s_rot2}, 10")
I(f"s_add_u32 s{s_p}, s{s_pbeg}, s{s_t2}")
I("v_and_b32 v16, 31, v1")
I("v_lshlrev_b32 v16, 10, v16")
I("v_lshrrev_b32 v17, 5, v1")
I("v_lshl_add_u32 v16, v17, 5, v16")
I(f"s_lshl_b32 s{s_t1}, s{s_t1}, 15")
I(f"s_lshl_b32 s{s_t2}, s{s_cb}, 7")
I(f"s_add_u32 s{s_t1}, s{s_t1}, s{s_t2}")
I(f"s_lshl_b32 s{s_t2}, s{s_t0}, 6")
I(f"s_add_u32 s{s_t1}, s{s_t1}, s{s_t2}")
I(f"v_add_u32 v16, s{s_t1}, v16")
I(f"s_lshl_b32 s{s_t1}, s{s_wave}, 12")
I(f"s_add_u32 s{s_t1}, s{s_t1}, {XCH}")
I(f"v_add_u32 v17, s{s_t1}, v9")
I(f"s_xor_b32 s{s_t2}, s{s_wave}, 2")
I(f"s_lshl_b32 s{s_t2}, s{s_t2}, 12")
I(f"s_add_u32 s{s_t2}, s{s_t2}, {XCH}")
I(f"v_add_u32 v18, s{s_t2}, v9")
I("s_waitcnt lgkmcnt(0)")
make_srd(sH, 16, WS_REC)
make_srd(sO, 12, OB)
make_srd(sD, 14, 256)
make_srd(sW2, 10, W2B)
if args.jobA or args.jobX:
    make_srd(sX, 4, XB); make_srd(sW1, 6, WB); make_srd(sW3, 8, WB)
if args.prio: I(f"s_setprio {args.prio}")
if not args.oldlate: I(f"buffer_load_dword v{vOLD}, v21, {srd(sH)}, s{s_fl} offen sc1")
if args.amp.startswith("g"):
    I(f"s_not_b32 s{s_t1}, s{s_prof}")
    I(f"v_mov_b32 v60, s{s_t1}")
    I("s_mov_b64 exec, 1")
    I(f"buffer_atomic_umax v60, v21, {srd(sD)}, 0 offen offset:252 sc1")
    I("s_mov_b64 exec, -1")
if args.tlb:
    I(f"s_cmp_lg_u32 s{s_wave}, 0")
    I(f"s_cbranch_scc1 {P}_c_notlb")
    I("s_mov_b64 exec, 1")
    I(f"buffer_load_dword v28, v16, {srd(sO)}, 0 offen")
    I(f"buffer_load_dword v29, v21, {srd(sD)}, 0 offen sc1")
    I(f"buffer_load_dword v30, v21, {srd(sW2)}, 0 offen")
    I(f"s_mov_b32 s{s_t1}, {W2B-128}")
    I(f"buffer_load_dword v31, v21, {srd(sW2)}, s{s_t1} offen")
    I(f"s_add_u32 s{s_t1}, s{s_fl}, {3*HSTR*1024}")
    I(f"buffer_load_dword v32, v21, {srd(sH)}, s{s_t1} offen sc1")
    I("s_mov_b64 exec, -1")
    L(f"{P}_c_notlb")
I(f"s_cmp_ge_u32 s{s_sl}, 15")
I(f"s_cbranch_scc1 {P}_c_idle")

def xr(fs, mt): return fs + 4 * mt
def wr_(fs, t, mat): return fs + 16 + 4 * (2 * t + mat)
def acc(t, mat, mt): return ACC + ((t * 2 + mat) * 4 + mt) * 4
def xrd(ks, fs, mt): return [f"ds_read_b128 v[{xr(fs,mt)}:{xr(fs,mt)+3}], v{vAX[ks]} offset:{2048*mt}"]
def wrd(ks, fs, t, mat):
    d = wr_(fs, t, mat)
    return [f"ds_read_b64_tr_b16 v[{d+2*h}:{d+2*h+1}], v{vAW[t]} offset:{ks*12288+mat*3072+h*768}" for h in range(2)]
def reads(ks, fs):
    r = xrd(ks, fs, 0) + wrd(ks, fs, 0, 0) + xrd(ks, fs, 1) + wrd(ks, fs, 0, 1) + xrd(ks, fs, 2) + xrd(ks, fs, 3)
    for t in (1, 2):
        for mat in range(2): r += wrd(ks, fs, t, mat)
    return r
def mf(fs, t, mat, mt):
    a = acc(t, mat, mt); w = wr_(fs, t, mat); x = xr(fs, mt)
    return f"v_mfma_f32_16x16x32_bf16 v[{a}:{a+3}], v[{w}:{w+3}], v[{x}:{x+3}], v[{a}:{a+3}]"
def mfmas(fs):
    return [mf(fs, t, mat, mt) for t in range(3) for mat in range(2) for mt in range(4)]
if args.skiplight:
    I(f"s_cmp_lg_u32 s{s_valid}, 0")
    I(f"s_cbranch_scc1 {P}_c_work")
    for i in range(8): I("s_barrier")
    I(f"s_branch {P}_c_epidone")
    L(f"{P}_c_work")
I(f"s_mov_b32 s{s_cnt}, 0")
I(f"s_mov_b32 s{s_ring}, 0")
I(f"s_mov_b32 s{s_sx}, 16384")
I(f"s_mov_b32 s{s_sw}, 24576")
I("s_barrier")
if args.oldlate:
    I(f"s_cmp_lg_u32 s{s_wave}, 0")
    I(f"s_cbranch_scc1 {P}_c_noold")
    I(f"buffer_load_dword v{vOLD}, v21, {srd(sH)}, s{s_fl} offen sc1")
    L(f"{P}_c_noold")
stamp(1)
r = reads(0, FA)
for x in r[:12]: I(x)
I("s_waitcnt lgkmcnt(8)")
for x in r[12:]: I(x)
L(f"{P}_c_loop")
m = mfmas(FA); r = reads(1, FB)
extra = [f"s_add_u32 s{s_ring}, s{s_ring}, 1", f"s_cmp_eq_u32 s{s_ring}, 3",
         f"s_cselect_b32 s{s_t0}, {-32768 & 0xffffffff}, s{s_sx}", f"s_cselect_b32 s{s_t1}, {-49152 & 0xffffffff}, s{s_sw}",
         f"s_cselect_b32 s{s_ring}, 0, s{s_ring}", f"s_add_u32 s{s_cnt}, s{s_cnt}, 1"]
upd = [f"v_add_u32 v{vAX[ks]}, s{s_t0}, v{vAX[ks]}" for ks in range(2)] + [f"v_add_u32 v{vAW[t]}, s{s_t1}, v{vAW[t]}" for t in range(3)]
need = {0: 8, 8: 10, 12: 12, 16: 14, 20: 16}
for i in range(24):
    if i in need: I(f"s_waitcnt lgkmcnt({min(15, 16 - need[i] + min(i, 16))})")
    I(m[i])
    if i < 16: I(r[i])
    elif i < 19: I(extra[2*(i-16)]); I(extra[2*(i-16)+1])
    elif i < 24: I(upd[i-19])
I("s_waitcnt lgkmcnt(0)")
m = mfmas(FB); r = reads(0, FA)
for i in range(24):
    if i == args.barpos: I("s_barrier")
    I(m[i])
    if i >= args.barpos:
        for x in r[(i - args.barpos) * args.rpg:(i - args.barpos + 1) * args.rpg]: I(x)
assert (24 - args.barpos) * args.rpg >= 16
I(f"s_cmp_lt_u32 s{s_cnt}, 7")
I(f"s_cbranch_scc1 {P}_c_loop")
stamp(2)
T = 32
def epi(t, p):
    tm = T + p * 12; o = tm + 8
    g = [acc(t, 0, 2*p + (q >> 2)) + (q & 3) for q in range(8)]
    u = [acc(t, 1, 2*p + (q >> 2)) + (q & 3) for q in range(8)]
    v = []
    for q in range(8): v.append(f"v_mul_f32 v{tm+q}, s{s_k}, v{g[q]}")
    for q in range(8): v.append(f"v_exp_f32 v{tm+q}, v{tm+q}")
    for q in range(8): v.append(f"v_add_f32 v{tm+q}, 1.0, v{tm+q}")
    for q in range(8): v.append(f"v_rcp_f32 v{tm+q}, v{tm+q}")
    for q in range(8): v.append(f"v_mul_f32 v{tm+q}, v{tm+q}, v{g[q]}")
    for q in range(8): v.append(f"v_mul_f32 v{tm+q}, v{tm+q}, v{u[q]}")
    for q in (0, 2, 1, 3): v.append(f"v_cvt_pk_bf16_f32 v{o+q}, v{tm+2*q}, v{tm+2*q+1}")
    if 2 * t + p >= args.pkfrom:
        v = []
        pr = lambda r: f"v[{r}:{r+1}]"
        for q in range(0, 8, 2): v.append(f"v_pk_mul_f32 {pr(tm+q)}, {pr(g[q])}, v[56:57]")
        for q in range(8): v.append(f"v_exp_f32 v{tm+q}, v{tm+q}")
        for q in range(0, 8, 2): v.append(f"v_pk_add_f32 {pr(tm+q)}, {pr(tm+q)}, v[58:59]")
        for q in range(8): v.append(f"v_rcp_f32 v{tm+q}, v{tm+q}")
        for q in range(0, 8, 2): v.append(f"v_pk_mul_f32 {pr(tm+q)}, {pr(tm+q)}, {pr(g[q])}")
        for q in range(0, 8, 2): v.append(f"v_pk_mul_f32 {pr(tm+q)}, {pr(tm+q)}, {pr(u[q])}")
        for q in (0, 2, 1, 3): v.append(f"v_cvt_pk_bf16_f32 v{o+q}, v{tm+2*q}, v{tm+2*q+1}")
    v.append(("swap", o))
    v.append(("store", t, p, o))
    return v
def emit_v(x):
    if isinstance(x, tuple) and x[0] == "swap":
        o = x[1]
        I(f"v_permlane16_swap_b32 v{o}, v{o+2}")
        I("s_nop 0")
        I(f"v_permlane16_swap_b32 v{o+1}, v{o+3}")
    elif isinstance(x, tuple):
        _, t, mb, o = x
        I(f"s_cmp_le_u32 s{s_valid}, {t}")
        I(f"s_cbranch_scc1 {P}_c_ns{t}{mb}")
        I(f"buffer_store_dwordx4 v[{o}:{o+3}], v9, {srd(sH)}, s{s_hoff+2*t+mb} offen {HST}")
        L(f"{P}_c_ns{t}{mb}")
    else:
        I(x)
blocks = [(t, p) for t in range(3) for p in range(2)]
def bmf(t, p, fs): return [mf(fs, t, mat, 2*p + j) for mat in range(2) for j in range(2)]
rB = reads(1, FB)
I("s_waitcnt lgkmcnt(0)")
pre = bmf(0, 0, FA) + bmf(0, 1, FA)
for i in range(8):
    I(pre[i]); I(rB[2*i]);
    if i == 7: I("s_waitcnt lgkmcnt(9)")
    I(rB[2*i+1])
I("s_waitcnt lgkmcnt(8)")
seq = [(x, None) for x in bmf(0, 0, FB)]
seq[-1] = (seq[-1][0], 0)
x = bmf(0, 1, FB); seq += [(y, None) for y in x[:-1]] + [(x[-1], 1)]
for bi in range(2, 6):
    t, p = blocks[bi]
    x = bmf(t, p, FA) + bmf(t, p, FB)
    seq += [(y, None) for y in x[:-1]] + [(x[-1], bi)]
vq = []; nxt = 0; since = {}; PER = args.per
emitted_since = {}
for i, (mi, done) in enumerate(seq):
    if i == 8: I("s_waitcnt lgkmcnt(0)")
    I(mi)
    for k in emitted_since: emitted_since[k] += 1
    if done is not None: emitted_since[done] = 0
    n = 0
    while n < args.gapc:
        if not vq:
            if nxt in emitted_since and emitted_since[nxt] >= 4 and nxt < args.pkfrom:
                if emitted_since[nxt] < 9: I(f"s_nop {9 - emitted_since[nxt]}")
                vq += epi(*blocks[nxt]); nxt += 1
            else:
                break
        x = vq.pop(0)
        emit_v(x); n += 8 if (isinstance(x, tuple) or "exp" in x or "rcp" in x) else 4
        for k in emitted_since: emitted_since[k] += 1
while vq or nxt < 6:
    if not vq:
        if emitted_since[nxt] < 9: I(f"s_nop {9 - emitted_since[nxt]}")
        vq += epi(*blocks[nxt]); nxt += 1
    emit_v(vq.pop(0))
    for k in emitted_since: emitted_since[k] += 1
L(f"{P}_c_epidone")
stamp(3)
I("s_waitcnt vmcnt(0)")
I(f"v_add_u32 v{vOLD}, 1, v{vOLD}")
I("s_barrier")
I(f"s_cmp_lg_u32 s{s_wave}, 0")
I(f"s_cbranch_scc1 {P}_c_p2")
I("s_mov_b64 exec, 1")
I(f"buffer_store_dword v{vOLD}, v21, {srd(sH)}, s{s_fl} offen sc1")
I("s_mov_b64 exec, -1")
I(f"s_branch {P}_c_p2")
L(f"{P}_c_idle")
prefetch_jobs(False)
I("s_barrier")
L(f"{P}_c_p2")
stamp(4)
def wreads(u, dst):
    a = unit_addr(u); sg = a >> 16; off = a & 0xffff
    r = []
    for nb in range(2):
        for h in range(2):
            r.append(f"ds_read_b64_tr_b16 v[{dst+4*nb+2*h}:{dst+4*nb+2*h+1}], v{vB[sg][nb]} offset:{off+h*512}")
    return r
NW = 3
NPRE = 4 if args.pre else 2
PRE = 96
TN = args.tailn
def wdst(u):
    if args.pre and u < 4: return PRE + 8 * u
    if u >= 43 - TN: return PRE + 8 * (u - (43 - TN))
    return WF + 8 * (u % NW)
for u in range(NPRE):
    if u == 3: I("s_waitcnt lgkmcnt(8)")
    for r in wreads(u, wdst(u)): I(r)
for r in range(32):
    I(f"v_mov_b32 v{ACC+r}, 0")
if args.pre:
    I("s_waitcnt lgkmcnt(0)")
    I("s_barrier")
L(f"{P}_c_spin")
I("ds_read_b32 v24, v22 offset:4")
I("s_waitcnt lgkmcnt(0)")
I(f"v_readfirstlane_b32 s{s_t0}, v24")
I("s_nop 0")
I(f"s_cmp_eq_u32 s{s_t0}, 0")
I(f"s_cbranch_scc1 {P}_c_spin")
stamp(5)
if "p2" in args.diag: stamp(1, True)
def hload(s):
    b = HR + 4 * (s % R)
    return [f"buffer_load_dwordx4 v[{b}:{b+3}], v9, {srd(sH)}, s{s_p} offen {HLD}",
            f"s_add_u32 s{s_p}, s{s_p}, 1024",
            f"s_cmp_eq_u32 s{s_p}, s{s_pend}",
            f"s_cselect_b32 s{s_p}, s{s_pbeg}, s{s_p}"]
issued = 0
for s in range(args.hpro):
    for x in hload(s): I(x)
issued = args.hpro
def mm2(s, nb):
    hb = HR + 4 * (s % R); wd = wdst(s)
    return f"v_mfma_f32_32x32x16_bf16 v[{ACC+16*nb}:{ACC+16*nb+15}], v[{wd+4*nb}:{wd+4*nb+3}], v[{hb}:{hb+3}], v[{ACC+16*nb}:{ACC+16*nb+15}]"
for s in range(43):
    u = s + 2
    young = 1 if NPRE <= s + 1 < 43 else 0
    I(f"s_waitcnt vmcnt({issued - s - 1}) lgkmcnt({4*young})")
    if "p2" in args.diag and s in (0, 5, 11, 21, 32, 42): stamp({0:2, 5:3, 11:4, 21:5, 32:6, 42:7}[s], True)
    if s == 3 and not args.pre: I("s_barrier")
    if u == wdone: I("s_barrier")
    wr = wreads(u, wdst(u)) if NPRE <= u < 43 else []
    tail = s >= 43 - TN
    I(mm2(s, 1))
    for r in wr[:2]: I(r)
    if issued < 43 and issued - R < s:
        for x in hload(issued): I(x)
        issued += 1
    if not tail: I(mm2(s, 0))
    for r in wr[2:]: I(r)
    if issued < 43 and issued - R < s and issued - s - 1 < R - 1:
        for x in hload(issued): I(x)
        issued += 1
stamp(6)
tl = [mm2(s, 0) for s in range(43 - TN, 43)]
if tl: I(tl.pop(0))
I("s_nop 7")
I("s_nop 2" if TN else "s_nop 3")
for q in range(4):
    I(f"ds_write_b128 v17, v[{ACC+16+4*q}:{ACC+19+4*q}] offset:{q*1024}")
    if tl and q % 2 == 1: I(tl.pop(0))
for x in tl: I(x)
I("s_waitcnt lgkmcnt(0)")
I("s_barrier")
for q in range(4):
    I(f"ds_read_b128 v[{128+4*q}:{131+4*q}], v18 offset:{q*1024}")
I("s_nop 5")
for q in range(4):
    I(f"s_waitcnt lgkmcnt({3-q})")
    for p in range(2):
        I(f"v_pk_add_f32 v[{ACC+4*q+2*p}:{ACC+4*q+2*p+1}], v[{ACC+4*q+2*p}:{ACC+4*q+2*p+1}], v[{128+4*q+2*p}:{129+4*q+2*p}]")
    for p in range(2):
        I(f"v_cvt_pk_bf16_f32 v{144+2*q+p}, v{ACC+4*q+2*p}, v{ACC+4*q+2*p+1}")
    if q == 1: I(f"buffer_store_dwordx4 v[144:147], v16, {srd(sO)}, 0 offen {OST}")
I(f"buffer_store_dwordx4 v[148:151], v16, {srd(sO)}, 0 offen offset:16 {OST}")
if STAMPS:
    I("s_waitcnt vmcnt(0)")
stamp(7)
if args.amp and args.amp != "none":
    I("s_waitcnt lgkmcnt(0)")
    if args.amp.startswith("g"):
        aj = int(args.amp.split(",")[1]); ai = 1 if aj != 1 else 2
        I(f"buffer_load_dword v60, v21, {srd(sD)}, 0 offen offset:252 sc1")
        I("s_waitcnt vmcnt(0)")
        I(f"v_readfirstlane_b32 s{s_t1}, v60")
        I("s_nop 1")
        I(f"s_not_b32 s{s_prof+2*ai}, s{s_t1}")
    else:
        ai, aj = [int(t) for t in args.amp.split(",")]
    I(f"s_sub_u32 s{s_t0}, s{s_prof+2*aj}, s{s_prof+2*ai}")
    I(f"s_cmp_eq_u32 s{s_prof+2*ai}, 0")
    I(f"s_cselect_b32 s{s_t0}, 0, s{s_t0}")
    I(f"s_cmp_eq_u32 s{s_prof+2*aj}, 0")
    I(f"s_cselect_b32 s{s_t0}, 0, s{s_t0}")
    I(f"s_min_u32 s{s_t0}, s{s_t0}, 20000")
    I(f"s_mul_i32 s{s_t0}, s{s_t0}, 10")
    I("s_memrealtime s[82:83]")
    I("s_waitcnt lgkmcnt(0)")
    I(f"s_mov_b32 s{s_t1}, s82")
    L(f"{P}_amp")
    I("s_memrealtime s[82:83]")
    I("s_waitcnt lgkmcnt(0)")
    I(f"s_sub_u32 s{s_t2}, s82, s{s_t1}")
    I(f"s_cmp_lt_u32 s{s_t2}, s{s_t0}")
    I(f"s_cbranch_scc1 {P}_amp")
prof_store()
I("s_endpgm")
L(f"{P}_codeend")
for i in range(128): I("s_nop 0")

e('.section .rodata,"a"')
e(".p2align 6")
e(f".amdhsa_kernel {label}")
e("  .amdhsa_next_free_vgpr 256")
e("  .amdhsa_next_free_sgpr 102")
e("  .amdhsa_accum_offset 256")
e("  .amdhsa_group_segment_fixed_size 0")
e("  .amdhsa_kernarg_size 56")
e("  .amdhsa_user_sgpr_count 2")
e("  .amdhsa_user_sgpr_kernarg_segment_ptr 1")
e("  .amdhsa_system_sgpr_workgroup_id_x 1")
e("  .amdhsa_float_denorm_mode_32 3")
e(".end_amdhsa_kernel")

text = "\n".join(out) + "\n"
if args.codepf:
    import subprocess, tempfile, re, os
    def build(t):
        with tempfile.TemporaryDirectory() as d:
            open(d + "/k.s", "w").write(t)
            subprocess.run(["clang", "-x", "assembler", "-target", "amdgcn-amd-amdhsa", "-mcpu=gfx950", "-c", d + "/k.s", "-o", d + "/k.o"], check=True)
            sym = subprocess.run(["llvm-objdump", "-t", d + "/k.o"], capture_output=True, text=True).stdout
        a = {m.group(2): int(m.group(1), 16) for m in re.finditer(r"^([0-9a-f]{16}) .*\s(\S+)$", sym, re.M)}
        return a
    a = build(text.replace("@CODEPF@\n", ""))
    size = a[f"{P}_codeend"] - a[f"{P}_pc"]
    n = size // 512
    pf = "".join(f"    s_load_dword s3, s[18:19], {512*i}\n" for i in range(1, n + 1))
    text = text.replace("@CODEPF@\n", pf)
    sys.stderr.write(f"compute code {size} B, {n} touches/wave; loader code {a[f'{P}_compute']} B\n")
open(args.o, "w").write(text)
```

```python
import sys, argparse

ap = argparse.ArgumentParser()
ap.add_argument("-o", default="standalone__glu_gated_swiglu__prompt.s")
ap.add_argument("--prof", action="store_true")
ap.add_argument("--rot1", type=int, default=1)
ap.add_argument("--rot2", type=int, default=2)
ap.add_argument("--hring", type=int, default=12)
ap.add_argument("--hpro", type=int, default=10)
ap.add_argument("--jobX", type=int, default=1)
ap.add_argument("--barpos", type=int, default=16)
ap.add_argument("--skiplight", type=int, default=1)
ap.add_argument("--job3", type=int, default=1)
ap.add_argument("--fb", default="scalar")
ap.add_argument("--tailn", type=int, default=3)
ap.add_argument("--touch", type=int, default=0)
ap.add_argument("--pre", type=int, default=1)
ap.add_argument("--rpg", type=int, default=2)
ap.add_argument("--gapc", type=int, default=8)
ap.add_argument("--pace", type=int, default=10)
ap.add_argument("--pkfrom", type=int, default=2)
ap.add_argument("--fsat", type=int, default=0)
ap.add_argument("--oldlate", type=int, default=0)
ap.add_argument("--cbswap", type=int, default=0)
ap.add_argument("--flagsep", type=int, default=1)
ap.add_argument("--firstpoll", type=int, default=0)
ap.add_argument("--hst", default="sc1")
ap.add_argument("--hld", default="sc1")
ap.add_argument("--ost", default="none")
ap.add_argument("--sleep", type=int, default=1)
ap.add_argument("--cyc", action="store_true")
ap.add_argument("--amp", default="")
ap.add_argument("--codepf", type=int, default=0)
ap.add_argument("--tlb", type=int, default=0)
ap.add_argument("--jobA", type=int, default=0)
ap.add_argument("--jobB", type=int, default=0)
ap.add_argument("--prio", type=int, default=1)
ap.add_argument("--late", type=int, default=0)
ap.add_argument("--nopk", type=int, default=6)
ap.add_argument("--per", type=int, default=3)
ap.add_argument("--trickle", default="0,0,0,0,0,0,0,0")
ap.add_argument("--atb6", type=int, default=8)
ap.add_argument("--jobM", type=int, default=1)
ap.add_argument("--atb7", type=int, default=14)
ap.add_argument("--stouch", type=int, default=0)
ap.add_argument("--bmax", type=int, default=43)
ap.add_argument("--xrot", type=int, default=4)
ap.add_argument("--early", type=int, default=11)
ap.add_argument("--diag", default="")
args = ap.parse_args()

NAME = "standalone__glu_gated_swiglu__prompt"
out = []
def e(s=""): out.append(s)
def I(s): out.append("    " + s)
def L(s): out.append(s + ":")

S, D, F = 2048, 512, 1376
XB, WB, W2B, OB = S * D * 2, D * F * 2, F * D * 2, S * D * 2
HSTR = 87
WS_REC = 8 << 20
PROF_OFF = 7 << 20
LDS_X = 0
LDS_W = 49152
LDS_E = 122880
LDS_SCR = 159744
LDS_TOTAL = 163840
RANGES = [(0, 9, LDS_E), (9, 4, LDS_X + 32768), (13, 6, LDS_W + 49152), (19, 4, LDS_X), (23, 6, LDS_W),
          (29, 4, LDS_X + 16384), (33, 6, LDS_W + 24576), (39, 4, LDS_E)]
def unit_addr(u):
    for u0, n, a in RANGES:
        if u0 <= u < u0 + n: return a + (u - u0) * 4096
    raise ValueError
XCH = LDS_E + 4 * 4096

sX, sW1, sW3, sW2, sH, sO, sD = 20, 24, 28, 32, 36, 40, 44
s_wave, s_xcd, s_slot, s_mt, s_sl, s_rb, s_cb = 48, 49, 50, 51, 52, 53, 54
s_t0, s_t1, s_t2, s_t3 = 55, 56, 57, 58
s_cnt, s_kst, s_sx, s_sw, s_ring = 59, 60, 61, 62, 63
s_lx, s_lw, s_rot2, s_fl = 64, 65, 66, 67
s_k = 68
s_one = 70
s_hoff = 72
s_p, s_pend, s_pbeg = 78, 79, 80
s_valid = 81
s_prof = 84
def srd(r): return f"s[{r}:{r+3}]"
STAMPS = args.prof or args.amp
LOADER_STAGES = [False]
def stamp(i, force=False):
    if LOADER_STAGES[0] and not force: return
    if STAMPS:
        I(f"{'s_memtime' if args.cyc else 's_memrealtime'} s[{s_prof+2*i}:{s_prof+2*i+1}]")

def prof_store():
    if not args.prof: return
    I("s_waitcnt lgkmcnt(0)")
    I(f"s_lshl_b32 s{s_t0}, s2, 3")
    I(f"s_add_u32 s{s_t0}, s{s_t0}, s{s_wave}")
    I(f"s_lshl_b32 s{s_t0}, s{s_t0}, 5")
    I(f"s_add_u32 s{s_t0}, s{s_t0}, {PROF_OFF}")
    for i in range(8):
        I(f"v_mov_b32 v{240+i}, s{s_prof+2*i}")
    I("v_mov_b32 v248, 0")
    I("s_mov_b64 exec, 1")
    I(f"buffer_store_dwordx4 v[240:243], v248, {srd(sH)}, s{s_t0} offen")
    I(f"buffer_store_dwordx4 v[244:247], v248, {srd(sH)}, s{s_t0} offen offset:16")
    I("s_mov_b64 exec, -1")

def make_srd(r, p, nbytes):
    I(f"s_mov_b32 s{r}, s{p}")
    I(f"s_and_b32 s{r+1}, s{p+1}, 0xffff")
    I(f"s_mov_b32 s{r+2}, {nbytes}")
    I(f"s_mov_b32 s{r+3}, 0x20000")
pol = lambda s: s.replace("_", " ").replace("none", "")
HST, HLD, OST = pol(args.hst), pol(args.hld), pol(args.ost)

label = NAME + "_kernel"
P = "K"
def amp_block(spec, tag):
    I("s_waitcnt lgkmcnt(0)")
    if spec.startswith("g"):
        aj = int(spec.split(",")[1]); ai = 1 if aj != 1 else 2
        I(f"buffer_load_dword v60, v21, {srd(sD)}, 0 offen offset:252 sc1")
        I("s_waitcnt vmcnt(0)")
        I(f"v_readfirstlane_b32 s{s_t1}, v60")
        I("s_nop 1")
        I(f"s_not_b32 s{s_prof+2*ai}, s{s_t1}")
    else:
        ai, aj = [int(t) for t in spec.split(",")]
    I(f"s_sub_u32 s{s_t0}, s{s_prof+2*aj}, s{s_prof+2*ai}")
    I(f"s_cmp_eq_u32 s{s_prof+2*ai}, 0")
    I(f"s_cselect_b32 s{s_t0}, 0, s{s_t0}")
    I(f"s_cmp_eq_u32 s{s_prof+2*aj}, 0")
    I(f"s_cselect_b32 s{s_t0}, 0, s{s_t0}")
    I(f"s_min_u32 s{s_t0}, s{s_t0}, 20000")
    I(f"s_mul_i32 s{s_t0}, s{s_t0}, 10")
    I("s_memrealtime s[82:83]")
    I("s_waitcnt lgkmcnt(0)")
    I(f"s_mov_b32 s{s_t1}, s82")
    L(f"{P}_amp{tag}")
    I("s_memrealtime s[82:83]")
    I("s_waitcnt lgkmcnt(0)")
    I(f"s_sub_u32 s{s_t2}, s82, s{s_t1}")
    I(f"s_cmp_lt_u32 s{s_t2}, s{s_t0}")
    I(f"s_cbranch_scc1 {P}_amp{tag}")

e(f"; @launch grid=(256,1,1) block=(512,1,1) lds={LDS_TOTAL}")
e('.amdgcn_target "amdgcn-amd-amdhsa--gfx950"')
e(".text")
e(f".globl {label}")
e(".p2align 8")
e(f".type {label},@function")
L(label)
I("s_cmp_ge_u32 s2, 256")
I(f"s_cbranch_scc1 {P}_end")
I("s_load_dwordx8 s[4:11], s[0:1], 0")
I("s_load_dwordx4 s[12:15], s[0:1], 32")
I("s_load_dwordx2 s[16:17], s[0:1], 48")
if STAMPS:
    for i in range(8): I(f"s_mov_b32 s{s_prof+2*i}, 0")
stamp(0)
I("v_lshrrev_b32 v2, 6, v0")
I("v_and_b32 v1, 63, v0")
I(f"v_readfirstlane_b32 s{s_wave}, v2")
I(f"s_and_b32 s{s_xcd}, s2, 7")
I(f"s_lshr_b32 s{s_slot}, s2, 3")
I(f"s_and_b32 s{s_t0}, s{s_xcd}, 3")
I(f"s_lshl_b32 s{s_t0}, s{s_t0}, 2")
I(f"s_lshr_b32 s{s_t1}, s{s_xcd}, 2")
I(f"s_and_b32 s{s_t2}, s{s_slot}, 3")
I(f"s_lshr_b32 s{s_t3}, s{s_slot}, 2")
I(f"s_add_u32 s{s_mt}, s{s_t0}, s{s_t2}")
I(f"s_mul_i32 s{s_sl}, s{s_t1}, 7")
I(f"s_add_u32 s{s_sl}, s{s_sl}, s{s_t3}")
I(f"s_add_u32 s{s_kst}, s{s_t2}, s{s_t3}")
I(f"s_and_b32 s{s_kst}, s{s_kst}, {args.rot1-1}")
I(f"s_mul_i32 s{s_kst}, s{s_kst}, {8//args.rot1}")
if args.xrot == 2:
    I(f"s_add_u32 s{s_cnt}, s{s_xcd}, s{s_t1}")
    I(f"s_and_b32 s{s_cnt}, s{s_cnt}, 1")
    I(f"s_mul_i32 s{s_cnt}, s{s_cnt}, {max(1, 4//args.rot1)}")
    I(f"s_add_u32 s{s_kst}, s{s_kst}, s{s_cnt}")
elif args.xrot == 4:
    I(f"s_lshl_b32 s{s_cnt}, s{s_t1}, 1")
    I(f"s_add_u32 s{s_cnt}, s{s_cnt}, s{s_xcd}")
    I(f"s_and_b32 s{s_cnt}, s{s_cnt}, 3")
    I(f"s_mul_i32 s{s_cnt}, s{s_cnt}, {max(1, 2//args.rot1)}")
    I(f"s_add_u32 s{s_kst}, s{s_kst}, s{s_cnt}")
I(f"s_lshl_b32 s{s_t1}, s{s_t1}, 1")
I(f"s_add_u32 s{s_t0}, s{s_t0}, s{s_t1}")
I(f"s_add_u32 s{s_t1}, s{s_t0}, s{s_t2}")
I(f"s_cmp_ge_u32 s{s_slot}, 28")
I(f"s_cselect_b32 s{s_mt}, s{s_t1}, s{s_mt}")
I(f"s_cselect_b32 s{s_sl}, 14, s{s_sl}")
I(f"s_cmp_ge_u32 s{s_slot}, 30")
I(f"s_cselect_b32 s{s_sl}, 15, s{s_sl}")
I(f"s_cselect_b32 s{s_mt}, s{s_t0}, s{s_mt}")
I(f"s_lshl_b32 s{s_t0}, s{s_t0}, 1")
I(f"s_lshr_b32 s{s_t1}, s{s_slot}, 3")
I(f"s_add_u32 s{s_rb}, s{s_t0}, s{s_t1}")
I(f"s_and_b32 s{s_cb}, s{s_slot}, 7")
if args.cbswap:
    I(f"s_cmp_eq_u32 s{s_cb}, 3")
    I(f"s_cselect_b32 s{s_t2}, 6, s{s_cb}")
    I(f"s_cmp_eq_u32 s{s_cb}, 6")
    I(f"s_cselect_b32 s{s_cb}, 3, s{s_t2}")
if args.rot2 == 8:
    I(f"s_lshl_b32 s{s_rot2}, s{s_t1}, 1")
    I(f"s_add_u32 s{s_rot2}, s{s_rot2}, s{s_cb}")
    I(f"s_and_b32 s{s_rot2}, s{s_rot2}, 7")
    I(f"s_mul_i32 s{s_rot2}, s{s_rot2}, 43")
    I(f"s_lshr_b32 s{s_rot2}, s{s_rot2}, 3")
elif args.rot2 == 2:
    I(f"s_mul_i32 s{s_rot2}, s{s_t1}, 11")
elif args.rot2:
    I(f"s_add_u32 s{s_rot2}, s{s_t1}, s{s_cb}")
    I(f"s_and_b32 s{s_rot2}, s{s_rot2}, 3")
    I(f"s_mul_i32 s{s_rot2}, s{s_rot2}, 11")
else:
    I(f"s_mov_b32 s{s_rot2}, 0")
I(f"s_cmp_lt_u32 s{s_wave}, 4")
I(f"s_cbranch_scc1 {P}_compute")

LOADER_STAGES[0] = "stages" in args.diag
I(f"s_sub_u32 s{s_t3}, s{s_wave}, 4")
vX = [2, 3, 4, 5]; vW = [6, 7, 8]; vU = [10, 11, 12]; vW2 = 13
vFA, vFS, vFN = 20, 21, 22
I("v_lshrrev_b32 v14, 3, v1")
I(f"s_lshl_b32 s{s_t0}, s{s_t3}, 5")
I(f"v_add_u32 v14, s{s_t0}, v14")
I("v_and_b32 v15, 7, v1")
for j in range(4):
    I(f"v_add_u32 v16, {8*j}, v14")
    I("v_lshrrev_b32 v17, 1, v16")
    I("v_and_b32 v17, 7, v17")
    I("v_xor_b32 v17, v17, v15")
    I(f"v_subrev_u32 v16, {j}, v16")
    I("v_lshlrev_b32 v16, 10, v16")
    I(f"v_lshl_add_u32 v{vX[j]}, v17, 4, v16")
I(f"s_and_b32 s{s_t0}, s{s_sl}, 1")
I(f"s_lshl_b32 s{s_t1}, s{s_t3}, 4")
I("v_lshrrev_b32 v14, 2, v1")
I("v_and_b32 v15, 3, v1")
I(f"s_cmp_eq_u32 s{s_t0}, 1")
I("s_cselect_b64 vcc, -1, 0")
I(f"s_cmp_eq_u32 s{s_sl}, 14")
I(f"s_cselect_b32 s{s_t2}, 0, 64")
for j in range(3):
    I(f"v_add_u32 v16, {16*j}, v14")
    I("v_mul_u32_u24 v17, 43, v16")
    I("v_lshrrev_b32 v17, 7, v17")
    I("v_mul_u32_u24 v18, 3, v17")
    I("v_sub_u32 v18, v16, v18")
    I("v_sub_u32 v19, 2, v18")
    I("v_cndmask_b32 v18, v18, v19, vcc")
    I(f"v_mul_u32_u24 v18, s{s_t2}, v18")
    I("v_and_b32 v19, 8, v17")
    I("v_lshlrev_b32 v19, 2, v19")
    I(f"v_add_u32 v17, s{s_t1}, v17")
    I("v_mul_u32_u24 v17, 2752, v17")
    I("v_add_u32 v17, v17, v18")
    I("v_lshl_add_u32 v17, v15, 4, v17")
    I("v_xor_b32 v17, v17, v19")
    I(f"v_subrev_u32 v{vW[j]}, {1024*j}, v17")
I(f"s_lshl_b32 s{s_lx}, s{s_t3}, 12")
I(f"s_mul_i32 s{s_lw}, s{s_t3}, 6144")
I(f"s_add_u32 s{s_lw}, s{s_lw}, {LDS_W}")
I("v_lshrrev_b32 v14, 3, v1")
I(f"s_and_b32 s{s_t0}, s{s_t3}, 1")
I(f"s_lshl_b32 s{s_t0}, s{s_t0}, 3")
I(f"s_lshr_b32 s{s_t1}, s{s_t3}, 1")
I(f"s_mul_i32 s{s_t1}, s{s_t1}, 688")
I(f"s_add_u32 s{s_t0}, s{s_t0}, s{s_t1}")
I(f"v_add_u32 v14, s{s_t0}, v14")
I("v_lshlrev_b32 v14, 10, v14")
I("v_lshrrev_b32 v15, 4, v1")
I("v_and_b32 v15, 1, v15")
I("v_lshlrev_b32 v15, 2, v15")
I("v_and_b32 v16, 7, v1")
I("v_xor_b32 v15, v15, v16")
I(f"v_lshl_add_u32 v{vW2}, v15, 4, v14")
I(f"s_lshl_b32 s{s_pbeg}, s{s_cb}, 7")
I(f"s_add_u32 s{s_pend}, s{s_pbeg}, {43*16384}")
I(f"s_lshl_b32 s{s_t0}, s{s_rot2}, 14")
I(f"s_add_u32 s{s_p}, s{s_pbeg}, s{s_t0}")
I(f"s_lshl_b32 s{s_hoff}, s{s_t3}, 10")
I(f"s_lshr_b32 s{s_t0}, s{s_rb}, 1")
I(f"s_mul_i32 s{s_fl}, s{s_t0}, {4*HSTR*1024}")
I(f"s_add_u32 s{s_fl}, s{s_fl}, {86*1024}")
if args.flagsep:
    I(f"v_min_u32 v14, 15, v1")
    I(f"s_cmp_eq_u32 s{s_t0}, s{s_mt}")
    I(f"s_cselect_b32 s{s_t1}, s{s_sl}, 15")
    I(f"v_cmp_eq_u32 vcc, s{s_t1}, v14")
    I("v_mov_b32 v15, 15")
    I("s_nop 0")
    I("v_cndmask_b32 v14, v14, v15, vcc")
    I("v_lshrrev_b32 v15, 3, v14")
    I(f"v_mul_u32_u24 v15, {HSTR*1024}, v15")
    I("v_and_b32 v14, 7, v14")
    I(f"v_lshl_add_u32 v{vFA}, v14, 7, v15")
else:
    I(f"v_and_b32 v{vFA}, 15, v1")
    I(f"v_lshlrev_b32 v{vFA}, 2, v{vFA}")
I(f"s_lshl_b32 s{s_valid}, 1, s{s_sl}")
I(f"s_cmp_eq_u32 s{s_t0}, s{s_mt}")
I(f"s_cselect_b32 s{s_valid}, s{s_valid}, 0")
I(f"s_cmp_eq_u32 s{s_wave}, 5")
I(f"s_cselect_b32 s{s_t1}, 64, 43")
I(f"s_mul_i32 s{s_t2}, s2, s{s_t1}")
I(f"s_sub_u32 s{s_t1}, s{s_t1}, 1")
I(f"v_min_u32 v23, s{s_t1}, v1")
I(f"v_add_u32 v23, s{s_t2}, v23")
I("v_lshlrev_b32 v23, 7, v23")
if args.touch == 2:
    I("v_min_u32 v24, 31, v1")
    I("v_lshrrev_b32 v25, 2, v24")
    I(f"s_lshl_b32 s{s_t1}, s2, 3")
    I(f"v_add_u32 v25, s{s_t1}, v25")
    I("v_lshlrev_b32 v25, 3, v25")
    I("v_and_b32 v26, 1, v24")
    I("v_and_b32 v24, 2, v24")
    I("v_lshl_add_u32 v26, v24, 1, v26")
    I("v_add3_u32 v25, v25, v26, 2")
    I("v_min_u32 v24, 21, v1")
    I(f"s_mul_i32 s{s_t1}, s2, 22")
    I(f"v_add_u32 v24, s{s_t1}, v24")
    I("v_min_u32 v24, 5503, v24")
    I("v_cmp_gt_u32 vcc, 2752, v24")
    I("v_add_u32 v26, 2752, v24")
    I("v_add_u32 v24, 5504, v24")
    I("v_cndmask_b32 v24, v24, v26, vcc")
    I(f"s_cmp_eq_u32 s{s_wave}, 5")
    I("s_cselect_b64 vcc, -1, 0")
    I("v_cndmask_b32 v23, v24, v25, vcc")
    I("v_lshlrev_b32 v23, 7, v23")
I(f"s_lshl_b32 s{s_hoff+1}, s{s_mt}, 17")
I(f"s_mul_i32 s{s_hoff+2}, s{s_sl}, 192")
I(f"s_mov_b32 s{s_ring}, 0")
I(f"s_mov_b32 s{s_cnt}, 0")
I(f"s_mov_b32 s{sX+2}, {XB}"); I(f"s_mov_b32 s{sX+3}, 0x20000")
I(f"s_mov_b32 s{sW1+2}, {WB}"); I(f"s_mov_b32 s{sW1+3}, 0x20000")
I(f"s_mov_b32 s{sW3+2}, {WB}"); I(f"s_mov_b32 s{sW3+3}, 0x20000")
I(f"s_mov_b32 s{sW2+2}, {W2B}"); I(f"s_mov_b32 s{sW2+3}, 0x20000")
I(f"s_mov_b32 s{sH+2}, {WS_REC}"); I(f"s_mov_b32 s{sH+3}, 0x20000")
I(f"s_mov_b32 s{sD+2}, 256"); I(f"s_mov_b32 s{sD+3}, 0x20000")
I("s_waitcnt lgkmcnt(0)")
for r, p in ((sX, 4), (sW1, 6), (sW3, 8), (sW2, 10), (sH, 16), (sD, 14)):
    I(f"s_mov_b32 s{r}, s{p}")
    I(f"s_and_b32 s{r+1}, s{p+1}, 0xffff")
stamp(1)

wcount = [0]
def issueW(ua, ub, pace=0):
    for u0, n, a in RANGES:
        lo, hi = max(ua, u0), min(ub, u0 + n)
        if lo >= hi: continue
        lab = f"{P}_l_w{wcount[0]}"; wcount[0] += 1
        I(f"s_add_u32 m0, s{s_hoff}, {unit_addr(lo)}")
        I(f"s_mov_b32 s{s_t0}, {hi-lo}")
        L(lab)
        if pace: I(f"s_waitcnt vmcnt({pace-1})")
        I(f"buffer_load_dwordx4 v{vW2}, {srd(sW2)}, s{s_p} offen lds")
        I(f"s_add_u32 s{s_p}, s{s_p}, 16384")
        I(f"s_cmp_eq_u32 s{s_p}, s{s_pend}")
        I(f"s_cselect_b32 s{s_p}, s{s_pbeg}, s{s_p}")
        I("s_add_u32 m0, m0, 4096")
        I(f"s_sub_u32 s{s_t0}, s{s_t0}, 1")
        I(f"s_cmp_lg_u32 s{s_t0}, 0")
        I(f"s_cbranch_scc1 {lab}")

def aux_load(tag):
    if not args.touch:
        I(f"buffer_load_dword v{vFS}, v{vFA}, {srd(sH)}, s{s_fl} offen sc1")
        return
    I(f"s_cmp_eq_u32 s{s_wave}, 4")
    I(f"s_cbranch_scc0 {P}_ax{tag}1")
    I(f"buffer_load_dword v{vFS}, v{vFA}, {srd(sH)}, s{s_fl} offen sc1")
    I(f"s_branch {P}_ax{tag}e")
    L(f"{P}_ax{tag}1")
    I(f"s_cmp_eq_u32 s{s_wave}, 5")
    I(f"s_cbranch_scc0 {P}_ax{tag}2")
    I(f"buffer_load_dword v24, v23, {srd(sX)}, 0 offen")
    I(f"s_branch {P}_ax{tag}e")
    L(f"{P}_ax{tag}2")
    I(f"s_cmp_eq_u32 s{s_wave}, 6")
    I(f"s_cbranch_scc0 {P}_ax{tag}3")
    I(f"buffer_load_dword v24, v23, {srd(sW1)}, 0 offen")
    I(f"s_branch {P}_ax{tag}e")
    L(f"{P}_ax{tag}3")
    I(f"buffer_load_dword v24, v23, {srd(sW3)}, 0 offen")
    L(f"{P}_ax{tag}e")

pfc = [0]
def prefetch_jobs(is_loader):
    tag = pfc[0]; pfc[0] += 1
    I(f"s_and_b32 s{s_t2}, s{s_slot}, 1")
    if args.jobA:
        I(f"s_lshl_b32 s{s_t0}, s{s_xcd}, 1")
        I(f"s_add_u32 s{s_t0}, s{s_t0}, s{s_t2}")
        I("v_lshlrev_b32 v40, 10, v1")
        I("v_lshlrev_b32 v41, 7, v1")
        I(f"s_lshl_b32 s{s_t1}, s{s_t0}, 17")
        I(f"s_and_b32 s{s_t3}, s{s_wave}, 1")
        I(f"s_lshl_b32 s{s_cnt}, s{s_t3}, 16")
        I(f"s_add_u32 s{s_t1}, s{s_t1}, s{s_cnt}")
        I(f"s_lshr_b32 s{s_cnt}, s{s_wave}, 1")
        I(f"s_add_u32 s{s_kst}, s{s_cnt}, {args.jobA}")
        I(f"s_lshl_b32 s{s_kst}, s{s_kst}, 7")
        I(f"s_add_u32 s{s_sx}, s{s_t1}, s{s_kst}")
        i0 = (args.jobA * 43) // 2
        I(f"s_lshl_b32 s{s_cnt}, s{s_cnt}, 4")
        I(f"s_add_u32 s{s_cnt}, s{s_cnt}, s{s_t0}")
        I(f"s_add_u32 s{s_cnt}, s{s_cnt}, {i0}")
        I(f"s_lshl_b32 s{s_sw}, s{s_cnt}, 13")
        I(f"s_cmp_eq_u32 s{s_t3}, 0")
        I(f"s_cselect_b32 s{sW1}, s{sW1}, s{sW3}")
        I(f"s_cselect_b32 s{sW1+1}, s{sW1+1}, s{sW3+1}")
        nx = (8 - args.jobA + 3) // 4
        nw = (172 - i0 + 63) // 64
        for n in range(max(nx, nw)):
            if n < nx:
                if args.jobA + 4 * n + 3 >= 8:
                    I(f"s_cmp_ge_u32 s{s_kst}, {(8 - 4*n)*128}")
                    I(f"s_cbranch_scc1 {P}_pf{tag}_x{n}")
                I(f"buffer_load_dword v42, v40, {srd(sX)}, s{s_sx} offen offset:{512*n}")
                L(f"{P}_pf{tag}_x{n}")
            if n < nw:
                I(f"s_cmp_ge_u32 s{s_sw}, {WB}")
                I(f"s_cbranch_scc1 {P}_pf{tag}_w{n}")
                I(f"buffer_load_dword v43, v41, {srd(sW1)}, s{s_sw} offen")
                L(f"{P}_pf{tag}_w{n}")
                I(f"s_add_u32 s{s_sw}, s{s_sw}, {64*8192}")
    if args.jobX:
        I("v_lshlrev_b32 v40, 10, v1")
        I(f"s_and_b32 s{s_t0}, s{s_xcd}, 3")
        I(f"s_lshl_b32 s{s_t0}, s{s_t0}, 19")
        I(f"s_lshl_b32 s{s_t1}, s{s_wave}, 16")
        I(f"s_add_u32 s{s_t0}, s{s_t0}, s{s_t1}")
        I(f"s_add_u32 s{s_t1}, s{s_kst}, s{s_t2}")
        I(f"s_add_u32 s{s_t1}, s{s_t1}, 2")
        I(f"s_and_b32 s{s_t1}, s{s_t1}, 7")
        I(f"s_lshl_b32 s{s_t1}, s{s_t1}, 7")
        I(f"s_add_u32 s{s_t0}, s{s_t0}, s{s_t1}")
        I(f"buffer_load_dword v42, v40, {srd(sX)}, s{s_t0} offen")
    if args.jobM:
        I("v_lshlrev_b32 v41, 7, v1")
        I(f"s_lshl_b32 s{s_t0}, s{s_xcd}, 1")
        I(f"s_add_u32 s{s_t0}, s{s_t0}, s{s_t2}")
        I(f"s_lshl_b32 s{s_t1}, s{s_wave}, 4")
        I(f"s_add_u32 s{s_t0}, s{s_t0}, s{s_t1}")
        I(f"s_lshl_b32 s{s_t0}, s{s_t0}, 13")
        I(f"buffer_load_dword v43, v41, {srd(sW2)}, s{s_t0} offen")
        I(f"s_add_u32 s{s_t0}, s{s_t0}, {128*8192}")
        I(f"s_cmp_ge_u32 s{s_t0}, {W2B}")
        I(f"s_cbranch_scc1 {P}_pf{tag}_m")
        I(f"buffer_load_dword v43, v41, {srd(sW2)}, s{s_t0} offen")
        L(f"{P}_pf{tag}_m")
        I(f"s_cmp_ge_u32 s{s_wave}, 0")
        I(f"s_cbranch_scc1 {P}_pf{tag}_u")
        I(f"s_lshr_b32 s{s_t0}, s{s_wave}, 1")
        I(f"s_mul_i32 s{s_t0}, s{s_t0}, 11")
        I(f"s_and_b32 s{s_t1}, s{s_wave}, 1")
        I(f"s_add_u32 s{s_t0}, s{s_t0}, s{s_t1}")
        I(f"s_add_u32 s{s_t0}, s{s_t0}, 9")
        I(f"s_mul_i32 s{s_t1}, s{s_t2}, 43")
        I(f"s_add_u32 s{s_t0}, s{s_t0}, s{s_t1}")
        I(f"s_lshl_b32 s{s_t0}, s{s_t0}, 14")
        I(f"buffer_load_dword v43, v41, {srd(sW2)}, s{s_t0} offen")
        I(f"s_add_u32 s{s_t0}, s{s_t0}, 8192")
        I(f"buffer_load_dword v43, v41, {srd(sW2)}, s{s_t0} offen")
        L(f"{P}_pf{tag}_u")
    if args.job3:
        I("v_min_u32 v44, 42, v1")
        I("v_lshlrev_b32 v44, 10, v44")
        I(f"s_mul_i32 s{s_t0}, s{s_t2}, 688")
        I(f"s_mul_i32 s{s_t1}, s{s_wave}, 86")
        I(f"s_add_u32 s{s_t0}, s{s_t0}, s{s_t1}")
        I(f"s_lshl_b32 s{s_t0}, s{s_t0}, 10")
        I(f"buffer_load_dword v45, v44, {srd(sW2)}, s{s_t0} offen offset:384")
        I(f"s_add_u32 s{s_t0}, s{s_t0}, {43*1024}")
        I(f"buffer_load_dword v45, v44, {srd(sW2)}, s{s_t0} offen offset:384")
    if is_loader:
        issueW(0, 39)
    if args.jobB:
        for j in range(3):
            I(f"v_add_u32 v44, {64*j}, v1")
            I("v_mul_u32_u24 v45, 171, v44")
            I("v_lshrrev_b32 v45, 10, v45")
            I("v_mul_u32_u24 v46, 6, v45")
            I("v_sub_u32 v46, v44, v46")
            I("v_lshlrev_b32 v45, 10, v45")
            I(f"v_lshl_add_u32 v{48+j}, v46, 7, v45")
        I(f"s_lshl_b32 s{s_t0}, s{s_wave}, 1")
        I(f"s_add_u32 s{s_t0}, s{s_t0}, s{s_t2}")
        I(f"s_lshl_b32 s{s_t0}, s{s_t0}, 15")
        for n in range(args.jobB):
            I(f"s_cmp_ge_u32 s{s_t0}, {args.bmax*32768}")
            I(f"s_cbranch_scc1 {P}_pf{tag}_b{n}")
            for j in range(3):
                I(f"buffer_load_dword v47, v{48+j}, {srd(sW2)}, s{s_t0} offen")
            L(f"{P}_pf{tag}_b{n}")
            I(f"s_add_u32 s{s_t0}, s{s_t0}, {16*32768}")

I(f"s_cmp_ge_u32 s{s_sl}, 15")
I(f"s_cbranch_scc1 {P}_l_idle")
if args.stouch:
    nst = 8 - args.stouch
    I(f"s_lshl_b32 s{s_t0}, s{s_slot}, 2")
    I(f"s_add_u32 s{s_t0}, s{s_t0}, s{s_wave}")
    I(f"s_add_u32 s{s_t0}, s{s_t0}, {1376 - nst*120 - 4}")
    I(f"s_lshl_b32 s{s_t0}, s{s_t0}, 10")
    I(f"s_add_u32 s18, s10, s{s_t0}")
    I("s_addc_u32 s19, s11, 0")
TR = [int(t) for t in args.trickle.split(",")]
assert sum(TR) <= 9
wdone = 0
for c in range(8):
    ring = c % 3
    if c == 2 and args.touch == 2: aux_load("a")
    if "nodma" in args.diag and c >= 3:
        I("s_barrier"); stamp(c - 1, True); continue
    I(f"s_lshl_b32 s{s_t0}, s{s_kst}, 7")
    I(f"s_add_u32 s{s_sx}, s{s_hoff+1}, s{s_t0}")
    I(f"s_add_u32 m0, s{s_lx}, {ring*16384}")
    I(f"s_mul_i32 s{s_sw}, s{s_kst}, {64*2752}")
    for j in range(4):
        I(f"buffer_load_dwordx4 v{vX[j]}, {srd(sX)}, s{s_sx} offen offset:{1024*j} lds")
    I(f"s_add_u32 m0, s{s_lw}, {ring*24576}")
    I(f"s_add_u32 s{s_sw}, s{s_sw}, s{s_hoff+2}")
    for j in range(3):
        I(f"buffer_load_dwordx4 v{vW[j]}, {srd(sW1)}, s{s_sw} offen offset:{1024*j} lds")
    I("s_add_u32 m0, m0, 3072")
    I(f"s_add_u32 s{s_kst}, s{s_kst}, 1")
    for j in range(3):
        I(f"buffer_load_dwordx4 v{vW[j]}, {srd(sW3)}, s{s_sw} offen offset:{1024*j} lds")
    I(f"s_and_b32 s{s_kst}, s{s_kst}, 7")
    if c == 0 and "s0only" in args.diag:
        I("s_waitcnt vmcnt(0)")
    if c == 0 and args.touch != 2: aux_load("a")
    if TR[c]:
        issueW(wdone, wdone + TR[c]); wdone += TR[c]
    if args.stouch and c >= args.stouch:
        for j in range(12):
            I(f"s_load_dword s3, s[18:19], {(c - args.stouch)*120*1024 + 64*j}")
    if c >= 1:
        I(f"s_waitcnt vmcnt({TR[c-1] + 10 + TR[c] + (1 if c == (2 if args.touch == 2 else 1) else 0)})")
        if "b0" in args.diag and c == 1: stamp(7, True)
        if "pre" in args.diag and c >= 2: stamp(c - 1, True)
        I("s_barrier")
        if LOADER_STAGES[0] and "pre" not in args.diag and c >= 2: stamp(c - 1, True)
stamp(2)
issueW(wdone, wdone + args.atb6)
I(f"s_waitcnt vmcnt({TR[7] + args.atb6})")
wdone += args.atb6
assert wdone <= 19
if "pre" in args.diag: stamp(7, True)
I("s_barrier")
if LOADER_STAGES[0] and "pre" not in args.diag: stamp(7, True)
stamp(3)
issueW(wdone, wdone + args.atb7, args.pace); wdone += args.atb7
assert wdone <= 29
I("s_waitcnt vmcnt(0)")
stamp(4)
I("s_barrier")
if args.fb == "scalar":
    I(f"s_cmp_lg_u32 s{s_wave}, 5")
    I(f"s_cbranch_scc1 {P}_l_nofb")
    I(f"s_lshl_b32 s{s_sx}, 1, s{s_sl}")
    I(f"s_lshl_b32 s{s_sw}, s{s_mt}, 4")
    I(f"s_atomic_add s{s_sx}, s[14:15], s{s_sw}")
    I("s_waitcnt lgkmcnt(0)") if "fbwait" in args.diag else None
    L(f"{P}_l_nofb")
I("s_sleep 1")
if args.pre:
    issueW(wdone, wdone + 2)
    I("s_barrier")
    issueW(wdone + 2, 43)
else:
    issueW(wdone, 39)
stamp(5)
I(f"s_branch {P}_l_sel")
L(f"{P}_l_idle")
aux_load("b")
prefetch_jobs(True)
I("s_waitcnt vmcnt(0)")
I("s_barrier")
if args.pre:
    I("s_barrier")
    issueW(39, 43)
L(f"{P}_l_sel")
I(f"s_cmp_lg_u32 s{s_wave}, 4")
I(f"s_cbranch_scc1 {P}_l_go")
L(f"{P}_l_pollinit")
I(f"s_lshr_b32 s{s_t1}, s{s_rb}, 1")
I(f"s_lshl_b32 s{s_t1}, s{s_t1}, 4")
I("v_mov_b32 v18, 0")
I(f"v_mov_b32 v17, {LDS_SCR+4}")
I("v_mov_b32 v19, 1")
I(f"s_mov_b32 s{s_cnt}, 0")
L(f"{P}_l_poll")
I(f"buffer_load_dword v{vFN}, v{vFA}, {srd(sH)}, s{s_fl} offen sc1")
I(f"s_add_u32 s{s_cnt}, s{s_cnt}, 1")
I("s_waitcnt vmcnt(0)")
I(f"v_cmp_ne_u32 vcc, v{vFN}, v{vFS}")
I(f"s_and_b32 s{s_t0}, s{s_cnt}, {0 if 'fbonly' in args.diag else 31}")
if "fbonly" in args.diag: I("s_mov_b64 vcc, 0")
I(f"s_or_b32 s{s_t2}, vcc_lo, s{s_valid}")
I(f"s_and_b32 s{s_t2}, s{s_t2}, 0x7fff")
I(f"s_cmp_eq_u32 s{s_t2}, 0x7fff")
I(f"s_cbranch_scc1 {P}_l_ok")
if args.sleep: I(f"s_sleep {args.sleep}")
I(f"s_cmp_lg_u32 s{s_t0}, 0")
I(f"s_cbranch_scc1 {P}_l_poll")
I(f"buffer_load_dword v16, v18, {srd(sD)}, s{s_t1} offen sc1")
I("s_waitcnt vmcnt(0)")
I(f"v_readfirstlane_b32 s{s_t0}, v16")
I(f"s_cmp_ge_u32 s{s_cnt}, 400000")
I(f"s_cbranch_scc1 {P}_l_ok")
I(f"s_or_b32 s{s_t2}, s{s_t2}, s{s_t0}")
I(f"s_cmp_lg_u32 s{s_t2}, 0x7fff")
I(f"s_cbranch_scc1 {P}_l_poll")
L(f"{P}_l_ok")
I("ds_write_b32 v17, v19")
L(f"{P}_l_go")
stamp(6)
if not args.pre:
    I("s_barrier")
    issueW(39, 43)
if args.fb == "vector":
    I(f"s_cmp_lg_u32 s{s_wave}, 5")
    I(f"s_cbranch_scc1 {P}_l_nofb")
    I(f"s_cmp_ge_u32 s{s_sl}, 15")
    I(f"s_cbranch_scc1 {P}_l_nofb")
    I(f"s_lshl_b32 s{s_t0}, 1, s{s_sl}")
    I(f"s_lshl_b32 s{s_t1}, s{s_mt}, 4")
    I(f"v_mov_b32 v17, s{s_t0}")
    I("v_mov_b32 v18, 0")
    I("s_mov_b64 exec, 1")
    I(f"buffer_atomic_add v17, v18, {srd(sD)}, s{s_t1} offen sc1")
    I("s_mov_b64 exec, -1")
    I("s_waitcnt vmcnt(1)")
    I(f"s_branch {P}_l_fin")
    L(f"{P}_l_nofb")
    I("s_waitcnt vmcnt(0)")
    L(f"{P}_l_fin")
else:
    I("s_waitcnt vmcnt(0)")
I("s_barrier")
if args.amp.startswith("L"): amp_block(args.amp[1:], "l")
prof_store()
L(f"{P}_end")
I("s_endpgm")

LOADER_STAGES[0] = "p2" in args.diag
L(f"{P}_compute")
if args.codepf:
    I("s_getpc_b64 s[18:19]")
    L(f"{P}_pc")
    I(f"s_lshl_b32 s{s_t0}, s{s_wave}, 7")
    I(f"s_add_u32 s18, s18, s{s_t0}")
    I("s_addc_u32 s19, s19, 0")
    out.append("@CODEPF@")
vAX = [2, 3]; vAW = [6, 7, 8]
ACC = 64
FA, FB = 160, 200
vOLD = 20
I(f"s_and_b32 s{s_t0}, s{s_wave}, 1")
I(f"s_lshl_b32 s{s_t0}, s{s_t0}, 6")
I("v_and_b32 v10, 15, v1")
I("v_lshrrev_b32 v11, 1, v10")
I(f"v_add_u32 v10, s{s_t0}, v10")
I("v_lshrrev_b32 v12, 4, v1")
I("v_lshlrev_b32 v10, 7, v10")
for ks in range(2):
    I(f"v_add_u32 v13, {4*ks}, v12")
    I("v_xor_b32 v13, v13, v11")
    I(f"v_lshl_add_u32 v{vAX[ks]}, v13, 4, v10")
I("v_and_b32 v11, 1, v12")
I("v_lshrrev_b32 v10, 1, v12")
I("v_lshrrev_b32 v12, 2, v1")
I("v_and_b32 v12, 3, v12")
I("v_lshl_add_u32 v12, v11, 3, v12")
I("v_mul_u32_u24 v12, 192, v12")
I("v_mul_u32_u24 v13, 6144, v10")
I("v_add_u32 v12, v12, v13")
I("v_and_b32 v13, 3, v1")
I("v_lshl_add_u32 v12, v13, 3, v12")
I(f"v_add_u32 v12, {LDS_W}, v12")
I("v_lshlrev_b32 v11, 5, v11")
I(f"s_lshr_b32 s{s_t0}, s{s_wave}, 1")
I(f"s_mul_i32 s{s_t0}, s{s_t0}, 3")
for t in range(3):
    I(f"s_add_u32 s{s_t1}, s{s_t0}, {t}")
    I(f"s_lshr_b32 s{s_t2}, s{s_t1}, 1")
    I(f"s_lshl_b32 s{s_t2}, s{s_t2}, 6")
    I(f"s_and_b32 s{s_t1}, s{s_t1}, 1")
    I(f"s_lshl_b32 s{s_t1}, s{s_t1}, 5")
    I(f"v_xor_b32 v13, s{s_t1}, v11")
    I(f"v_add3_u32 v{vAW[t]}, v12, v13, s{s_t2}")
for r in range(96):
    I(f"v_mov_b32 v{ACC+r}, 0")
I(f"s_and_b32 s{s_t3}, s{s_sl}, 1")
I(f"s_and_b32 s{s_t1}, s{s_wave}, 1")
I(f"s_lshl_b32 s{s_t1}, s{s_t1}, 1")
I(f"s_lshl_b32 s{s_cnt}, s{s_mt}, 2")
I(f"s_add_u32 s{s_t1}, s{s_t1}, s{s_cnt}")
I(f"s_mul_i32 s{s_p}, s{s_t1}, {HSTR}")
I(f"s_mul_i32 s{s_cnt}, s{s_sl}, 6")
I(f"s_add_u32 s{s_p}, s{s_p}, s{s_cnt}")
for t in range(3):
    I(f"s_add_u32 s{s_t1}, s{s_t0}, {t}")
    I(f"s_lshr_b32 s{s_t2}, s{s_t1}, 1")
    I(f"s_sub_u32 s{s_cnt}, 2, s{s_t2}")
    I(f"s_cmp_eq_u32 s{s_t3}, 1")
    I(f"s_cselect_b32 s{s_t2}, s{s_cnt}, s{s_t2}")
    I(f"s_lshl_b32 s{s_t2}, s{s_t2}, 1")
    I(f"s_and_b32 s{s_t1}, s{s_t1}, 1")
    I(f"s_add_u32 s{s_t2}, s{s_t2}, s{s_t1}")
    I(f"s_add_u32 s{s_t2}, s{s_t2}, s{s_p}")
    I(f"s_lshl_b32 s{s_hoff+2*t}, s{s_t2}, 10")
    I(f"s_add_u32 s{s_hoff+2*t+1}, s{s_hoff+2*t}, {HSTR*1024}")
I(f"s_cmp_eq_u32 s{s_t0}, 0")
I(f"s_cselect_b32 s{s_t1}, 2, 0")
I(f"s_cmp_eq_u32 s{s_sl}, 14")
I(f"s_cselect_b32 s{s_valid}, s{s_t1}, 3")
I(f"s_mov_b32 s{s_k}, 0xbfb8aa3b")
I(f"s_mov_b32 s{s_k+1}, 0xbfb8aa3b")
I(f"s_mov_b32 s{s_one}, 1.0")
I(f"s_mov_b32 s{s_one+1}, 1.0")
I("v_lshlrev_b32 v9, 4, v1")
I(f"v_mov_b32 v56, s{s_k}"); I(f"v_mov_b32 v57, s{s_k}"); I("v_mov_b32 v58, 1.0"); I("v_mov_b32 v59, 1.0")
I(f"s_mul_i32 s{s_fl}, s{s_mt}, {4*HSTR*1024}")
if args.flagsep:
    I(f"s_lshr_b32 s{s_t1}, s{s_sl}, 3")
    I(f"s_mul_i32 s{s_t1}, s{s_t1}, {HSTR*1024}")
    I(f"s_add_u32 s{s_fl}, s{s_fl}, s{s_t1}")
    I(f"s_and_b32 s{s_t1}, s{s_sl}, 7")
    I(f"s_lshl_b32 s{s_t1}, s{s_t1}, 7")
else:
    I(f"s_lshl_b32 s{s_t1}, s{s_sl}, 2")
I(f"s_add_u32 s{s_fl}, s{s_fl}, s{s_t1}")
I(f"s_add_u32 s{s_fl}, s{s_fl}, {86*1024}")
I("v_mov_b32 v21, 0")
I(f"v_mov_b32 v22, {LDS_SCR}")
I("ds_write_b32 v22, v21")
I("ds_write_b32 v22, v21 offset:4")
vB = [[10, 11], [12, 13], [14, 15]]
WF = 128; HR = 160; R = args.hring
I("v_lshrrev_b32 v16, 4, v1")
I("v_lshrrev_b32 v17, 1, v16")
I("v_lshrrev_b32 v18, 2, v1")
I("v_and_b32 v18, 3, v18")
I("v_lshl_add_u32 v17, v17, 3, v18")
I("v_lshlrev_b32 v17, 7, v17")
I("v_and_b32 v16, 1, v16")
I("v_and_b32 v19, 1, v1")
I("v_lshl_add_u32 v16, v19, 1, v16")
I("v_lshrrev_b32 v18, 1, v18")
I("v_lshlrev_b32 v18, 2, v18")
I(f"s_lshr_b32 s{s_t0}, s{s_wave}, 1")
I(f"s_lshl_b32 s{s_t1}, s{s_t0}, 2")
I(f"v_xor_b32 v18, s{s_t1}, v18")
I("v_xor_b32 v16, v16, v18")
I("v_lshl_add_u32 v17, v16, 4, v17")
I("v_lshrrev_b32 v19, 1, v1")
I("v_and_b32 v19, 1, v19")
I("v_lshl_add_u32 v17, v19, 3, v17")
I(f"s_lshl_b32 s{s_t1}, s{s_t0}, 11")
I(f"v_add_u32 v{vB[0][0]}, s{s_t1}, v17")
I(f"v_xor_b32 v{vB[0][1]}, 64, v{vB[0][0]}")
for sg in (1, 2):
    for nb in range(2):
        I(f"v_add_u32 v{vB[sg][nb]}, {sg*65536}, v{vB[0][nb]}")
I(f"s_and_b32 s{s_t1}, s{s_wave}, 1")
I(f"s_lshl_b32 s{s_t2}, s{s_rb}, 1")
I(f"s_add_u32 s{s_t1}, s{s_t1}, s{s_t2}")
I(f"s_mul_i32 s{s_t2}, s{s_t1}, {HSTR}")
I(f"s_mul_i32 s{s_t3}, s{s_t0}, 43")
I(f"s_add_u32 s{s_t2}, s{s_t2}, s{s_t3}")
I(f"s_lshl_b32 s{s_pbeg}, s{s_t2}, 10")
I(f"s_add_u32 s{s_pend}, s{s_pbeg}, {43*1024}")
I(f"s_lshl_b32 s{s_t2}, s{s_rot2}, 10")
I(f"s_add_u32 s{s_p}, s{s_pbeg}, s{s_t2}")
I("v_and_b32 v16, 31, v1")
I("v_lshlrev_b32 v16, 10, v16")
I("v_lshrrev_b32 v17, 5, v1")
I("v_lshl_add_u32 v16, v17, 5, v16")
I(f"s_lshl_b32 s{s_t1}, s{s_t1}, 15")
I(f"s_lshl_b32 s{s_t2}, s{s_cb}, 7")
I(f"s_add_u32 s{s_t1}, s{s_t1}, s{s_t2}")
I(f"s_lshl_b32 s{s_t2}, s{s_t0}, 6")
I(f"s_add_u32 s{s_t1}, s{s_t1}, s{s_t2}")
I(f"v_add_u32 v16, s{s_t1}, v16")
I(f"s_lshl_b32 s{s_t1}, s{s_wave}, 12")
I(f"s_add_u32 s{s_t1}, s{s_t1}, {XCH}")
I(f"v_add_u32 v17, s{s_t1}, v9")
I(f"s_xor_b32 s{s_t2}, s{s_wave}, 2")
I(f"s_lshl_b32 s{s_t2}, s{s_t2}, 12")
I(f"s_add_u32 s{s_t2}, s{s_t2}, {XCH}")
I(f"v_add_u32 v18, s{s_t2}, v9")
I("s_waitcnt lgkmcnt(0)")
make_srd(sH, 16, WS_REC)
make_srd(sO, 12, OB)
make_srd(sD, 14, 256)
make_srd(sW2, 10, W2B)
if args.jobA or args.jobX:
    make_srd(sX, 4, XB); make_srd(sW1, 6, WB); make_srd(sW3, 8, WB)
if args.prio: I(f"s_setprio {args.prio}")
if not args.oldlate: I(f"buffer_load_dword v{vOLD}, v21, {srd(sH)}, s{s_fl} offen sc1")
if args.amp.startswith("g"):
    I(f"s_not_b32 s{s_t1}, s{s_prof}")
    I(f"v_mov_b32 v60, s{s_t1}")
    I("s_mov_b64 exec, 1")
    I(f"buffer_atomic_umax v60, v21, {srd(sD)}, 0 offen offset:252 sc1")
    I("s_mov_b64 exec, -1")
if args.tlb:
    I(f"s_cmp_lg_u32 s{s_wave}, 0")
    I(f"s_cbranch_scc1 {P}_c_notlb")
    I("s_mov_b64 exec, 1")
    I(f"buffer_load_dword v28, v16, {srd(sO)}, 0 offen")
    I(f"buffer_load_dword v29, v21, {srd(sD)}, 0 offen sc1")
    I(f"buffer_load_dword v30, v21, {srd(sW2)}, 0 offen")
    I(f"s_mov_b32 s{s_t1}, {W2B-128}")
    I(f"buffer_load_dword v31, v21, {srd(sW2)}, s{s_t1} offen")
    I(f"s_add_u32 s{s_t1}, s{s_fl}, {3*HSTR*1024}")
    I(f"buffer_load_dword v32, v21, {srd(sH)}, s{s_t1} offen sc1")
    I("s_mov_b64 exec, -1")
    L(f"{P}_c_notlb")
I(f"s_cmp_ge_u32 s{s_sl}, 15")
I(f"s_cbranch_scc1 {P}_c_idle")

def xr(fs, mt): return fs + 4 * mt
def wr_(fs, t, mat): return fs + 16 + 4 * (2 * t + mat)
def acc(t, mat, mt): return ACC + ((t * 2 + mat) * 4 + mt) * 4
def xrd(ks, fs, mt): return [f"ds_read_b128 v[{xr(fs,mt)}:{xr(fs,mt)+3}], v{vAX[ks]} offset:{2048*mt}"]
def wrd(ks, fs, t, mat):
    d = wr_(fs, t, mat)
    return [f"ds_read_b64_tr_b16 v[{d+2*h}:{d+2*h+1}], v{vAW[t]} offset:{ks*12288+mat*3072+h*768}" for h in range(2)]
def reads(ks, fs):
    r = xrd(ks, fs, 0) + wrd(ks, fs, 0, 0) + xrd(ks, fs, 1) + wrd(ks, fs, 0, 1) + xrd(ks, fs, 2) + xrd(ks, fs, 3)
    for t in (1, 2):
        for mat in range(2): r += wrd(ks, fs, t, mat)
    return r
def mf(fs, t, mat, mt):
    a = acc(t, mat, mt); w = wr_(fs, t, mat); x = xr(fs, mt)
    return f"v_mfma_f32_16x16x32_bf16 v[{a}:{a+3}], v[{w}:{w+3}], v[{x}:{x+3}], v[{a}:{a+3}]"
def mfmas(fs):
    return [mf(fs, t, mat, mt) for t in range(3) for mat in range(2) for mt in range(4)]
if args.skiplight:
    I(f"s_cmp_lg_u32 s{s_valid}, 0")
    I(f"s_cbranch_scc1 {P}_c_work")
    for i in range(8): I("s_barrier")
    I(f"s_branch {P}_c_epidone")
    L(f"{P}_c_work")
I(f"s_mov_b32 s{s_cnt}, 0")
I(f"s_mov_b32 s{s_ring}, 0")
I(f"s_mov_b32 s{s_sx}, 16384")
I(f"s_mov_b32 s{s_sw}, 24576")
if "b0" in args.diag: stamp(1)
I("s_barrier")
if args.oldlate:
    I(f"s_cmp_lg_u32 s{s_wave}, 0")
    I(f"s_cbranch_scc1 {P}_c_noold")
    I(f"buffer_load_dword v{vOLD}, v21, {srd(sH)}, s{s_fl} offen sc1")
    L(f"{P}_c_noold")
if "b0" not in args.diag: stamp(1)
r = reads(0, FA)
for x in r[:12]: I(x)
I("s_waitcnt lgkmcnt(8)")
for x in r[12:]: I(x)
L(f"{P}_c_loop")
m = mfmas(FA); r = reads(1, FB)
extra = [f"s_add_u32 s{s_ring}, s{s_ring}, 1", f"s_cmp_eq_u32 s{s_ring}, 3",
         f"s_cselect_b32 s{s_t0}, {-32768 & 0xffffffff}, s{s_sx}", f"s_cselect_b32 s{s_t1}, {-49152 & 0xffffffff}, s{s_sw}",
         f"s_cselect_b32 s{s_ring}, 0, s{s_ring}", f"s_add_u32 s{s_cnt}, s{s_cnt}, 1"]
upd = [f"v_add_u32 v{vAX[ks]}, s{s_t0}, v{vAX[ks]}" for ks in range(2)] + [f"v_add_u32 v{vAW[t]}, s{s_t1}, v{vAW[t]}" for t in range(3)]
need = {0: 8, 8: 10, 12: 12, 16: 14, 20: 16}
for i in range(24):
    if i in need: I(f"s_waitcnt lgkmcnt({min(15, 16 - need[i] + min(i, 16))})")
    I(m[i])
    if i < 16: I(r[i])
    elif i < 19: I(extra[2*(i-16)]); I(extra[2*(i-16)+1])
    elif i < 24: I(upd[i-19])
I("s_waitcnt lgkmcnt(0)")
m = mfmas(FB); r = reads(0, FA)
for i in range(24):
    if i == args.barpos: I("s_barrier")
    I(m[i])
    if i >= args.barpos:
        for x in r[(i - args.barpos) * args.rpg:(i - args.barpos + 1) * args.rpg]: I(x)
assert (24 - args.barpos) * args.rpg >= 16
I(f"s_cmp_lt_u32 s{s_cnt}, 7")
I(f"s_cbranch_scc1 {P}_c_loop")
stamp(2)
T = 32
def epi(t, p):
    tm = T + p * 12; o = tm + 8
    g = [acc(t, 0, 2*p + (q >> 2)) + (q & 3) for q in range(8)]
    u = [acc(t, 1, 2*p + (q >> 2)) + (q & 3) for q in range(8)]
    v = []
    for q in range(8): v.append(f"v_mul_f32 v{tm+q}, s{s_k}, v{g[q]}")
    for q in range(8): v.append(f"v_exp_f32 v{tm+q}, v{tm+q}")
    for q in range(8): v.append(f"v_add_f32 v{tm+q}, 1.0, v{tm+q}")
    for q in range(8): v.append(f"v_rcp_f32 v{tm+q}, v{tm+q}")
    for q in range(8): v.append(f"v_mul_f32 v{tm+q}, v{tm+q}, v{g[q]}")
    for q in range(8): v.append(f"v_mul_f32 v{tm+q}, v{tm+q}, v{u[q]}")
    for q in (0, 2, 1, 3): v.append(f"v_cvt_pk_bf16_f32 v{o+q}, v{tm+2*q}, v{tm+2*q+1}")
    if 2 * t + p >= args.pkfrom:
        v = []
        pr = lambda r: f"v[{r}:{r+1}]"
        for q in range(0, 8, 2): v.append(f"v_pk_mul_f32 {pr(tm+q)}, {pr(g[q])}, v[56:57]")
        for q in range(8): v.append(f"v_exp_f32 v{tm+q}, v{tm+q}")
        for q in range(0, 8, 2): v.append(f"v_pk_add_f32 {pr(tm+q)}, {pr(tm+q)}, v[58:59]")
        for q in range(8): v.append(f"v_rcp_f32 v{tm+q}, v{tm+q}")
        for q in range(0, 8, 2): v.append(f"v_pk_mul_f32 {pr(tm+q)}, {pr(tm+q)}, {pr(g[q])}")
        for q in range(0, 8, 2): v.append(f"v_pk_mul_f32 {pr(tm+q)}, {pr(tm+q)}, {pr(u[q])}")
        for q in (0, 2, 1, 3): v.append(f"v_cvt_pk_bf16_f32 v{o+q}, v{tm+2*q}, v{tm+2*q+1}")
    v.append(("swap", o))
    v.append(("store", t, p, o))
    return v
def emit_v(x):
    if isinstance(x, tuple) and x[0] == "swap":
        o = x[1]
        I(f"v_permlane16_swap_b32 v{o}, v{o+2}")
        I("s_nop 0")
        I(f"v_permlane16_swap_b32 v{o+1}, v{o+3}")
    elif isinstance(x, tuple):
        _, t, mb, o = x
        I(f"s_cmp_le_u32 s{s_valid}, {t}")
        I(f"s_cbranch_scc1 {P}_c_ns{t}{mb}")
        I(f"buffer_store_dwordx4 v[{o}:{o+3}], v9, {srd(sH)}, s{s_hoff+2*t+mb} offen {HST}")
        L(f"{P}_c_ns{t}{mb}")
    else:
        I(x)
blocks = [(t, p) for t in range(3) for p in range(2)]
def bmf(t, p, fs): return [mf(fs, t, mat, 2*p + j) for mat in range(2) for j in range(2)]
rB = reads(1, FB)
I("s_waitcnt lgkmcnt(0)")
pre = bmf(0, 0, FA) + bmf(0, 1, FA)
for i in range(8):
    I(pre[i]); I(rB[2*i]);
    if i == 7: I("s_waitcnt lgkmcnt(9)")
    I(rB[2*i+1])
I("s_waitcnt lgkmcnt(8)")
seq = [(x, None) for x in bmf(0, 0, FB)]
seq[-1] = (seq[-1][0], 0)
x = bmf(0, 1, FB); seq += [(y, None) for y in x[:-1]] + [(x[-1], 1)]
for bi in range(2, 6):
    t, p = blocks[bi]
    x = bmf(t, p, FA) + bmf(t, p, FB)
    seq += [(y, None) for y in x[:-1]] + [(x[-1], bi)]
vq = []; nxt = 0; since = {}; PER = args.per
emitted_since = {}
for i, (mi, done) in enumerate(seq):
    if i == 8: I("s_waitcnt lgkmcnt(0)")
    I(mi)
    for k in emitted_since: emitted_since[k] += 1
    if done is not None: emitted_since[done] = 0
    n = 0
    while n < args.gapc:
        if not vq:
            if nxt in emitted_since and emitted_since[nxt] >= 4 and nxt < args.pkfrom:
                if emitted_since[nxt] < 9: I(f"s_nop {9 - emitted_since[nxt]}")
                vq += epi(*blocks[nxt]); nxt += 1
            else:
                break
        x = vq.pop(0)
        emit_v(x); n += 8 if (isinstance(x, tuple) or "exp" in x or "rcp" in x) else 4
        for k in emitted_since: emitted_since[k] += 1
while vq or nxt < 6:
    if not vq:
        if emitted_since[nxt] < 9: I(f"s_nop {9 - emitted_since[nxt]}")
        vq += epi(*blocks[nxt]); nxt += 1
    emit_v(vq.pop(0))
    for k in emitted_since: emitted_since[k] += 1
L(f"{P}_c_epidone")
stamp(3)
I("s_waitcnt vmcnt(0)")
I(f"v_add_u32 v{vOLD}, 1, v{vOLD}")
I("s_barrier")
I(f"s_cmp_lg_u32 s{s_wave}, 0")
I(f"s_cbranch_scc1 {P}_c_p2")
I("s_mov_b64 exec, 1")
I(f"buffer_store_dword v{vOLD}, v21, {srd(sH)}, s{s_fl} offen sc1")
I("s_mov_b64 exec, -1")
I(f"s_branch {P}_c_p2")
L(f"{P}_c_idle")
prefetch_jobs(False)
I("s_barrier")
L(f"{P}_c_p2")
stamp(4)
def wreads(u, dst):
    a = unit_addr(u); sg = a >> 16; off = a & 0xffff
    r = []
    for nb in range(2):
        for h in range(2):
            r.append(f"ds_read_b64_tr_b16 v[{dst+4*nb+2*h}:{dst+4*nb+2*h+1}], v{vB[sg][nb]} offset:{off+h*512}")
    return r
NW = 3
NPRE = 4 if args.pre else 2
PRE = 96
TN = args.tailn
def wdst(u):
    if args.pre and u < 4: return PRE + 8 * u
    if u >= 43 - TN: return PRE + 8 * (u - (43 - TN))
    return WF + 8 * (u % NW)
for u in range(NPRE):
    if u == 3: I("s_waitcnt lgkmcnt(8)")
    for r in wreads(u, wdst(u)): I(r)
for r in range(32):
    I(f"v_mov_b32 v{ACC+r}, 0")
if args.pre:
    I("s_waitcnt lgkmcnt(0)")
    I("s_barrier")
L(f"{P}_c_spin")
I("ds_read_b32 v24, v22 offset:4")
I("s_waitcnt lgkmcnt(0)")
I(f"v_readfirstlane_b32 s{s_t0}, v24")
I("s_nop 0")
I(f"s_cmp_eq_u32 s{s_t0}, 0")
I(f"s_cbranch_scc1 {P}_c_spin")
stamp(5)
if "p2" in args.diag: stamp(1, True)
def hload(s):
    b = HR + 4 * (s % R)
    return [f"buffer_load_dwordx4 v[{b}:{b+3}], v9, {srd(sH)}, s{s_p} offen {HLD}",
            f"s_add_u32 s{s_p}, s{s_p}, 1024",
            f"s_cmp_eq_u32 s{s_p}, s{s_pend}",
            f"s_cselect_b32 s{s_p}, s{s_pbeg}, s{s_p}"]
issued = 0
for s in range(args.hpro):
    for x in hload(s): I(x)
issued = args.hpro
def mm2(s, nb):
    hb = HR + 4 * (s % R); wd = wdst(s)
    return f"v_mfma_f32_32x32x16_bf16 v[{ACC+16*nb}:{ACC+16*nb+15}], v[{wd+4*nb}:{wd+4*nb+3}], v[{hb}:{hb+3}], v[{ACC+16*nb}:{ACC+16*nb+15}]"
for s in range(43):
    u = s + 2
    young = 1 if NPRE <= s + 1 < 43 else 0
    I(f"s_waitcnt vmcnt({issued - s - 1}) lgkmcnt({4*young})")
    if "p2" in args.diag and s in (0, 5, 11, 21, 32, 42): stamp({0:2, 5:3, 11:4, 21:5, 32:6, 42:7}[s], True)
    if s == 3 and not args.pre: I("s_barrier")
    if u == wdone: I("s_barrier")
    wr = wreads(u, wdst(u)) if NPRE <= u < 43 else []
    tail = s >= 43 - TN
    I(mm2(s, 1))
    for r in wr[:2]: I(r)
    if issued < 43 and issued - R < s:
        for x in hload(issued): I(x)
        issued += 1
    if not tail: I(mm2(s, 0))
    for r in wr[2:]: I(r)
    if issued < 43 and issued - R < s and issued - s - 1 < R - 1:
        for x in hload(issued): I(x)
        issued += 1
stamp(6)
tl = [mm2(s, 0) for s in range(43 - TN, 43)]
if tl: I(tl.pop(0))
I("s_nop 7")
I("s_nop 2" if TN else "s_nop 3")
for q in range(4):
    I(f"ds_write_b128 v17, v[{ACC+16+4*q}:{ACC+19+4*q}] offset:{q*1024}")
    if tl and q % 2 == 1: I(tl.pop(0))
for x in tl: I(x)
I("s_waitcnt lgkmcnt(0)")
I("s_barrier")
for q in range(4):
    I(f"ds_read_b128 v[{128+4*q}:{131+4*q}], v18 offset:{q*1024}")
I("s_nop 5")
for q in range(4):
    I(f"s_waitcnt lgkmcnt({3-q})")
    for p in range(2):
        I(f"v_pk_add_f32 v[{ACC+4*q+2*p}:{ACC+4*q+2*p+1}], v[{ACC+4*q+2*p}:{ACC+4*q+2*p+1}], v[{128+4*q+2*p}:{129+4*q+2*p}]")
    for p in range(2):
        I(f"v_cvt_pk_bf16_f32 v{144+2*q+p}, v{ACC+4*q+2*p}, v{ACC+4*q+2*p+1}")
    if q == 1: I(f"buffer_store_dwordx4 v[144:147], v16, {srd(sO)}, 0 offen {OST}")
I(f"buffer_store_dwordx4 v[148:151], v16, {srd(sO)}, 0 offen offset:16 {OST}")
if STAMPS:
    I("s_waitcnt vmcnt(0)")
stamp(7)
if args.amp and args.amp != "none" and not args.amp.startswith("L"): amp_block(args.amp, "c")
prof_store()
I("s_endpgm")
L(f"{P}_codeend")
for i in range(128): I("s_nop 0")

e('.section .rodata,"a"')
e(".p2align 6")
e(f".amdhsa_kernel {label}")
e("  .amdhsa_next_free_vgpr 256")
e("  .amdhsa_next_free_sgpr 102")
e("  .amdhsa_accum_offset 256")
e("  .amdhsa_group_segment_fixed_size 0")
e("  .amdhsa_kernarg_size 56")
e("  .amdhsa_user_sgpr_count 2")
e("  .amdhsa_user_sgpr_kernarg_segment_ptr 1")
e("  .amdhsa_system_sgpr_workgroup_id_x 1")
e("  .amdhsa_float_denorm_mode_32 3")
e(".end_amdhsa_kernel")

text = "\n".join(out) + "\n"
if args.codepf:
    import subprocess, tempfile, re, os
    def build(t):
        with tempfile.TemporaryDirectory() as d:
            open(d + "/k.s", "w").write(t)
            subprocess.run(["clang", "-x", "assembler", "-target", "amdgcn-amd-amdhsa", "-mcpu=gfx950", "-c", d + "/k.s", "-o", d + "/k.o"], check=True)
            sym = subprocess.run(["llvm-objdump", "-t", d + "/k.o"], capture_output=True, text=True).stdout
        a = {m.group(2): int(m.group(1), 16) for m in re.finditer(r"^([0-9a-f]{16}) .*\s(\S+)$", sym, re.M)}
        return a
    a = build(text.replace("@CODEPF@\n", ""))
    size = a[f"{P}_codeend"] - a[f"{P}_pc"]
    n = size // 512
    pf = "".join(f"    s_load_dword s3, s[18:19], {512*i}\n" for i in range(1, n + 1))
    text = text.replace("@CODEPF@\n", pf)
    sys.stderr.write(f"compute code {size} B, {n} touches/wave; loader code {a[f'{P}_compute']} B\n")
open(args.o, "w").write(text)
```

```python
import sys, argparse, subprocess, tempfile, re

ap = argparse.ArgumentParser()
ap.add_argument("-o", default="standalone__glu_gated_swiglu__prompt.s")
ap.add_argument("--prof", action="store_true")
ap.add_argument("--cyc", action="store_true")
ap.add_argument("--amp", default="")
ap.add_argument("--diag", default="")
ap.add_argument("--xrot", type=int, default=4)
ap.add_argument("--hring", type=int, default=12)
ap.add_argument("--hpro", type=int, default=10)
ap.add_argument("--sleep", type=int, default=1)
ap.add_argument("--codepf", type=int, default=1)
ap.add_argument("--prio", type=int, default=1)
ap.add_argument("--atb6", type=int, default=8)
ap.add_argument("--kmin", type=int, default=12)
ap.add_argument("--stopat", type=int, default=4)
ap.add_argument("--pace2", type=int, default=10)
ap.add_argument("--pace", type=int, default=10)
ap.add_argument("--barpos", type=int, default=16)
ap.add_argument("--rpg", type=int, default=2)
ap.add_argument("--gapc", type=int, default=8)
ap.add_argument("--pkfrom", type=int, default=2)
ap.add_argument("--tailn", type=int, default=3)
ap.add_argument("--jobx3", type=int, default=0)
ap.add_argument("--job3", type=int, default=1)
ap.add_argument("--jobM", type=int, default=0)
ap.add_argument("--jobX", type=int, default=1)
ap.add_argument("--wb1", type=int, default=2)
args = ap.parse_args()

NAME = "standalone__glu_gated_swiglu__prompt"
out = []
def e(s=""): out.append(s)
def I(s): out.append("    " + s)
def L(s): out.append(s + ":")

S, D, F = 2048, 512, 1376
XB, WB, W2B, OB = S * D * 2, D * F * 2, F * D * 2, S * D * 2
HSTR = 87
WS_REC = 8 << 20
PROF_OFF = 7 << 20
SLOT0, SLOTSZ, LDS_SCR, LDS_TOTAL = 36864 + 40960, 40960, 159744, 163840
def unit_addr(u): return (u % 39) * 4096
XCH = 4 * 4096

sX, sW1, sW3, sW2, sH, sO, sD = 20, 24, 28, 32, 36, 40, 44
s_wave, s_mg4, s_sh, s_mt, s_sl, s_rb, s_cb = 48, 49, 50, 51, 52, 53, 54
s_t0, s_t1, s_t2, s_t3 = 55, 56, 57, 58
s_cnt, s_kst, s_sx, s_sw, s_ring = 59, 60, 61, 62, 63
s_lx, s_lw, s_rot2, s_fl = 64, 65, 66, 67
s_k = 68
s_xb, s_wb, s_lu = 69, 70, 71
s_hoff = 72
s_p, s_pend, s_pbeg, s_valid = 78, 79, 80, 81
s_u, s_lim = 75, 76
s_prof = 84
def srd(r): return f"s[{r}:{r+3}]"
STAMPS = args.prof or args.amp
MUTE = [False]
def stamp(i, force=False):
    if MUTE[0] and not force: return
    if STAMPS: I(f"{'s_memtime' if args.cyc else 's_memrealtime'} s[{s_prof+2*i}:{s_prof+2*i+1}]")
def srd_tail(r, nbytes):
    I(f"s_mov_b32 s{r+2}, {nbytes}")
    I(f"s_mov_b32 s{r+3}, 0x20000")
def prof_store():
    if not args.prof: return
    I("s_waitcnt lgkmcnt(0)")
    I(f"s_lshl_b32 s{s_t0}, s2, 3")
    I(f"s_xor_b32 s{s_t1}, s{s_wave}, 4")
    I(f"s_add_u32 s{s_t0}, s{s_t0}, s{s_t1}")
    I(f"s_lshl_b32 s{s_t0}, s{s_t0}, 5")
    I(f"s_add_u32 s{s_t0}, s{s_t0}, {PROF_OFF}")
    for i in range(8): I(f"v_mov_b32 v{240+i}, s{s_prof+2*i}")
    I("v_mov_b32 v248, 0")
    I("s_mov_b64 exec, 1")
    I(f"buffer_store_dwordx4 v[240:243], v248, {srd(sH)}, s{s_t0} offen")
    I(f"buffer_store_dwordx4 v[244:247], v248, {srd(sH)}, s{s_t0} offen offset:16")
    I("s_mov_b64 exec, -1")
P = "K"
def amp_block(spec, tag):
    ai, aj = [int(t) for t in spec.split(",")]
    I("s_waitcnt lgkmcnt(0)")
    I(f"s_sub_u32 s{s_t0}, s{s_prof+2*aj}, s{s_prof+2*ai}")
    I(f"s_cmp_eq_u32 s{s_prof+2*ai}, 0")
    I(f"s_cselect_b32 s{s_t0}, 0, s{s_t0}")
    I(f"s_cmp_eq_u32 s{s_prof+2*aj}, 0")
    I(f"s_cselect_b32 s{s_t0}, 0, s{s_t0}")
    I(f"s_min_u32 s{s_t0}, s{s_t0}, 20000")
    I(f"s_mul_i32 s{s_t0}, s{s_t0}, 10")
    I("s_memrealtime s[82:83]")
    I("s_waitcnt lgkmcnt(0)")
    I(f"s_mov_b32 s{s_t1}, s82")
    L(f"{P}_amp{tag}")
    I("s_memrealtime s[82:83]")
    I("s_waitcnt lgkmcnt(0)")
    I(f"s_sub_u32 s{s_t2}, s82, s{s_t1}")
    I(f"s_cmp_lt_u32 s{s_t2}, s{s_t0}")
    I(f"s_cbranch_scc1 {P}_amp{tag}")

def kst_init():
    if args.xrot == 1:
        I(f"s_add_u32 s{s_kst}, s2, s{s_sh}")
        I(f"s_and_b32 s{s_kst}, s{s_kst}, 1")
        I(f"s_lshl_b32 s{s_kst}, s{s_kst}, 2")
    elif args.xrot == 4:
        I(f"s_lshl_b32 s{s_kst}, s{s_sh}, 1")
        I(f"s_add_u32 s{s_kst}, s{s_kst}, s2")
        I(f"s_and_b32 s{s_kst}, s{s_kst}, 3")
        I(f"s_lshl_b32 s{s_kst}, s{s_kst}, 1")
    elif args.xrot == 5:
        I(f"s_lshl_b32 s{s_kst}, s{s_sh}, 1")
        I(f"s_add_u32 s{s_kst}, s{s_kst}, s2")
        I(f"s_and_b32 s{s_kst}, s{s_kst}, 3")
        I(f"s_add_u32 s{s_cnt}, s{s_mt}, s{s_sl}")
        I(f"s_and_b32 s{s_cnt}, s{s_cnt}, 1")
        I(f"s_lshl_b32 s{s_cnt}, s{s_cnt}, 2")
        I(f"s_add_u32 s{s_kst}, s{s_kst}, s{s_cnt}")
    else:
        I(f"s_mov_b32 s{s_kst}, 0")

def decode2():
    I(f"s_lshl_b32 s{s_t0}, s{s_sh}, 1")
    I(f"s_add_u32 s{s_t0}, s{s_t0}, s{s_mg4}")
    I(f"s_lshl_b32 s{s_t0}, s{s_t0}, 1")
    I(f"s_lshr_b32 s{s_t1}, s2, 6")
    I(f"s_add_u32 s{s_rb}, s{s_t0}, s{s_t1}")
    I(f"s_bfe_u32 s{s_cb}, s2, {3 | (3 << 16)}")
    I(f"s_mul_i32 s{s_rot2}, s{s_t1}, 11")

label = NAME + "_kernel"
e(f"; @launch grid=(256,1,1) block=(512,1,1) lds={LDS_TOTAL}")
e('.amdgcn_target "amdgcn-amd-amdhsa--gfx950"')
e(".text")
e(f".globl {label}")
e(".p2align 8")
e(f".type {label},@function")
L(label)
I("s_cmp_ge_u32 s2, 256")
I(f"s_cbranch_scc1 {P}_end")
for r, off in ((sX, 0), (sW1, 8), (sW3, 16), (sW2, 24), (sO, 32), (sD, 40), (sH, 48)):
    I(f"s_load_dwordx2 s[{r}:{r+1}], s[0:1], {off}")
if STAMPS:
    for i in range(8): I(f"s_mov_b32 s{s_prof+2*i}, 0")
stamp(0)
I("v_lshrrev_b32 v2, 6, v0")
I("v_and_b32 v1, 63, v0")
I(f"v_readfirstlane_b32 s{s_wave}, v2")
I(f"s_and_b32 s{s_mg4}, s2, 3")
I(f"s_lshl_b32 s{s_mg4}, s{s_mg4}, 2")
I(f"s_cmp_lt_u32 s{s_wave}, 4")
I(f"s_cbranch_scc1 {P}_dec")
if args.codepf:
    I("s_getpc_b64 s[18:19]")
    L(f"{P}_pc")
    I("v_bfe_u32 v60, v0, 1, 7")
    I("v_min_u32 v60, @CODELINES@, v60")
    I("v_lshlrev_b32 v60, 7, v60")
    I("global_load_dword v61, v60, s[18:19]")
L(f"{P}_dec")
I(f"s_bfe_u32 s{s_sh}, s2, {2 | (1 << 16)}")
I(f"s_bfe_u32 s{s_t2}, s2, {3 | (2 << 16)}")
I(f"s_lshr_b32 s{s_t3}, s2, 5")
I(f"s_add_u32 s{s_mt}, s{s_mg4}, s{s_t2}")
I(f"s_mul_i32 s{s_sl}, s{s_sh}, 7")
I(f"s_add_u32 s{s_sl}, s{s_sl}, s{s_t3}")
I(f"s_cmp_lg_u32 s{s_t3}, 7")
I(f"s_cbranch_scc1 {P}_dec2")
I(f"s_lshl_b32 s{s_t0}, s{s_sh}, 1")
I(f"s_and_b32 s{s_t1}, s{s_t2}, 1")
I(f"s_add_u32 s{s_mt}, s{s_mg4}, s{s_t0}")
I(f"s_add_u32 s{s_mt}, s{s_mt}, s{s_t1}")
I(f"s_lshr_b32 s{s_sl}, s{s_t2}, 1")
I(f"s_add_u32 s{s_sl}, s{s_sl}, 14")
L(f"{P}_dec2")
I(f"s_cmp_ge_u32 s{s_wave}, 4")
I(f"s_cbranch_scc1 {P}_compute")

MUTE[0] = "stages" in args.diag
vX = [2, 3, 4, 5]; vW = [6, 7, 8]; vW2 = 13
vFA, vFS, vFN = 20, 21, 22
I("v_lshrrev_b32 v14, 3, v1")
I("v_lshrrev_b32 v15, 4, v1")
I("v_and_b32 v16, 7, v1")
I("v_xor_b32 v15, v15, v16")
I("v_lshlrev_b32 v14, 10, v14")
I(f"v_lshl_add_u32 v{vX[0]}, v15, 4, v14")
I(f"v_xor_b32 v{vX[1]}, 64, v{vX[0]}")
I(f"v_add_u32 v{vX[1]}, 7168, v{vX[1]}")
I(f"v_add_u32 v{vX[2]}, 14336, v{vX[0]}")
I(f"v_add_u32 v{vX[3]}, 14336, v{vX[1]}")
I(f"s_bitcmp1_b32 s{s_sl}, 0")
I(f"s_cselect_b32 s{s_t0}, -64, 64")
I(f"s_cselect_b32 s{s_t1}, 128, 0")
I(f"s_cmp_eq_u32 s{s_sl}, 14")
I(f"s_cselect_b32 s{s_t0}, 0, s{s_t0}")
I(f"s_mul_i32 s{s_t2}, s{s_t0}, -3")
I(f"s_add_u32 s{s_t2}, s{s_t2}, 2752")
I("v_lshrrev_b32 v14, 2, v1")
I("v_and_b32 v15, 3, v1")
I(f"v_lshl_add_u32 v15, v15, 4, s{s_t1}")
I("v_and_b32 v16, 32, v1")
for j in range(3):
    if j: I(f"v_add_u32 v14, 16, v14")
    I("v_mul_u32_u24 v17, 43, v14")
    if j == 0: I("v_mov_b32 v18, v15")
    if j == 1: I("v_xor_b32 v18, v15, v16")
    if j == 2: I("v_xor_b32 v18, 32, v15")
    I("v_lshrrev_b32 v17, 7, v17")
    I(f"v_mad_i32_i24 v18, v14, s{s_t0}, v18")
    I(f"v_mad_i32_i24 v{vW[j]}, v17, s{s_t2}, v18")
    if j: I(f"v_subrev_u32 v{vW[j]}, {1024*j}, v{vW[j]}")
I(f"s_lshl_b32 s{s_lx}, s{s_wave}, 12")
I(f"s_add_u32 s{s_lx}, s{s_lx}, {SLOT0}")
I(f"s_mul_i32 s{s_lw}, s{s_wave}, 6144")
I(f"s_add_u32 s{s_lw}, s{s_lw}, {SLOT0+16384}")
I(f"s_lshl_b32 s{s_xb}, s{s_mt}, 17")
I(f"s_lshl_b32 s{s_t0}, s{s_wave}, 15")
I(f"s_add_u32 s{s_xb}, s{s_xb}, s{s_t0}")
I(f"s_mul_i32 s{s_wb}, s{s_sl}, 192")
I(f"s_mul_i32 s{s_t0}, s{s_wave}, {16*2752}")
I(f"s_add_u32 s{s_wb}, s{s_wb}, s{s_t0}")
kst_init()
I(f"s_mov_b32 s{s_cnt}, 0")
I(f"s_mov_b32 s{s_ring}, {SLOTSZ}")
srd_tail(sX, XB); srd_tail(sW1, WB); srd_tail(sW3, WB)
I(f"s_cmp_ge_u32 s{s_sl}, 15")
I(f"s_cbranch_scc1 {P}_l_init")
I(f"s_lshl_b32 s{s_t0}, s{s_kst}, 7")
I(f"s_add_u32 s{s_sx}, s{s_xb}, s{s_t0}")
I(f"s_mul_i32 s{s_sw}, s{s_kst}, {64*2752}")
I(f"s_add_u32 s{s_sw}, s{s_sw}, s{s_wb}")
I(f"s_mov_b32 m0, s{s_lx}")
I("s_waitcnt lgkmcnt(0)")
stamp(1)
def issueS(tag):
    for j in range(4):
        I(f"buffer_load_dwordx4 v{vX[j]}, {srd(sX)}, s{s_sx} offen offset:{1024*j} lds")
    I(f"s_mov_b32 m0, s{s_lw}")
    I(f"s_add_u32 s{s_kst}, s{s_kst}, 1")
    for j in range(3):
        I(f"buffer_load_dwordx4 v{vW[j]}, {srd(sW1)}, s{s_sw} offen offset:{1024*j} lds")
    I("s_add_u32 m0, m0, 3072")
    I(f"s_and_b32 s{s_kst}, s{s_kst}, 7")
    for j in range(3):
        I(f"buffer_load_dwordx4 v{vW[j]}, {srd(sW3)}, s{s_sw} offen offset:{1024*j} lds")
    I(f"s_lshl_b32 s{s_t0}, s{s_kst}, 7")
    I(f"s_add_u32 s{s_sx}, s{s_xb}, s{s_t0}")
    I(f"s_mul_i32 s{s_sw}, s{s_kst}, {64*2752}")
    I(f"s_add_u32 s{s_sw}, s{s_sw}, s{s_wb}")
    I(f"s_cmp_ge_u32 s{s_lx}, {SLOT0+SLOTSZ}")
    I(f"s_cselect_b32 s{s_t0}, {-2*SLOTSZ & 0xffffffff}, s{s_ring}")
    I(f"s_add_u32 s{s_lx}, s{s_lx}, s{s_t0}")
    I(f"s_add_u32 s{s_lw}, s{s_lw}, s{s_t0}")
    I(f"s_mov_b32 m0, s{s_lx}")
    I(f"s_add_u32 s{s_cnt}, s{s_cnt}, 1")
L(f"{P}_l_loop")
issueS("a")
I(f"s_cmp_eq_u32 s{s_cnt}, 1")
I(f"s_cbranch_scc1 {P}_l_loop")

L(f"{P}_l_init")
decode2()
srd_tail(sW2, W2B); srd_tail(sH, WS_REC); srd_tail(sD, 256)
I("v_lshrrev_b32 v14, 3, v1")
I(f"s_and_b32 s{s_t0}, s{s_wave}, 1")
I(f"s_lshl_b32 s{s_t0}, s{s_t0}, 3")
I(f"s_lshr_b32 s{s_t1}, s{s_wave}, 1")
I(f"s_mul_i32 s{s_t1}, s{s_t1}, 688")
I(f"s_add_u32 s{s_t0}, s{s_t0}, s{s_t1}")
I(f"v_add_u32 v14, s{s_t0}, v14")
I("v_lshlrev_b32 v14, 10, v14")
I("v_lshrrev_b32 v15, 2, v1")
I("v_and_b32 v15, 4, v15")
I("v_and_b32 v16, 7, v1")
I("v_xor_b32 v15, v15, v16")
I(f"v_lshl_add_u32 v{vW2}, v15, 4, v14")
I(f"s_lshl_b32 s{s_pbeg}, s{s_cb}, 7")
I(f"s_add_u32 s{s_pend}, s{s_pbeg}, {43*16384}")
I(f"s_lshl_b32 s{s_t0}, s{s_rot2}, 14")
I(f"s_add_u32 s{s_p}, s{s_pbeg}, s{s_t0}")
I(f"s_lshl_b32 s{s_lu}, s{s_wave}, 10")
I(f"s_lshr_b32 s{s_t0}, s{s_rb}, 1")
I(f"s_mul_i32 s{s_fl}, s{s_t0}, {4*HSTR*1024}")
I(f"s_add_u32 s{s_fl}, s{s_fl}, {86*1024}")
I("v_min_u32 v14, 15, v1")
I(f"s_lshl_b32 s{s_valid}, 1, s{s_sl}")
I(f"s_cmp_eq_u32 s{s_t0}, s{s_mt}")
I(f"s_cselect_b32 s{s_t1}, s{s_sl}, 15")
I(f"s_cselect_b32 s{s_valid}, s{s_valid}, 0")
I(f"v_cmp_eq_u32 vcc, s{s_t1}, v14")
I("v_mov_b32 v15, 15")
I("s_nop 0")
I("v_cndmask_b32 v14, v14, v15, vcc")
I("v_lshrrev_b32 v15, 3, v14")
I(f"v_mul_u32_u24 v15, {HSTR*1024}, v15")
I("v_and_b32 v14, 7, v14")
I(f"v_lshl_add_u32 v{vFA}, v14, 7, v15")
I("s_waitcnt lgkmcnt(0)")
I(f"s_cmp_lg_u32 s{s_wave}, 0")
I(f"s_cbranch_scc1 {P}_l_nosamp")
I(f"buffer_load_dword v{vFS}, v{vFA}, {srd(sH)}, s{s_fl} offen sc1")
L(f"{P}_l_nosamp")
I(f"s_cmp_ge_u32 s{s_sl}, 15")
I(f"s_cbranch_scc1 {P}_l_idle")
L(f"{P}_l_wait")
I("s_waitcnt vmcnt(10)")
if "b0" in args.diag:
    I(f"s_cmp_lg_u32 s{s_cnt}, 2"); I(f"s_cbranch_scc1 {P}_l_nb0"); stamp(7, True); L(f"{P}_l_nb0")
I("s_barrier")
if "stages" in args.diag:
    for c in range(1, 7):
        I(f"s_cmp_lg_u32 s{s_cnt}, {c+2}"); I(f"s_cbranch_scc1 {P}_l_st{c}"); stamp(c, True); L(f"{P}_l_st{c}")
I(f"s_cmp_ge_u32 s{s_cnt}, 8")
I(f"s_cbranch_scc1 {P}_l_tail")
issueS("b")
I(f"s_branch {P}_l_wait")
LOADER_TAIL_MARK = len(out)

wcount = [0]
def w_one():
    I(f"buffer_load_dwordx4 v{vW2}, {srd(sW2)}, s{s_p} offen lds")
    I(f"s_add_u32 s{s_p}, s{s_p}, 16384")
    I(f"s_cmp_eq_u32 s{s_p}, s{s_pend}")
    I(f"s_cselect_b32 s{s_p}, s{s_pbeg}, s{s_p}")
    I("s_add_u32 m0, m0, 4096")
    I(f"s_add_u32 s{s_u}, s{s_u}, 1")
def issueW(lim, pace=0):
    lab = f"{P}_l_w{wcount[0]}"; wcount[0] += 1
    I(f"s_cmp_ge_u32 s{s_u}, {lim}")
    I(f"s_cbranch_scc1 {lab}e")
    L(lab)
    if pace: I(f"s_waitcnt vmcnt({pace-1})")
    w_one()
    I(f"s_cmp_lt_u32 s{s_u}, {lim}")
    I(f"s_cbranch_scc1 {lab}")
    L(lab + "e")

pfc = [0]
def prefetch_jobs():
    tag = pfc[0]; pfc[0] += 1
    I(f"s_bfe_u32 s{s_t2}, s2, {3 | (1 << 16)}")
    if args.jobX:
        kst_init()
        I("v_lshlrev_b32 v40, 10, v1")
        I(f"s_lshl_b32 s{s_t0}, s{s_mg4}, 17")
        I(f"s_lshl_b32 s{s_t1}, s{s_wave}, 16")
        I(f"s_add_u32 s{s_t0}, s{s_t0}, s{s_t1}")
        I(f"s_add_u32 s{s_t1}, s{s_kst}, s{s_t2}")
        I(f"s_add_u32 s{s_t1}, s{s_t1}, 2")
        I(f"s_and_b32 s{s_t1}, s{s_t1}, 7")
        I(f"s_lshl_b32 s{s_t1}, s{s_t1}, 7")
        I(f"s_add_u32 s{s_t0}, s{s_t0}, s{s_t1}")
        I(f"buffer_load_dword v42, v40, {srd(sX)}, s{s_t0} offen")
    if args.jobx3:
        I("v_and_b32 v40, 31, v1")
        I("v_lshlrev_b32 v40, 10, v40")
        I(f"s_lshl_b32 s{s_t0}, s{s_mg4}, 17")
        I(f"s_lshl_b32 s{s_t1}, s{s_t2}, 18")
        I(f"s_add_u32 s{s_t0}, s{s_t0}, s{s_t1}")
        I(f"s_lshl_b32 s{s_t1}, s{s_wave}, 15")
        I(f"s_add_u32 s{s_t0}, s{s_t0}, s{s_t1}")
        I(f"buffer_load_dword v42, v40, {srd(sX)}, s{s_t0} offen offset:384")
    if args.jobM:
        I("v_lshlrev_b32 v41, 7, v1")
        I(f"s_and_b32 s{s_t0}, s2, 7")
        I(f"s_lshl_b32 s{s_t0}, s{s_t0}, 1")
        I(f"s_add_u32 s{s_t0}, s{s_t0}, s{s_t2}")
        I(f"s_lshl_b32 s{s_t1}, s{s_wave}, 4")
        I(f"s_add_u32 s{s_t0}, s{s_t0}, s{s_t1}")
        I(f"s_lshl_b32 s{s_t0}, s{s_t0}, 13")
        I(f"buffer_load_dword v43, v41, {srd(sW2)}, s{s_t0} offen")
        I(f"s_add_u32 s{s_t0}, s{s_t0}, {128*8192}")
        I(f"s_cmp_ge_u32 s{s_t0}, {W2B}")
        I(f"s_cbranch_scc1 {P}_pf{tag}_m")
        I(f"buffer_load_dword v43, v41, {srd(sW2)}, s{s_t0} offen")
        L(f"{P}_pf{tag}_m")
    if args.job3:
        I("v_min_u32 v44, 42, v1")
        I("v_lshlrev_b32 v44, 10, v44")
        I(f"s_mul_i32 s{s_t0}, s{s_t2}, 688")
        I(f"s_mul_i32 s{s_t1}, s{s_wave}, 86")
        I(f"s_add_u32 s{s_t0}, s{s_t0}, s{s_t1}")
        I(f"s_lshl_b32 s{s_t0}, s{s_t0}, 10")
        I(f"buffer_load_dword v45, v44, {srd(sW2)}, s{s_t0} offen offset:384")
        I(f"s_add_u32 s{s_t0}, s{s_t0}, {43*1024}")
        I(f"buffer_load_dword v45, v44, {srd(sW2)}, s{s_t0} offen offset:384")

L(f"{P}_l_tail")
stamp(2)
I(f"s_mov_b32 m0, s{s_lu}")
I(f"s_mov_b32 s{s_u}, 0")
I(f"v_mov_b32 v17, {LDS_SCR}")
issueW(args.atb6)
I(f"s_waitcnt vmcnt({args.atb6})")
I("s_barrier")
if "stages" in args.diag: stamp(7, True)
stamp(3)
issueW(args.kmin, args.pace)
I("s_setprio 3")
L(f"{P}_l_str")
I("ds_read_b64 v[18:19], v17 offset:8")
I(f"s_waitcnt vmcnt({args.pace2-1}) lgkmcnt(0)")
I(f"v_readfirstlane_b32 s{s_t0}, v18")
I(f"v_readfirstlane_b32 s{s_t1}, v19")
I(f"s_cmp_eq_u32 s{s_t0}, 4")
I(f"s_cselect_b32 s{s_lim}, 39, 29")
I(f"s_cmp_lg_u32 s{s_t1}, 0")
I(f"s_cbranch_scc1 {P}_l_stop")
I(f"s_cmp_ge_u32 s{s_u}, s{s_lim}")
I(f"s_cbranch_scc1 {P}_l_full")
w_one()
I(f"s_branch {P}_l_str")
L(f"{P}_l_full")
I("s_sleep 1")
I(f"s_cmp_lt_u32 s{s_u}, 39")
I(f"s_cbranch_scc1 {P}_l_str")
L(f"{P}_l_stop")
I("s_setprio 0")
I("s_waitcnt vmcnt(0)")
stamp(4)
if "wk" in args.diag:
    I("s_waitcnt lgkmcnt(0)"); I(f"s_mul_i32 s{s_prof+14}, s{s_u}, 10"); I(f"s_add_u32 s{s_prof+14}, s{s_prof+14}, s{s_prof+8}")
I("s_barrier")
I(f"s_cmp_lg_u32 s{s_wave}, 1")
I(f"s_cbranch_scc1 {P}_l_nofb")
I(f"s_lshl_b32 s{s_sx}, 1, s{s_sl}")
I(f"s_lshl_b32 s{s_sw}, s{s_mt}, 4")
I(f"s_atomic_add s{s_sx}, s[{sD}:{sD+1}], s{s_sw}")
L(f"{P}_l_nofb")
I("s_sleep 1")
I(f"s_add_u32 s{s_lim}, s{s_u}, {args.wb1}")
I(f"s_min_u32 s{s_lim}, s{s_lim}, 39")
issueW(f"s{s_lim}")
I(f"s_branch {P}_l_bb")
L(f"{P}_l_idle")
prefetch_jobs()
I(f"s_mov_b32 m0, s{s_lu}")
I(f"s_mov_b32 s{s_u}, 0")
issueW(39)
I("s_waitcnt vmcnt(0)")
I("s_barrier")
L(f"{P}_l_bb")
I("s_barrier")
issueW(39)
I(f"s_mov_b32 m0, s{s_lu}")
issueW(43)
stamp(5)
wdone = args.kmin
L(f"{P}_l_sel")
I(f"s_cmp_lg_u32 s{s_wave}, 0")
I(f"s_cbranch_scc1 {P}_l_go")
I(f"s_lshr_b32 s{s_t1}, s{s_rb}, 1")
I(f"s_lshl_b32 s{s_t1}, s{s_t1}, 4")
I("v_mov_b32 v18, 0")
I(f"v_mov_b32 v17, {LDS_SCR}")
I("v_mov_b32 v19, 1")
I(f"s_mov_b32 s{s_cnt}, 0")
L(f"{P}_l_poll")
I(f"buffer_load_dword v{vFN}, v{vFA}, {srd(sH)}, s{s_fl} offen sc1")
I(f"s_add_u32 s{s_cnt}, s{s_cnt}, 1")
I("s_waitcnt vmcnt(0)")
I(f"v_cmp_ne_u32 vcc, v{vFN}, v{vFS}")
I(f"s_and_b32 s{s_t0}, s{s_cnt}, {0 if 'fbonly' in args.diag else 31}")
if "fbonly" in args.diag: I("s_mov_b64 vcc, 0")
I(f"s_or_b32 s{s_t2}, vcc_lo, s{s_valid}")
I(f"s_and_b32 s{s_t2}, s{s_t2}, 0x7fff")
I(f"s_cmp_eq_u32 s{s_t2}, 0x7fff")
I(f"s_cbranch_scc1 {P}_l_ok")
if args.sleep: I(f"s_sleep {args.sleep}")
I(f"s_cmp_lg_u32 s{s_t0}, 0")
I(f"s_cbranch_scc1 {P}_l_poll")
I(f"buffer_load_dword v16, v18, {srd(sD)}, s{s_t1} offen sc1")
I("s_waitcnt vmcnt(0)")
I(f"v_readfirstlane_b32 s{s_t0}, v16")
I(f"s_cmp_ge_u32 s{s_cnt}, 400000")
I(f"s_cbranch_scc1 {P}_l_ok")
I(f"s_or_b32 s{s_t2}, s{s_t2}, s{s_t0}")
I(f"s_cmp_lg_u32 s{s_t2}, 0x7fff")
I(f"s_cbranch_scc1 {P}_l_poll")
L(f"{P}_l_ok")
I("ds_write_b32 v17, v19")
L(f"{P}_l_go")
stamp(6)
I("s_waitcnt vmcnt(0)")
I("s_barrier")
if args.amp.startswith("L"): amp_block(args.amp[1:], "l")
prof_store()
L(f"{P}_end")
I("s_endpgm")
loader_tail = out[LOADER_TAIL_MARK:]
del out[LOADER_TAIL_MARK:]

MUTE[0] = "p2" in args.diag
L(f"{P}_compute")
vAX = [2, 3]; vAW = [6, 7, 8]
ACC = 64
FA, FB = 160, 200
vOLD = 20
if args.prio: I(f"s_setprio {args.prio}")
I(f"s_and_b32 s{s_t0}, s{s_wave}, 1")
I(f"s_lshl_b32 s{s_t0}, s{s_t0}, 13")
I(f"s_add_u32 s{s_t0}, s{s_t0}, {SLOT0}")
I("v_and_b32 v10, 15, v1")
I("v_lshrrev_b32 v11, 1, v10")
I("v_lshrrev_b32 v12, 4, v1")
I(f"v_lshl_add_u32 v10, v10, 7, s{s_t0}")
I("v_xor_b32 v13, v12, v11")
I("v_and_b32 v11, 1, v12")
I(f"v_lshl_add_u32 v{vAX[0]}, v13, 4, v10")
I(f"v_xor_b32 v{vAX[1]}, 64, v{vAX[0]}")
I("v_lshrrev_b32 v10, 1, v12")
I("v_bfe_u32 v12, v1, 2, 2")
I("v_lshl_add_u32 v12, v11, 3, v12")
I("v_mul_u32_u24 v12, 192, v12")
I("v_mul_u32_u24 v13, 6144, v10")
I("v_and_b32 v10, 3, v1")
I("v_lshl_add_u32 v12, v10, 3, v12")
I(f"s_mov_b32 s{s_t1}, {SLOT0+16384}")
I(f"v_add3_u32 v12, v12, v13, s{s_t1}")
I("v_lshlrev_b32 v11, 5, v11")
I(f"s_bfe_u32 s{s_t0}, s{s_wave}, {1 | (1 << 16)}")
I(f"s_lshl_b32 s{s_t1}, s{s_t0}, 5")
I(f"s_lshl_b32 s{s_t2}, s{s_t0}, 6")
I(f"v_xor_b32 v13, s{s_t1}, v11")
I(f"v_add3_u32 v{vAW[0]}, v12, v13, s{s_t2}")
I(f"v_add_u32 v{vAW[2]}, 64, v{vAW[0]}")
I("v_xor_b32 v13, 32, v13")
I(f"s_lshl_b32 s{s_t2}, s{s_t0}, 7")
I(f"v_add3_u32 v{vAW[1]}, v12, v13, s{s_t2}")
I("v_mov_b32 v21, 0")
I(f"v_mov_b32 v22, {LDS_SCR}")
I("ds_write_b32 v22, v21")
I("ds_write_b32 v22, v21 offset:8")
I("ds_write_b32 v22, v21 offset:12")
I("v_mov_b32 v23, 1")
for r in range(0, 96, 2):
    I(f"v_mov_b64 v[{ACC+r}:{ACC+r+1}], 0")
I(f"s_cmp_eq_u32 s{s_t0}, 0")
I(f"s_cselect_b32 s{s_t1}, 2, 0")
I(f"s_movk_i32 s{s_t2}, 0x543")
I(f"s_cselect_b32 s{s_t2}, 0x210, s{s_t2}")
I(f"s_movk_i32 s{s_t3}, 0x103")
I(f"s_cselect_b32 s{s_t3}, 0x254, s{s_t3}")
I(f"s_cmp_eq_u32 s{s_sl}, 14")
I(f"s_cselect_b32 s{s_valid}, s{s_t1}, 3")
I(f"s_bitcmp1_b32 s{s_sl}, 0")
I(f"s_cselect_b32 s{s_t2}, s{s_t3}, s{s_t2}")
I(f"s_and_b32 s{s_t1}, s{s_wave}, 1")
I(f"s_lshl_b32 s{s_t3}, s{s_mt}, 1")
I(f"s_add_u32 s{s_t1}, s{s_t1}, s{s_t3}")
I(f"s_mul_i32 s{s_t1}, s{s_t1}, {2*HSTR}")
I(f"s_mul_i32 s{s_t3}, s{s_sl}, 6")
I(f"s_add_u32 s{s_t1}, s{s_t1}, s{s_t3}")
for t in range(3):
    I(f"s_bfe_u32 s{s_t3}, s{s_t2}, {4*t | (4 << 16)}")
    I(f"s_add_u32 s{s_t3}, s{s_t3}, s{s_t1}")
    I(f"s_lshl_b32 s{s_hoff+t}, s{s_t3}, 10")
I(f"s_mov_b32 s{s_k}, 0xbfb8aa3b")
I("v_lshlrev_b32 v9, 4, v1")
I(f"v_add_u32 v10, {HSTR*1024}, v9")
I(f"v_mov_b32 v56, s{s_k}"); I(f"v_mov_b32 v57, s{s_k}"); I("v_mov_b32 v58, 1.0"); I("v_mov_b32 v59, 1.0")
I(f"s_mul_i32 s{s_fl}, s{s_mt}, {4*HSTR*1024}")
I(f"s_lshr_b32 s{s_t1}, s{s_sl}, 3")
I(f"s_mul_i32 s{s_t1}, s{s_t1}, {HSTR*1024}")
I(f"s_add_u32 s{s_fl}, s{s_fl}, s{s_t1}")
I(f"s_and_b32 s{s_t1}, s{s_sl}, 7")
I(f"s_lshl_b32 s{s_t1}, s{s_t1}, 7")
I(f"s_add_u32 s{s_fl}, s{s_fl}, s{s_t1}")
I(f"s_add_u32 s{s_fl}, s{s_fl}, {86*1024}")
srd_tail(sH, WS_REC); srd_tail(sO, OB)
I(f"s_mov_b32 s{s_cnt}, 0")
I(f"s_mov_b32 s{s_ring}, 1")
I(f"s_mov_b32 s{s_sx}, {SLOTSZ}")
I("s_waitcnt lgkmcnt(0)")
I(f"s_cmp_ge_u32 s{s_sl}, 15")
I(f"s_cbranch_scc1 {P}_c_idle")
I(f"s_cmp_eq_u32 s{s_valid}, 0")
I(f"s_cbranch_scc1 {P}_c_lazy")

def xr(fs, mt): return fs + 4 * mt
def wr_(fs, t, mat): return fs + 16 + 4 * (2 * t + mat)
def acc(t, mat, mt): return ACC + ((t * 2 + mat) * 4 + mt) * 4
def xrd(ks, fs, mt): return [f"ds_read_b128 v[{xr(fs,mt)}:{xr(fs,mt)+3}], v{vAX[ks]} offset:{2048*mt}"]
def wrd(ks, fs, t, mat):
    d = wr_(fs, t, mat)
    return [f"ds_read_b64_tr_b16 v[{d+2*h}:{d+2*h+1}], v{vAW[t]} offset:{ks*12288+mat*3072+h*768}" for h in range(2)]
def reads(ks, fs):
    r = xrd(ks, fs, 0) + wrd(ks, fs, 0, 0) + xrd(ks, fs, 1) + wrd(ks, fs, 0, 1) + xrd(ks, fs, 2) + xrd(ks, fs, 3)
    for t in (1, 2):
        for mat in range(2): r += wrd(ks, fs, t, mat)
    return r
def mf(fs, t, mat, mt):
    a = acc(t, mat, mt); w = wr_(fs, t, mat); x = xr(fs, mt)
    return f"v_mfma_f32_16x16x32_bf16 v[{a}:{a+3}], v[{w}:{w+3}], v[{x}:{x+3}], v[{a}:{a+3}]"
def mfmas(fs):
    return [mf(fs, t, mat, mt) for t in range(3) for mat in range(2) for mt in range(4)]
if "b0" in args.diag: stamp(1)
I("s_barrier")
if "b0" not in args.diag: stamp(1)
r = reads(0, FA)
for x in r[:12]: I(x)
I(f"s_cmp_lg_u32 s{s_wave}, 4")
I(f"s_cbranch_scc1 {P}_c_noold")
I(f"buffer_load_dword v{vOLD}, v21, {srd(sH)}, s{s_fl} offen sc1")
L(f"{P}_c_noold")
I("s_waitcnt lgkmcnt(8)")
for x in r[12:]: I(x)
L(f"{P}_c_loop")
m = mfmas(FA); r = reads(1, FB)
extra = [f"s_add_u32 s{s_ring}, s{s_ring}, 1", f"s_cmp_eq_u32 s{s_ring}, 3",
         f"s_cselect_b32 s{s_t0}, {-2*SLOTSZ & 0xffffffff}, s{s_sx}", f"s_cselect_b32 s{s_ring}, 0, s{s_ring}",
         f"s_add_u32 s{s_cnt}, s{s_cnt}, 1", None]
upd = [f"v_add_u32 v{r}, s{s_t0}, v{r}" for r in vAX + vAW]
need = {0: 8, 8: 10, 12: 12, 16: 14, 20: 16}
for i in range(24):
    if i in need: I(f"s_waitcnt lgkmcnt({min(15, 16 - need[i] + min(i, 16))})")
    I(m[i])
    if i < 16: I(r[i])
    elif i < 19:
        for x in extra[2*(i-16):2*(i-16)+2]:
            if x: I(x)
    else: I(upd[i-19])
I("s_waitcnt lgkmcnt(0)")
m = mfmas(FB); r = reads(0, FA)
for i in range(24):
    if i == args.barpos: I("s_barrier")
    I(m[i])
    if i >= args.barpos:
        for x in r[(i - args.barpos) * args.rpg:(i - args.barpos + 1) * args.rpg]: I(x)
assert (24 - args.barpos) * args.rpg >= 16
I(f"s_cmp_lt_u32 s{s_cnt}, 7")
I(f"s_cbranch_scc1 {P}_c_loop")
stamp(2)
T = 32
def epi(t, p):
    tm = T + p * 12; o = tm + 8
    g = [acc(t, 0, 2*p + (q >> 2)) + (q & 3) for q in range(8)]
    u = [acc(t, 1, 2*p + (q >> 2)) + (q & 3) for q in range(8)]
    v = []
    if 2 * t + p >= args.pkfrom:
        pr = lambda r: f"v[{r}:{r+1}]"
        for q in range(0, 8, 2): v.append(f"v_pk_mul_f32 {pr(tm+q)}, {pr(g[q])}, v[56:57]")
        for q in range(8): v.append(f"v_exp_f32 v{tm+q}, v{tm+q}")
        for q in range(0, 8, 2): v.append(f"v_pk_add_f32 {pr(tm+q)}, {pr(tm+q)}, v[58:59]")
        for q in range(8): v.append(f"v_rcp_f32 v{tm+q}, v{tm+q}")
        for q in range(0, 8, 2): v.append(f"v_pk_mul_f32 {pr(tm+q)}, {pr(tm+q)}, {pr(g[q])}")
        for q in range(0, 8, 2): v.append(f"v_pk_mul_f32 {pr(tm+q)}, {pr(tm+q)}, {pr(u[q])}")
    else:
        for q in range(8): v.append(f"v_mul_f32 v{tm+q}, s{s_k}, v{g[q]}")
        for q in range(8): v.append(f"v_exp_f32 v{tm+q}, v{tm+q}")
        for q in range(8): v.append(f"v_add_f32 v{tm+q}, 1.0, v{tm+q}")
        for q in range(8): v.append(f"v_rcp_f32 v{tm+q}, v{tm+q}")
        for q in range(8): v.append(f"v_mul_f32 v{tm+q}, v{tm+q}, v{g[q]}")
        for q in range(8): v.append(f"v_mul_f32 v{tm+q}, v{tm+q}, v{u[q]}")
    for q in (0, 2, 1, 3): v.append(f"v_cvt_pk_bf16_f32 v{o+q}, v{tm+2*q}, v{tm+2*q+1}")
    v.append(("swap", o))
    v.append(("store", t, p, o))
    return v
def emit_v(x):
    if isinstance(x, tuple) and x[0] == "swap":
        o = x[1]
        I(f"v_permlane16_swap_b32 v{o}, v{o+2}")
        I("s_nop 0")
        I(f"v_permlane16_swap_b32 v{o+1}, v{o+3}")
    elif isinstance(x, tuple):
        _, t, p, o = x
        if t == 2:
            I(f"s_cmp_le_u32 s{s_valid}, 2")
            I(f"s_cbranch_scc1 {P}_c_ns{t}{p}")
        I(f"buffer_store_dwordx4 v[{o}:{o+3}], v{9+p}, {srd(sH)}, s{s_hoff+t} offen sc1")
        if t == 2: L(f"{P}_c_ns{t}{p}")
    else:
        I(x)
blocks = [(t, p) for t in range(3) for p in range(2)]
def bmf(t, p, fs): return [mf(fs, t, mat, 2*p + j) for mat in range(2) for j in range(2)]
rB = reads(1, FB)
I("s_waitcnt lgkmcnt(8)")
pre = bmf(0, 0, FA) + bmf(0, 1, FA)
for i in range(8):
    I(pre[i])
    if i == 3: I("s_waitcnt lgkmcnt(6)")
    I(rB[2*i])
    if i == 7: I("s_waitcnt lgkmcnt(9)")
    I(rB[2*i+1])
I("s_waitcnt lgkmcnt(8)")
seq = []
for bi, (t, p) in enumerate(blocks):
    x = bmf(t, p, FB) if bi < 2 else bmf(t, p, FA) + bmf(t, p, FB)
    seq += [(y, None) for y in x[:-1]] + [(x[-1], bi)]
vq = []; nxt = 0; since = {}
for i, (mi, done) in enumerate(seq):
    if i == 8:
        I("s_waitcnt lgkmcnt(0)")
        I("s_mov_b64 exec, 1"); I("ds_add_u32 v22, v23 offset:8"); I("s_mov_b64 exec, -1")
    I(mi)
    for k in since: since[k] += 1
    if done is not None: since[done] = 0
    n = 0
    while n < args.gapc:
        if not vq:
            if nxt in since and since[nxt] >= 4 and nxt < args.pkfrom:
                if since[nxt] < 9: I(f"s_nop {9 - since[nxt]}")
                vq += epi(*blocks[nxt]); nxt += 1
            else:
                break
        x = vq.pop(0)
        emit_v(x); n += 8 if (isinstance(x, tuple) or "exp" in x or "rcp" in x) else 4
        for k in since: since[k] += 1
while vq or nxt < 6:
    if not vq:
        if since[nxt] < 9: I(f"s_nop {9 - since[nxt]}")
        if nxt == args.stopat: I("ds_write_b32 v22, v23 offset:12")
        vq += epi(*blocks[nxt]); nxt += 1
    emit_v(vq.pop(0))
    for k in since: since[k] += 1
if args.stopat == 6: I("ds_write_b32 v22, v23 offset:12")
L(f"{P}_c_epidone")
stamp(3)
vB = [[10, 11], [12, 13], [14, 15]]
WF = 128; HR = 160; R = args.hring
decode2()
I("v_lshrrev_b32 v16, 4, v1")
I("v_lshrrev_b32 v17, 5, v1")
I("v_bfe_u32 v18, v1, 2, 2")
I("v_lshl_add_u32 v17, v17, 3, v18")
I("v_lshlrev_b32 v17, 7, v17")
I("v_and_b32 v16, 1, v16")
I("v_and_b32 v19, 1, v1")
I("v_lshl_add_u32 v16, v19, 1, v16")
I("v_lshlrev_b32 v18, 1, v18")
I("v_and_b32 v18, 4, v18")
I(f"s_bfe_u32 s{s_t0}, s{s_wave}, {1 | (1 << 16)}")
I(f"s_lshl_b32 s{s_t1}, s{s_t0}, 2")
I(f"v_xor_b32 v18, s{s_t1}, v18")
I("v_xor_b32 v16, v16, v18")
I("v_lshl_add_u32 v17, v16, 4, v17")
I("v_bfe_u32 v19, v1, 1, 1")
I("v_lshl_add_u32 v17, v19, 3, v17")
I(f"s_lshl_b32 s{s_t1}, s{s_t0}, 11")
I(f"v_add_u32 v{vB[0][0]}, s{s_t1}, v17")
I(f"v_xor_b32 v{vB[0][1]}, 64, v{vB[0][0]}")
for sg in (1, 2):
    for nb in range(2):
        I(f"v_add_u32 v{vB[sg][nb]}, {sg*65536}, v{vB[0][nb]}")
I(f"s_and_b32 s{s_t1}, s{s_wave}, 1")
I(f"s_lshl_b32 s{s_t2}, s{s_rb}, 1")
I(f"s_add_u32 s{s_t1}, s{s_t1}, s{s_t2}")
I(f"s_mul_i32 s{s_t2}, s{s_t1}, {HSTR}")
I(f"s_mul_i32 s{s_t3}, s{s_t0}, 43")
I(f"s_add_u32 s{s_t2}, s{s_t2}, s{s_t3}")
I(f"s_lshl_b32 s{s_pbeg}, s{s_t2}, 10")
I(f"s_add_u32 s{s_pend}, s{s_pbeg}, {43*1024}")
I(f"s_lshl_b32 s{s_t2}, s{s_rot2}, 10")
I(f"s_add_u32 s{s_p}, s{s_pbeg}, s{s_t2}")
I("v_and_b32 v16, 31, v1")
I("v_lshlrev_b32 v16, 10, v16")
I("v_and_b32 v17, 32, v1")
I(f"s_lshl_b32 s{s_t1}, s{s_t1}, 15")
I(f"s_lshl_b32 s{s_t2}, s{s_cb}, 7")
I(f"s_add_u32 s{s_t1}, s{s_t1}, s{s_t2}")
I(f"s_lshl_b32 s{s_t2}, s{s_t0}, 6")
I(f"s_add_u32 s{s_t1}, s{s_t1}, s{s_t2}")
I(f"v_add3_u32 v16, v16, v17, s{s_t1}")
I(f"s_and_b32 s{s_t1}, s{s_wave}, 3")
I(f"s_lshl_b32 s{s_t1}, s{s_t1}, 12")
I(f"s_xor_b32 s{s_t2}, s{s_t1}, {2 << 12}")
I(f"s_add_u32 s{s_t1}, s{s_t1}, {XCH}")
I(f"s_add_u32 s{s_t2}, s{s_t2}, {XCH}")
I(f"v_add_u32 v17, s{s_t1}, v9")
I(f"v_add_u32 v18, s{s_t2}, v9")
for r in range(0, 32, 2):
    I(f"v_mov_b64 v[{ACC+r}:{ACC+r+1}], 0")
I("s_waitcnt vmcnt(0)")
I(f"v_add_u32 v{vOLD}, 1, v{vOLD}")
I("s_barrier")
I(f"s_cmp_lg_u32 s{s_wave}, 4")
I(f"s_cbranch_scc1 {P}_c_p2")
I(f"s_cmp_ge_u32 s{s_sl}, 15")
I(f"s_cbranch_scc1 {P}_c_p2")
I("s_mov_b64 exec, 1")
I(f"buffer_store_dword v{vOLD}, v21, {srd(sH)}, s{s_fl} offen sc1")
I("s_mov_b64 exec, -1")
L(f"{P}_c_p2")
stamp(4)
def wreads(u, dst):
    a = unit_addr(u); sg = a >> 16; off = a & 0xffff
    return [f"ds_read_b64_tr_b16 v[{dst+4*nb+2*h}:{dst+4*nb+2*h+1}], v{vB[sg][nb]} offset:{off+h*512}" for nb in range(2) for h in range(2)]
NW, NPRE, PRE, TN = 3, 4, 96, args.tailn
def wdst(u):
    if u < 4: return PRE + 8 * u
    if u >= 43 - TN: return PRE + 8 * (u - (43 - TN))
    return WF + 8 * (u % NW)
for u in range(NPRE):
    if u == 3: I("s_waitcnt lgkmcnt(8)")
    for r in wreads(u, wdst(u)): I(r)
I("s_waitcnt lgkmcnt(0)")
I("s_barrier")
L(f"{P}_c_spin")
I("ds_read_b32 v24, v22")
I("s_waitcnt lgkmcnt(0)")
I(f"v_readfirstlane_b32 s{s_t0}, v24")
I("s_nop 0")
I(f"s_cmp_eq_u32 s{s_t0}, 0")
I(f"s_cbranch_scc1 {P}_c_spin")
stamp(5)
if "p2" in args.diag: stamp(1, True)
def hload(s):
    b = HR + 4 * (s % R)
    return [f"buffer_load_dwordx4 v[{b}:{b+3}], v9, {srd(sH)}, s{s_p} offen sc1",
            f"s_add_u32 s{s_p}, s{s_p}, 1024",
            f"s_cmp_eq_u32 s{s_p}, s{s_pend}",
            f"s_cselect_b32 s{s_p}, s{s_pbeg}, s{s_p}"]
for s in range(args.hpro):
    for x in hload(s): I(x)
issued = args.hpro
def mm2(s, nb):
    hb = HR + 4 * (s % R); wd = wdst(s)
    return f"v_mfma_f32_32x32x16_bf16 v[{ACC+16*nb}:{ACC+16*nb+15}], v[{wd+4*nb}:{wd+4*nb+3}], v[{hb}:{hb+3}], v[{ACC+16*nb}:{ACC+16*nb+15}]"
for s in range(43):
    u = s + 2
    young = 1 if NPRE <= s + 1 < 43 else 0
    I(f"s_waitcnt vmcnt({issued - s - 1}) lgkmcnt({4*young})")
    if "p2" in args.diag and s in (0, 5, 11, 21, 32, 42): stamp({0:2, 5:3, 11:4, 21:5, 32:6, 42:7}[s], True)
    if u == wdone: I("s_barrier")
    wr = wreads(u, wdst(u)) if NPRE <= u < 43 else []
    I(mm2(s, 1))
    for r in wr[:2]: I(r)
    if issued < 43 and issued - R < s:
        for x in hload(issued): I(x)
        issued += 1
    if s < 43 - TN: I(mm2(s, 0))
    for r in wr[2:]: I(r)
    if issued < 43 and issued - R < s and issued - s - 1 < R - 1:
        for x in hload(issued): I(x)
        issued += 1
stamp(6)
tl = [mm2(s, 0) for s in range(43 - TN, 43)]
if tl: I(tl.pop(0))
I("s_nop 7")
I("s_nop 3")
for q in range(4):
    I(f"ds_write_b128 v17, v[{ACC+16+4*q}:{ACC+19+4*q}] offset:{q*1024}")
    if tl and q % 2 == 1: I(tl.pop(0))
for x in tl: I(x)
I("s_waitcnt lgkmcnt(0)")
I("s_barrier")
for q in range(4):
    I(f"ds_read_b128 v[{128+4*q}:{131+4*q}], v18 offset:{q*1024}")
I("s_nop 5")
for q in range(4):
    I(f"s_waitcnt lgkmcnt({3-q})")
    for p in range(2):
        I(f"v_pk_add_f32 v[{ACC+4*q+2*p}:{ACC+4*q+2*p+1}], v[{ACC+4*q+2*p}:{ACC+4*q+2*p+1}], v[{128+4*q+2*p}:{129+4*q+2*p}]")
    for p in range(2):
        I(f"v_cvt_pk_bf16_f32 v{144+2*q+p}, v{ACC+4*q+2*p}, v{ACC+4*q+2*p+1}")
    if q == 1: I(f"buffer_store_dwordx4 v[144:147], v16, {srd(sO)}, 0 offen")
I(f"buffer_store_dwordx4 v[148:151], v16, {srd(sO)}, 0 offen offset:16")
if "dirty" in args.diag:
    n = int(re.search(r"dirty(\d+)", args.diag).group(1))
    I(f"s_mov_b32 s{sH+2}, {64 << 20}")
    I(f"s_lshl_b32 s{s_t0}, s2, 2")
    I(f"s_add_u32 s{s_t0}, s{s_t0}, s{s_wave}")
    I(f"s_mul_i32 s{s_t0}, s{s_t0}, {n*1024}")
    I(f"s_add_u32 s{s_t0}, s{s_t0}, {16 << 20}")
    for i in range(n):
        I(f"buffer_store_dwordx4 v[144:147], v9, {srd(sH)}, s{s_t0} offen")
        I(f"s_add_u32 s{s_t0}, s{s_t0}, 1024")
if STAMPS: I("s_waitcnt vmcnt(0)")
stamp(7)
if args.amp and args.amp != "none" and not args.amp.startswith("L"): amp_block(args.amp, "c")
prof_store()
I("s_endpgm")
L(f"{P}_c_lazy")
for i in range(8): I("s_barrier")
I("s_mov_b64 exec, 1"); I("ds_add_u32 v22, v23 offset:8"); I("s_mov_b64 exec, -1")
I(f"s_branch {P}_c_epidone")
L(f"{P}_c_idle")
srd_tail(sX, XB); srd_tail(sW2, W2B)
prefetch_jobs()
I(f"s_branch {P}_c_epidone")
out += loader_tail
L(f"{P}_codeend")

e('.section .rodata,"a"')
e(".p2align 6")
e(f".amdhsa_kernel {label}")
for l in ("next_free_vgpr 256", "next_free_sgpr 102", "accum_offset 256", "group_segment_fixed_size 0", "kernarg_size 56",
          "user_sgpr_count 2", "user_sgpr_kernarg_segment_ptr 1", "system_sgpr_workgroup_id_x 1", "float_denorm_mode_32 3"):
    e("  .amdhsa_" + l)
e(".end_amdhsa_kernel")

text = "\n".join(out) + "\n"
def symbols(t):
    with tempfile.TemporaryDirectory() as d:
        open(d + "/k.s", "w").write(t)
        subprocess.run(["clang", "-x", "assembler", "-target", "amdgcn-amd-amdhsa", "-mcpu=gfx950", "-c", d + "/k.s", "-o", d + "/k.o"], check=True)
        sym = subprocess.run(["llvm-objdump", "-t", d + "/k.o"], capture_output=True, text=True).stdout
    return {m.group(2): int(m.group(1), 16) for m in re.finditer(r"^([0-9a-f]{16}) .*\s(\S+)$", sym, re.M)}
a = symbols(text.replace("@CODELINES@", "100"))
if args.codepf:
    n = (a[f"{P}_codeend"] - 4 - a[f"{P}_pc"]) // 128
    assert 64 < n < 128
    text = text.replace("@CODELINES@", str(n))
sys.stderr.write(f"code {a[f'{P}_codeend']} B: loop@{a[f'{P}_l_loop']} compute@{a[f'{P}_compute']} cloop@{a[f'{P}_c_loop']} p2@{a[f'{P}_c_p2']} ltail@{a[f'{P}_l_tail']}\n")
open(args.o, "w").write(text)
```

```python
import sys, argparse, subprocess, tempfile, re

ap = argparse.ArgumentParser()
ap.add_argument("-o", default="standalone__glu_gated_swiglu__prompt.s")
ap.add_argument("--prof", action="store_true")
ap.add_argument("--cyc", action="store_true")
ap.add_argument("--amp", default="")
ap.add_argument("--diag", default="")
ap.add_argument("--xrot", type=int, default=4)
ap.add_argument("--hring", type=int, default=12)
ap.add_argument("--hpro", type=int, default=10)
ap.add_argument("--sleep", type=int, default=1)
ap.add_argument("--codepf", type=int, default=1)
ap.add_argument("--prio", type=int, default=1)
ap.add_argument("--atb6", type=int, default=8)
ap.add_argument("--kmin", type=int, default=12)
ap.add_argument("--stopat", type=int, default=4)
ap.add_argument("--pace2", type=int, default=10)
ap.add_argument("--pace", type=int, default=10)
ap.add_argument("--barpos", type=int, default=16)
ap.add_argument("--rpg", type=int, default=2)
ap.add_argument("--gapc", type=int, default=8)
ap.add_argument("--pkfrom", type=int, default=2)
ap.add_argument("--tailn", type=int, default=3)
ap.add_argument("--jobx3", type=int, default=0)
ap.add_argument("--job3", type=int, default=1)
ap.add_argument("--jobM", type=int, default=0)
ap.add_argument("--jobX", type=int, default=1)
ap.add_argument("--otr", type=int, default=0)
ap.add_argument("--ost", default="")
ap.add_argument("--wb1", type=int, default=2)
args = ap.parse_args()

NAME = "standalone__glu_gated_swiglu__prompt"
out = []
def e(s=""): out.append(s)
def I(s): out.append("    " + s)
def L(s): out.append(s + ":")

S, D, F = 2048, 512, 1376
XB, WB, W2B, OB = S * D * 2, D * F * 2, F * D * 2, S * D * 2
HSTR = 87
WS_REC = 8 << 20
PROF_OFF = 7 << 20
SLOT0, SLOTSZ, LDS_SCR, LDS_TOTAL = 36864 + 40960, 40960, 159744, 163840
def unit_addr(u): return (u % 39) * 4096
XCH = 4 * 4096
OTR = 8 * 4096

sX, sW1, sW3, sW2, sH, sO, sD = 20, 24, 28, 32, 36, 40, 44
s_wave, s_mg4, s_sh, s_mt, s_sl, s_rb, s_cb = 48, 49, 50, 51, 52, 53, 54
s_t0, s_t1, s_t2, s_t3 = 55, 56, 57, 58
s_cnt, s_kst, s_sx, s_sw, s_ring = 59, 60, 61, 62, 63
s_lx, s_lw, s_rot2, s_fl = 64, 65, 66, 67
s_k = 68
s_xb, s_wb, s_lu = 69, 70, 71
s_hoff = 72
s_p, s_pend, s_pbeg, s_valid = 78, 79, 80, 81
s_u, s_lim = 75, 76
s_prof = 84
def srd(r): return f"s[{r}:{r+3}]"
STAMPS = args.prof or args.amp
MUTE = [False]
def stamp(i, force=False):
    if MUTE[0] and not force: return
    if STAMPS: I(f"{'s_memtime' if args.cyc else 's_memrealtime'} s[{s_prof+2*i}:{s_prof+2*i+1}]")
def srd_tail(r, nbytes):
    I(f"s_mov_b32 s{r+2}, {nbytes}")
    I(f"s_mov_b32 s{r+3}, 0x20000")
def prof_store():
    if not args.prof: return
    I("s_waitcnt lgkmcnt(0)")
    I(f"s_lshl_b32 s{s_t0}, s2, 3")
    I(f"s_xor_b32 s{s_t1}, s{s_wave}, 4")
    I(f"s_add_u32 s{s_t0}, s{s_t0}, s{s_t1}")
    I(f"s_lshl_b32 s{s_t0}, s{s_t0}, 5")
    I(f"s_add_u32 s{s_t0}, s{s_t0}, {PROF_OFF}")
    for i in range(8): I(f"v_mov_b32 v{240+i}, s{s_prof+2*i}")
    I("v_mov_b32 v248, 0")
    I("s_mov_b64 exec, 1")
    I(f"buffer_store_dwordx4 v[240:243], v248, {srd(sH)}, s{s_t0} offen")
    I(f"buffer_store_dwordx4 v[244:247], v248, {srd(sH)}, s{s_t0} offen offset:16")
    I("s_mov_b64 exec, -1")
P = "K"
def amp_block(spec, tag):
    ai, aj = [int(t) for t in spec.split(",")]
    I("s_waitcnt lgkmcnt(0)")
    I(f"s_sub_u32 s{s_t0}, s{s_prof+2*aj}, s{s_prof+2*ai}")
    I(f"s_cmp_eq_u32 s{s_prof+2*ai}, 0")
    I(f"s_cselect_b32 s{s_t0}, 0, s{s_t0}")
    I(f"s_cmp_eq_u32 s{s_prof+2*aj}, 0")
    I(f"s_cselect_b32 s{s_t0}, 0, s{s_t0}")
    I(f"s_min_u32 s{s_t0}, s{s_t0}, 20000")
    I(f"s_mul_i32 s{s_t0}, s{s_t0}, 10")
    I("s_memrealtime s[82:83]")
    I("s_waitcnt lgkmcnt(0)")
    I(f"s_mov_b32 s{s_t1}, s82")
    L(f"{P}_amp{tag}")
    I("s_memrealtime s[82:83]")
    I("s_waitcnt lgkmcnt(0)")
    I(f"s_sub_u32 s{s_t2}, s82, s{s_t1}")
    I(f"s_cmp_lt_u32 s{s_t2}, s{s_t0}")
    I(f"s_cbranch_scc1 {P}_amp{tag}")

def kst_init():
    if args.xrot == 1:
        I(f"s_add_u32 s{s_kst}, s2, s{s_sh}")
        I(f"s_and_b32 s{s_kst}, s{s_kst}, 1")
        I(f"s_lshl_b32 s{s_kst}, s{s_kst}, 2")
    elif args.xrot == 4:
        I(f"s_lshl_b32 s{s_kst}, s{s_sh}, 1")
        I(f"s_add_u32 s{s_kst}, s{s_kst}, s2")
        I(f"s_and_b32 s{s_kst}, s{s_kst}, 3")
        I(f"s_lshl_b32 s{s_kst}, s{s_kst}, 1")
    elif args.xrot == 5:
        I(f"s_lshl_b32 s{s_kst}, s{s_sh}, 1")
        I(f"s_add_u32 s{s_kst}, s{s_kst}, s2")
        I(f"s_and_b32 s{s_kst}, s{s_kst}, 3")
        I(f"s_add_u32 s{s_cnt}, s{s_mt}, s{s_sl}")
        I(f"s_and_b32 s{s_cnt}, s{s_cnt}, 1")
        I(f"s_lshl_b32 s{s_cnt}, s{s_cnt}, 2")
        I(f"s_add_u32 s{s_kst}, s{s_kst}, s{s_cnt}")
    else:
        I(f"s_mov_b32 s{s_kst}, 0")

def decode2():
    I(f"s_lshl_b32 s{s_t0}, s{s_sh}, 1")
    I(f"s_add_u32 s{s_t0}, s{s_t0}, s{s_mg4}")
    I(f"s_lshl_b32 s{s_t0}, s{s_t0}, 1")
    I(f"s_lshr_b32 s{s_t1}, s2, 6")
    I(f"s_add_u32 s{s_rb}, s{s_t0}, s{s_t1}")
    I(f"s_bfe_u32 s{s_cb}, s2, {3 | (3 << 16)}")
    I(f"s_mul_i32 s{s_rot2}, s{s_t1}, 11")

label = NAME + "_kernel"
e(f"; @launch grid=(256,1,1) block=(512,1,1) lds={LDS_TOTAL}")
e('.amdgcn_target "amdgcn-amd-amdhsa--gfx950"')
e(".text")
e(f".globl {label}")
e(".p2align 8")
e(f".type {label},@function")
L(label)
I("s_cmp_ge_u32 s2, 256")
I(f"s_cbranch_scc1 {P}_end")
for r, off in ((sX, 0), (sW1, 8), (sW3, 16), (sW2, 24), (sO, 32), (sD, 40), (sH, 48)):
    I(f"s_load_dwordx2 s[{r}:{r+1}], s[0:1], {off}")
if STAMPS:
    for i in range(8): I(f"s_mov_b32 s{s_prof+2*i}, 0")
stamp(0)
I("v_lshrrev_b32 v2, 6, v0")
I("v_and_b32 v1, 63, v0")
I(f"v_readfirstlane_b32 s{s_wave}, v2")
I(f"s_and_b32 s{s_mg4}, s2, 3")
I(f"s_lshl_b32 s{s_mg4}, s{s_mg4}, 2")
I(f"s_cmp_lt_u32 s{s_wave}, 4")
I(f"s_cbranch_scc1 {P}_dec")
if args.codepf:
    I("s_getpc_b64 s[18:19]")
    L(f"{P}_pc")
    I("v_bfe_u32 v60, v0, 1, 7")
    I("v_min_u32 v60, @CODELINES@, v60")
    I("v_lshlrev_b32 v60, 7, v60")
    I("global_load_dword v61, v60, s[18:19]")
L(f"{P}_dec")
I(f"s_bfe_u32 s{s_sh}, s2, {2 | (1 << 16)}")
I(f"s_bfe_u32 s{s_t2}, s2, {3 | (2 << 16)}")
I(f"s_lshr_b32 s{s_t3}, s2, 5")
I(f"s_add_u32 s{s_mt}, s{s_mg4}, s{s_t2}")
I(f"s_mul_i32 s{s_sl}, s{s_sh}, 7")
I(f"s_add_u32 s{s_sl}, s{s_sl}, s{s_t3}")
I(f"s_cmp_lg_u32 s{s_t3}, 7")
I(f"s_cbranch_scc1 {P}_dec2")
I(f"s_lshl_b32 s{s_t0}, s{s_sh}, 1")
I(f"s_and_b32 s{s_t1}, s{s_t2}, 1")
I(f"s_add_u32 s{s_mt}, s{s_mg4}, s{s_t0}")
I(f"s_add_u32 s{s_mt}, s{s_mt}, s{s_t1}")
I(f"s_lshr_b32 s{s_sl}, s{s_t2}, 1")
I(f"s_add_u32 s{s_sl}, s{s_sl}, 14")
L(f"{P}_dec2")
I(f"s_cmp_ge_u32 s{s_wave}, 4")
I(f"s_cbranch_scc1 {P}_compute")

MUTE[0] = "stages" in args.diag
vX = [2, 3, 4, 5]; vW = [6, 7, 8]; vW2 = 13
vFA, vFS, vFN = 20, 21, 22
I("v_lshrrev_b32 v14, 3, v1")
I("v_lshrrev_b32 v15, 4, v1")
I("v_and_b32 v16, 7, v1")
I("v_xor_b32 v15, v15, v16")
I("v_lshlrev_b32 v14, 10, v14")
I(f"v_lshl_add_u32 v{vX[0]}, v15, 4, v14")
I(f"v_xor_b32 v{vX[1]}, 64, v{vX[0]}")
I(f"v_add_u32 v{vX[1]}, 7168, v{vX[1]}")
I(f"v_add_u32 v{vX[2]}, 14336, v{vX[0]}")
I(f"v_add_u32 v{vX[3]}, 14336, v{vX[1]}")
I(f"s_bitcmp1_b32 s{s_sl}, 0")
I(f"s_cselect_b32 s{s_t0}, -64, 64")
I(f"s_cselect_b32 s{s_t1}, 128, 0")
I(f"s_cmp_eq_u32 s{s_sl}, 14")
I(f"s_cselect_b32 s{s_t0}, 0, s{s_t0}")
I(f"s_mul_i32 s{s_t2}, s{s_t0}, -3")
I(f"s_add_u32 s{s_t2}, s{s_t2}, 2752")
I("v_lshrrev_b32 v14, 2, v1")
I("v_and_b32 v15, 3, v1")
I(f"v_lshl_add_u32 v15, v15, 4, s{s_t1}")
I("v_and_b32 v16, 32, v1")
for j in range(3):
    if j: I(f"v_add_u32 v14, 16, v14")
    I("v_mul_u32_u24 v17, 43, v14")
    if j == 0: I("v_mov_b32 v18, v15")
    if j == 1: I("v_xor_b32 v18, v15, v16")
    if j == 2: I("v_xor_b32 v18, 32, v15")
    I("v_lshrrev_b32 v17, 7, v17")
    I(f"v_mad_i32_i24 v18, v14, s{s_t0}, v18")
    I(f"v_mad_i32_i24 v{vW[j]}, v17, s{s_t2}, v18")
    if j: I(f"v_subrev_u32 v{vW[j]}, {1024*j}, v{vW[j]}")
I(f"s_lshl_b32 s{s_lx}, s{s_wave}, 12")
I(f"s_add_u32 s{s_lx}, s{s_lx}, {SLOT0}")
I(f"s_mul_i32 s{s_lw}, s{s_wave}, 6144")
I(f"s_add_u32 s{s_lw}, s{s_lw}, {SLOT0+16384}")
I(f"s_lshl_b32 s{s_xb}, s{s_mt}, 17")
I(f"s_lshl_b32 s{s_t0}, s{s_wave}, 15")
I(f"s_add_u32 s{s_xb}, s{s_xb}, s{s_t0}")
I(f"s_mul_i32 s{s_wb}, s{s_sl}, 192")
I(f"s_mul_i32 s{s_t0}, s{s_wave}, {16*2752}")
I(f"s_add_u32 s{s_wb}, s{s_wb}, s{s_t0}")
kst_init()
I(f"s_mov_b32 s{s_cnt}, 0")
I(f"s_mov_b32 s{s_ring}, {SLOTSZ}")
srd_tail(sX, XB); srd_tail(sW1, WB); srd_tail(sW3, WB)
I(f"s_cmp_ge_u32 s{s_sl}, 15")
I(f"s_cbranch_scc1 {P}_l_init")
I(f"s_lshl_b32 s{s_t0}, s{s_kst}, 7")
I(f"s_add_u32 s{s_sx}, s{s_xb}, s{s_t0}")
I(f"s_mul_i32 s{s_sw}, s{s_kst}, {64*2752}")
I(f"s_add_u32 s{s_sw}, s{s_sw}, s{s_wb}")
I(f"s_mov_b32 m0, s{s_lx}")
I("s_waitcnt lgkmcnt(0)")
stamp(1)
def issueS(tag):
    for j in range(4):
        I(f"buffer_load_dwordx4 v{vX[j]}, {srd(sX)}, s{s_sx} offen offset:{1024*j} lds")
    I(f"s_mov_b32 m0, s{s_lw}")
    I(f"s_add_u32 s{s_kst}, s{s_kst}, 1")
    for j in range(3):
        I(f"buffer_load_dwordx4 v{vW[j]}, {srd(sW1)}, s{s_sw} offen offset:{1024*j} lds")
    I("s_add_u32 m0, m0, 3072")
    I(f"s_and_b32 s{s_kst}, s{s_kst}, 7")
    for j in range(3):
        I(f"buffer_load_dwordx4 v{vW[j]}, {srd(sW3)}, s{s_sw} offen offset:{1024*j} lds")
    I(f"s_lshl_b32 s{s_t0}, s{s_kst}, 7")
    I(f"s_add_u32 s{s_sx}, s{s_xb}, s{s_t0}")
    I(f"s_mul_i32 s{s_sw}, s{s_kst}, {64*2752}")
    I(f"s_add_u32 s{s_sw}, s{s_sw}, s{s_wb}")
    I(f"s_cmp_ge_u32 s{s_lx}, {SLOT0+SLOTSZ}")
    I(f"s_cselect_b32 s{s_t0}, {-2*SLOTSZ & 0xffffffff}, s{s_ring}")
    I(f"s_add_u32 s{s_lx}, s{s_lx}, s{s_t0}")
    I(f"s_add_u32 s{s_lw}, s{s_lw}, s{s_t0}")
    I(f"s_mov_b32 m0, s{s_lx}")
    I(f"s_add_u32 s{s_cnt}, s{s_cnt}, 1")
L(f"{P}_l_loop")
issueS("a")
I(f"s_cmp_eq_u32 s{s_cnt}, 1")
I(f"s_cbranch_scc1 {P}_l_loop")

L(f"{P}_l_init")
decode2()
srd_tail(sW2, W2B); srd_tail(sH, WS_REC); srd_tail(sD, 256)
I("v_lshrrev_b32 v14, 3, v1")
I(f"s_and_b32 s{s_t0}, s{s_wave}, 1")
I(f"s_lshl_b32 s{s_t0}, s{s_t0}, 3")
I(f"s_lshr_b32 s{s_t1}, s{s_wave}, 1")
I(f"s_mul_i32 s{s_t1}, s{s_t1}, 688")
I(f"s_add_u32 s{s_t0}, s{s_t0}, s{s_t1}")
I(f"v_add_u32 v14, s{s_t0}, v14")
I("v_lshlrev_b32 v14, 10, v14")
I("v_lshrrev_b32 v15, 2, v1")
I("v_and_b32 v15, 4, v15")
I("v_and_b32 v16, 7, v1")
I("v_xor_b32 v15, v15, v16")
I(f"v_lshl_add_u32 v{vW2}, v15, 4, v14")
I(f"s_lshl_b32 s{s_pbeg}, s{s_cb}, 7")
I(f"s_add_u32 s{s_pend}, s{s_pbeg}, {43*16384}")
I(f"s_lshl_b32 s{s_t0}, s{s_rot2}, 14")
I(f"s_add_u32 s{s_p}, s{s_pbeg}, s{s_t0}")
I(f"s_lshl_b32 s{s_lu}, s{s_wave}, 10")
I(f"s_lshr_b32 s{s_t0}, s{s_rb}, 1")
I(f"s_mul_i32 s{s_fl}, s{s_t0}, {4*HSTR*1024}")
I(f"s_add_u32 s{s_fl}, s{s_fl}, {86*1024}")
I("v_min_u32 v14, 15, v1")
I(f"s_lshl_b32 s{s_valid}, 1, s{s_sl}")
I(f"s_cmp_eq_u32 s{s_t0}, s{s_mt}")
I(f"s_cselect_b32 s{s_t1}, s{s_sl}, 15")
I(f"s_cselect_b32 s{s_valid}, s{s_valid}, 0")
I(f"v_cmp_eq_u32 vcc, s{s_t1}, v14")
I("v_mov_b32 v15, 15")
I("s_nop 0")
I("v_cndmask_b32 v14, v14, v15, vcc")
I("v_lshrrev_b32 v15, 3, v14")
I(f"v_mul_u32_u24 v15, {HSTR*1024}, v15")
I("v_and_b32 v14, 7, v14")
I(f"v_lshl_add_u32 v{vFA}, v14, 7, v15")
I("s_waitcnt lgkmcnt(0)")
I(f"s_cmp_lg_u32 s{s_wave}, 0")
I(f"s_cbranch_scc1 {P}_l_nosamp")
I(f"buffer_load_dword v{vFS}, v{vFA}, {srd(sH)}, s{s_fl} offen sc1")
L(f"{P}_l_nosamp")
I(f"s_cmp_ge_u32 s{s_sl}, 15")
I(f"s_cbranch_scc1 {P}_l_idle")
L(f"{P}_l_wait")
I("s_waitcnt vmcnt(10)")
if "b0" in args.diag:
    I(f"s_cmp_lg_u32 s{s_cnt}, 2"); I(f"s_cbranch_scc1 {P}_l_nb0"); stamp(7, True); L(f"{P}_l_nb0")
I("s_barrier")
if "stages" in args.diag:
    for c in range(1, 7):
        I(f"s_cmp_lg_u32 s{s_cnt}, {c+2}"); I(f"s_cbranch_scc1 {P}_l_st{c}"); stamp(c, True); L(f"{P}_l_st{c}")
I(f"s_cmp_ge_u32 s{s_cnt}, 8")
I(f"s_cbranch_scc1 {P}_l_tail")
issueS("b")
I(f"s_branch {P}_l_wait")
LOADER_TAIL_MARK = len(out)

wcount = [0]
def w_one():
    I(f"buffer_load_dwordx4 v{vW2}, {srd(sW2)}, s{s_p} offen lds")
    I(f"s_add_u32 s{s_p}, s{s_p}, 16384")
    I(f"s_cmp_eq_u32 s{s_p}, s{s_pend}")
    I(f"s_cselect_b32 s{s_p}, s{s_pbeg}, s{s_p}")
    I("s_add_u32 m0, m0, 4096")
    I(f"s_add_u32 s{s_u}, s{s_u}, 1")
def issueW(lim, pace=0):
    lab = f"{P}_l_w{wcount[0]}"; wcount[0] += 1
    I(f"s_cmp_ge_u32 s{s_u}, {lim}")
    I(f"s_cbranch_scc1 {lab}e")
    L(lab)
    if pace: I(f"s_waitcnt vmcnt({pace-1})")
    w_one()
    I(f"s_cmp_lt_u32 s{s_u}, {lim}")
    I(f"s_cbranch_scc1 {lab}")
    L(lab + "e")

pfc = [0]
def prefetch_jobs():
    tag = pfc[0]; pfc[0] += 1
    I(f"s_bfe_u32 s{s_t2}, s2, {3 | (1 << 16)}")
    if args.jobX:
        kst_init()
        I("v_lshlrev_b32 v40, 10, v1")
        I(f"s_lshl_b32 s{s_t0}, s{s_mg4}, 17")
        I(f"s_lshl_b32 s{s_t1}, s{s_wave}, 16")
        I(f"s_add_u32 s{s_t0}, s{s_t0}, s{s_t1}")
        I(f"s_add_u32 s{s_t1}, s{s_kst}, s{s_t2}")
        I(f"s_add_u32 s{s_t1}, s{s_t1}, 2")
        I(f"s_and_b32 s{s_t1}, s{s_t1}, 7")
        I(f"s_lshl_b32 s{s_t1}, s{s_t1}, 7")
        I(f"s_add_u32 s{s_t0}, s{s_t0}, s{s_t1}")
        I(f"buffer_load_dword v42, v40, {srd(sX)}, s{s_t0} offen")
    if args.jobx3:
        I("v_and_b32 v40, 31, v1")
        I("v_lshlrev_b32 v40, 10, v40")
        I(f"s_lshl_b32 s{s_t0}, s{s_mg4}, 17")
        I(f"s_lshl_b32 s{s_t1}, s{s_t2}, 18")
        I(f"s_add_u32 s{s_t0}, s{s_t0}, s{s_t1}")
        I(f"s_lshl_b32 s{s_t1}, s{s_wave}, 15")
        I(f"s_add_u32 s{s_t0}, s{s_t0}, s{s_t1}")
        I(f"buffer_load_dword v42, v40, {srd(sX)}, s{s_t0} offen offset:384")
    if args.jobM:
        I("v_lshlrev_b32 v41, 7, v1")
        I(f"s_and_b32 s{s_t0}, s2, 7")
        I(f"s_lshl_b32 s{s_t0}, s{s_t0}, 1")
        I(f"s_add_u32 s{s_t0}, s{s_t0}, s{s_t2}")
        I(f"s_lshl_b32 s{s_t1}, s{s_wave}, 4")
        I(f"s_add_u32 s{s_t0}, s{s_t0}, s{s_t1}")
        I(f"s_lshl_b32 s{s_t0}, s{s_t0}, 13")
        I(f"buffer_load_dword v43, v41, {srd(sW2)}, s{s_t0} offen")
        I(f"s_add_u32 s{s_t0}, s{s_t0}, {128*8192}")
        I(f"s_cmp_ge_u32 s{s_t0}, {W2B}")
        I(f"s_cbranch_scc1 {P}_pf{tag}_m")
        I(f"buffer_load_dword v43, v41, {srd(sW2)}, s{s_t0} offen")
        L(f"{P}_pf{tag}_m")
    if args.job3:
        I("v_min_u32 v44, 42, v1")
        I("v_lshlrev_b32 v44, 10, v44")
        I(f"s_mul_i32 s{s_t0}, s{s_t2}, 688")
        I(f"s_mul_i32 s{s_t1}, s{s_wave}, 86")
        I(f"s_add_u32 s{s_t0}, s{s_t0}, s{s_t1}")
        I(f"s_lshl_b32 s{s_t0}, s{s_t0}, 10")
        I(f"buffer_load_dword v45, v44, {srd(sW2)}, s{s_t0} offen offset:384")
        I(f"s_add_u32 s{s_t0}, s{s_t0}, {43*1024}")
        I(f"buffer_load_dword v45, v44, {srd(sW2)}, s{s_t0} offen offset:384")

L(f"{P}_l_tail")
stamp(2)
I(f"s_mov_b32 m0, s{s_lu}")
I(f"s_mov_b32 s{s_u}, 0")
I(f"v_mov_b32 v17, {LDS_SCR}")
issueW(args.atb6)
I(f"s_waitcnt vmcnt({args.atb6})")
I("s_barrier")
if "stages" in args.diag: stamp(7, True)
stamp(3)
issueW(args.kmin, args.pace)
I("s_setprio 3")
L(f"{P}_l_str")
I("ds_read_b64 v[18:19], v17 offset:8")
I(f"s_waitcnt vmcnt({args.pace2-1}) lgkmcnt(0)")
I(f"v_readfirstlane_b32 s{s_t0}, v18")
I(f"v_readfirstlane_b32 s{s_t1}, v19")
I(f"s_cmp_eq_u32 s{s_t0}, 4")
I(f"s_cselect_b32 s{s_lim}, 39, 29")
I(f"s_cmp_lg_u32 s{s_t1}, 0")
I(f"s_cbranch_scc1 {P}_l_stop")
I(f"s_cmp_ge_u32 s{s_u}, s{s_lim}")
I(f"s_cbranch_scc1 {P}_l_full")
w_one()
I(f"s_branch {P}_l_str")
L(f"{P}_l_full")
I("s_sleep 1")
I(f"s_cmp_lt_u32 s{s_u}, 39")
I(f"s_cbranch_scc1 {P}_l_str")
L(f"{P}_l_stop")
I("s_setprio 0")
I("s_waitcnt vmcnt(0)")
stamp(4)
if "wk" in args.diag:
    I("s_waitcnt lgkmcnt(0)"); I(f"s_mul_i32 s{s_prof+14}, s{s_u}, 10"); I(f"s_add_u32 s{s_prof+14}, s{s_prof+14}, s{s_prof+8}")
I("s_barrier")
I(f"s_cmp_lg_u32 s{s_wave}, 1")
I(f"s_cbranch_scc1 {P}_l_nofb")
I(f"s_lshl_b32 s{s_sx}, 1, s{s_sl}")
I(f"s_lshl_b32 s{s_sw}, s{s_mt}, 4")
I(f"s_atomic_add s{s_sx}, s[{sD}:{sD+1}], s{s_sw}")
L(f"{P}_l_nofb")
I("s_sleep 1")
I(f"s_add_u32 s{s_lim}, s{s_u}, {args.wb1}")
I(f"s_min_u32 s{s_lim}, s{s_lim}, 39")
issueW(f"s{s_lim}")
I(f"s_branch {P}_l_bb")
L(f"{P}_l_idle")
prefetch_jobs()
I(f"s_mov_b32 m0, s{s_lu}")
I(f"s_mov_b32 s{s_u}, 0")
issueW(39)
I("s_waitcnt vmcnt(0)")
I("s_barrier")
L(f"{P}_l_bb")
I("s_barrier")
issueW(39)
I(f"s_mov_b32 m0, s{s_lu}")
issueW(43)
stamp(5)
wdone = args.kmin
L(f"{P}_l_sel")
I(f"s_cmp_lg_u32 s{s_wave}, 0")
I(f"s_cbranch_scc1 {P}_l_go")
I(f"s_lshr_b32 s{s_t1}, s{s_rb}, 1")
I(f"s_lshl_b32 s{s_t1}, s{s_t1}, 4")
I("v_mov_b32 v18, 0")
I(f"v_mov_b32 v17, {LDS_SCR}")
I("v_mov_b32 v19, 1")
I(f"s_mov_b32 s{s_cnt}, 0")
L(f"{P}_l_poll")
I(f"buffer_load_dword v{vFN}, v{vFA}, {srd(sH)}, s{s_fl} offen sc1")
I(f"s_add_u32 s{s_cnt}, s{s_cnt}, 1")
I("s_waitcnt vmcnt(0)")
I(f"v_cmp_ne_u32 vcc, v{vFN}, v{vFS}")
I(f"s_and_b32 s{s_t0}, s{s_cnt}, {0 if 'fbonly' in args.diag else 31}")
if "fbonly" in args.diag: I("s_mov_b64 vcc, 0")
I(f"s_or_b32 s{s_t2}, vcc_lo, s{s_valid}")
I(f"s_and_b32 s{s_t2}, s{s_t2}, 0x7fff")
I(f"s_cmp_eq_u32 s{s_t2}, 0x7fff")
I(f"s_cbranch_scc1 {P}_l_ok")
if args.sleep: I(f"s_sleep {args.sleep}")
I(f"s_cmp_lg_u32 s{s_t0}, 0")
I(f"s_cbranch_scc1 {P}_l_poll")
I(f"buffer_load_dword v16, v18, {srd(sD)}, s{s_t1} offen sc1")
I("s_waitcnt vmcnt(0)")
I(f"v_readfirstlane_b32 s{s_t0}, v16")
I(f"s_cmp_ge_u32 s{s_cnt}, 400000")
I(f"s_cbranch_scc1 {P}_l_ok")
I(f"s_or_b32 s{s_t2}, s{s_t2}, s{s_t0}")
I(f"s_cmp_lg_u32 s{s_t2}, 0x7fff")
I(f"s_cbranch_scc1 {P}_l_poll")
L(f"{P}_l_ok")
I("ds_write_b32 v17, v19")
L(f"{P}_l_go")
stamp(6)
I("s_waitcnt vmcnt(0)")
I("s_barrier")
if args.amp.startswith("L"): amp_block(args.amp[1:], "l")
prof_store()
L(f"{P}_end")
I("s_endpgm")
loader_tail = out[LOADER_TAIL_MARK:]
del out[LOADER_TAIL_MARK:]

MUTE[0] = "p2" in args.diag
L(f"{P}_compute")
vAX = [2, 3]; vAW = [6, 7, 8]
ACC = 64
FA, FB = 160, 200
vOLD = 20
if args.prio: I(f"s_setprio {args.prio}")
I(f"s_and_b32 s{s_t0}, s{s_wave}, 1")
I(f"s_lshl_b32 s{s_t0}, s{s_t0}, 13")
I(f"s_add_u32 s{s_t0}, s{s_t0}, {SLOT0}")
I("v_and_b32 v10, 15, v1")
I("v_lshrrev_b32 v11, 1, v10")
I("v_lshrrev_b32 v12, 4, v1")
I(f"v_lshl_add_u32 v10, v10, 7, s{s_t0}")
I("v_xor_b32 v13, v12, v11")
I("v_and_b32 v11, 1, v12")
I(f"v_lshl_add_u32 v{vAX[0]}, v13, 4, v10")
I(f"v_xor_b32 v{vAX[1]}, 64, v{vAX[0]}")
I("v_lshrrev_b32 v10, 1, v12")
I("v_bfe_u32 v12, v1, 2, 2")
I("v_lshl_add_u32 v12, v11, 3, v12")
I("v_mul_u32_u24 v12, 192, v12")
I("v_mul_u32_u24 v13, 6144, v10")
I("v_and_b32 v10, 3, v1")
I("v_lshl_add_u32 v12, v10, 3, v12")
I(f"s_mov_b32 s{s_t1}, {SLOT0+16384}")
I(f"v_add3_u32 v12, v12, v13, s{s_t1}")
I("v_lshlrev_b32 v11, 5, v11")
I(f"s_bfe_u32 s{s_t0}, s{s_wave}, {1 | (1 << 16)}")
I(f"s_lshl_b32 s{s_t1}, s{s_t0}, 5")
I(f"s_lshl_b32 s{s_t2}, s{s_t0}, 6")
I(f"v_xor_b32 v13, s{s_t1}, v11")
I(f"v_add3_u32 v{vAW[0]}, v12, v13, s{s_t2}")
I(f"v_add_u32 v{vAW[2]}, 64, v{vAW[0]}")
I("v_xor_b32 v13, 32, v13")
I(f"s_lshl_b32 s{s_t2}, s{s_t0}, 7")
I(f"v_add3_u32 v{vAW[1]}, v12, v13, s{s_t2}")
I("v_mov_b32 v21, 0")
I(f"v_mov_b32 v22, {LDS_SCR}")
I("ds_write_b32 v22, v21")
I("ds_write_b32 v22, v21 offset:8")
I("ds_write_b32 v22, v21 offset:12")
I("v_mov_b32 v23, 1")
for r in range(0, 96, 2):
    I(f"v_mov_b64 v[{ACC+r}:{ACC+r+1}], 0")
I(f"s_cmp_eq_u32 s{s_t0}, 0")
I(f"s_cselect_b32 s{s_t1}, 2, 0")
I(f"s_movk_i32 s{s_t2}, 0x543")
I(f"s_cselect_b32 s{s_t2}, 0x210, s{s_t2}")
I(f"s_movk_i32 s{s_t3}, 0x103")
I(f"s_cselect_b32 s{s_t3}, 0x254, s{s_t3}")
I(f"s_cmp_eq_u32 s{s_sl}, 14")
I(f"s_cselect_b32 s{s_valid}, s{s_t1}, 3")
I(f"s_bitcmp1_b32 s{s_sl}, 0")
I(f"s_cselect_b32 s{s_t2}, s{s_t3}, s{s_t2}")
I(f"s_and_b32 s{s_t1}, s{s_wave}, 1")
I(f"s_lshl_b32 s{s_t3}, s{s_mt}, 1")
I(f"s_add_u32 s{s_t1}, s{s_t1}, s{s_t3}")
I(f"s_mul_i32 s{s_t1}, s{s_t1}, {2*HSTR}")
I(f"s_mul_i32 s{s_t3}, s{s_sl}, 6")
I(f"s_add_u32 s{s_t1}, s{s_t1}, s{s_t3}")
for t in range(3):
    I(f"s_bfe_u32 s{s_t3}, s{s_t2}, {4*t | (4 << 16)}")
    I(f"s_add_u32 s{s_t3}, s{s_t3}, s{s_t1}")
    I(f"s_lshl_b32 s{s_hoff+t}, s{s_t3}, 10")
I(f"s_mov_b32 s{s_k}, 0xbfb8aa3b")
I("v_lshlrev_b32 v9, 4, v1")
I(f"v_add_u32 v10, {HSTR*1024}, v9")
I(f"v_mov_b32 v56, s{s_k}"); I(f"v_mov_b32 v57, s{s_k}"); I("v_mov_b32 v58, 1.0"); I("v_mov_b32 v59, 1.0")
I(f"s_mul_i32 s{s_fl}, s{s_mt}, {4*HSTR*1024}")
I(f"s_lshr_b32 s{s_t1}, s{s_sl}, 3")
I(f"s_mul_i32 s{s_t1}, s{s_t1}, {HSTR*1024}")
I(f"s_add_u32 s{s_fl}, s{s_fl}, s{s_t1}")
I(f"s_and_b32 s{s_t1}, s{s_sl}, 7")
I(f"s_lshl_b32 s{s_t1}, s{s_t1}, 7")
I(f"s_add_u32 s{s_fl}, s{s_fl}, s{s_t1}")
I(f"s_add_u32 s{s_fl}, s{s_fl}, {86*1024}")
srd_tail(sH, WS_REC); srd_tail(sO, OB)
I(f"s_mov_b32 s{s_cnt}, 0")
I(f"s_mov_b32 s{s_ring}, 1")
I(f"s_mov_b32 s{s_sx}, {SLOTSZ}")
I("s_waitcnt lgkmcnt(0)")
I(f"s_cmp_ge_u32 s{s_sl}, 15")
I(f"s_cbranch_scc1 {P}_c_idle")
I(f"s_cmp_eq_u32 s{s_valid}, 0")
I(f"s_cbranch_scc1 {P}_c_lazy")

def xr(fs, mt): return fs + 4 * mt
def wr_(fs, t, mat): return fs + 16 + 4 * (2 * t + mat)
def acc(t, mat, mt): return ACC + ((t * 2 + mat) * 4 + mt) * 4
def xrd(ks, fs, mt): return [f"ds_read_b128 v[{xr(fs,mt)}:{xr(fs,mt)+3}], v{vAX[ks]} offset:{2048*mt}"]
def wrd(ks, fs, t, mat):
    d = wr_(fs, t, mat)
    return [f"ds_read_b64_tr_b16 v[{d+2*h}:{d+2*h+1}], v{vAW[t]} offset:{ks*12288+mat*3072+h*768}" for h in range(2)]
def reads(ks, fs):
    r = xrd(ks, fs, 0) + wrd(ks, fs, 0, 0) + xrd(ks, fs, 1) + wrd(ks, fs, 0, 1) + xrd(ks, fs, 2) + xrd(ks, fs, 3)
    for t in (1, 2):
        for mat in range(2): r += wrd(ks, fs, t, mat)
    return r
def mf(fs, t, mat, mt):
    a = acc(t, mat, mt); w = wr_(fs, t, mat); x = xr(fs, mt)
    return f"v_mfma_f32_16x16x32_bf16 v[{a}:{a+3}], v[{w}:{w+3}], v[{x}:{x+3}], v[{a}:{a+3}]"
def mfmas(fs):
    return [mf(fs, t, mat, mt) for t in range(3) for mat in range(2) for mt in range(4)]
if "b0" in args.diag: stamp(1)
I("s_barrier")
if "b0" not in args.diag: stamp(1)
r = reads(0, FA)
for x in r[:12]: I(x)
I(f"s_cmp_lg_u32 s{s_wave}, 4")
I(f"s_cbranch_scc1 {P}_c_noold")
I(f"buffer_load_dword v{vOLD}, v21, {srd(sH)}, s{s_fl} offen sc1")
L(f"{P}_c_noold")
I("s_waitcnt lgkmcnt(8)")
for x in r[12:]: I(x)
L(f"{P}_c_loop")
m = mfmas(FA); r = reads(1, FB)
extra = [f"s_add_u32 s{s_ring}, s{s_ring}, 1", f"s_cmp_eq_u32 s{s_ring}, 3",
         f"s_cselect_b32 s{s_t0}, {-2*SLOTSZ & 0xffffffff}, s{s_sx}", f"s_cselect_b32 s{s_ring}, 0, s{s_ring}",
         f"s_add_u32 s{s_cnt}, s{s_cnt}, 1", None]
upd = [f"v_add_u32 v{r}, s{s_t0}, v{r}" for r in vAX + vAW]
need = {0: 8, 8: 10, 12: 12, 16: 14, 20: 16}
for i in range(24):
    if i in need: I(f"s_waitcnt lgkmcnt({min(15, 16 - need[i] + min(i, 16))})")
    I(m[i])
    if i < 16: I(r[i])
    elif i < 19:
        for x in extra[2*(i-16):2*(i-16)+2]:
            if x: I(x)
    else: I(upd[i-19])
I("s_waitcnt lgkmcnt(0)")
m = mfmas(FB); r = reads(0, FA)
for i in range(24):
    if i == args.barpos: I("s_barrier")
    I(m[i])
    if i >= args.barpos:
        for x in r[(i - args.barpos) * args.rpg:(i - args.barpos + 1) * args.rpg]: I(x)
assert (24 - args.barpos) * args.rpg >= 16
I(f"s_cmp_lt_u32 s{s_cnt}, 7")
I(f"s_cbranch_scc1 {P}_c_loop")
stamp(2)
T = 32
def epi(t, p):
    tm = T + p * 12; o = tm + 8
    g = [acc(t, 0, 2*p + (q >> 2)) + (q & 3) for q in range(8)]
    u = [acc(t, 1, 2*p + (q >> 2)) + (q & 3) for q in range(8)]
    v = []
    if 2 * t + p >= args.pkfrom:
        pr = lambda r: f"v[{r}:{r+1}]"
        for q in range(0, 8, 2): v.append(f"v_pk_mul_f32 {pr(tm+q)}, {pr(g[q])}, v[56:57]")
        for q in range(8): v.append(f"v_exp_f32 v{tm+q}, v{tm+q}")
        for q in range(0, 8, 2): v.append(f"v_pk_add_f32 {pr(tm+q)}, {pr(tm+q)}, v[58:59]")
        for q in range(8): v.append(f"v_rcp_f32 v{tm+q}, v{tm+q}")
        for q in range(0, 8, 2): v.append(f"v_pk_mul_f32 {pr(tm+q)}, {pr(tm+q)}, {pr(g[q])}")
        for q in range(0, 8, 2): v.append(f"v_pk_mul_f32 {pr(tm+q)}, {pr(tm+q)}, {pr(u[q])}")
    else:
        for q in range(8): v.append(f"v_mul_f32 v{tm+q}, s{s_k}, v{g[q]}")
        for q in range(8): v.append(f"v_exp_f32 v{tm+q}, v{tm+q}")
        for q in range(8): v.append(f"v_add_f32 v{tm+q}, 1.0, v{tm+q}")
        for q in range(8): v.append(f"v_rcp_f32 v{tm+q}, v{tm+q}")
        for q in range(8): v.append(f"v_mul_f32 v{tm+q}, v{tm+q}, v{g[q]}")
        for q in range(8): v.append(f"v_mul_f32 v{tm+q}, v{tm+q}, v{u[q]}")
    for q in (0, 2, 1, 3): v.append(f"v_cvt_pk_bf16_f32 v{o+q}, v{tm+2*q}, v{tm+2*q+1}")
    v.append(("swap", o))
    v.append(("store", t, p, o))
    return v
def emit_v(x):
    if isinstance(x, tuple) and x[0] == "swap":
        o = x[1]
        I(f"v_permlane16_swap_b32 v{o}, v{o+2}")
        I("s_nop 0")
        I(f"v_permlane16_swap_b32 v{o+1}, v{o+3}")
    elif isinstance(x, tuple):
        _, t, p, o = x
        if t == 2:
            I(f"s_cmp_le_u32 s{s_valid}, 2")
            I(f"s_cbranch_scc1 {P}_c_ns{t}{p}")
        I(f"buffer_store_dwordx4 v[{o}:{o+3}], v{9+p}, {srd(sH)}, s{s_hoff+t} offen sc1")
        if t == 2: L(f"{P}_c_ns{t}{p}")
    else:
        I(x)
blocks = [(t, p) for t in range(3) for p in range(2)]
def bmf(t, p, fs): return [mf(fs, t, mat, 2*p + j) for mat in range(2) for j in range(2)]
rB = reads(1, FB)
I("s_waitcnt lgkmcnt(8)")
pre = bmf(0, 0, FA) + bmf(0, 1, FA)
for i in range(8):
    I(pre[i])
    if i == 3: I("s_waitcnt lgkmcnt(6)")
    I(rB[2*i])
    if i == 7: I("s_waitcnt lgkmcnt(9)")
    I(rB[2*i+1])
I("s_waitcnt lgkmcnt(8)")
seq = []
for bi, (t, p) in enumerate(blocks):
    x = bmf(t, p, FB) if bi < 2 else bmf(t, p, FA) + bmf(t, p, FB)
    seq += [(y, None) for y in x[:-1]] + [(x[-1], bi)]
vq = []; nxt = 0; since = {}
for i, (mi, done) in enumerate(seq):
    if i == 8:
        I("s_waitcnt lgkmcnt(0)")
        I("s_mov_b64 exec, 1"); I("ds_add_u32 v22, v23 offset:8"); I("s_mov_b64 exec, -1")
    I(mi)
    for k in since: since[k] += 1
    if done is not None: since[done] = 0
    n = 0
    while n < args.gapc:
        if not vq:
            if nxt in since and since[nxt] >= 4 and nxt < args.pkfrom:
                if since[nxt] < 9: I(f"s_nop {9 - since[nxt]}")
                vq += epi(*blocks[nxt]); nxt += 1
            else:
                break
        x = vq.pop(0)
        emit_v(x); n += 8 if (isinstance(x, tuple) or "exp" in x or "rcp" in x) else 4
        for k in since: since[k] += 1
while vq or nxt < 6:
    if not vq:
        if since[nxt] < 9: I(f"s_nop {9 - since[nxt]}")
        if nxt == args.stopat: I("ds_write_b32 v22, v23 offset:12")
        vq += epi(*blocks[nxt]); nxt += 1
    emit_v(vq.pop(0))
    for k in since: since[k] += 1
if args.stopat == 6: I("ds_write_b32 v22, v23 offset:12")
L(f"{P}_c_epidone")
stamp(3)
vB = [[10, 11], [12, 13], [14, 15]]
WF = 128; HR = 160; R = args.hring
decode2()
I("v_lshrrev_b32 v16, 4, v1")
I("v_lshrrev_b32 v17, 5, v1")
I("v_bfe_u32 v18, v1, 2, 2")
I("v_lshl_add_u32 v17, v17, 3, v18")
I("v_lshlrev_b32 v17, 7, v17")
I("v_and_b32 v16, 1, v16")
I("v_and_b32 v19, 1, v1")
I("v_lshl_add_u32 v16, v19, 1, v16")
I("v_lshlrev_b32 v18, 1, v18")
I("v_and_b32 v18, 4, v18")
I(f"s_bfe_u32 s{s_t0}, s{s_wave}, {1 | (1 << 16)}")
I(f"s_lshl_b32 s{s_t1}, s{s_t0}, 2")
I(f"v_xor_b32 v18, s{s_t1}, v18")
I("v_xor_b32 v16, v16, v18")
I("v_lshl_add_u32 v17, v16, 4, v17")
I("v_bfe_u32 v19, v1, 1, 1")
I("v_lshl_add_u32 v17, v19, 3, v17")
I(f"s_lshl_b32 s{s_t1}, s{s_t0}, 11")
I(f"v_add_u32 v{vB[0][0]}, s{s_t1}, v17")
I(f"v_xor_b32 v{vB[0][1]}, 64, v{vB[0][0]}")
for sg in (1, 2):
    for nb in range(2):
        I(f"v_add_u32 v{vB[sg][nb]}, {sg*65536}, v{vB[0][nb]}")
I(f"s_and_b32 s{s_t1}, s{s_wave}, 1")
I(f"s_lshl_b32 s{s_t2}, s{s_rb}, 1")
I(f"s_add_u32 s{s_t1}, s{s_t1}, s{s_t2}")
I(f"s_mul_i32 s{s_t2}, s{s_t1}, {HSTR}")
I(f"s_mul_i32 s{s_t3}, s{s_t0}, 43")
I(f"s_add_u32 s{s_t2}, s{s_t2}, s{s_t3}")
I(f"s_lshl_b32 s{s_pbeg}, s{s_t2}, 10")
I(f"s_add_u32 s{s_pend}, s{s_pbeg}, {43*1024}")
I(f"s_lshl_b32 s{s_t2}, s{s_rot2}, 10")
I(f"s_add_u32 s{s_p}, s{s_pbeg}, s{s_t2}")
I("v_and_b32 v16, 31, v1")
I("v_lshlrev_b32 v16, 10, v16")
I("v_and_b32 v17, 32, v1")
I(f"s_lshl_b32 s{s_t1}, s{s_t1}, 15")
I(f"s_lshl_b32 s{s_t2}, s{s_cb}, 7")
I(f"s_add_u32 s{s_t1}, s{s_t1}, s{s_t2}")
I(f"s_lshl_b32 s{s_t2}, s{s_t0}, 6")
I(f"s_add_u32 s{s_t1}, s{s_t1}, s{s_t2}")
I(f"v_add3_u32 v16, v16, v17, s{s_t1}")
I(f"s_and_b32 s{s_t1}, s{s_wave}, 3")
I(f"s_lshl_b32 s{s_t1}, s{s_t1}, 12")
I(f"s_xor_b32 s{s_t2}, s{s_t1}, {2 << 12}")
I(f"s_add_u32 s{s_t1}, s{s_t1}, {XCH}")
I(f"s_add_u32 s{s_t2}, s{s_t2}, {XCH}")
I(f"v_add_u32 v17, s{s_t1}, v9")
I(f"v_add_u32 v18, s{s_t2}, v9")
if args.otr:
    I("v_and_b32 v25, 31, v1")
    I(f"s_and_b32 s{s_t1}, s{s_wave}, 1")
    I(f"s_lshl_b32 s{s_t1}, s{s_t1}, 12")
    I(f"s_add_u32 s{s_t1}, s{s_t1}, {OTR}")
    I(f"v_lshl_add_u32 v26, v25, 7, s{s_t1}")
    I("v_lshrrev_b32 v27, 5, v1")
    I(f"s_lshl_b32 s{s_t2}, s{s_t0}, 1")
    I(f"v_add_lshl_u32 v27, v27, s{s_t2}, 1")
    I("v_and_b32 v25, 7, v25")
    I("v_xor_b32 v27, v27, v25")
    I("v_lshl_add_u32 v25, v27, 4, v26")
    I("v_xor_b32 v26, 16, v25")
    if args.otr == 1:
        I("v_lshrrev_b32 v27, 2, v1")
        I("v_and_b32 v28, 3, v1")
        I(f"s_lshl_b32 s{s_t2}, s{s_t0}, 2")
        I(f"v_add_u32 v28, s{s_t2}, v28")
        rowstep = 16
    else:
        I("v_lshrrev_b32 v27, 3, v1")
        I(f"s_lshl_b32 s{s_t2}, s{s_t0}, 4")
        I(f"v_add_u32 v27, s{s_t2}, v27")
        I("v_and_b32 v28, 7, v1")
        rowstep = 8
    I(f"s_and_b32 s{s_t2}, s{s_wave}, 1")
    I(f"s_lshl_b32 s{s_t3}, s{s_rb}, 1")
    I(f"s_add_u32 s{s_t2}, s{s_t2}, s{s_t3}")
    I(f"s_lshl_b32 s{s_t2}, s{s_t2}, 15")
    I(f"s_lshl_b32 s{s_t3}, s{s_cb}, 7")
    I(f"s_add_u32 s{s_t2}, s{s_t2}, s{s_t3}")
    I(f"v_lshl_add_u32 v16, v27, 10, s{s_t2}")
    I("v_lshl_add_u32 v16, v28, 4, v16")
    I(f"v_add_u32 v29, {rowstep*1024}, v16")
    I("v_and_b32 v30, 7, v27")
    I("v_xor_b32 v28, v28, v30")
    I(f"v_lshl_add_u32 v27, v27, 7, s{s_t1}")
    I("v_lshl_add_u32 v27, v28, 4, v27")
for r in range(0, 32, 2):
    I(f"v_mov_b64 v[{ACC+r}:{ACC+r+1}], 0")
I("s_waitcnt vmcnt(0)")
I(f"v_add_u32 v{vOLD}, 1, v{vOLD}")
I("s_barrier")
I(f"s_cmp_lg_u32 s{s_wave}, 4")
I(f"s_cbranch_scc1 {P}_c_p2")
I(f"s_cmp_ge_u32 s{s_sl}, 15")
I(f"s_cbranch_scc1 {P}_c_p2")
I("s_mov_b64 exec, 1")
I(f"buffer_store_dword v{vOLD}, v21, {srd(sH)}, s{s_fl} offen sc1")
I("s_mov_b64 exec, -1")
L(f"{P}_c_p2")
stamp(4)
def wreads(u, dst):
    a = unit_addr(u); sg = a >> 16; off = a & 0xffff
    return [f"ds_read_b64_tr_b16 v[{dst+4*nb+2*h}:{dst+4*nb+2*h+1}], v{vB[sg][nb]} offset:{off+h*512}" for nb in range(2) for h in range(2)]
NW, NPRE, PRE, TN = 3, 4, 96, args.tailn
def wdst(u):
    if u < 4: return PRE + 8 * u
    if u >= 43 - TN: return PRE + 8 * (u - (43 - TN))
    return WF + 8 * (u % NW)
for u in range(NPRE):
    if u == 3: I("s_waitcnt lgkmcnt(8)")
    for r in wreads(u, wdst(u)): I(r)
I("s_waitcnt lgkmcnt(0)")
I("s_barrier")
L(f"{P}_c_spin")
I("ds_read_b32 v24, v22")
I("s_waitcnt lgkmcnt(0)")
I(f"v_readfirstlane_b32 s{s_t0}, v24")
I("s_nop 0")
I(f"s_cmp_eq_u32 s{s_t0}, 0")
I(f"s_cbranch_scc1 {P}_c_spin")
stamp(5)
if "p2" in args.diag: stamp(1, True)
def hload(s):
    b = HR + 4 * (s % R)
    return [f"buffer_load_dwordx4 v[{b}:{b+3}], v9, {srd(sH)}, s{s_p} offen sc1",
            f"s_add_u32 s{s_p}, s{s_p}, 1024",
            f"s_cmp_eq_u32 s{s_p}, s{s_pend}",
            f"s_cselect_b32 s{s_p}, s{s_pbeg}, s{s_p}"]
for s in range(args.hpro):
    for x in hload(s): I(x)
issued = args.hpro
def mm2(s, nb):
    hb = HR + 4 * (s % R); wd = wdst(s)
    return f"v_mfma_f32_32x32x16_bf16 v[{ACC+16*nb}:{ACC+16*nb+15}], v[{wd+4*nb}:{wd+4*nb+3}], v[{hb}:{hb+3}], v[{ACC+16*nb}:{ACC+16*nb+15}]"
for s in range(43):
    u = s + 2
    young = 1 if NPRE <= s + 1 < 43 else 0
    I(f"s_waitcnt vmcnt({issued - s - 1}) lgkmcnt({4*young})")
    if "p2" in args.diag and s in (0, 5, 11, 21, 32, 42): stamp({0:2, 5:3, 11:4, 21:5, 32:6, 42:7}[s], True)
    if u == wdone: I("s_barrier")
    wr = wreads(u, wdst(u)) if NPRE <= u < 43 else []
    I(mm2(s, 1))
    for r in wr[:2]: I(r)
    if issued < 43 and issued - R < s:
        for x in hload(issued): I(x)
        issued += 1
    if s < 43 - TN: I(mm2(s, 0))
    for r in wr[2:]: I(r)
    if issued < 43 and issued - R < s and issued - s - 1 < R - 1:
        for x in hload(issued): I(x)
        issued += 1
stamp(6)
tl = [mm2(s, 0) for s in range(43 - TN, 43)]
if tl: I(tl.pop(0))
I("s_nop 7")
I("s_nop 3")
for q in range(4):
    I(f"ds_write_b128 v17, v[{ACC+16+4*q}:{ACC+19+4*q}] offset:{q*1024}")
    if tl and q % 2 == 1: I(tl.pop(0))
for x in tl: I(x)
I("s_waitcnt lgkmcnt(0)")
I("s_barrier")
for q in range(4):
    I(f"ds_read_b128 v[{128+4*q}:{131+4*q}], v18 offset:{q*1024}")
I("s_nop 5")
for q in range(4):
    I(f"s_waitcnt lgkmcnt({3-q + (1 if args.otr and q >= 2 else 0)})")
    for p in range(2):
        I(f"v_pk_add_f32 v[{ACC+4*q+2*p}:{ACC+4*q+2*p+1}], v[{ACC+4*q+2*p}:{ACC+4*q+2*p+1}], v[{128+4*q+2*p}:{129+4*q+2*p}]")
    for p in range(2):
        I(f"v_cvt_pk_bf16_f32 v{144+2*q+p}, v{ACC+4*q+2*p}, v{ACC+4*q+2*p+1}")
    if q == 1:
        if args.otr: I("ds_write_b128 v25, v[144:147]")
        else: I(f"buffer_store_dwordx4 v[144:147], v16, {srd(sO)}, 0 offen {args.ost}")
if args.otr:
    I("ds_write_b128 v26, v[148:151]")
    if args.otr == 2:
        I("s_waitcnt lgkmcnt(0)")
        I("s_barrier")
    I("ds_read_b128 v[152:155], v27")
    I(f"ds_read_b128 v[156:159], v27 offset:{rowstep*128}")
    I("s_waitcnt lgkmcnt(1)")
    I(f"buffer_store_dwordx4 v[152:155], v16, {srd(sO)}, 0 offen {args.ost}")
    I("s_waitcnt lgkmcnt(0)")
    I(f"buffer_store_dwordx4 v[156:159], v29, {srd(sO)}, 0 offen {args.ost}")
else:
    I(f"buffer_store_dwordx4 v[148:151], v16, {srd(sO)}, 0 offen offset:16 {args.ost}")
if "dirty" in args.diag:
    n = int(re.search(r"dirty(\d+)", args.diag).group(1))
    I(f"s_mov_b32 s{sH+2}, {64 << 20}")
    I(f"s_lshl_b32 s{s_t0}, s2, 2")
    I(f"s_add_u32 s{s_t0}, s{s_t0}, s{s_wave}")
    I(f"s_mul_i32 s{s_t0}, s{s_t0}, {n*1024}")
    I(f"s_add_u32 s{s_t0}, s{s_t0}, {16 << 20}")
    for i in range(n):
        I(f"buffer_store_dwordx4 v[144:147], v9, {srd(sH)}, s{s_t0} offen")
        I(f"s_add_u32 s{s_t0}, s{s_t0}, 1024")
if STAMPS: I("s_waitcnt vmcnt(0)")
stamp(7)
if args.amp and args.amp != "none" and not args.amp.startswith("L"): amp_block(args.amp, "c")
prof_store()
I("s_endpgm")
L(f"{P}_c_lazy")
for i in range(8): I("s_barrier")
I("s_mov_b64 exec, 1"); I("ds_add_u32 v22, v23 offset:8"); I("s_mov_b64 exec, -1")
I(f"s_branch {P}_c_epidone")
L(f"{P}_c_idle")
srd_tail(sX, XB); srd_tail(sW2, W2B)
prefetch_jobs()
I(f"s_branch {P}_c_epidone")
out += loader_tail
L(f"{P}_codeend")

e('.section .rodata,"a"')
e(".p2align 6")
e(f".amdhsa_kernel {label}")
for l in ("next_free_vgpr 256", "next_free_sgpr 102", "accum_offset 256", "group_segment_fixed_size 0", "kernarg_size 56",
          "user_sgpr_count 2", "user_sgpr_kernarg_segment_ptr 1", "system_sgpr_workgroup_id_x 1", "float_denorm_mode_32 3"):
    e("  .amdhsa_" + l)
e(".end_amdhsa_kernel")

text = "\n".join(out) + "\n"
def symbols(t):
    with tempfile.TemporaryDirectory() as d:
        open(d + "/k.s", "w").write(t)
        subprocess.run(["clang", "-x", "assembler", "-target", "amdgcn-amd-amdhsa", "-mcpu=gfx950", "-c", d + "/k.s", "-o", d + "/k.o"], check=True)
        sym = subprocess.run(["llvm-objdump", "-t", d + "/k.o"], capture_output=True, text=True).stdout
    return {m.group(2): int(m.group(1), 16) for m in re.finditer(r"^([0-9a-f]{16}) .*\s(\S+)$", sym, re.M)}
a = symbols(text.replace("@CODELINES@", "100"))
if args.codepf:
    n = (a[f"{P}_codeend"] - 4 - a[f"{P}_pc"]) // 128
    assert 64 < n < 128
    text = text.replace("@CODELINES@", str(n))
sys.stderr.write(f"code {a[f'{P}_codeend']} B: loop@{a[f'{P}_l_loop']} compute@{a[f'{P}_compute']} cloop@{a[f'{P}_c_loop']} p2@{a[f'{P}_c_p2']} ltail@{a[f'{P}_l_tail']}\n")
open(args.o, "w").write(text)
```

```python
import sys, argparse, subprocess, tempfile, re

ap = argparse.ArgumentParser()
ap.add_argument("-o", default="standalone__glu_gated_swiglu__prompt.s")
ap.add_argument("--prof", action="store_true")
ap.add_argument("--cyc", action="store_true")
ap.add_argument("--amp", default="")
ap.add_argument("--diag", default="")
ap.add_argument("--xrot", type=int, default=4)
ap.add_argument("--hring", type=int, default=12)
ap.add_argument("--hpro", type=int, default=10)
ap.add_argument("--sleep", type=int, default=1)
ap.add_argument("--codepf", type=int, default=1)
ap.add_argument("--prio", type=int, default=1)
ap.add_argument("--atb6", type=int, default=8)
ap.add_argument("--kmin", type=int, default=12)
ap.add_argument("--stopat", type=int, default=4)
ap.add_argument("--pace2", type=int, default=10)
ap.add_argument("--pace", type=int, default=10)
ap.add_argument("--barpos", type=int, default=16)
ap.add_argument("--rpg", type=int, default=2)
ap.add_argument("--gapc", type=int, default=8)
ap.add_argument("--pkfrom", type=int, default=1)
ap.add_argument("--tailn", type=int, default=3)
ap.add_argument("--jobx3", type=int, default=0)
ap.add_argument("--job3", type=int, default=1)
ap.add_argument("--jobM", type=int, default=0)
ap.add_argument("--jobX", type=int, default=1)
ap.add_argument("--otr", type=int, default=2)
ap.add_argument("--ost", default="sc1")
ap.add_argument("--prew", type=int, default=0)
ap.add_argument("--align", type=int, default=1)
ap.add_argument("--map", type=int, default=0)
ap.add_argument("--burst", type=int, default=1)
ap.add_argument("--stouch", type=int, default=0)
ap.add_argument("--wb1", type=int, default=2)
args = ap.parse_args()

NAME = "standalone__glu_gated_swiglu__prompt"
out = []
def e(s=""): out.append(s)
def I(s): out.append("    " + s)
def L(s): out.append(s + ":")

S, D, F = 2048, 512, 1376
XB, WB, W2B, OB = S * D * 2, D * F * 2, F * D * 2, S * D * 2
HSTR = 87
WS_REC = 8 << 20
PROF_OFF = 7 << 20
SLOT0, SLOTSZ, LDS_SCR, LDS_TOTAL = 36864 + 40960, 40960, 159744, 163840
def unit_addr(u): return (u % 39) * 4096
XCH = 4 * 4096
OTR = 8 * 4096

sX, sW1, sW3, sW2, sH, sO, sD = 20, 24, 28, 32, 36, 40, 44
s_wave, s_mg4, s_sh, s_mt, s_sl, s_rb, s_cb = 48, 49, 50, 51, 52, 53, 54
s_t0, s_t1, s_t2, s_t3 = 55, 56, 57, 58
s_cnt, s_kst, s_sx, s_sw, s_ring = 59, 60, 61, 62, 63
s_lx, s_lw, s_rot2, s_fl = 64, 65, 66, 67
s_k = 68
s_xb, s_wb, s_lu = 69, 70, 71
s_hoff = 72
s_p, s_pend, s_pbeg, s_valid = 78, 79, 80, 81
s_u, s_lim = 75, 76
s_prof = 84
def srd(r): return f"s[{r}:{r+3}]"
STAMPS = args.prof or args.amp
MUTE = [False]
def stamp(i, force=False):
    if "clk" in args.diag:
        m = {1: 0, 2: 1, 4: 2, 5: 3}
        if i in m:
            I(f"s_memrealtime s[{s_prof+2*m[i]}:{s_prof+2*m[i]+1}]"); I(f"s_memtime s[{s_prof+8+2*m[i]}:{s_prof+9+2*m[i]}]")
        return
    if MUTE[0] and not force: return
    if STAMPS: I(f"{'s_memtime' if args.cyc else 's_memrealtime'} s[{s_prof+2*i}:{s_prof+2*i+1}]")
def srd_tail(r, nbytes):
    I(f"s_mov_b32 s{r+2}, {nbytes}")
    I(f"s_mov_b32 s{r+3}, 0x20000")
def prof_store():
    if not args.prof: return
    I("s_waitcnt lgkmcnt(0)")
    I(f"s_lshl_b32 s{s_t0}, s2, 3")
    I(f"s_xor_b32 s{s_t1}, s{s_wave}, 4")
    I(f"s_add_u32 s{s_t0}, s{s_t0}, s{s_t1}")
    I(f"s_lshl_b32 s{s_t0}, s{s_t0}, 5")
    I(f"s_add_u32 s{s_t0}, s{s_t0}, {PROF_OFF}")
    for i in range(8): I(f"v_mov_b32 v{240+i}, s{s_prof+2*i}")
    I("v_mov_b32 v248, 0")
    I("s_mov_b64 exec, 1")
    I(f"buffer_store_dwordx4 v[240:243], v248, {srd(sH)}, s{s_t0} offen")
    I(f"buffer_store_dwordx4 v[244:247], v248, {srd(sH)}, s{s_t0} offen offset:16")
    I("s_mov_b64 exec, -1")
P = "K"
def amp_block(spec, tag):
    ai, aj = [int(t) for t in spec.split(",")]
    I("s_waitcnt lgkmcnt(0)")
    I(f"s_sub_u32 s{s_t0}, s{s_prof+2*aj}, s{s_prof+2*ai}")
    I(f"s_cmp_eq_u32 s{s_prof+2*ai}, 0")
    I(f"s_cselect_b32 s{s_t0}, 0, s{s_t0}")
    I(f"s_cmp_eq_u32 s{s_prof+2*aj}, 0")
    I(f"s_cselect_b32 s{s_t0}, 0, s{s_t0}")
    I(f"s_min_u32 s{s_t0}, s{s_t0}, 20000")
    I(f"s_mul_i32 s{s_t0}, s{s_t0}, 10")
    I("s_memrealtime s[82:83]")
    I("s_waitcnt lgkmcnt(0)")
    I(f"s_mov_b32 s{s_t1}, s82")
    L(f"{P}_amp{tag}")
    I("s_memrealtime s[82:83]")
    I("s_waitcnt lgkmcnt(0)")
    I(f"s_sub_u32 s{s_t2}, s82, s{s_t1}")
    I(f"s_cmp_lt_u32 s{s_t2}, s{s_t0}")
    I(f"s_cbranch_scc1 {P}_amp{tag}")

def kst_init():
    if args.map and args.xrot == 1:
        I(f"s_lshl_b32 s{s_kst}, s{s_sh}, 2")
        I(f"s_xor_b32 s{s_kst}, s{s_kst}, s{s_mg4}")
        I(f"s_and_b32 s{s_kst}, s{s_kst}, 4")
    elif args.map and args.xrot == 4:
        I(f"s_lshr_b32 s{s_kst}, s{s_mg4}, 1")
        I(f"s_lshl_b32 s{s_cnt}, s{s_sh}, 2")
        I(f"s_add_u32 s{s_kst}, s{s_kst}, s{s_cnt}")
        I(f"s_and_b32 s{s_kst}, s{s_kst}, 7")
    elif args.xrot == 1:
        I(f"s_add_u32 s{s_kst}, s2, s{s_sh}")
        I(f"s_and_b32 s{s_kst}, s{s_kst}, 1")
        I(f"s_lshl_b32 s{s_kst}, s{s_kst}, 2")
    elif args.xrot == 4:
        I(f"s_lshl_b32 s{s_kst}, s{s_sh}, 1")
        I(f"s_add_u32 s{s_kst}, s{s_kst}, s2")
        I(f"s_and_b32 s{s_kst}, s{s_kst}, 3")
        I(f"s_lshl_b32 s{s_kst}, s{s_kst}, 1")
    elif args.xrot == 5:
        I(f"s_lshl_b32 s{s_kst}, s{s_sh}, 1")
        I(f"s_add_u32 s{s_kst}, s{s_kst}, s2")
        I(f"s_and_b32 s{s_kst}, s{s_kst}, 3")
        I(f"s_add_u32 s{s_cnt}, s{s_mt}, s{s_sl}")
        I(f"s_and_b32 s{s_cnt}, s{s_cnt}, 1")
        I(f"s_lshl_b32 s{s_cnt}, s{s_cnt}, 2")
        I(f"s_add_u32 s{s_kst}, s{s_kst}, s{s_cnt}")
    else:
        I(f"s_mov_b32 s{s_kst}, 0")

def decode2():
    I(f"s_lshl_b32 s{s_t0}, s{s_sh}, 1")
    I(f"s_add_u32 s{s_t0}, s{s_t0}, s{s_mg4}")
    I(f"s_lshl_b32 s{s_t0}, s{s_t0}, 1")
    I(f"s_lshr_b32 s{s_t1}, s2, 6")
    I(f"s_add_u32 s{s_rb}, s{s_t0}, s{s_t1}")
    I(f"s_bfe_u32 s{s_cb}, s2, {3 | (3 << 16)}")
    I(f"s_mul_i32 s{s_rot2}, s{s_t1}, 11")

label = NAME + "_kernel"
e(f"; @launch grid=(256,1,1) block=(512,1,1) lds={LDS_TOTAL}")
e('.amdgcn_target "amdgcn-amd-amdhsa--gfx950"')
e(".text")
e(f".globl {label}")
e(".p2align 8")
e(f".type {label},@function")
L(label)
I("s_cmp_ge_u32 s2, 256")
I(f"s_cbranch_scc1 {P}_end")
for r, off in ((sX, 0), (sW1, 8), (sW3, 16), (sW2, 24), (sO, 32), (sD, 40), (sH, 48)):
    I(f"s_load_dwordx2 s[{r}:{r+1}], s[0:1], {off}")
if STAMPS:
    for i in range(8): I(f"s_mov_b32 s{s_prof+2*i}, 0")
stamp(0)
I("v_lshrrev_b32 v2, 6, v0")
I("v_and_b32 v1, 63, v0")
I(f"v_readfirstlane_b32 s{s_wave}, v2")
if args.map:
    I(f"s_and_b32 s{s_mg4}, s2, 6")
    I(f"s_lshl_b32 s{s_mg4}, s{s_mg4}, 1")
else:
    I(f"s_and_b32 s{s_mg4}, s2, 3")
    I(f"s_lshl_b32 s{s_mg4}, s{s_mg4}, 2")
I(f"s_cmp_lt_u32 s{s_wave}, 4")
I(f"s_cbranch_scc1 {P}_dec")
if args.codepf:
    I("s_getpc_b64 s[18:19]")
    L(f"{P}_pc")
    I("v_bfe_u32 v60, v0, 1, 7")
    I("v_lshlrev_b32 v60, 7, v60")
    I(f"v_min_u32 v60, {P}_codeend-{P}_pc-4, v60")
    I("global_load_dword v61, v60, s[18:19]")
L(f"{P}_dec")
I(f"s_bfe_u32 s{s_sh}, s2, {(0 if args.map else 2) | (1 << 16)}")
I(f"s_bfe_u32 s{s_t2}, s2, {3 | (2 << 16)}")
I(f"s_lshr_b32 s{s_t3}, s2, 5")
I(f"s_add_u32 s{s_mt}, s{s_mg4}, s{s_t2}")
I(f"s_mul_i32 s{s_sl}, s{s_sh}, 7")
I(f"s_add_u32 s{s_sl}, s{s_sl}, s{s_t3}")
I(f"s_cmp_lg_u32 s{s_t3}, 7")
I(f"s_cbranch_scc1 {P}_dec2")
I(f"s_lshl_b32 s{s_t0}, s{s_sh}, 1")
I(f"s_and_b32 s{s_t1}, s{s_t2}, 1")
I(f"s_add_u32 s{s_mt}, s{s_mg4}, s{s_t0}")
I(f"s_add_u32 s{s_mt}, s{s_mt}, s{s_t1}")
I(f"s_lshr_b32 s{s_sl}, s{s_t2}, 1")
I(f"s_add_u32 s{s_sl}, s{s_sl}, 14")
L(f"{P}_dec2")
I(f"s_cmp_ge_u32 s{s_wave}, 4")
I(f"s_cbranch_scc1 {P}_compute")

MUTE[0] = "stages" in args.diag
vX = [2, 3, 4, 5]; vW = [6, 7, 8]; vW2 = 13
vFA, vFS, vFN = 20, 21, 22
I("v_lshrrev_b32 v14, 3, v1")
I("v_lshrrev_b32 v15, 4, v1")
I("v_and_b32 v16, 7, v1")
I("v_xor_b32 v15, v15, v16")
I("v_lshlrev_b32 v14, 10, v14")
I(f"v_lshl_add_u32 v{vX[0]}, v15, 4, v14")
I(f"v_xor_b32 v{vX[1]}, 64, v{vX[0]}")
I(f"v_add_u32 v{vX[1]}, 7168, v{vX[1]}")
I(f"v_add_u32 v{vX[2]}, 14336, v{vX[0]}")
I(f"v_add_u32 v{vX[3]}, 14336, v{vX[1]}")
I(f"s_bitcmp1_b32 s{s_sl}, 0")
I(f"s_cselect_b32 s{s_t0}, -64, 64")
I(f"s_cselect_b32 s{s_t1}, 128, 0")
I(f"s_cmp_eq_u32 s{s_sl}, 14")
I(f"s_cselect_b32 s{s_t0}, 0, s{s_t0}")
I(f"s_mul_i32 s{s_t2}, s{s_t0}, -3")
I(f"s_add_u32 s{s_t2}, s{s_t2}, 2752")
I("v_lshrrev_b32 v14, 2, v1")
I("v_and_b32 v15, 3, v1")
I(f"v_lshl_add_u32 v15, v15, 4, s{s_t1}")
I("v_and_b32 v16, 32, v1")
for j in range(3):
    if j: I(f"v_add_u32 v14, 16, v14")
    I("v_mul_u32_u24 v17, 43, v14")
    if j == 0: I("v_mov_b32 v18, v15")
    if j == 1: I("v_xor_b32 v18, v15, v16")
    if j == 2: I("v_xor_b32 v18, 32, v15")
    I("v_lshrrev_b32 v17, 7, v17")
    I(f"v_mad_i32_i24 v18, v14, s{s_t0}, v18")
    I(f"v_mad_i32_i24 v{vW[j]}, v17, s{s_t2}, v18")
    if j: I(f"v_subrev_u32 v{vW[j]}, {1024*j}, v{vW[j]}")
I(f"s_lshl_b32 s{s_lx}, s{s_wave}, 12")
I(f"s_add_u32 s{s_lx}, s{s_lx}, {SLOT0}")
I(f"s_mul_i32 s{s_lw}, s{s_wave}, 6144")
I(f"s_add_u32 s{s_lw}, s{s_lw}, {SLOT0+16384}")
I(f"s_lshl_b32 s{s_xb}, s{s_mt}, 17")
I(f"s_lshl_b32 s{s_t0}, s{s_wave}, 15")
I(f"s_add_u32 s{s_xb}, s{s_xb}, s{s_t0}")
I(f"s_mul_i32 s{s_wb}, s{s_sl}, 192")
I(f"s_mul_i32 s{s_t0}, s{s_wave}, {16*2752}")
I(f"s_add_u32 s{s_wb}, s{s_wb}, s{s_t0}")
kst_init()
I(f"s_mov_b32 s{s_cnt}, 0")
I(f"s_mov_b32 s{s_ring}, {SLOTSZ}")
srd_tail(sX, XB); srd_tail(sW1, WB); srd_tail(sW3, WB)
I(f"s_cmp_ge_u32 s{s_sl}, 15")
I(f"s_cbranch_scc1 {P}_l_init")
I(f"s_lshl_b32 s{s_t0}, s{s_kst}, 7")
I(f"s_add_u32 s{s_sx}, s{s_xb}, s{s_t0}")
I(f"s_mul_i32 s{s_sw}, s{s_kst}, {64*2752}")
I(f"s_add_u32 s{s_sw}, s{s_sw}, s{s_wb}")
I(f"s_mov_b32 m0, s{s_lx}")
I("s_waitcnt lgkmcnt(0)")
stamp(1)
def issueS(tag):
    for j in range(4):
        I(f"buffer_load_dwordx4 v{vX[j]}, {srd(sX)}, s{s_sx} offen offset:{1024*j} lds")
    I(f"s_mov_b32 m0, s{s_lw}")
    I(f"s_add_u32 s{s_kst}, s{s_kst}, 1")
    for j in range(3):
        I(f"buffer_load_dwordx4 v{vW[j]}, {srd(sW1)}, s{s_sw} offen offset:{1024*j} lds")
    I("s_add_u32 m0, m0, 3072")
    I(f"s_and_b32 s{s_kst}, s{s_kst}, 7")
    for j in range(3):
        I(f"buffer_load_dwordx4 v{vW[j]}, {srd(sW3)}, s{s_sw} offen offset:{1024*j} lds")
    I(f"s_lshl_b32 s{s_t0}, s{s_kst}, 7")
    I(f"s_add_u32 s{s_sx}, s{s_xb}, s{s_t0}")
    I(f"s_mul_i32 s{s_sw}, s{s_kst}, {64*2752}")
    I(f"s_add_u32 s{s_sw}, s{s_sw}, s{s_wb}")
    I(f"s_cmp_ge_u32 s{s_lx}, {SLOT0+SLOTSZ}")
    I(f"s_cselect_b32 s{s_t0}, {-2*SLOTSZ & 0xffffffff}, s{s_ring}")
    I(f"s_add_u32 s{s_lx}, s{s_lx}, s{s_t0}")
    I(f"s_add_u32 s{s_lw}, s{s_lw}, s{s_t0}")
    I(f"s_mov_b32 m0, s{s_lx}")
    I(f"s_add_u32 s{s_cnt}, s{s_cnt}, 1")
L(f"{P}_l_loop")
issueS("a")
I(f"s_cmp_eq_u32 s{s_cnt}, 1")
I(f"s_cbranch_scc1 {P}_l_loop")

L(f"{P}_l_init")
decode2()
srd_tail(sW2, W2B); srd_tail(sH, WS_REC); srd_tail(sD, 256)
I("v_lshrrev_b32 v14, 3, v1")
I(f"s_and_b32 s{s_t0}, s{s_wave}, 1")
I(f"s_lshl_b32 s{s_t0}, s{s_t0}, 3")
I(f"s_lshr_b32 s{s_t1}, s{s_wave}, 1")
I(f"s_mul_i32 s{s_t1}, s{s_t1}, 688")
I(f"s_add_u32 s{s_t0}, s{s_t0}, s{s_t1}")
I(f"v_add_u32 v14, s{s_t0}, v14")
I("v_lshlrev_b32 v14, 10, v14")
I("v_lshrrev_b32 v15, 2, v1")
I("v_and_b32 v15, 4, v15")
I("v_and_b32 v16, 7, v1")
I("v_xor_b32 v15, v15, v16")
I(f"v_lshl_add_u32 v{vW2}, v15, 4, v14")
I(f"s_lshl_b32 s{s_pbeg}, s{s_cb}, 7")
I(f"s_add_u32 s{s_pend}, s{s_pbeg}, {43*16384}")
I(f"s_lshl_b32 s{s_t0}, s{s_rot2}, 14")
I(f"s_add_u32 s{s_p}, s{s_pbeg}, s{s_t0}")
I(f"s_lshl_b32 s{s_lu}, s{s_wave}, 10")
I(f"s_lshr_b32 s{s_t0}, s{s_rb}, 1")
I(f"s_mul_i32 s{s_fl}, s{s_t0}, {4*HSTR*1024}")
I(f"s_add_u32 s{s_fl}, s{s_fl}, {86*1024}")
I("v_min_u32 v14, 15, v1")
I(f"s_lshl_b32 s{s_valid}, 1, s{s_sl}")
I(f"s_cmp_eq_u32 s{s_t0}, s{s_mt}")
I(f"s_cselect_b32 s{s_t1}, s{s_sl}, 15")
I(f"s_cselect_b32 s{s_valid}, s{s_valid}, 0")
I(f"v_cmp_eq_u32 vcc, s{s_t1}, v14")
I("v_mov_b32 v15, 15")
I("s_nop 0")
I("v_cndmask_b32 v14, v14, v15, vcc")
I("v_lshrrev_b32 v15, 3, v14")
I(f"v_mul_u32_u24 v15, {HSTR*1024}, v15")
I("v_and_b32 v14, 7, v14")
I(f"v_lshl_add_u32 v{vFA}, v14, 7, v15")
I("s_waitcnt lgkmcnt(0)")
I(f"s_cmp_lg_u32 s{s_wave}, 0")
I(f"s_cbranch_scc1 {P}_l_nosamp")
I(f"buffer_load_dword v{vFS}, v{vFA}, {srd(sH)}, s{s_fl} offen sc1")
L(f"{P}_l_nosamp")
I(f"s_cmp_ge_u32 s{s_sl}, 15")
I(f"s_cbranch_scc1 {P}_l_idle")
if args.stouch:
    I(f"s_lshr_b32 s{s_t0}, s2, 3")
    I(f"s_lshl_b32 s{s_t0}, s{s_t0}, 2")
    I(f"s_add_u32 s{s_t0}, s{s_t0}, s{s_wave}")
    I(f"s_mul_i32 s{s_t0}, s{s_t0}, {11*1024}")
    I(f"s_add_u32 s18, s{sW2}, s{s_t0}")
    I(f"s_addc_u32 s19, s{sW2+1}, 0")
L(f"{P}_l_wait")
I("s_waitcnt vmcnt(10)")
if "b0" in args.diag:
    I(f"s_cmp_lg_u32 s{s_cnt}, 2"); I(f"s_cbranch_scc1 {P}_l_nb0"); stamp(7, True); L(f"{P}_l_nb0")
I("s_barrier")
if "stages" in args.diag:
    for c in range(1, 7):
        I(f"s_cmp_lg_u32 s{s_cnt}, {c+2}"); I(f"s_cbranch_scc1 {P}_l_st{c}"); stamp(c, True); L(f"{P}_l_st{c}")
I(f"s_cmp_ge_u32 s{s_cnt}, 8")
I(f"s_cbranch_scc1 {P}_l_tail")
issueS("b")
if args.stouch == 1:
    for c in (0, 1, 2, 4, 5):
        for hh in range(2): I(f"s_load_dword s3, s[18:19], {c*128 + hh*64}")
    I("s_add_u32 s18, s18, 2048"); I("s_addc_u32 s19, s19, 0")
if args.stouch == 2:
    for r in range(2):
        for c in (0, 1, 2, 4, 5): I(f"s_load_dwordx2 s[4:5], s[18:19], {r*1024 + c*128 + 60}")
    I("s_add_u32 s18, s18, 2048"); I("s_addc_u32 s19, s19, 0")
I(f"s_branch {P}_l_wait")
LOADER_TAIL_MARK = len(out)

wcount = [0]
def w_one():
    I(f"buffer_load_dwordx4 v{vW2}, {srd(sW2)}, s{s_p} offen lds")
    I(f"s_add_u32 s{s_p}, s{s_p}, 16384")
    I(f"s_cmp_eq_u32 s{s_p}, s{s_pend}")
    I(f"s_cselect_b32 s{s_p}, s{s_pbeg}, s{s_p}")
    I("s_add_u32 m0, m0, 4096")
    I(f"s_add_u32 s{s_u}, s{s_u}, 1")
def issueW(lim, pace=0):
    lab = f"{P}_l_w{wcount[0]}"; wcount[0] += 1
    I(f"s_cmp_ge_u32 s{s_u}, {lim}")
    I(f"s_cbranch_scc1 {lab}e")
    L(lab)
    if pace: I(f"s_waitcnt vmcnt({pace-1})")
    w_one()
    I(f"s_cmp_lt_u32 s{s_u}, {lim}")
    I(f"s_cbranch_scc1 {lab}")
    L(lab + "e")

pfc = [0]
def prefetch_jobs():
    tag = pfc[0]; pfc[0] += 1
    I(f"s_bfe_u32 s{s_t2}, s2, {3 | (1 << 16)}")
    if args.jobX:
        kst_init()
        I("v_lshlrev_b32 v40, 10, v1")
        if args.jobX == 2:
            I(f"s_cmp_ge_u32 s{s_mg4}, 8")
            I(f"s_cbranch_scc1 {P}_pf{tag}_e")
            I(f"s_add_u32 s{s_t0}, s{s_mg4}, 8")
            I(f"s_lshl_b32 s{s_t0}, s{s_t0}, 17")
            I(f"s_lshl_b32 s{s_t1}, s{s_wave}, 16")
            I(f"s_add_u32 s{s_t0}, s{s_t0}, s{s_t1}")
            I(f"s_add_u32 s{s_t1}, s{s_kst}, s{s_t2}")
            I(f"s_lshl_b32 s{s_t1}, s{s_t1}, 7")
            I(f"s_add_u32 s{s_t0}, s{s_t0}, s{s_t1}")
            I(f"buffer_load_dword v42, v40, {srd(sX)}, s{s_t0} offen")
            L(f"{P}_pf{tag}_e")
        I(f"s_lshl_b32 s{s_t0}, s{s_mg4}, 17")
        I(f"s_lshl_b32 s{s_t1}, s{s_wave}, 16")
        I(f"s_add_u32 s{s_t0}, s{s_t0}, s{s_t1}")
        I(f"s_add_u32 s{s_t1}, s{s_kst}, s{s_t2}")
        I(f"s_add_u32 s{s_t1}, s{s_t1}, 2")
        I(f"s_and_b32 s{s_t1}, s{s_t1}, 7")
        I(f"s_lshl_b32 s{s_t1}, s{s_t1}, 7")
        I(f"s_add_u32 s{s_t0}, s{s_t0}, s{s_t1}")
        I(f"buffer_load_dword v42, v40, {srd(sX)}, s{s_t0} offen")
    if args.jobx3:
        I("v_and_b32 v40, 31, v1")
        I("v_lshlrev_b32 v40, 10, v40")
        I(f"s_lshl_b32 s{s_t0}, s{s_mg4}, 17")
        I(f"s_lshl_b32 s{s_t1}, s{s_t2}, 18")
        I(f"s_add_u32 s{s_t0}, s{s_t0}, s{s_t1}")
        I(f"s_lshl_b32 s{s_t1}, s{s_wave}, 15")
        I(f"s_add_u32 s{s_t0}, s{s_t0}, s{s_t1}")
        I(f"buffer_load_dword v42, v40, {srd(sX)}, s{s_t0} offen offset:384")
    if args.jobM:
        I("v_lshlrev_b32 v41, 7, v1")
        I(f"s_and_b32 s{s_t0}, s2, 7")
        I(f"s_lshl_b32 s{s_t0}, s{s_t0}, 1")
        I(f"s_add_u32 s{s_t0}, s{s_t0}, s{s_t2}")
        I(f"s_lshl_b32 s{s_t1}, s{s_wave}, 4")
        I(f"s_add_u32 s{s_t0}, s{s_t0}, s{s_t1}")
        I(f"s_lshl_b32 s{s_t0}, s{s_t0}, 13")
        I(f"buffer_load_dword v43, v41, {srd(sW2)}, s{s_t0} offen")
        I(f"s_add_u32 s{s_t0}, s{s_t0}, {128*8192}")
        I(f"s_cmp_ge_u32 s{s_t0}, {W2B}")
        I(f"s_cbranch_scc1 {P}_pf{tag}_m")
        I(f"buffer_load_dword v43, v41, {srd(sW2)}, s{s_t0} offen")
        L(f"{P}_pf{tag}_m")
    if args.job3:
        I("v_min_u32 v44, 42, v1")
        I("v_lshlrev_b32 v44, 10, v44")
        I(f"s_mul_i32 s{s_t0}, s{s_t2}, 688")
        I(f"s_mul_i32 s{s_t1}, s{s_wave}, 86")
        I(f"s_add_u32 s{s_t0}, s{s_t0}, s{s_t1}")
        I(f"s_lshl_b32 s{s_t0}, s{s_t0}, 10")
        I(f"buffer_load_dword v45, v44, {srd(sW2)}, s{s_t0} offen offset:384")
        I(f"s_add_u32 s{s_t0}, s{s_t0}, {43*1024}")
        I(f"buffer_load_dword v45, v44, {srd(sW2)}, s{s_t0} offen offset:384")

L(f"{P}_l_tail")
stamp(2)
I(f"s_mov_b32 m0, s{s_lu}")
I(f"s_mov_b32 s{s_u}, 0")
I(f"v_mov_b32 v17, {LDS_SCR}")
issueW(args.atb6)
I(f"s_waitcnt vmcnt({args.atb6})")
I("s_barrier")
if "stages" in args.diag: stamp(7, True)
stamp(3)
issueW(args.kmin, args.pace)
I("s_setprio 3")
if args.stopat < 0: I(f"s_branch {P}_l_stop")
L(f"{P}_l_str")
I("ds_read_b64 v[18:19], v17 offset:8")
I(f"s_waitcnt vmcnt({args.pace2-1}) lgkmcnt(0)")
I(f"v_readfirstlane_b32 s{s_t0}, v18")
I(f"v_readfirstlane_b32 s{s_t1}, v19")
I(f"s_cmp_eq_u32 s{s_t0}, 4")
I(f"s_cselect_b32 s{s_lim}, 39, 29")
I(f"s_cmp_lg_u32 s{s_t1}, 0")
I(f"s_cbranch_scc1 {P}_l_stop")
I(f"s_cmp_ge_u32 s{s_u}, s{s_lim}")
I(f"s_cbranch_scc1 {P}_l_full")
for bi in range(args.burst):
    if bi:
        I(f"s_cmp_ge_u32 s{s_u}, s{s_lim}")
        I(f"s_cbranch_scc1 {P}_l_full")
        I(f"s_waitcnt vmcnt({args.pace2-1})")
    w_one()
I(f"s_branch {P}_l_str")
L(f"{P}_l_full")
I("s_sleep 1")
I(f"s_cmp_lt_u32 s{s_u}, 39")
I(f"s_cbranch_scc1 {P}_l_str")
L(f"{P}_l_stop")
I("s_setprio 0")
I("s_waitcnt vmcnt(0)")
stamp(4)
if "wk" in args.diag:
    I("s_waitcnt lgkmcnt(0)"); I(f"s_mul_i32 s{s_prof+14}, s{s_u}, 10"); I(f"s_add_u32 s{s_prof+14}, s{s_prof+14}, s{s_prof+8}")
I("s_barrier")
I(f"s_cmp_lg_u32 s{s_wave}, 1")
I(f"s_cbranch_scc1 {P}_l_nofb")
I(f"s_lshl_b32 s{s_sx}, 1, s{s_sl}")
I(f"s_lshl_b32 s{s_sw}, s{s_mt}, 4")
I(f"s_atomic_add s{s_sx}, s[{sD}:{sD+1}], s{s_sw}")
L(f"{P}_l_nofb")
I("s_sleep 1")
I(f"s_add_u32 s{s_lim}, s{s_u}, {args.wb1}")
I(f"s_min_u32 s{s_lim}, s{s_lim}, 39")
issueW(f"s{s_lim}")
I(f"s_branch {P}_l_bb")
L(f"{P}_l_idle")
prefetch_jobs()
I(f"s_mov_b32 m0, s{s_lu}")
I(f"s_mov_b32 s{s_u}, 0")
issueW(39)
I("s_waitcnt vmcnt(0)")
I("s_barrier")
L(f"{P}_l_bb")
I("s_barrier")
issueW(39)
I(f"s_mov_b32 m0, s{s_lu}")
issueW(43)
stamp(5)
wdone = args.kmin
L(f"{P}_l_sel")
I(f"s_cmp_lg_u32 s{s_wave}, 0")
I(f"s_cbranch_scc1 {P}_l_go")
I(f"s_lshr_b32 s{s_t1}, s{s_rb}, 1")
I(f"s_lshl_b32 s{s_t1}, s{s_t1}, 4")
I("v_mov_b32 v18, 0")
I(f"v_mov_b32 v17, {LDS_SCR}")
I("v_mov_b32 v19, 1")
I(f"s_mov_b32 s{s_cnt}, 0")
L(f"{P}_l_poll")
I(f"buffer_load_dword v{vFN}, v{vFA}, {srd(sH)}, s{s_fl} offen sc1")
I(f"s_add_u32 s{s_cnt}, s{s_cnt}, 1")
I("s_waitcnt vmcnt(0)")
I(f"v_cmp_ne_u32 vcc, v{vFN}, v{vFS}")
I(f"s_and_b32 s{s_t0}, s{s_cnt}, {0 if 'fbonly' in args.diag else 31}")
if "fbonly" in args.diag: I("s_mov_b64 vcc, 0")
I(f"s_or_b32 s{s_t2}, vcc_lo, s{s_valid}")
I(f"s_and_b32 s{s_t2}, s{s_t2}, 0x7fff")
I(f"s_cmp_eq_u32 s{s_t2}, 0x7fff")
I(f"s_cbranch_scc1 {P}_l_ok")
if args.sleep: I(f"s_sleep {args.sleep}")
I(f"s_cmp_lg_u32 s{s_t0}, 0")
I(f"s_cbranch_scc1 {P}_l_poll")
I(f"buffer_load_dword v16, v18, {srd(sD)}, s{s_t1} offen sc1")
I("s_waitcnt vmcnt(0)")
I(f"v_readfirstlane_b32 s{s_t0}, v16")
I(f"s_cmp_ge_u32 s{s_cnt}, 400000")
I(f"s_cbranch_scc1 {P}_l_ok")
I(f"s_or_b32 s{s_t2}, s{s_t2}, s{s_t0}")
I(f"s_cmp_lg_u32 s{s_t2}, 0x7fff")
I(f"s_cbranch_scc1 {P}_l_poll")
L(f"{P}_l_ok")
I("ds_write_b32 v17, v19")
L(f"{P}_l_go")
stamp(6)
I("s_waitcnt vmcnt(0)")
I("s_barrier")
if args.amp.startswith("L"): amp_block(args.amp[1:], "l")
prof_store()
L(f"{P}_end")
I("s_endpgm")
loader_tail = out[LOADER_TAIL_MARK:]
del out[LOADER_TAIL_MARK:]

MUTE[0] = "p2" in args.diag
L(f"{P}_compute")
vAX = [2, 3]; vAW = [6, 7, 8]
ACC = 64
FA, FB = 160, 200
vOLD = 20
if args.prio: I(f"s_setprio {args.prio}")
I(f"s_and_b32 s{s_t0}, s{s_wave}, 1")
I(f"s_lshl_b32 s{s_t0}, s{s_t0}, 13")
I(f"s_add_u32 s{s_t0}, s{s_t0}, {SLOT0}")
I("v_and_b32 v10, 15, v1")
I("v_lshrrev_b32 v11, 1, v10")
I("v_lshrrev_b32 v12, 4, v1")
I(f"v_lshl_add_u32 v10, v10, 7, s{s_t0}")
I("v_xor_b32 v13, v12, v11")
I("v_and_b32 v11, 1, v12")
I(f"v_lshl_add_u32 v{vAX[0]}, v13, 4, v10")
I(f"v_xor_b32 v{vAX[1]}, 64, v{vAX[0]}")
I("v_lshrrev_b32 v10, 1, v12")
I("v_bfe_u32 v12, v1, 2, 2")
I("v_lshl_add_u32 v12, v11, 3, v12")
I("v_mul_u32_u24 v12, 192, v12")
I("v_mul_u32_u24 v13, 6144, v10")
I("v_and_b32 v10, 3, v1")
I("v_lshl_add_u32 v12, v10, 3, v12")
I(f"s_mov_b32 s{s_t1}, {SLOT0+16384}")
I(f"v_add3_u32 v12, v12, v13, s{s_t1}")
I("v_lshlrev_b32 v11, 5, v11")
I(f"s_bfe_u32 s{s_t0}, s{s_wave}, {1 | (1 << 16)}")
I(f"s_lshl_b32 s{s_t1}, s{s_t0}, 5")
I(f"s_lshl_b32 s{s_t2}, s{s_t0}, 6")
I(f"v_xor_b32 v13, s{s_t1}, v11")
I(f"v_add3_u32 v{vAW[0]}, v12, v13, s{s_t2}")
I(f"v_add_u32 v{vAW[2]}, 64, v{vAW[0]}")
I("v_xor_b32 v13, 32, v13")
I(f"s_lshl_b32 s{s_t2}, s{s_t0}, 7")
I(f"v_add3_u32 v{vAW[1]}, v12, v13, s{s_t2}")
I("v_mov_b32 v21, 0")
I(f"v_mov_b32 v22, {LDS_SCR}")
I("ds_write_b32 v22, v21")
I("ds_write_b32 v22, v21 offset:8")
I("ds_write_b32 v22, v21 offset:12")
I("v_mov_b32 v23, 1")
for r in range(0, 96, 2):
    I(f"v_mov_b64 v[{ACC+r}:{ACC+r+1}], 0")
I(f"s_cmp_eq_u32 s{s_t0}, 0")
I(f"s_cselect_b32 s{s_t1}, 2, 0")
I(f"s_movk_i32 s{s_t2}, 0x543")
I(f"s_cselect_b32 s{s_t2}, 0x210, s{s_t2}")
I(f"s_movk_i32 s{s_t3}, 0x103")
I(f"s_cselect_b32 s{s_t3}, 0x254, s{s_t3}")
I(f"s_cmp_eq_u32 s{s_sl}, 14")
I(f"s_cselect_b32 s{s_valid}, s{s_t1}, 3")
I(f"s_bitcmp1_b32 s{s_sl}, 0")
I(f"s_cselect_b32 s{s_t2}, s{s_t3}, s{s_t2}")
I(f"s_and_b32 s{s_t1}, s{s_wave}, 1")
I(f"s_lshl_b32 s{s_t3}, s{s_mt}, 1")
I(f"s_add_u32 s{s_t1}, s{s_t1}, s{s_t3}")
I(f"s_mul_i32 s{s_t1}, s{s_t1}, {2*HSTR}")
I(f"s_mul_i32 s{s_t3}, s{s_sl}, 6")
I(f"s_add_u32 s{s_t1}, s{s_t1}, s{s_t3}")
for t in range(3):
    I(f"s_bfe_u32 s{s_t3}, s{s_t2}, {4*t | (4 << 16)}")
    I(f"s_add_u32 s{s_t3}, s{s_t3}, s{s_t1}")
    I(f"s_lshl_b32 s{s_hoff+t}, s{s_t3}, 10")
I(f"s_mov_b32 s{s_k}, 0xbfb8aa3b")
I("v_lshlrev_b32 v9, 4, v1")
I(f"v_add_u32 v10, {HSTR*1024}, v9")
I(f"v_mov_b32 v56, s{s_k}"); I(f"v_mov_b32 v57, s{s_k}"); I("v_mov_b32 v58, 1.0"); I("v_mov_b32 v59, 1.0")
I(f"s_mul_i32 s{s_fl}, s{s_mt}, {4*HSTR*1024}")
I(f"s_lshr_b32 s{s_t1}, s{s_sl}, 3")
I(f"s_mul_i32 s{s_t1}, s{s_t1}, {HSTR*1024}")
I(f"s_add_u32 s{s_fl}, s{s_fl}, s{s_t1}")
I(f"s_and_b32 s{s_t1}, s{s_sl}, 7")
I(f"s_lshl_b32 s{s_t1}, s{s_t1}, 7")
I(f"s_add_u32 s{s_fl}, s{s_fl}, s{s_t1}")
I(f"s_add_u32 s{s_fl}, s{s_fl}, {86*1024}")
srd_tail(sH, WS_REC); srd_tail(sO, OB)
I(f"s_mov_b32 s{s_cnt}, 0")
I(f"s_mov_b32 s{s_ring}, 1")
I(f"s_mov_b32 s{s_sx}, {SLOTSZ}")
I("s_waitcnt lgkmcnt(0)")
I(f"s_cmp_ge_u32 s{s_sl}, 15")
I(f"s_cbranch_scc1 {P}_c_idle")
I(f"s_cmp_eq_u32 s{s_valid}, 0")
I(f"s_cbranch_scc1 {P}_c_lazy")

def xr(fs, mt): return fs + 4 * mt
def wr_(fs, t, mat): return fs + 16 + 4 * (2 * t + mat)
def acc(t, mat, mt): return ACC + ((t * 2 + mat) * 4 + mt) * 4
def xrd(ks, fs, mt): return [f"ds_read_b128 v[{xr(fs,mt)}:{xr(fs,mt)+3}], v{vAX[ks]} offset:{2048*mt}"]
def wrd(ks, fs, t, mat):
    d = wr_(fs, t, mat)
    return [f"ds_read_b64_tr_b16 v[{d+2*h}:{d+2*h+1}], v{vAW[t]} offset:{ks*12288+mat*3072+h*768}" for h in range(2)]
def reads(ks, fs):
    r = xrd(ks, fs, 0) + wrd(ks, fs, 0, 0) + xrd(ks, fs, 1) + wrd(ks, fs, 0, 1) + xrd(ks, fs, 2) + xrd(ks, fs, 3)
    for t in (1, 2):
        for mat in range(2): r += wrd(ks, fs, t, mat)
    return r
def mf(fs, t, mat, mt):
    a = acc(t, mat, mt); w = wr_(fs, t, mat); x = xr(fs, mt)
    return f"v_mfma_f32_16x16x32_bf16 v[{a}:{a+3}], v[{w}:{w+3}], v[{x}:{x+3}], v[{a}:{a+3}]"
def mfmas(fs):
    return [mf(fs, t, mat, mt) for t in range(3) for mat in range(2) for mt in range(4)]
if args.prew:
    for t in range(3):
        if t == 2:
            I(f"s_cmp_le_u32 s{s_valid}, 2"); I(f"s_cbranch_scc1 {P}_c_npw")
        for p_ in range(2):
            I(f"buffer_store_dwordx4 v[64:67], v{9+p_}, {srd(sH)}, s{s_hoff+t} offen sc1")
    L(f"{P}_c_npw")
if args.align:
    I(f"s_branch {P}_pg1"); out.append("@COLD@"); e(".p2align 12"); L(f"{P}_pg1")
if "b0" in args.diag: stamp(1)
I("s_barrier")
if "b0" not in args.diag: stamp(1)
r = reads(0, FA)
for x in r[:12]: I(x)
I(f"s_cmp_lg_u32 s{s_wave}, 4")
I(f"s_cbranch_scc1 {P}_c_noold")
I(f"buffer_load_dword v{vOLD}, v21, {srd(sH)}, s{s_fl} offen sc1")
L(f"{P}_c_noold")
I("s_waitcnt lgkmcnt(8)")
for x in r[12:]: I(x)
L(f"{P}_c_loop")
m = mfmas(FA); r = reads(1, FB)
extra = [f"s_add_u32 s{s_ring}, s{s_ring}, 1", f"s_cmp_eq_u32 s{s_ring}, 3",
         f"s_cselect_b32 s{s_t0}, {-2*SLOTSZ & 0xffffffff}, s{s_sx}", f"s_cselect_b32 s{s_ring}, 0, s{s_ring}",
         f"s_add_u32 s{s_cnt}, s{s_cnt}, 1", None]
upd = [f"v_add_u32 v{r}, s{s_t0}, v{r}" for r in vAX + vAW]
need = {0: 8, 8: 10, 12: 12, 16: 14, 20: 16}
for i in range(24):
    if i in need: I(f"s_waitcnt lgkmcnt({min(15, 16 - need[i] + min(i, 16))})")
    I(m[i])
    if i < 16: I(r[i])
    elif i < 19:
        for x in extra[2*(i-16):2*(i-16)+2]:
            if x: I(x)
    else: I(upd[i-19])
I("s_waitcnt lgkmcnt(0)")
m = mfmas(FB); r = reads(0, FA)
for i in range(24):
    if i == args.barpos: I("s_barrier")
    I(m[i])
    if i >= args.barpos:
        for x in r[(i - args.barpos) * args.rpg:(i - args.barpos + 1) * args.rpg]: I(x)
assert (24 - args.barpos) * args.rpg >= 16
I(f"s_cmp_lt_u32 s{s_cnt}, 7")
I(f"s_cbranch_scc1 {P}_c_loop")
stamp(2)
T = 32
def epi(t, p):
    tm = T + p * 12; o = tm + 8
    g = [acc(t, 0, 2*p + (q >> 2)) + (q & 3) for q in range(8)]
    u = [acc(t, 1, 2*p + (q >> 2)) + (q & 3) for q in range(8)]
    v = []
    if 2 * t + p >= args.pkfrom:
        pr = lambda r: f"v[{r}:{r+1}]"
        for q in range(0, 8, 2): v.append(f"v_pk_mul_f32 {pr(tm+q)}, {pr(g[q])}, v[56:57]")
        for q in range(8): v.append(f"v_exp_f32 v{tm+q}, v{tm+q}")
        for q in range(0, 8, 2): v.append(f"v_pk_add_f32 {pr(tm+q)}, {pr(tm+q)}, v[58:59]")
        for q in range(8): v.append(f"v_rcp_f32 v{tm+q}, v{tm+q}")
        for q in range(0, 8, 2): v.append(f"v_pk_mul_f32 {pr(tm+q)}, {pr(tm+q)}, {pr(g[q])}")
        for q in range(0, 8, 2): v.append(f"v_pk_mul_f32 {pr(tm+q)}, {pr(tm+q)}, {pr(u[q])}")
    else:
        for q in range(8): v.append(f"v_mul_f32 v{tm+q}, s{s_k}, v{g[q]}")
        for q in range(8): v.append(f"v_exp_f32 v{tm+q}, v{tm+q}")
        for q in range(8): v.append(f"v_add_f32 v{tm+q}, 1.0, v{tm+q}")
        for q in range(8): v.append(f"v_rcp_f32 v{tm+q}, v{tm+q}")
        for q in range(8): v.append(f"v_mul_f32 v{tm+q}, v{tm+q}, v{g[q]}")
        for q in range(8): v.append(f"v_mul_f32 v{tm+q}, v{tm+q}, v{u[q]}")
    for q in (0, 2, 1, 3): v.append(f"v_cvt_pk_bf16_f32 v{o+q}, v{tm+2*q}, v{tm+2*q+1}")
    v.append(("swap", o))
    v.append(("store", t, p, o))
    return v
def emit_v(x):
    if isinstance(x, tuple) and x[0] == "swap":
        o = x[1]
        I(f"v_permlane16_swap_b32 v{o}, v{o+2}")
        I("s_nop 0")
        I(f"v_permlane16_swap_b32 v{o+1}, v{o+3}")
    elif isinstance(x, tuple):
        _, t, p, o = x
        if t == 2:
            I(f"s_cmp_le_u32 s{s_valid}, 2")
            I(f"s_cbranch_scc1 {P}_c_ns{t}{p}")
        I(f"buffer_store_dwordx4 v[{o}:{o+3}], v{9+p}, {srd(sH)}, s{s_hoff+t} offen sc1")
        if t == 2: L(f"{P}_c_ns{t}{p}")
    else:
        I(x)
blocks = [(t, p) for t in range(3) for p in range(2)]
def bmf(t, p, fs): return [mf(fs, t, mat, 2*p + j) for mat in range(2) for j in range(2)]
rB = reads(1, FB)
I("s_waitcnt lgkmcnt(8)")
pre = bmf(0, 0, FA) + bmf(0, 1, FA)
for i in range(8):
    I(pre[i])
    if i == 3: I("s_waitcnt lgkmcnt(6)")
    I(rB[2*i])
    if i == 7: I("s_waitcnt lgkmcnt(9)")
    I(rB[2*i+1])
I("s_waitcnt lgkmcnt(8)")
seq = []
for bi, (t, p) in enumerate(blocks):
    x = bmf(t, p, FB) if bi < 2 else bmf(t, p, FA) + bmf(t, p, FB)
    seq += [(y, None) for y in x[:-1]] + [(x[-1], bi)]
vq = []; nxt = 0; since = {}
for i, (mi, done) in enumerate(seq):
    if i == 8:
        I("s_waitcnt lgkmcnt(0)")
        I("s_mov_b64 exec, 1"); I("ds_add_u32 v22, v23 offset:8"); I("s_mov_b64 exec, -1")
    I(mi)
    for k in since: since[k] += 1
    if done is not None: since[done] = 0
    n = 0
    while n < args.gapc:
        if not vq:
            if nxt in since and since[nxt] >= 4 and nxt < args.pkfrom:
                if since[nxt] < 9: I(f"s_nop {9 - since[nxt]}")
                vq += epi(*blocks[nxt]); nxt += 1
            else:
                break
        x = vq.pop(0)
        emit_v(x); n += 8 if (isinstance(x, tuple) or "exp" in x or "rcp" in x) else 4
        for k in since: since[k] += 1
while vq or nxt < 6:
    if not vq:
        if since[nxt] < 9: I(f"s_nop {9 - since[nxt]}")
        if nxt == args.stopat: I("ds_write_b32 v22, v23 offset:12")
        vq += epi(*blocks[nxt]); nxt += 1
    emit_v(vq.pop(0))
    for k in since: since[k] += 1
if args.stopat == 6: I("ds_write_b32 v22, v23 offset:12")
L(f"{P}_c_epidone")
stamp(3)
vB = [[10, 11], [12, 13], [14, 15]]
WF = 128; HR = 160; R = args.hring
I("v_lshrrev_b32 v16, 4, v1")
I("v_lshrrev_b32 v17, 5, v1")
I("v_bfe_u32 v18, v1, 2, 2")
I("v_lshl_add_u32 v17, v17, 3, v18")
I("v_lshlrev_b32 v17, 7, v17")
I("v_and_b32 v16, 1, v16")
I("v_and_b32 v19, 1, v1")
I("v_lshl_add_u32 v16, v19, 1, v16")
I("v_lshlrev_b32 v18, 1, v18")
I("v_and_b32 v18, 4, v18")
I(f"s_bfe_u32 s{s_t0}, s{s_wave}, {1 | (1 << 16)}")
I(f"s_lshl_b32 s{s_t1}, s{s_t0}, 2")
I(f"v_xor_b32 v18, s{s_t1}, v18")
I("v_xor_b32 v16, v16, v18")
I("v_lshl_add_u32 v17, v16, 4, v17")
I("v_bfe_u32 v19, v1, 1, 1")
I("v_lshl_add_u32 v17, v19, 3, v17")
I(f"s_lshl_b32 s{s_t1}, s{s_t0}, 11")
I(f"v_add_u32 v{vB[0][0]}, s{s_t1}, v17")
I(f"v_xor_b32 v{vB[0][1]}, 64, v{vB[0][0]}")
for sg in (1, 2):
    for nb in range(2):
        I(f"v_add_u32 v{vB[sg][nb]}, {sg*65536}, v{vB[0][nb]}")
I("s_waitcnt vmcnt(0)")
I(f"v_add_u32 v{vOLD}, 1, v{vOLD}")
I("s_barrier")
I(f"s_cmp_lg_u32 s{s_wave}, 4")
I(f"s_cbranch_scc1 {P}_c_p2")
I(f"s_cmp_ge_u32 s{s_sl}, 15")
I(f"s_cbranch_scc1 {P}_c_p2")
I("s_mov_b64 exec, 1")
I(f"buffer_store_dword v{vOLD}, v21, {srd(sH)}, s{s_fl} offen sc1")
I("s_mov_b64 exec, -1")
L(f"{P}_c_p2")
stamp(4)
def wreads(u, dst):
    a = unit_addr(u); sg = a >> 16; off = a & 0xffff
    return [f"ds_read_b64_tr_b16 v[{dst+4*nb+2*h}:{dst+4*nb+2*h+1}], v{vB[sg][nb]} offset:{off+h*512}" for nb in range(2) for h in range(2)]
NW, NPRE, PRE, TN = 3, 4, 96, args.tailn
def wdst(u):
    if u < 4: return PRE + 8 * u
    if u >= 43 - TN: return PRE + 8 * (u - (43 - TN))
    return WF + 8 * (u % NW)
for u in range(NPRE):
    if u == 3: I("s_waitcnt lgkmcnt(8)")
    for r in wreads(u, wdst(u)): I(r)
I("s_waitcnt lgkmcnt(0)")
I("s_barrier")
decode2()
I(f"s_bfe_u32 s{s_t0}, s{s_wave}, {1 | (1 << 16)}")
I(f"s_and_b32 s{s_t1}, s{s_wave}, 1")
I(f"s_lshl_b32 s{s_t2}, s{s_rb}, 1")
I(f"s_add_u32 s{s_t1}, s{s_t1}, s{s_t2}")
I(f"s_mul_i32 s{s_t2}, s{s_t1}, {HSTR}")
I(f"s_mul_i32 s{s_t3}, s{s_t0}, 43")
I(f"s_add_u32 s{s_t2}, s{s_t2}, s{s_t3}")
I(f"s_lshl_b32 s{s_pbeg}, s{s_t2}, 10")
I(f"s_add_u32 s{s_pend}, s{s_pbeg}, {43*1024}")
I(f"s_lshl_b32 s{s_t2}, s{s_rot2}, 10")
I(f"s_add_u32 s{s_p}, s{s_pbeg}, s{s_t2}")
I("v_and_b32 v16, 31, v1")
I("v_lshlrev_b32 v16, 10, v16")
I("v_and_b32 v17, 32, v1")
I(f"s_lshl_b32 s{s_t1}, s{s_t1}, 15")
I(f"s_lshl_b32 s{s_t2}, s{s_cb}, 7")
I(f"s_add_u32 s{s_t1}, s{s_t1}, s{s_t2}")
I(f"s_lshl_b32 s{s_t2}, s{s_t0}, 6")
I(f"s_add_u32 s{s_t1}, s{s_t1}, s{s_t2}")
I(f"v_add3_u32 v16, v16, v17, s{s_t1}")
I(f"s_and_b32 s{s_t1}, s{s_wave}, 3")
I(f"s_lshl_b32 s{s_t1}, s{s_t1}, 12")
I(f"s_xor_b32 s{s_t2}, s{s_t1}, {2 << 12}")
I(f"s_add_u32 s{s_t1}, s{s_t1}, {XCH}")
I(f"s_add_u32 s{s_t2}, s{s_t2}, {XCH}")
I(f"v_add_u32 v17, s{s_t1}, v9")
I(f"v_add_u32 v18, s{s_t2}, v9")
if args.otr:
    I("v_and_b32 v25, 31, v1")
    I(f"s_and_b32 s{s_t1}, s{s_wave}, 1")
    I(f"s_lshl_b32 s{s_t1}, s{s_t1}, 12")
    I(f"s_add_u32 s{s_t1}, s{s_t1}, {OTR}")
    I(f"v_lshl_add_u32 v26, v25, 7, s{s_t1}")
    I("v_lshrrev_b32 v27, 5, v1")
    I(f"s_lshl_b32 s{s_t2}, s{s_t0}, 1")
    I(f"v_add_lshl_u32 v27, v27, s{s_t2}, 1")
    I("v_and_b32 v25, 7, v25")
    I("v_xor_b32 v27, v27, v25")
    I("v_lshl_add_u32 v25, v27, 4, v26")
    I("v_xor_b32 v26, 16, v25")
    if args.otr == 1:
        I("v_lshrrev_b32 v27, 2, v1")
        I("v_and_b32 v28, 3, v1")
        I(f"s_lshl_b32 s{s_t2}, s{s_t0}, 2")
        I(f"v_add_u32 v28, s{s_t2}, v28")
        rowstep = 16
    else:
        I("v_lshrrev_b32 v27, 3, v1")
        I(f"s_lshl_b32 s{s_t2}, s{s_t0}, 4")
        I(f"v_add_u32 v27, s{s_t2}, v27")
        I("v_and_b32 v28, 7, v1")
        rowstep = 8
    I(f"s_and_b32 s{s_t2}, s{s_wave}, 1")
    I(f"s_lshl_b32 s{s_t3}, s{s_rb}, 1")
    I(f"s_add_u32 s{s_t2}, s{s_t2}, s{s_t3}")
    I(f"s_lshl_b32 s{s_t2}, s{s_t2}, 15")
    I(f"s_lshl_b32 s{s_t3}, s{s_cb}, 7")
    I(f"s_add_u32 s{s_t2}, s{s_t2}, s{s_t3}")
    I(f"v_lshl_add_u32 v16, v27, 10, s{s_t2}")
    I("v_lshl_add_u32 v16, v28, 4, v16")
    I(f"v_add_u32 v29, {rowstep*1024}, v16")
    I("v_and_b32 v30, 7, v27")
    I("v_xor_b32 v28, v28, v30")
    I(f"v_lshl_add_u32 v27, v27, 7, s{s_t1}")
    I("v_lshl_add_u32 v27, v28, 4, v27")
for r in range(0, 32, 2):
    I(f"v_mov_b64 v[{ACC+r}:{ACC+r+1}], 0")
if args.align:
    I(f"s_branch {P}_c_spin"); e(".p2align 12")
L(f"{P}_c_spin")
I("ds_read_b32 v24, v22")
I("s_waitcnt lgkmcnt(0)")
I(f"v_readfirstlane_b32 s{s_t0}, v24")
I("s_nop 0")
I(f"s_cmp_eq_u32 s{s_t0}, 0")
I(f"s_cbranch_scc1 {P}_c_spin")
stamp(5)
if "p2" in args.diag: stamp(1, True)
def hload(s):
    b = HR + 4 * (s % R)
    return [f"buffer_load_dwordx4 v[{b}:{b+3}], v9, {srd(sH)}, s{s_p} offen sc1",
            f"s_add_u32 s{s_p}, s{s_p}, 1024",
            f"s_cmp_eq_u32 s{s_p}, s{s_pend}",
            f"s_cselect_b32 s{s_p}, s{s_pbeg}, s{s_p}"]
for s in range(args.hpro):
    for x in hload(s): I(x)
issued = args.hpro
def mm2(s, nb):
    hb = HR + 4 * (s % R); wd = wdst(s)
    return f"v_mfma_f32_32x32x16_bf16 v[{ACC+16*nb}:{ACC+16*nb+15}], v[{wd+4*nb}:{wd+4*nb+3}], v[{hb}:{hb+3}], v[{ACC+16*nb}:{ACC+16*nb+15}]"
for s in range(43):
    u = s + 2
    young = 1 if NPRE <= s + 1 < 43 else 0
    I(f"s_waitcnt vmcnt({issued - s - 1}) lgkmcnt({4*young})")
    if "p2" in args.diag and s in (0, 5, 11, 21, 32, 42): stamp({0:2, 5:3, 11:4, 21:5, 32:6, 42:7}[s], True)
    if u == wdone: I("s_barrier")
    wr = wreads(u, wdst(u)) if NPRE <= u < 43 else []
    I(mm2(s, 1))
    for r in wr[:2]: I(r)
    if issued < 43 and issued - R < s:
        for x in hload(issued): I(x)
        issued += 1
    if s < 43 - TN: I(mm2(s, 0))
    for r in wr[2:]: I(r)
    if issued < 43 and issued - R < s and issued - s - 1 < R - 1:
        for x in hload(issued): I(x)
        issued += 1
stamp(6)
tl = [mm2(s, 0) for s in range(43 - TN, 43)]
if tl: I(tl.pop(0))
I("s_nop 7")
I("s_nop 3")
for q in range(4):
    I(f"ds_write_b128 v17, v[{ACC+16+4*q}:{ACC+19+4*q}] offset:{q*1024}")
    if tl and q % 2 == 1: I(tl.pop(0))
for x in tl: I(x)
I("s_waitcnt lgkmcnt(0)")
I("s_barrier")
for q in range(4):
    I(f"ds_read_b128 v[{128+4*q}:{131+4*q}], v18 offset:{q*1024}")
I("s_nop 5")
for q in range(4):
    I(f"s_waitcnt lgkmcnt({3-q + (1 if args.otr and q >= 2 else 0)})")
    for p in range(2):
        I(f"v_pk_add_f32 v[{ACC+4*q+2*p}:{ACC+4*q+2*p+1}], v[{ACC+4*q+2*p}:{ACC+4*q+2*p+1}], v[{128+4*q+2*p}:{129+4*q+2*p}]")
    for p in range(2):
        I(f"v_cvt_pk_bf16_f32 v{144+2*q+p}, v{ACC+4*q+2*p}, v{ACC+4*q+2*p+1}")
    if q == 1:
        if args.otr: I("ds_write_b128 v25, v[144:147]")
        else: I(f"buffer_store_dwordx4 v[144:147], v16, {srd(sO)}, 0 offen {args.ost}")
if args.otr:
    I("ds_write_b128 v26, v[148:151]")
    if args.otr == 2:
        I("s_waitcnt lgkmcnt(0)")
        I("s_barrier")
    I("ds_read_b128 v[152:155], v27")
    I(f"ds_read_b128 v[156:159], v27 offset:{rowstep*128}")
    I("s_waitcnt lgkmcnt(1)")
    I(f"buffer_store_dwordx4 v[152:155], v16, {srd(sO)}, 0 offen {args.ost}")
    I("s_waitcnt lgkmcnt(0)")
    I(f"buffer_store_dwordx4 v[156:159], v29, {srd(sO)}, 0 offen {args.ost}")
else:
    I(f"buffer_store_dwordx4 v[148:151], v16, {srd(sO)}, 0 offen offset:16 {args.ost}")
if "dirty" in args.diag:
    n = int(re.search(r"dirty(\d+)", args.diag).group(1))
    I(f"s_mov_b32 s{sH+2}, {64 << 20}")
    I(f"s_lshl_b32 s{s_t0}, s2, 2")
    I(f"s_add_u32 s{s_t0}, s{s_t0}, s{s_wave}")
    I(f"s_mul_i32 s{s_t0}, s{s_t0}, {n*1024}")
    I(f"s_add_u32 s{s_t0}, s{s_t0}, {16 << 20}")
    for i in range(n):
        I(f"buffer_store_dwordx4 v[144:147], v9, {srd(sH)}, s{s_t0} offen")
        I(f"s_add_u32 s{s_t0}, s{s_t0}, 1024")
if STAMPS: I("s_waitcnt vmcnt(0)")
stamp(7)
if args.amp and args.amp != "none" and not args.amp.startswith("L"): amp_block(args.amp, "c")
prof_store()
I("s_endpgm")
COLD_MARK = len(out)
L(f"{P}_c_lazy")
for i in range(8): I("s_barrier")
I("s_mov_b64 exec, 1"); I("ds_add_u32 v22, v23 offset:8"); I("s_mov_b64 exec, -1")
I(f"s_branch {P}_c_epidone")
L(f"{P}_c_idle")
srd_tail(sX, XB); srd_tail(sW2, W2B)
prefetch_jobs()
I(f"s_branch {P}_c_epidone")
out += loader_tail
if args.align:
    cold = out[COLD_MARK:]; del out[COLD_MARK:]
    i = out.index("@COLD@"); out[i:i+1] = cold
L(f"{P}_codeend")

e('.section .rodata,"a"')
e(".p2align 6")
e(f".amdhsa_kernel {label}")
for l in ("next_free_vgpr 256", "next_free_sgpr 102", "accum_offset 256", "group_segment_fixed_size 0", "kernarg_size 56",
          "user_sgpr_count 2", "user_sgpr_kernarg_segment_ptr 1", "system_sgpr_workgroup_id_x 1", "float_denorm_mode_32 3"):
    e("  .amdhsa_" + l)
e(".end_amdhsa_kernel")

text = "\n".join(out) + "\n"
def symbols(t):
    with tempfile.TemporaryDirectory() as d:
        open(d + "/k.s", "w").write(t)
        subprocess.run(["clang", "-x", "assembler", "-target", "amdgcn-amd-amdhsa", "-mcpu=gfx950", "-c", d + "/k.s", "-o", d + "/k.o"], check=True)
        sym = subprocess.run(["llvm-objdump", "-t", d + "/k.o"], capture_output=True, text=True).stdout
    return {m.group(2): int(m.group(1), 16) for m in re.finditer(r"^([0-9a-f]{16}) .*\s(\S+)$", sym, re.M)}
a = symbols(text.replace("@CODELINES@", "100"))
assert a[f"{P}_codeend"] < 16384
sys.stderr.write(f"code {a[f'{P}_codeend']} B: loop@{a[f'{P}_l_loop']} compute@{a[f'{P}_compute']} cloop@{a[f'{P}_c_loop']} p2@{a[f'{P}_c_p2']} ltail@{a[f'{P}_l_tail']}\n")
open(args.o, "w").write(text)
```

```python
import sys, argparse, subprocess, tempfile, re

ap = argparse.ArgumentParser()
ap.add_argument("-o", default="standalone__glu_gated_swiglu__prompt.s")
ap.add_argument("--prof", action="store_true")
ap.add_argument("--cyc", action="store_true")
ap.add_argument("--amp", default="")
ap.add_argument("--diag", default="")
ap.add_argument("--xrot", type=int, default=4)
ap.add_argument("--hring", type=int, default=12)
ap.add_argument("--hpro", type=int, default=10)
ap.add_argument("--sleep", type=int, default=1)
ap.add_argument("--codepf", type=int, default=1)
ap.add_argument("--prio", type=int, default=1)
ap.add_argument("--atb6", type=int, default=8)
ap.add_argument("--kmin", type=int, default=12)
ap.add_argument("--stopat", type=int, default=4)
ap.add_argument("--pace2", type=int, default=10)
ap.add_argument("--pace", type=int, default=10)
ap.add_argument("--barpos", type=int, default=16)
ap.add_argument("--rpg", type=int, default=2)
ap.add_argument("--gapc", type=int, default=8)
ap.add_argument("--pkfrom", type=int, default=1)
ap.add_argument("--tailn", type=int, default=3)
ap.add_argument("--jobx3", type=int, default=0)
ap.add_argument("--job3", type=int, default=1)
ap.add_argument("--jobM", type=int, default=0)
ap.add_argument("--jobX", type=int, default=1)
ap.add_argument("--otr", type=int, default=2)
ap.add_argument("--ost", default="sc1")
ap.add_argument("--prew", type=int, default=0)
ap.add_argument("--align", type=int, default=1)
ap.add_argument("--tlbw", type=int, default=0)
ap.add_argument("--map", type=int, default=0)
ap.add_argument("--burst", type=int, default=1)
ap.add_argument("--stouch", type=int, default=0)
ap.add_argument("--wb1", type=int, default=2)
args = ap.parse_args()

NAME = "standalone__glu_gated_swiglu__prompt"
out = []
def e(s=""): out.append(s)
def I(s): out.append("    " + s)
def L(s): out.append(s + ":")

S, D, F = 2048, 512, 1376
XB, WB, W2B, OB = S * D * 2, D * F * 2, F * D * 2, S * D * 2
HSTR = 87
WS_REC = 8 << 20
PROF_OFF = 7 << 20
SLOT0, SLOTSZ, LDS_SCR, LDS_TOTAL = 36864 + 40960, 40960, 159744, 163840
def unit_addr(u): return (u % 39) * 4096
XCH = 4 * 4096
OTR = 8 * 4096

sX, sW1, sW3, sW2, sH, sO, sD = 20, 24, 28, 32, 36, 40, 44
s_wave, s_mg4, s_sh, s_mt, s_sl, s_rb, s_cb = 48, 49, 50, 51, 52, 53, 54
s_t0, s_t1, s_t2, s_t3 = 55, 56, 57, 58
s_cnt, s_kst, s_sx, s_sw, s_ring = 59, 60, 61, 62, 63
s_lx, s_lw, s_rot2, s_fl = 64, 65, 66, 67
s_k = 68
s_xb, s_wb, s_lu = 69, 70, 71
s_hoff = 72
s_p, s_pend, s_pbeg, s_valid = 78, 79, 80, 81
s_u, s_lim = 75, 76
s_prof = 84
def srd(r): return f"s[{r}:{r+3}]"
STAMPS = args.prof or args.amp
MUTE = [False]
def stamp(i, force=False):
    if "clk" in args.diag:
        m = {1: 0, 2: 1, 4: 2, 5: 3}
        if i in m:
            I(f"s_memrealtime s[{s_prof+2*m[i]}:{s_prof+2*m[i]+1}]"); I(f"s_memtime s[{s_prof+8+2*m[i]}:{s_prof+9+2*m[i]}]")
        return
    if MUTE[0] and not force: return
    if STAMPS: I(f"{'s_memtime' if args.cyc else 's_memrealtime'} s[{s_prof+2*i}:{s_prof+2*i+1}]")
def srd_tail(r, nbytes):
    I(f"s_mov_b32 s{r+2}, {nbytes}")
    I(f"s_mov_b32 s{r+3}, 0x20000")
def prof_store():
    if not args.prof: return
    I("s_waitcnt lgkmcnt(0)")
    I(f"s_lshl_b32 s{s_t0}, s2, 3")
    I(f"s_xor_b32 s{s_t1}, s{s_wave}, 4")
    I(f"s_add_u32 s{s_t0}, s{s_t0}, s{s_t1}")
    I(f"s_lshl_b32 s{s_t0}, s{s_t0}, 5")
    I(f"s_add_u32 s{s_t0}, s{s_t0}, {PROF_OFF}")
    for i in range(8): I(f"v_mov_b32 v{240+i}, s{s_prof+2*i}")
    I("v_mov_b32 v248, 0")
    I("s_mov_b64 exec, 1")
    I(f"buffer_store_dwordx4 v[240:243], v248, {srd(sH)}, s{s_t0} offen")
    I(f"buffer_store_dwordx4 v[244:247], v248, {srd(sH)}, s{s_t0} offen offset:16")
    I("s_mov_b64 exec, -1")
P = "K"
def amp_block(spec, tag):
    ai, aj = [int(t) for t in spec.split(",")]
    I("s_waitcnt lgkmcnt(0)")
    I(f"s_sub_u32 s{s_t0}, s{s_prof+2*aj}, s{s_prof+2*ai}")
    I(f"s_cmp_eq_u32 s{s_prof+2*ai}, 0")
    I(f"s_cselect_b32 s{s_t0}, 0, s{s_t0}")
    I(f"s_cmp_eq_u32 s{s_prof+2*aj}, 0")
    I(f"s_cselect_b32 s{s_t0}, 0, s{s_t0}")
    I(f"s_min_u32 s{s_t0}, s{s_t0}, 20000")
    I(f"s_mul_i32 s{s_t0}, s{s_t0}, 10")
    I("s_memrealtime s[82:83]")
    I("s_waitcnt lgkmcnt(0)")
    I(f"s_mov_b32 s{s_t1}, s82")
    L(f"{P}_amp{tag}")
    I("s_memrealtime s[82:83]")
    I("s_waitcnt lgkmcnt(0)")
    I(f"s_sub_u32 s{s_t2}, s82, s{s_t1}")
    I(f"s_cmp_lt_u32 s{s_t2}, s{s_t0}")
    I(f"s_cbranch_scc1 {P}_amp{tag}")

def kst_init():
    if args.map and args.xrot == 1:
        I(f"s_lshl_b32 s{s_kst}, s{s_sh}, 2")
        I(f"s_xor_b32 s{s_kst}, s{s_kst}, s{s_mg4}")
        I(f"s_and_b32 s{s_kst}, s{s_kst}, 4")
    elif args.map and args.xrot == 4:
        I(f"s_lshr_b32 s{s_kst}, s{s_mg4}, 1")
        I(f"s_lshl_b32 s{s_cnt}, s{s_sh}, 2")
        I(f"s_add_u32 s{s_kst}, s{s_kst}, s{s_cnt}")
        I(f"s_and_b32 s{s_kst}, s{s_kst}, 7")
    elif args.xrot == 1:
        I(f"s_add_u32 s{s_kst}, s2, s{s_sh}")
        I(f"s_and_b32 s{s_kst}, s{s_kst}, 1")
        I(f"s_lshl_b32 s{s_kst}, s{s_kst}, 2")
    elif args.xrot == 4:
        I(f"s_lshl_b32 s{s_kst}, s{s_sh}, 1")
        I(f"s_add_u32 s{s_kst}, s{s_kst}, s2")
        I(f"s_and_b32 s{s_kst}, s{s_kst}, 3")
        I(f"s_lshl_b32 s{s_kst}, s{s_kst}, 1")
    elif args.xrot == 5:
        I(f"s_lshl_b32 s{s_kst}, s{s_sh}, 1")
        I(f"s_add_u32 s{s_kst}, s{s_kst}, s2")
        I(f"s_and_b32 s{s_kst}, s{s_kst}, 3")
        I(f"s_add_u32 s{s_cnt}, s{s_mt}, s{s_sl}")
        I(f"s_and_b32 s{s_cnt}, s{s_cnt}, 1")
        I(f"s_lshl_b32 s{s_cnt}, s{s_cnt}, 2")
        I(f"s_add_u32 s{s_kst}, s{s_kst}, s{s_cnt}")
    elif args.xrot == 6:
        I(f"s_add_u32 s{s_kst}, s2, s{s_sh}")
        I(f"s_and_b32 s{s_kst}, s{s_kst}, 1")
        I(f"s_lshl_b32 s{s_kst}, s{s_kst}, 1")
        I(f"s_add_u32 s{s_cnt}, s{s_mt}, s{s_sl}")
        I(f"s_and_b32 s{s_cnt}, s{s_cnt}, 1")
        I(f"s_lshl_b32 s{s_cnt}, s{s_cnt}, 2")
        I(f"s_add_u32 s{s_kst}, s{s_kst}, s{s_cnt}")
    else:
        I(f"s_mov_b32 s{s_kst}, 0")

def decode2():
    I(f"s_lshl_b32 s{s_t0}, s{s_sh}, 1")
    I(f"s_add_u32 s{s_t0}, s{s_t0}, s{s_mg4}")
    I(f"s_lshl_b32 s{s_t0}, s{s_t0}, 1")
    I(f"s_lshr_b32 s{s_t1}, s2, 6")
    I(f"s_add_u32 s{s_rb}, s{s_t0}, s{s_t1}")
    I(f"s_bfe_u32 s{s_cb}, s2, {3 | (3 << 16)}")
    I(f"s_mul_i32 s{s_rot2}, s{s_t1}, 11")

label = NAME + "_kernel"
e(f"; @launch grid=(256,1,1) block=(512,1,1) lds={LDS_TOTAL}")
e('.amdgcn_target "amdgcn-amd-amdhsa--gfx950"')
e(".text")
e(f".globl {label}")
e(".p2align 8")
e(f".type {label},@function")
L(label)
I("s_cmp_ge_u32 s2, 256")
I(f"s_cbranch_scc1 {P}_end")
for r, off in ((sX, 0), (sW1, 8), (sW3, 16), (sW2, 24), (sO, 32), (sD, 40), (sH, 48)):
    I(f"s_load_dwordx2 s[{r}:{r+1}], s[0:1], {off}")
if STAMPS:
    for i in range(8): I(f"s_mov_b32 s{s_prof+2*i}, 0")
if "delay" in args.diag:
    for i in range(int(re.search(r"delay(\d+)", args.diag).group(1))): I("s_sleep 18")
stamp(0)
I("v_lshrrev_b32 v2, 6, v0")
I("v_and_b32 v1, 63, v0")
I(f"v_readfirstlane_b32 s{s_wave}, v2")
if args.map:
    I(f"s_and_b32 s{s_mg4}, s2, 6")
    I(f"s_lshl_b32 s{s_mg4}, s{s_mg4}, 1")
else:
    I(f"s_and_b32 s{s_mg4}, s2, 3")
    I(f"s_lshl_b32 s{s_mg4}, s{s_mg4}, 2")
I(f"s_cmp_lt_u32 s{s_wave}, 4")
I(f"s_cbranch_scc1 {P}_dec")
if args.codepf:
    I("s_getpc_b64 s[18:19]")
    L(f"{P}_pc")
    I("v_bfe_u32 v60, v0, 1, 7")
    I("v_lshlrev_b32 v60, 7, v60")
    I(f"v_min_u32 v60, {P}_codeend-{P}_pc-4, v60")
    I("global_load_dword v61, v60, s[18:19]")
L(f"{P}_dec")
I(f"s_bfe_u32 s{s_sh}, s2, {(0 if args.map else 2) | (1 << 16)}")
I(f"s_bfe_u32 s{s_t2}, s2, {3 | (2 << 16)}")
I(f"s_lshr_b32 s{s_t3}, s2, 5")
I(f"s_add_u32 s{s_mt}, s{s_mg4}, s{s_t2}")
I(f"s_mul_i32 s{s_sl}, s{s_sh}, 7")
I(f"s_add_u32 s{s_sl}, s{s_sl}, s{s_t3}")
I(f"s_cmp_lg_u32 s{s_t3}, 7")
I(f"s_cbranch_scc1 {P}_dec2")
I(f"s_lshl_b32 s{s_t0}, s{s_sh}, 1")
I(f"s_and_b32 s{s_t1}, s{s_t2}, 1")
I(f"s_add_u32 s{s_mt}, s{s_mg4}, s{s_t0}")
I(f"s_add_u32 s{s_mt}, s{s_mt}, s{s_t1}")
I(f"s_lshr_b32 s{s_sl}, s{s_t2}, 1")
I(f"s_add_u32 s{s_sl}, s{s_sl}, 14")
L(f"{P}_dec2")
I(f"s_cmp_ge_u32 s{s_wave}, 4")
I(f"s_cbranch_scc1 {P}_compute")

MUTE[0] = "stages" in args.diag
vX = [2, 3, 4, 5]; vW = [6, 7, 8]; vW2 = 13
vFA, vFS, vFN = 20, 21, 22
I("v_lshrrev_b32 v14, 3, v1")
I("v_lshrrev_b32 v15, 4, v1")
I("v_and_b32 v16, 7, v1")
I("v_xor_b32 v15, v15, v16")
I("v_lshlrev_b32 v14, 10, v14")
I(f"v_lshl_add_u32 v{vX[0]}, v15, 4, v14")
I(f"v_xor_b32 v{vX[1]}, 64, v{vX[0]}")
I(f"v_add_u32 v{vX[1]}, 7168, v{vX[1]}")
I(f"v_add_u32 v{vX[2]}, 14336, v{vX[0]}")
I(f"v_add_u32 v{vX[3]}, 14336, v{vX[1]}")
I(f"s_bitcmp1_b32 s{s_sl}, 0")
I(f"s_cselect_b32 s{s_t0}, -64, 64")
I(f"s_cselect_b32 s{s_t1}, 128, 0")
I(f"s_cmp_eq_u32 s{s_sl}, 14")
I(f"s_cselect_b32 s{s_t0}, 0, s{s_t0}")
I(f"s_mul_i32 s{s_t2}, s{s_t0}, -3")
I(f"s_add_u32 s{s_t2}, s{s_t2}, 2752")
I("v_lshrrev_b32 v14, 2, v1")
I("v_and_b32 v15, 3, v1")
I(f"v_lshl_add_u32 v15, v15, 4, s{s_t1}")
I("v_and_b32 v16, 32, v1")
for j in range(3):
    if j: I(f"v_add_u32 v14, 16, v14")
    I("v_mul_u32_u24 v17, 43, v14")
    if j == 0: I("v_mov_b32 v18, v15")
    if j == 1: I("v_xor_b32 v18, v15, v16")
    if j == 2: I("v_xor_b32 v18, 32, v15")
    I("v_lshrrev_b32 v17, 7, v17")
    I(f"v_mad_i32_i24 v18, v14, s{s_t0}, v18")
    I(f"v_mad_i32_i24 v{vW[j]}, v17, s{s_t2}, v18")
    if j: I(f"v_subrev_u32 v{vW[j]}, {1024*j}, v{vW[j]}")
I(f"s_lshl_b32 s{s_lx}, s{s_wave}, 12")
I(f"s_add_u32 s{s_lx}, s{s_lx}, {SLOT0}")
I(f"s_mul_i32 s{s_lw}, s{s_wave}, 6144")
I(f"s_add_u32 s{s_lw}, s{s_lw}, {SLOT0+16384}")
I(f"s_lshl_b32 s{s_xb}, s{s_mt}, 17")
I(f"s_lshl_b32 s{s_t0}, s{s_wave}, 15")
I(f"s_add_u32 s{s_xb}, s{s_xb}, s{s_t0}")
I(f"s_mul_i32 s{s_wb}, s{s_sl}, 192")
I(f"s_mul_i32 s{s_t0}, s{s_wave}, {16*2752}")
I(f"s_add_u32 s{s_wb}, s{s_wb}, s{s_t0}")
kst_init()
I(f"s_mov_b32 s{s_cnt}, 0")
I(f"s_mov_b32 s{s_ring}, {SLOTSZ}")
srd_tail(sX, XB); srd_tail(sW1, WB); srd_tail(sW3, WB)
I(f"s_cmp_ge_u32 s{s_sl}, 15")
I(f"s_cbranch_scc1 {P}_l_init")
I(f"s_lshl_b32 s{s_t0}, s{s_kst}, 7")
I(f"s_add_u32 s{s_sx}, s{s_xb}, s{s_t0}")
I(f"s_mul_i32 s{s_sw}, s{s_kst}, {64*2752}")
I(f"s_add_u32 s{s_sw}, s{s_sw}, s{s_wb}")
I(f"s_mov_b32 m0, s{s_lx}")
I("s_waitcnt lgkmcnt(0)")
if args.tlbw:
    I(f"s_load_dword s3, s[{sW1}:{sW1+1}], s{s_sw}")
    I(f"s_load_dword s4, s[{sW3}:{sW3+1}], s{s_sw}")
    if args.tlbw > 1:
        I(f"s_load_dword s5, s[{sW2}:{sW2+1}], 0")
        I(f"s_load_dword s6, s[{sO}:{sO+1}], 0")
stamp(1)
def issueS(tag):
    for j in range(4):
        I(f"buffer_load_dwordx4 v{vX[j]}, {srd(sX)}, s{s_sx} offen offset:{1024*j} lds")
    I(f"s_mov_b32 m0, s{s_lw}")
    I(f"s_add_u32 s{s_kst}, s{s_kst}, 1")
    for j in range(3):
        I(f"buffer_load_dwordx4 v{vW[j]}, {srd(sW1)}, s{s_sw} offen offset:{1024*j} lds")
    I("s_add_u32 m0, m0, 3072")
    I(f"s_and_b32 s{s_kst}, s{s_kst}, 7")
    for j in range(3):
        I(f"buffer_load_dwordx4 v{vW[j]}, {srd(sW3)}, s{s_sw} offen offset:{1024*j} lds")
    I(f"s_lshl_b32 s{s_t0}, s{s_kst}, 7")
    I(f"s_add_u32 s{s_sx}, s{s_xb}, s{s_t0}")
    I(f"s_mul_i32 s{s_sw}, s{s_kst}, {64*2752}")
    I(f"s_add_u32 s{s_sw}, s{s_sw}, s{s_wb}")
    I(f"s_cmp_ge_u32 s{s_lx}, {SLOT0+SLOTSZ}")
    I(f"s_cselect_b32 s{s_t0}, {-2*SLOTSZ & 0xffffffff}, s{s_ring}")
    I(f"s_add_u32 s{s_lx}, s{s_lx}, s{s_t0}")
    I(f"s_add_u32 s{s_lw}, s{s_lw}, s{s_t0}")
    I(f"s_mov_b32 m0, s{s_lx}")
    I(f"s_add_u32 s{s_cnt}, s{s_cnt}, 1")
L(f"{P}_l_loop")
issueS("a")
I(f"s_cmp_eq_u32 s{s_cnt}, 1")
I(f"s_cbranch_scc1 {P}_l_loop")

L(f"{P}_l_init")
decode2()
srd_tail(sW2, W2B); srd_tail(sH, WS_REC); srd_tail(sD, 256)
I("v_lshrrev_b32 v14, 3, v1")
I(f"s_and_b32 s{s_t0}, s{s_wave}, 1")
I(f"s_lshl_b32 s{s_t0}, s{s_t0}, 3")
I(f"s_lshr_b32 s{s_t1}, s{s_wave}, 1")
I(f"s_mul_i32 s{s_t1}, s{s_t1}, 688")
I(f"s_add_u32 s{s_t0}, s{s_t0}, s{s_t1}")
I(f"v_add_u32 v14, s{s_t0}, v14")
I("v_lshlrev_b32 v14, 10, v14")
I("v_lshrrev_b32 v15, 2, v1")
I("v_and_b32 v15, 4, v15")
I("v_and_b32 v16, 7, v1")
I("v_xor_b32 v15, v15, v16")
I(f"v_lshl_add_u32 v{vW2}, v15, 4, v14")
I(f"s_lshl_b32 s{s_pbeg}, s{s_cb}, 7")
I(f"s_add_u32 s{s_pend}, s{s_pbeg}, {43*16384}")
I(f"s_lshl_b32 s{s_t0}, s{s_rot2}, 14")
I(f"s_add_u32 s{s_p}, s{s_pbeg}, s{s_t0}")
I(f"s_lshl_b32 s{s_lu}, s{s_wave}, 10")
I(f"s_lshr_b32 s{s_t0}, s{s_rb}, 1")
I(f"s_mul_i32 s{s_fl}, s{s_t0}, {4*HSTR*1024}")
I(f"s_add_u32 s{s_fl}, s{s_fl}, {86*1024}")
I("v_min_u32 v14, 15, v1")
I(f"s_lshl_b32 s{s_valid}, 1, s{s_sl}")
I(f"s_cmp_eq_u32 s{s_t0}, s{s_mt}")
I(f"s_cselect_b32 s{s_t1}, s{s_sl}, 15")
I(f"s_cselect_b32 s{s_valid}, s{s_valid}, 0")
I(f"v_cmp_eq_u32 vcc, s{s_t1}, v14")
I("v_mov_b32 v15, 15")
I("s_nop 0")
I("v_cndmask_b32 v14, v14, v15, vcc")
I("v_lshrrev_b32 v15, 3, v14")
I(f"v_mul_u32_u24 v15, {HSTR*1024}, v15")
I("v_and_b32 v14, 7, v14")
I(f"v_lshl_add_u32 v{vFA}, v14, 7, v15")
I("s_waitcnt lgkmcnt(0)")
I(f"s_cmp_lg_u32 s{s_wave}, 0")
I(f"s_cbranch_scc1 {P}_l_nosamp")
I(f"buffer_load_dword v{vFS}, v{vFA}, {srd(sH)}, s{s_fl} offen sc1")
L(f"{P}_l_nosamp")
I(f"s_cmp_ge_u32 s{s_sl}, 15")
I(f"s_cbranch_scc1 {P}_l_idle")
if args.stouch:
    I(f"s_lshr_b32 s{s_t0}, s2, 3")
    I(f"s_lshl_b32 s{s_t0}, s{s_t0}, 2")
    I(f"s_add_u32 s{s_t0}, s{s_t0}, s{s_wave}")
    I(f"s_mul_i32 s{s_t0}, s{s_t0}, {11*1024}")
    I(f"s_add_u32 s18, s{sW2}, s{s_t0}")
    I(f"s_addc_u32 s19, s{sW2+1}, 0")
L(f"{P}_l_wait")
I("s_waitcnt vmcnt(10)")
if "b0" in args.diag:
    I(f"s_cmp_lg_u32 s{s_cnt}, 2"); I(f"s_cbranch_scc1 {P}_l_nb0"); stamp(7, True); L(f"{P}_l_nb0")
I("s_barrier")
if "stages" in args.diag:
    for c in range(1, 7):
        I(f"s_cmp_lg_u32 s{s_cnt}, {c+2}"); I(f"s_cbranch_scc1 {P}_l_st{c}"); stamp(c, True); L(f"{P}_l_st{c}")
I(f"s_cmp_ge_u32 s{s_cnt}, 8")
I(f"s_cbranch_scc1 {P}_l_tail")
issueS("b")
if args.stouch == 1:
    for c in (0, 1, 2, 4, 5):
        for hh in range(2): I(f"s_load_dword s3, s[18:19], {c*128 + hh*64}")
    I("s_add_u32 s18, s18, 2048"); I("s_addc_u32 s19, s19, 0")
if args.stouch == 2:
    for r in range(2):
        for c in (0, 1, 2, 4, 5): I(f"s_load_dwordx2 s[4:5], s[18:19], {r*1024 + c*128 + 60}")
    I("s_add_u32 s18, s18, 2048"); I("s_addc_u32 s19, s19, 0")
I(f"s_branch {P}_l_wait")
LOADER_TAIL_MARK = len(out)

wcount = [0]
def w_one():
    I(f"buffer_load_dwordx4 v{vW2}, {srd(sW2)}, s{s_p} offen lds")
    I(f"s_add_u32 s{s_p}, s{s_p}, 16384")
    I(f"s_cmp_eq_u32 s{s_p}, s{s_pend}")
    I(f"s_cselect_b32 s{s_p}, s{s_pbeg}, s{s_p}")
    I("s_add_u32 m0, m0, 4096")
    I(f"s_add_u32 s{s_u}, s{s_u}, 1")
def issueW(lim, pace=0):
    lab = f"{P}_l_w{wcount[0]}"; wcount[0] += 1
    I(f"s_cmp_ge_u32 s{s_u}, {lim}")
    I(f"s_cbranch_scc1 {lab}e")
    L(lab)
    if pace: I(f"s_waitcnt vmcnt({pace-1})")
    w_one()
    I(f"s_cmp_lt_u32 s{s_u}, {lim}")
    I(f"s_cbranch_scc1 {lab}")
    L(lab + "e")

pfc = [0]
def prefetch_jobs():
    tag = pfc[0]; pfc[0] += 1
    I(f"s_bfe_u32 s{s_t2}, s2, {3 | (1 << 16)}")
    if args.jobX:
        kst_init()
        I("v_lshlrev_b32 v40, 10, v1")
        if args.jobX == 2:
            I(f"s_cmp_ge_u32 s{s_mg4}, 8")
            I(f"s_cbranch_scc1 {P}_pf{tag}_e")
            I(f"s_add_u32 s{s_t0}, s{s_mg4}, 8")
            I(f"s_lshl_b32 s{s_t0}, s{s_t0}, 17")
            I(f"s_lshl_b32 s{s_t1}, s{s_wave}, 16")
            I(f"s_add_u32 s{s_t0}, s{s_t0}, s{s_t1}")
            I(f"s_add_u32 s{s_t1}, s{s_kst}, s{s_t2}")
            I(f"s_lshl_b32 s{s_t1}, s{s_t1}, 7")
            I(f"s_add_u32 s{s_t0}, s{s_t0}, s{s_t1}")
            I(f"buffer_load_dword v42, v40, {srd(sX)}, s{s_t0} offen")
            L(f"{P}_pf{tag}_e")
        I(f"s_lshl_b32 s{s_t0}, s{s_mg4}, 17")
        I(f"s_lshl_b32 s{s_t1}, s{s_wave}, 16")
        I(f"s_add_u32 s{s_t0}, s{s_t0}, s{s_t1}")
        I(f"s_add_u32 s{s_t1}, s{s_kst}, s{s_t2}")
        I(f"s_add_u32 s{s_t1}, s{s_t1}, 2")
        I(f"s_and_b32 s{s_t1}, s{s_t1}, 7")
        I(f"s_lshl_b32 s{s_t1}, s{s_t1}, 7")
        I(f"s_add_u32 s{s_t0}, s{s_t0}, s{s_t1}")
        I(f"buffer_load_dword v42, v40, {srd(sX)}, s{s_t0} offen")
    if args.jobx3:
        I("v_and_b32 v40, 31, v1")
        I("v_lshlrev_b32 v40, 10, v40")
        I(f"s_lshl_b32 s{s_t0}, s{s_mg4}, 17")
        I(f"s_lshl_b32 s{s_t1}, s{s_t2}, 18")
        I(f"s_add_u32 s{s_t0}, s{s_t0}, s{s_t1}")
        I(f"s_lshl_b32 s{s_t1}, s{s_wave}, 15")
        I(f"s_add_u32 s{s_t0}, s{s_t0}, s{s_t1}")
        I(f"buffer_load_dword v42, v40, {srd(sX)}, s{s_t0} offen offset:384")
    if args.jobM:
        I("v_lshlrev_b32 v41, 7, v1")
        I(f"s_and_b32 s{s_t0}, s2, 7")
        I(f"s_lshl_b32 s{s_t0}, s{s_t0}, 1")
        I(f"s_add_u32 s{s_t0}, s{s_t0}, s{s_t2}")
        I(f"s_lshl_b32 s{s_t1}, s{s_wave}, 4")
        I(f"s_add_u32 s{s_t0}, s{s_t0}, s{s_t1}")
        I(f"s_lshl_b32 s{s_t0}, s{s_t0}, 13")
        I(f"buffer_load_dword v43, v41, {srd(sW2)}, s{s_t0} offen")
        I(f"s_add_u32 s{s_t0}, s{s_t0}, {128*8192}")
        I(f"s_cmp_ge_u32 s{s_t0}, {W2B}")
        I(f"s_cbranch_scc1 {P}_pf{tag}_m")
        I(f"buffer_load_dword v43, v41, {srd(sW2)}, s{s_t0} offen")
        L(f"{P}_pf{tag}_m")
    if args.job3:
        I("v_min_u32 v44, 42, v1")
        I("v_lshlrev_b32 v44, 10, v44")
        I(f"s_mul_i32 s{s_t0}, s{s_t2}, 688")
        I(f"s_mul_i32 s{s_t1}, s{s_wave}, 86")
        I(f"s_add_u32 s{s_t0}, s{s_t0}, s{s_t1}")
        I(f"s_lshl_b32 s{s_t0}, s{s_t0}, 10")
        I(f"buffer_load_dword v45, v44, {srd(sW2)}, s{s_t0} offen offset:384")
        I(f"s_add_u32 s{s_t0}, s{s_t0}, {43*1024}")
        I(f"buffer_load_dword v45, v44, {srd(sW2)}, s{s_t0} offen offset:384")

L(f"{P}_l_tail")
stamp(2)
I(f"s_mov_b32 m0, s{s_lu}")
I(f"s_mov_b32 s{s_u}, 0")
I(f"v_mov_b32 v17, {LDS_SCR}")
issueW(args.atb6)
I(f"s_waitcnt vmcnt({args.atb6})")
I("s_barrier")
if "stages" in args.diag: stamp(7, True)
stamp(3)
issueW(args.kmin, args.pace)
I("s_setprio 3")
if args.stopat < 0: I(f"s_branch {P}_l_stop")
L(f"{P}_l_str")
I("ds_read_b64 v[18:19], v17 offset:8")
I(f"s_waitcnt vmcnt({args.pace2-1}) lgkmcnt(0)")
I(f"v_readfirstlane_b32 s{s_t0}, v18")
I(f"v_readfirstlane_b32 s{s_t1}, v19")
I(f"s_cmp_eq_u32 s{s_t0}, 4")
I(f"s_cselect_b32 s{s_lim}, 39, 29")
I(f"s_cmp_lg_u32 s{s_t1}, 0")
I(f"s_cbranch_scc1 {P}_l_stop")
I(f"s_cmp_ge_u32 s{s_u}, s{s_lim}")
I(f"s_cbranch_scc1 {P}_l_full")
for bi in range(args.burst):
    if bi:
        I(f"s_cmp_ge_u32 s{s_u}, s{s_lim}")
        I(f"s_cbranch_scc1 {P}_l_full")
        I(f"s_waitcnt vmcnt({args.pace2-1})")
    w_one()
I(f"s_branch {P}_l_str")
L(f"{P}_l_full")
I("s_sleep 1")
I(f"s_cmp_lt_u32 s{s_u}, 39")
I(f"s_cbranch_scc1 {P}_l_str")
L(f"{P}_l_stop")
I("s_setprio 0")
I("s_waitcnt vmcnt(0)")
stamp(4)
if "wk" in args.diag:
    I("s_waitcnt lgkmcnt(0)"); I(f"s_mul_i32 s{s_prof+14}, s{s_u}, 10"); I(f"s_add_u32 s{s_prof+14}, s{s_prof+14}, s{s_prof+8}")
I("s_barrier")
I(f"s_cmp_lg_u32 s{s_wave}, 1")
I(f"s_cbranch_scc1 {P}_l_nofb")
I(f"s_lshl_b32 s{s_sx}, 1, s{s_sl}")
I(f"s_lshl_b32 s{s_sw}, s{s_mt}, 4")
I(f"s_atomic_add s{s_sx}, s[{sD}:{sD+1}], s{s_sw}")
L(f"{P}_l_nofb")
I("s_sleep 1")
I(f"s_add_u32 s{s_lim}, s{s_u}, {args.wb1}")
I(f"s_min_u32 s{s_lim}, s{s_lim}, 39")
issueW(f"s{s_lim}")
I(f"s_branch {P}_l_bb")
L(f"{P}_l_idle")
prefetch_jobs()
I(f"s_mov_b32 m0, s{s_lu}")
I(f"s_mov_b32 s{s_u}, 0")
issueW(39)
I("s_waitcnt vmcnt(0)")
I("s_barrier")
L(f"{P}_l_bb")
I("s_barrier")
issueW(39)
I(f"s_mov_b32 m0, s{s_lu}")
issueW(43)
stamp(5)
wdone = args.kmin
L(f"{P}_l_sel")
I(f"s_cmp_lg_u32 s{s_wave}, 0")
I(f"s_cbranch_scc1 {P}_l_go")
I(f"s_lshr_b32 s{s_t1}, s{s_rb}, 1")
I(f"s_lshl_b32 s{s_t1}, s{s_t1}, 4")
I("v_mov_b32 v18, 0")
I(f"v_mov_b32 v17, {LDS_SCR}")
I("v_mov_b32 v19, 1")
I(f"s_mov_b32 s{s_cnt}, 0")
L(f"{P}_l_poll")
I(f"buffer_load_dword v{vFN}, v{vFA}, {srd(sH)}, s{s_fl} offen sc1")
I(f"s_add_u32 s{s_cnt}, s{s_cnt}, 1")
I("s_waitcnt vmcnt(0)")
I(f"v_cmp_ne_u32 vcc, v{vFN}, v{vFS}")
I(f"s_and_b32 s{s_t0}, s{s_cnt}, {0 if 'fbonly' in args.diag else 31}")
if "fbonly" in args.diag: I("s_mov_b64 vcc, 0")
I(f"s_or_b32 s{s_t2}, vcc_lo, s{s_valid}")
I(f"s_and_b32 s{s_t2}, s{s_t2}, 0x7fff")
I(f"s_cmp_eq_u32 s{s_t2}, 0x7fff")
I(f"s_cbranch_scc1 {P}_l_ok")
if args.sleep: I(f"s_sleep {args.sleep}")
I(f"s_cmp_lg_u32 s{s_t0}, 0")
I(f"s_cbranch_scc1 {P}_l_poll")
I(f"buffer_load_dword v16, v18, {srd(sD)}, s{s_t1} offen sc1")
I("s_waitcnt vmcnt(0)")
I(f"v_readfirstlane_b32 s{s_t0}, v16")
I(f"s_cmp_ge_u32 s{s_cnt}, 400000")
I(f"s_cbranch_scc1 {P}_l_ok")
I(f"s_or_b32 s{s_t2}, s{s_t2}, s{s_t0}")
I(f"s_cmp_lg_u32 s{s_t2}, 0x7fff")
I(f"s_cbranch_scc1 {P}_l_poll")
L(f"{P}_l_ok")
I("ds_write_b32 v17, v19")
L(f"{P}_l_go")
stamp(6)
I("s_waitcnt vmcnt(0)")
I("s_barrier")
if args.amp.startswith("L"): amp_block(args.amp[1:], "l")
prof_store()
L(f"{P}_end")
I("s_endpgm")
loader_tail = out[LOADER_TAIL_MARK:]
del out[LOADER_TAIL_MARK:]

MUTE[0] = "p2" in args.diag
L(f"{P}_compute")
vAX = [2, 3]; vAW = [6, 7, 8]
ACC = 64
FA, FB = 160, 200
vOLD = 20
if args.prio: I(f"s_setprio {args.prio}")
I(f"s_and_b32 s{s_t0}, s{s_wave}, 1")
I(f"s_lshl_b32 s{s_t0}, s{s_t0}, 13")
I(f"s_add_u32 s{s_t0}, s{s_t0}, {SLOT0}")
I("v_and_b32 v10, 15, v1")
I("v_lshrrev_b32 v11, 1, v10")
I("v_lshrrev_b32 v12, 4, v1")
I(f"v_lshl_add_u32 v10, v10, 7, s{s_t0}")
I("v_xor_b32 v13, v12, v11")
I("v_and_b32 v11, 1, v12")
I(f"v_lshl_add_u32 v{vAX[0]}, v13, 4, v10")
I(f"v_xor_b32 v{vAX[1]}, 64, v{vAX[0]}")
I("v_lshrrev_b32 v10, 1, v12")
I("v_bfe_u32 v12, v1, 2, 2")
I("v_lshl_add_u32 v12, v11, 3, v12")
I("v_mul_u32_u24 v12, 192, v12")
I("v_mul_u32_u24 v13, 6144, v10")
I("v_and_b32 v10, 3, v1")
I("v_lshl_add_u32 v12, v10, 3, v12")
I(f"s_mov_b32 s{s_t1}, {SLOT0+16384}")
I(f"v_add3_u32 v12, v12, v13, s{s_t1}")
I("v_lshlrev_b32 v11, 5, v11")
I(f"s_bfe_u32 s{s_t0}, s{s_wave}, {1 | (1 << 16)}")
I(f"s_lshl_b32 s{s_t1}, s{s_t0}, 5")
I(f"s_lshl_b32 s{s_t2}, s{s_t0}, 6")
I(f"v_xor_b32 v13, s{s_t1}, v11")
I(f"v_add3_u32 v{vAW[0]}, v12, v13, s{s_t2}")
I(f"v_add_u32 v{vAW[2]}, 64, v{vAW[0]}")
I("v_xor_b32 v13, 32, v13")
I(f"s_lshl_b32 s{s_t2}, s{s_t0}, 7")
I(f"v_add3_u32 v{vAW[1]}, v12, v13, s{s_t2}")
I("v_mov_b32 v21, 0")
I(f"v_mov_b32 v22, {LDS_SCR}")
I("ds_write_b32 v22, v21")
I("ds_write_b32 v22, v21 offset:8")
I("ds_write_b32 v22, v21 offset:12")
I("v_mov_b32 v23, 1")
for r in range(0, 96, 2):
    I(f"v_mov_b64 v[{ACC+r}:{ACC+r+1}], 0")
I(f"s_cmp_eq_u32 s{s_t0}, 0")
I(f"s_cselect_b32 s{s_t1}, 2, 0")
I(f"s_movk_i32 s{s_t2}, 0x543")
I(f"s_cselect_b32 s{s_t2}, 0x210, s{s_t2}")
I(f"s_movk_i32 s{s_t3}, 0x103")
I(f"s_cselect_b32 s{s_t3}, 0x254, s{s_t3}")
I(f"s_cmp_eq_u32 s{s_sl}, 14")
I(f"s_cselect_b32 s{s_valid}, s{s_t1}, 3")
I(f"s_bitcmp1_b32 s{s_sl}, 0")
I(f"s_cselect_b32 s{s_t2}, s{s_t3}, s{s_t2}")
I(f"s_and_b32 s{s_t1}, s{s_wave}, 1")
I(f"s_lshl_b32 s{s_t3}, s{s_mt}, 1")
I(f"s_add_u32 s{s_t1}, s{s_t1}, s{s_t3}")
I(f"s_mul_i32 s{s_t1}, s{s_t1}, {2*HSTR}")
I(f"s_mul_i32 s{s_t3}, s{s_sl}, 6")
I(f"s_add_u32 s{s_t1}, s{s_t1}, s{s_t3}")
for t in range(3):
    I(f"s_bfe_u32 s{s_t3}, s{s_t2}, {4*t | (4 << 16)}")
    I(f"s_add_u32 s{s_t3}, s{s_t3}, s{s_t1}")
    I(f"s_lshl_b32 s{s_hoff+t}, s{s_t3}, 10")
I(f"s_mov_b32 s{s_k}, 0xbfb8aa3b")
I("v_lshlrev_b32 v9, 4, v1")
I(f"v_add_u32 v10, {HSTR*1024}, v9")
I(f"v_mov_b32 v56, s{s_k}"); I(f"v_mov_b32 v57, s{s_k}"); I("v_mov_b32 v58, 1.0"); I("v_mov_b32 v59, 1.0")
I(f"s_mul_i32 s{s_fl}, s{s_mt}, {4*HSTR*1024}")
I(f"s_lshr_b32 s{s_t1}, s{s_sl}, 3")
I(f"s_mul_i32 s{s_t1}, s{s_t1}, {HSTR*1024}")
I(f"s_add_u32 s{s_fl}, s{s_fl}, s{s_t1}")
I(f"s_and_b32 s{s_t1}, s{s_sl}, 7")
I(f"s_lshl_b32 s{s_t1}, s{s_t1}, 7")
I(f"s_add_u32 s{s_fl}, s{s_fl}, s{s_t1}")
I(f"s_add_u32 s{s_fl}, s{s_fl}, {86*1024}")
srd_tail(sH, WS_REC); srd_tail(sO, OB)
I(f"s_mov_b32 s{s_cnt}, 0")
I(f"s_mov_b32 s{s_ring}, 1")
I(f"s_mov_b32 s{s_sx}, {SLOTSZ}")
I("s_waitcnt lgkmcnt(0)")
I(f"s_cmp_ge_u32 s{s_sl}, 15")
I(f"s_cbranch_scc1 {P}_c_idle")
I(f"s_cmp_eq_u32 s{s_valid}, 0")
I(f"s_cbranch_scc1 {P}_c_lazy")

def xr(fs, mt): return fs + 4 * mt
def wr_(fs, t, mat): return fs + 16 + 4 * (2 * t + mat)
def acc(t, mat, mt): return ACC + ((t * 2 + mat) * 4 + mt) * 4
def xrd(ks, fs, mt): return [f"ds_read_b128 v[{xr(fs,mt)}:{xr(fs,mt)+3}], v{vAX[ks]} offset:{2048*mt}"]
def wrd(ks, fs, t, mat):
    d = wr_(fs, t, mat)
    return [f"ds_read_b64_tr_b16 v[{d+2*h}:{d+2*h+1}], v{vAW[t]} offset:{ks*12288+mat*3072+h*768}" for h in range(2)]
def reads(ks, fs):
    if "noread" in args.diag: return ["s_nop 0"] * 16
    if "halfread" in args.diag:
        r = xrd(ks, fs, 0) + wrd(ks, fs, 0, 0) + xrd(ks, fs, 1) + wrd(ks, fs, 0, 1) + wrd(ks, fs, 1, 0)
        return r + ["s_nop 0"] * 8
    r = xrd(ks, fs, 0) + wrd(ks, fs, 0, 0) + xrd(ks, fs, 1) + wrd(ks, fs, 0, 1) + xrd(ks, fs, 2) + xrd(ks, fs, 3)
    for t in (1, 2):
        for mat in range(2): r += wrd(ks, fs, t, mat)
    return r
def mf(fs, t, mat, mt):
    a = acc(t, mat, mt); w = wr_(fs, t, mat); x = xr(fs, mt)
    return f"v_mfma_f32_16x16x32_bf16 v[{a}:{a+3}], v[{w}:{w+3}], v[{x}:{x+3}], v[{a}:{a+3}]"
def mfmas(fs):
    return [mf(fs, t, mat, mt) for t in range(3) for mat in range(2) for mt in range(4)]
if args.prew:
    for t in range(3):
        if t == 2:
            I(f"s_cmp_le_u32 s{s_valid}, 2"); I(f"s_cbranch_scc1 {P}_c_npw")
        for p_ in range(2):
            I(f"buffer_store_dwordx4 v[64:67], v{9+p_}, {srd(sH)}, s{s_hoff+t} offen sc1")
    L(f"{P}_c_npw")
if args.align:
    I(f"s_branch {P}_pg1"); out.append("@COLD@"); e(".p2align 12"); L(f"{P}_pg1")
if "b0" in args.diag: stamp(1)
I("s_barrier")
if "b0" not in args.diag: stamp(1)
r = reads(0, FA)
for x in r[:12]: I(x)
I(f"s_cmp_lg_u32 s{s_wave}, 4")
I(f"s_cbranch_scc1 {P}_c_noold")
I(f"buffer_load_dword v{vOLD}, v21, {srd(sH)}, s{s_fl} offen sc1")
L(f"{P}_c_noold")
I("s_waitcnt lgkmcnt(8)")
for x in r[12:]: I(x)
L(f"{P}_c_loop")
m = mfmas(FA); r = reads(1, FB)
extra = [f"s_add_u32 s{s_ring}, s{s_ring}, 1", f"s_cmp_eq_u32 s{s_ring}, 3",
         f"s_cselect_b32 s{s_t0}, {-2*SLOTSZ & 0xffffffff}, s{s_sx}", f"s_cselect_b32 s{s_ring}, 0, s{s_ring}",
         f"s_add_u32 s{s_cnt}, s{s_cnt}, 1", None]
upd = [f"v_add_u32 v{r}, s{s_t0}, v{r}" for r in vAX + vAW]
need = {0: 8, 8: 10, 12: 12, 16: 14, 20: 16}
for i in range(24):
    if i in need: I(f"s_waitcnt lgkmcnt({min(15, 16 - need[i] + min(i, 16))})")
    I(m[i])
    if i < 16: I(r[i])
    elif i < 19:
        for x in extra[2*(i-16):2*(i-16)+2]:
            if x: I(x)
    else: I(upd[i-19])
I("s_waitcnt lgkmcnt(0)")
m = mfmas(FB); r = reads(0, FA)
for i in range(24):
    if i == args.barpos: I("s_barrier")
    I(m[i])
    if i >= args.barpos:
        for x in r[(i - args.barpos) * args.rpg:(i - args.barpos + 1) * args.rpg]: I(x)
assert (24 - args.barpos) * args.rpg >= 16
I(f"s_cmp_lt_u32 s{s_cnt}, 7")
I(f"s_cbranch_scc1 {P}_c_loop")
stamp(2)
T = 32
def epi(t, p):
    tm = T + p * 12; o = tm + 8
    g = [acc(t, 0, 2*p + (q >> 2)) + (q & 3) for q in range(8)]
    u = [acc(t, 1, 2*p + (q >> 2)) + (q & 3) for q in range(8)]
    v = []
    if 2 * t + p >= args.pkfrom:
        pr = lambda r: f"v[{r}:{r+1}]"
        for q in range(0, 8, 2): v.append(f"v_pk_mul_f32 {pr(tm+q)}, {pr(g[q])}, v[56:57]")
        for q in range(8): v.append(f"v_exp_f32 v{tm+q}, v{tm+q}")
        for q in range(0, 8, 2): v.append(f"v_pk_add_f32 {pr(tm+q)}, {pr(tm+q)}, v[58:59]")
        for q in range(8): v.append(f"v_rcp_f32 v{tm+q}, v{tm+q}")
        for q in range(0, 8, 2): v.append(f"v_pk_mul_f32 {pr(tm+q)}, {pr(tm+q)}, {pr(g[q])}")
        for q in range(0, 8, 2): v.append(f"v_pk_mul_f32 {pr(tm+q)}, {pr(tm+q)}, {pr(u[q])}")
    else:
        for q in range(8): v.append(f"v_mul_f32 v{tm+q}, s{s_k}, v{g[q]}")
        for q in range(8): v.append(f"v_exp_f32 v{tm+q}, v{tm+q}")
        for q in range(8): v.append(f"v_add_f32 v{tm+q}, 1.0, v{tm+q}")
        for q in range(8): v.append(f"v_rcp_f32 v{tm+q}, v{tm+q}")
        for q in range(8): v.append(f"v_mul_f32 v{tm+q}, v{tm+q}, v{g[q]}")
        for q in range(8): v.append(f"v_mul_f32 v{tm+q}, v{tm+q}, v{u[q]}")
    for q in (0, 2, 1, 3): v.append(f"v_cvt_pk_bf16_f32 v{o+q}, v{tm+2*q}, v{tm+2*q+1}")
    v.append(("swap", o))
    v.append(("store", t, p, o))
    return v
def emit_v(x):
    if isinstance(x, tuple) and x[0] == "swap":
        o = x[1]
        I(f"v_permlane16_swap_b32 v{o}, v{o+2}")
        I("s_nop 0")
        I(f"v_permlane16_swap_b32 v{o+1}, v{o+3}")
    elif isinstance(x, tuple):
        _, t, p, o = x
        if t == 2:
            I(f"s_cmp_le_u32 s{s_valid}, 2")
            I(f"s_cbranch_scc1 {P}_c_ns{t}{p}")
        I(f"buffer_store_dwordx4 v[{o}:{o+3}], v{9+p}, {srd(sH)}, s{s_hoff+t} offen {'' if 'hplain' in args.diag else 'sc1'}")
        if t == 2: L(f"{P}_c_ns{t}{p}")
    else:
        I(x)
blocks = [(t, p) for t in range(3) for p in range(2)]
def bmf(t, p, fs): return [mf(fs, t, mat, 2*p + j) for mat in range(2) for j in range(2)]
rB = reads(1, FB)
I("s_waitcnt lgkmcnt(8)")
pre = bmf(0, 0, FA) + bmf(0, 1, FA)
for i in range(8):
    I(pre[i])
    if i == 3: I("s_waitcnt lgkmcnt(6)")
    I(rB[2*i])
    if i == 7: I("s_waitcnt lgkmcnt(9)")
    I(rB[2*i+1])
I("s_waitcnt lgkmcnt(8)")
seq = []
for bi, (t, p) in enumerate(blocks):
    x = bmf(t, p, FB) if bi < 2 else bmf(t, p, FA) + bmf(t, p, FB)
    seq += [(y, None) for y in x[:-1]] + [(x[-1], bi)]
vq = []; nxt = 0; since = {}
for i, (mi, done) in enumerate(seq):
    if i == 8:
        I("s_waitcnt lgkmcnt(0)")
        I("s_mov_b64 exec, 1"); I("ds_add_u32 v22, v23 offset:8"); I("s_mov_b64 exec, -1")
    I(mi)
    for k in since: since[k] += 1
    if done is not None: since[done] = 0
    n = 0
    while n < args.gapc:
        if not vq:
            if nxt in since and since[nxt] >= 4 and nxt < args.pkfrom:
                if since[nxt] < 9: I(f"s_nop {9 - since[nxt]}")
                vq += epi(*blocks[nxt]); nxt += 1
            else:
                break
        x = vq.pop(0)
        emit_v(x); n += 8 if (isinstance(x, tuple) or "exp" in x or "rcp" in x) else 4
        for k in since: since[k] += 1
while vq or nxt < 6:
    if not vq:
        if since[nxt] < 9: I(f"s_nop {9 - since[nxt]}")
        if nxt == args.stopat: I("ds_write_b32 v22, v23 offset:12")
        vq += epi(*blocks[nxt]); nxt += 1
    emit_v(vq.pop(0))
    for k in since: since[k] += 1
if args.stopat == 6: I("ds_write_b32 v22, v23 offset:12")
L(f"{P}_c_epidone")
stamp(3)
vB = [[10, 11], [12, 13], [14, 15]]
WF = 128; HR = 160; R = args.hring
I("v_lshrrev_b32 v16, 4, v1")
I("v_lshrrev_b32 v17, 5, v1")
I("v_bfe_u32 v18, v1, 2, 2")
I("v_lshl_add_u32 v17, v17, 3, v18")
I("v_lshlrev_b32 v17, 7, v17")
I("v_and_b32 v16, 1, v16")
I("v_and_b32 v19, 1, v1")
I("v_lshl_add_u32 v16, v19, 1, v16")
I("v_lshlrev_b32 v18, 1, v18")
I("v_and_b32 v18, 4, v18")
I(f"s_bfe_u32 s{s_t0}, s{s_wave}, {1 | (1 << 16)}")
I(f"s_lshl_b32 s{s_t1}, s{s_t0}, 2")
I(f"v_xor_b32 v18, s{s_t1}, v18")
I("v_xor_b32 v16, v16, v18")
I("v_lshl_add_u32 v17, v16, 4, v17")
I("v_bfe_u32 v19, v1, 1, 1")
I("v_lshl_add_u32 v17, v19, 3, v17")
I(f"s_lshl_b32 s{s_t1}, s{s_t0}, 11")
I(f"v_add_u32 v{vB[0][0]}, s{s_t1}, v17")
I(f"v_xor_b32 v{vB[0][1]}, 64, v{vB[0][0]}")
for sg in (1, 2):
    for nb in range(2):
        I(f"v_add_u32 v{vB[sg][nb]}, {sg*65536}, v{vB[0][nb]}")
I("s_waitcnt vmcnt(0)")
I(f"v_add_u32 v{vOLD}, 1, v{vOLD}")
I("s_barrier")
I(f"s_cmp_lg_u32 s{s_wave}, 4")
I(f"s_cbranch_scc1 {P}_c_p2")
I(f"s_cmp_ge_u32 s{s_sl}, 15")
I(f"s_cbranch_scc1 {P}_c_p2")
I("s_mov_b64 exec, 1")
I(f"buffer_store_dword v{vOLD}, v21, {srd(sH)}, s{s_fl} offen sc1")
I("s_mov_b64 exec, -1")
L(f"{P}_c_p2")
stamp(4)
def wreads(u, dst):
    a = unit_addr(u); sg = a >> 16; off = a & 0xffff
    return [f"ds_read_b64_tr_b16 v[{dst+4*nb+2*h}:{dst+4*nb+2*h+1}], v{vB[sg][nb]} offset:{off+h*512}" for nb in range(2) for h in range(2)]
NW, NPRE, PRE, TN = 3, 4, 96, args.tailn
def wdst(u):
    if u < 4: return PRE + 8 * u
    if u >= 43 - TN: return PRE + 8 * (u - (43 - TN))
    return WF + 8 * (u % NW)
for u in range(NPRE):
    if u == 3: I("s_waitcnt lgkmcnt(8)")
    for r in wreads(u, wdst(u)): I(r)
I("s_waitcnt lgkmcnt(0)")
I("s_barrier")
decode2()
I(f"s_bfe_u32 s{s_t0}, s{s_wave}, {1 | (1 << 16)}")
I(f"s_and_b32 s{s_t1}, s{s_wave}, 1")
I(f"s_lshl_b32 s{s_t2}, s{s_rb}, 1")
I(f"s_add_u32 s{s_t1}, s{s_t1}, s{s_t2}")
I(f"s_mul_i32 s{s_t2}, s{s_t1}, {HSTR}")
I(f"s_mul_i32 s{s_t3}, s{s_t0}, 43")
I(f"s_add_u32 s{s_t2}, s{s_t2}, s{s_t3}")
I(f"s_lshl_b32 s{s_pbeg}, s{s_t2}, 10")
I(f"s_add_u32 s{s_pend}, s{s_pbeg}, {43*1024}")
I(f"s_lshl_b32 s{s_t2}, s{s_rot2}, 10")
I(f"s_add_u32 s{s_p}, s{s_pbeg}, s{s_t2}")
I("v_and_b32 v16, 31, v1")
I("v_lshlrev_b32 v16, 10, v16")
I("v_and_b32 v17, 32, v1")
I(f"s_lshl_b32 s{s_t1}, s{s_t1}, 15")
I(f"s_lshl_b32 s{s_t2}, s{s_cb}, 7")
I(f"s_add_u32 s{s_t1}, s{s_t1}, s{s_t2}")
I(f"s_lshl_b32 s{s_t2}, s{s_t0}, 6")
I(f"s_add_u32 s{s_t1}, s{s_t1}, s{s_t2}")
I(f"v_add3_u32 v16, v16, v17, s{s_t1}")
I(f"s_and_b32 s{s_t1}, s{s_wave}, 3")
I(f"s_lshl_b32 s{s_t1}, s{s_t1}, 12")
I(f"s_xor_b32 s{s_t2}, s{s_t1}, {2 << 12}")
I(f"s_add_u32 s{s_t1}, s{s_t1}, {XCH}")
I(f"s_add_u32 s{s_t2}, s{s_t2}, {XCH}")
I(f"v_add_u32 v17, s{s_t1}, v9")
I(f"v_add_u32 v18, s{s_t2}, v9")
if args.otr:
    I("v_and_b32 v25, 31, v1")
    I(f"s_and_b32 s{s_t1}, s{s_wave}, 1")
    I(f"s_lshl_b32 s{s_t1}, s{s_t1}, 12")
    I(f"s_add_u32 s{s_t1}, s{s_t1}, {OTR}")
    I(f"v_lshl_add_u32 v26, v25, 7, s{s_t1}")
    I("v_lshrrev_b32 v27, 5, v1")
    I(f"s_lshl_b32 s{s_t2}, s{s_t0}, 1")
    I(f"v_add_lshl_u32 v27, v27, s{s_t2}, 1")
    I("v_and_b32 v25, 7, v25")
    I("v_xor_b32 v27, v27, v25")
    I("v_lshl_add_u32 v25, v27, 4, v26")
    I("v_xor_b32 v26, 16, v25")
    if args.otr == 1:
        I("v_lshrrev_b32 v27, 2, v1")
        I("v_and_b32 v28, 3, v1")
        I(f"s_lshl_b32 s{s_t2}, s{s_t0}, 2")
        I(f"v_add_u32 v28, s{s_t2}, v28")
        rowstep = 16
    else:
        I("v_lshrrev_b32 v27, 3, v1")
        I(f"s_lshl_b32 s{s_t2}, s{s_t0}, 4")
        I(f"v_add_u32 v27, s{s_t2}, v27")
        I("v_and_b32 v28, 7, v1")
        rowstep = 8
    I(f"s_and_b32 s{s_t2}, s{s_wave}, 1")
    I(f"s_lshl_b32 s{s_t3}, s{s_rb}, 1")
    I(f"s_add_u32 s{s_t2}, s{s_t2}, s{s_t3}")
    I(f"s_lshl_b32 s{s_t2}, s{s_t2}, 15")
    I(f"s_lshl_b32 s{s_t3}, s{s_cb}, 7")
    I(f"s_add_u32 s{s_t2}, s{s_t2}, s{s_t3}")
    I(f"v_lshl_add_u32 v16, v27, 10, s{s_t2}")
    I("v_lshl_add_u32 v16, v28, 4, v16")
    I(f"v_add_u32 v29, {rowstep*1024}, v16")
    I("v_and_b32 v30, 7, v27")
    I("v_xor_b32 v28, v28, v30")
    I(f"v_lshl_add_u32 v27, v27, 7, s{s_t1}")
    I("v_lshl_add_u32 v27, v28, 4, v27")
for r in range(0, 32, 2):
    I(f"v_mov_b64 v[{ACC+r}:{ACC+r+1}], 0")
if args.align:
    I(f"s_branch {P}_c_spin"); e(".p2align 12")
L(f"{P}_c_spin")
I("ds_read_b32 v24, v22")
I("s_waitcnt lgkmcnt(0)")
I(f"v_readfirstlane_b32 s{s_t0}, v24")
I("s_nop 0")
I(f"s_cmp_eq_u32 s{s_t0}, 0")
I(f"s_cbranch_scc1 {P}_c_spin")
stamp(5)
if "p2" in args.diag: stamp(1, True)
def hload(s):
    b = HR + 4 * (s % R)
    return [f"buffer_load_dwordx4 v[{b}:{b+3}], v9, {srd(sH)}, s{s_p} offen sc1",
            f"s_add_u32 s{s_p}, s{s_p}, 1024",
            f"s_cmp_eq_u32 s{s_p}, s{s_pend}",
            f"s_cselect_b32 s{s_p}, s{s_pbeg}, s{s_p}"]
for s in range(args.hpro):
    for x in hload(s): I(x)
issued = args.hpro
def mm2(s, nb):
    hb = HR + 4 * (s % R); wd = wdst(s)
    return f"v_mfma_f32_32x32x16_bf16 v[{ACC+16*nb}:{ACC+16*nb+15}], v[{wd+4*nb}:{wd+4*nb+3}], v[{hb}:{hb+3}], v[{ACC+16*nb}:{ACC+16*nb+15}]"
for s in range(43):
    u = s + 2
    young = 1 if NPRE <= s + 1 < 43 else 0
    I(f"s_waitcnt vmcnt({issued - s - 1}) lgkmcnt({4*young})")
    if "p2" in args.diag and s in (0, 5, 11, 21, 32, 42): stamp({0:2, 5:3, 11:4, 21:5, 32:6, 42:7}[s], True)
    if u == wdone: I("s_barrier")
    wr = wreads(u, wdst(u)) if NPRE <= u < 43 else []
    I(mm2(s, 1))
    for r in wr[:2]: I(r)
    if issued < 43 and issued - R < s:
        for x in hload(issued): I(x)
        issued += 1
    if s < 43 - TN: I(mm2(s, 0))
    for r in wr[2:]: I(r)
    if issued < 43 and issued - R < s and issued - s - 1 < R - 1:
        for x in hload(issued): I(x)
        issued += 1
stamp(6)
tl = [mm2(s, 0) for s in range(43 - TN, 43)]
if tl: I(tl.pop(0))
I("s_nop 7")
I("s_nop 3")
for q in range(4):
    I(f"ds_write_b128 v17, v[{ACC+16+4*q}:{ACC+19+4*q}] offset:{q*1024}")
    if tl and q % 2 == 1: I(tl.pop(0))
for x in tl: I(x)
I("s_waitcnt lgkmcnt(0)")
I("s_barrier")
for q in range(4):
    I(f"ds_read_b128 v[{128+4*q}:{131+4*q}], v18 offset:{q*1024}")
I("s_nop 5")
for q in range(4):
    I(f"s_waitcnt lgkmcnt({3-q + (1 if args.otr and q >= 2 else 0)})")
    for p in range(2):
        I(f"v_pk_add_f32 v[{ACC+4*q+2*p}:{ACC+4*q+2*p+1}], v[{ACC+4*q+2*p}:{ACC+4*q+2*p+1}], v[{128+4*q+2*p}:{129+4*q+2*p}]")
    for p in range(2):
        I(f"v_cvt_pk_bf16_f32 v{144+2*q+p}, v{ACC+4*q+2*p}, v{ACC+4*q+2*p+1}")
    if q == 1:
        if args.otr: I("ds_write_b128 v25, v[144:147]")
        else: I(f"buffer_store_dwordx4 v[144:147], v16, {srd(sO)}, 0 offen {args.ost}")
if args.otr:
    I("ds_write_b128 v26, v[148:151]")
    if args.otr == 2:
        I("s_waitcnt lgkmcnt(0)")
        I("s_barrier")
    I("ds_read_b128 v[152:155], v27")
    I(f"ds_read_b128 v[156:159], v27 offset:{rowstep*128}")
    I("s_waitcnt lgkmcnt(1)")
    I(f"buffer_store_dwordx4 v[152:155], v16, {srd(sO)}, 0 offen {args.ost}")
    I("s_waitcnt lgkmcnt(0)")
    I(f"buffer_store_dwordx4 v[156:159], v29, {srd(sO)}, 0 offen {args.ost}")
else:
    I(f"buffer_store_dwordx4 v[148:151], v16, {srd(sO)}, 0 offen offset:16 {args.ost}")
if "dirty" in args.diag:
    n = int(re.search(r"dirty(\d+)", args.diag).group(1))
    I(f"s_mov_b32 s{sH+2}, {64 << 20}")
    I(f"s_lshl_b32 s{s_t0}, s2, 2")
    I(f"s_add_u32 s{s_t0}, s{s_t0}, s{s_wave}")
    I(f"s_mul_i32 s{s_t0}, s{s_t0}, {n*1024}")
    I(f"s_add_u32 s{s_t0}, s{s_t0}, {16 << 20}")
    for i in range(n):
        I(f"buffer_store_dwordx4 v[144:147], v9, {srd(sH)}, s{s_t0} offen")
        I(f"s_add_u32 s{s_t0}, s{s_t0}, 1024")
if STAMPS: I("s_waitcnt vmcnt(0)")
stamp(7)
if args.amp and args.amp != "none" and not args.amp.startswith("L"): amp_block(args.amp, "c")
prof_store()
I("s_endpgm")
COLD_MARK = len(out)
L(f"{P}_c_lazy")
for i in range(8): I("s_barrier")
I("s_mov_b64 exec, 1"); I("ds_add_u32 v22, v23 offset:8"); I("s_mov_b64 exec, -1")
I(f"s_branch {P}_c_epidone")
L(f"{P}_c_idle")
srd_tail(sX, XB); srd_tail(sW2, W2B)
prefetch_jobs()
I(f"s_branch {P}_c_epidone")
out += loader_tail
if args.align:
    cold = out[COLD_MARK:]; del out[COLD_MARK:]
    i = out.index("@COLD@"); out[i:i+1] = cold
L(f"{P}_codeend")

e('.section .rodata,"a"')
e(".p2align 6")
e(f".amdhsa_kernel {label}")
for l in ("next_free_vgpr 256", "next_free_sgpr 102", "accum_offset 256", "group_segment_fixed_size 0", "kernarg_size 56",
          "user_sgpr_count 2", "user_sgpr_kernarg_segment_ptr 1", "system_sgpr_workgroup_id_x 1", "float_denorm_mode_32 3"):
    e("  .amdhsa_" + l)
e(".end_amdhsa_kernel")

text = "\n".join(out) + "\n"
def symbols(t):
    with tempfile.TemporaryDirectory() as d:
        open(d + "/k.s", "w").write(t)
        subprocess.run(["clang", "-x", "assembler", "-target", "amdgcn-amd-amdhsa", "-mcpu=gfx950", "-c", d + "/k.s", "-o", d + "/k.o"], check=True)
        sym = subprocess.run(["llvm-objdump", "-t", d + "/k.o"], capture_output=True, text=True).stdout
    return {m.group(2): int(m.group(1), 16) for m in re.finditer(r"^([0-9a-f]{16}) .*\s(\S+)$", sym, re.M)}
a = symbols(text.replace("@CODELINES@", "100"))
assert a[f"{P}_codeend"] < 16384
sys.stderr.write(f"code {a[f'{P}_codeend']} B: loop@{a[f'{P}_l_loop']} compute@{a[f'{P}_compute']} cloop@{a[f'{P}_c_loop']} p2@{a[f'{P}_c_p2']} ltail@{a[f'{P}_l_tail']}\n")
open(args.o, "w").write(text)
```

```python
import sys, argparse, subprocess, tempfile, re

ap = argparse.ArgumentParser()
ap.add_argument("-o", default="standalone__glu_gated_swiglu__prompt.s")
ap.add_argument("--prof", action="store_true")
ap.add_argument("--cyc", action="store_true")
ap.add_argument("--amp", default="")
ap.add_argument("--diag", default="")
ap.add_argument("--xrot", type=int, default=4)
ap.add_argument("--hring", type=int, default=12)
ap.add_argument("--hpro", type=int, default=10)
ap.add_argument("--sleep", type=int, default=1)
ap.add_argument("--codepf", type=int, default=1)
ap.add_argument("--prio", type=int, default=1)
ap.add_argument("--atb6", type=int, default=8)
ap.add_argument("--kmin", type=int, default=12)
ap.add_argument("--stopat", type=int, default=4)
ap.add_argument("--pace2", type=int, default=10)
ap.add_argument("--pace", type=int, default=10)
ap.add_argument("--barpos", type=int, default=16)
ap.add_argument("--rpg", type=int, default=2)
ap.add_argument("--gapc", type=int, default=8)
ap.add_argument("--pkfrom", type=int, default=1)
ap.add_argument("--tailn", type=int, default=3)
ap.add_argument("--jobx3", type=int, default=0)
ap.add_argument("--job3", type=int, default=1)
ap.add_argument("--jobM", type=int, default=0)
ap.add_argument("--jobX", type=int, default=1)
ap.add_argument("--otr", type=int, default=2)
ap.add_argument("--ost", default="sc1")
ap.add_argument("--prew", type=int, default=0)
ap.add_argument("--align", type=int, default=1)
ap.add_argument("--morder", type=int, default=1)
ap.add_argument("--fsleep", type=int, default=0)
ap.add_argument("--tlbw", type=int, default=0)
ap.add_argument("--map", type=int, default=0)
ap.add_argument("--burst", type=int, default=1)
ap.add_argument("--stouch", type=int, default=0)
ap.add_argument("--wb1", type=int, default=2)
args = ap.parse_args()

NAME = "standalone__glu_gated_swiglu__prompt"
out = []
def e(s=""): out.append(s)
def I(s): out.append("    " + s)
def L(s): out.append(s + ":")

S, D, F = 2048, 512, 1376
XB, WB, W2B, OB = S * D * 2, D * F * 2, F * D * 2, S * D * 2
HSTR = 87
WS_REC = 8 << 20
PROF_OFF = 7 << 20
SLOT0, SLOTSZ, LDS_SCR, LDS_TOTAL = 36864 + 40960, 40960, 159744, 163840
def unit_addr(u): return (u % 39) * 4096
XCH = 4 * 4096
OTR = 8 * 4096

sX, sW1, sW3, sW2, sH, sO, sD = 20, 24, 28, 32, 36, 40, 44
s_wave, s_mg4, s_sh, s_mt, s_sl, s_rb, s_cb = 48, 49, 50, 51, 52, 53, 54
s_t0, s_t1, s_t2, s_t3 = 55, 56, 57, 58
s_cnt, s_kst, s_sx, s_sw, s_ring = 59, 60, 61, 62, 63
s_lx, s_lw, s_rot2, s_fl = 64, 65, 66, 67
s_k = 68
s_xb, s_wb, s_lu = 69, 70, 71
s_hoff = 72
s_p, s_pend, s_pbeg, s_valid = 78, 79, 80, 81
s_u, s_lim = 75, 76
s_prof = 84
def srd(r): return f"s[{r}:{r+3}]"
STAMPS = args.prof or args.amp
MUTE = [False]
def stamp(i, force=False):
    if "clk" in args.diag:
        m = {1: 0, 2: 1, 4: 2, 5: 3}
        if i in m:
            I(f"s_memrealtime s[{s_prof+2*m[i]}:{s_prof+2*m[i]+1}]"); I(f"s_memtime s[{s_prof+8+2*m[i]}:{s_prof+9+2*m[i]}]")
        return
    if MUTE[0] and not force: return
    if STAMPS: I(f"{'s_memtime' if args.cyc else 's_memrealtime'} s[{s_prof+2*i}:{s_prof+2*i+1}]")
def srd_tail(r, nbytes):
    I(f"s_mov_b32 s{r+2}, {nbytes}")
    I(f"s_mov_b32 s{r+3}, 0x20000")
def prof_store():
    if not args.prof: return
    I("s_waitcnt lgkmcnt(0)")
    I(f"s_lshl_b32 s{s_t0}, s2, 3")
    I(f"s_xor_b32 s{s_t1}, s{s_wave}, 4")
    I(f"s_add_u32 s{s_t0}, s{s_t0}, s{s_t1}")
    I(f"s_lshl_b32 s{s_t0}, s{s_t0}, 5")
    I(f"s_add_u32 s{s_t0}, s{s_t0}, {PROF_OFF}")
    for i in range(8): I(f"v_mov_b32 v{240+i}, s{s_prof+2*i}")
    I("v_mov_b32 v248, 0")
    I("s_mov_b64 exec, 1")
    I(f"buffer_store_dwordx4 v[240:243], v248, {srd(sH)}, s{s_t0} offen")
    I(f"buffer_store_dwordx4 v[244:247], v248, {srd(sH)}, s{s_t0} offen offset:16")
    I("s_mov_b64 exec, -1")
P = "K"
def amp_block(spec, tag):
    ai, aj = [int(t) for t in spec.split(",")]
    I("s_waitcnt lgkmcnt(0)")
    I(f"s_sub_u32 s{s_t0}, s{s_prof+2*aj}, s{s_prof+2*ai}")
    I(f"s_cmp_eq_u32 s{s_prof+2*ai}, 0")
    I(f"s_cselect_b32 s{s_t0}, 0, s{s_t0}")
    I(f"s_cmp_eq_u32 s{s_prof+2*aj}, 0")
    I(f"s_cselect_b32 s{s_t0}, 0, s{s_t0}")
    I(f"s_min_u32 s{s_t0}, s{s_t0}, 20000")
    I(f"s_mul_i32 s{s_t0}, s{s_t0}, 10")
    I("s_memrealtime s[82:83]")
    I("s_waitcnt lgkmcnt(0)")
    I(f"s_mov_b32 s{s_t1}, s82")
    L(f"{P}_amp{tag}")
    I("s_memrealtime s[82:83]")
    I("s_waitcnt lgkmcnt(0)")
    I(f"s_sub_u32 s{s_t2}, s82, s{s_t1}")
    I(f"s_cmp_lt_u32 s{s_t2}, s{s_t0}")
    I(f"s_cbranch_scc1 {P}_amp{tag}")

def kst_init():
    if args.map and args.xrot == 1:
        I(f"s_lshl_b32 s{s_kst}, s{s_sh}, 2")
        I(f"s_xor_b32 s{s_kst}, s{s_kst}, s{s_mg4}")
        I(f"s_and_b32 s{s_kst}, s{s_kst}, 4")
    elif args.map and args.xrot == 4:
        I(f"s_lshr_b32 s{s_kst}, s{s_mg4}, 1")
        I(f"s_lshl_b32 s{s_cnt}, s{s_sh}, 2")
        I(f"s_add_u32 s{s_kst}, s{s_kst}, s{s_cnt}")
        I(f"s_and_b32 s{s_kst}, s{s_kst}, 7")
    elif args.xrot == 1:
        I(f"s_add_u32 s{s_kst}, s2, s{s_sh}")
        I(f"s_and_b32 s{s_kst}, s{s_kst}, 1")
        I(f"s_lshl_b32 s{s_kst}, s{s_kst}, 2")
    elif args.xrot == 4:
        I(f"s_lshl_b32 s{s_kst}, s{s_sh}, 1")
        I(f"s_add_u32 s{s_kst}, s{s_kst}, s2")
        I(f"s_and_b32 s{s_kst}, s{s_kst}, 3")
        I(f"s_lshl_b32 s{s_kst}, s{s_kst}, 1")
    elif args.xrot == 5:
        I(f"s_lshl_b32 s{s_kst}, s{s_sh}, 1")
        I(f"s_add_u32 s{s_kst}, s{s_kst}, s2")
        I(f"s_and_b32 s{s_kst}, s{s_kst}, 3")
        I(f"s_add_u32 s{s_cnt}, s{s_mt}, s{s_sl}")
        I(f"s_and_b32 s{s_cnt}, s{s_cnt}, 1")
        I(f"s_lshl_b32 s{s_cnt}, s{s_cnt}, 2")
        I(f"s_add_u32 s{s_kst}, s{s_kst}, s{s_cnt}")
    elif args.xrot == 6:
        I(f"s_add_u32 s{s_kst}, s2, s{s_sh}")
        I(f"s_and_b32 s{s_kst}, s{s_kst}, 1")
        I(f"s_lshl_b32 s{s_kst}, s{s_kst}, 1")
        I(f"s_add_u32 s{s_cnt}, s{s_mt}, s{s_sl}")
        I(f"s_and_b32 s{s_cnt}, s{s_cnt}, 1")
        I(f"s_lshl_b32 s{s_cnt}, s{s_cnt}, 2")
        I(f"s_add_u32 s{s_kst}, s{s_kst}, s{s_cnt}")
    else:
        I(f"s_mov_b32 s{s_kst}, 0")

def decode2():
    I(f"s_lshl_b32 s{s_t0}, s{s_sh}, 1")
    I(f"s_add_u32 s{s_t0}, s{s_t0}, s{s_mg4}")
    I(f"s_lshl_b32 s{s_t0}, s{s_t0}, 1")
    I(f"s_lshr_b32 s{s_t1}, s2, 6")
    I(f"s_add_u32 s{s_rb}, s{s_t0}, s{s_t1}")
    I(f"s_bfe_u32 s{s_cb}, s2, {3 | (3 << 16)}")
    I(f"s_mul_i32 s{s_rot2}, s{s_t1}, 11")

label = NAME + "_kernel"
e(f"; @launch grid=(256,1,1) block=(512,1,1) lds={LDS_TOTAL}")
e('.amdgcn_target "amdgcn-amd-amdhsa--gfx950"')
e(".text")
e(f".globl {label}")
e(".p2align 8")
e(f".type {label},@function")
L(label)
I("s_cmp_ge_u32 s2, 256")
I(f"s_cbranch_scc1 {P}_end")
for r, off in ((sX, 0), (sW1, 8), (sW3, 16), (sW2, 24), (sO, 32), (sD, 40), (sH, 48)):
    I(f"s_load_dwordx2 s[{r}:{r+1}], s[0:1], {off}")
if STAMPS:
    for i in range(8): I(f"s_mov_b32 s{s_prof+2*i}, 0")
if "delay" in args.diag:
    for i in range(int(re.search(r"delay(\d+)", args.diag).group(1))): I("s_sleep 18")
stamp(0)
I("v_lshrrev_b32 v2, 6, v0")
I("v_and_b32 v1, 63, v0")
I(f"v_readfirstlane_b32 s{s_wave}, v2")
if args.map:
    I(f"s_and_b32 s{s_mg4}, s2, 6")
    I(f"s_lshl_b32 s{s_mg4}, s{s_mg4}, 1")
else:
    I(f"s_and_b32 s{s_mg4}, s2, 3")
    I(f"s_lshl_b32 s{s_mg4}, s{s_mg4}, 2")
I(f"s_cmp_lt_u32 s{s_wave}, 4")
I(f"s_cbranch_scc1 {P}_dec")
if args.codepf:
    I("s_getpc_b64 s[18:19]")
    L(f"{P}_pc")
    I("v_bfe_u32 v60, v0, 1, 7")
    I("v_lshlrev_b32 v60, 7, v60")
    I(f"v_min_u32 v60, {P}_codeend-{P}_pc-4, v60")
    I("global_load_dword v61, v60, s[18:19]")
L(f"{P}_dec")
I(f"s_bfe_u32 s{s_sh}, s2, {(0 if args.map else 2) | (1 << 16)}")
I(f"s_bfe_u32 s{s_t2}, s2, {3 | (2 << 16)}")
I(f"s_lshr_b32 s{s_t3}, s2, 5")
I(f"s_add_u32 s{s_mt}, s{s_mg4}, s{s_t2}")
I(f"s_mul_i32 s{s_sl}, s{s_sh}, 7")
I(f"s_add_u32 s{s_sl}, s{s_sl}, s{s_t3}")
I(f"s_cmp_lg_u32 s{s_t3}, 7")
I(f"s_cbranch_scc1 {P}_dec2")
I(f"s_lshl_b32 s{s_t0}, s{s_sh}, 1")
I(f"s_and_b32 s{s_t1}, s{s_t2}, 1")
I(f"s_add_u32 s{s_mt}, s{s_mg4}, s{s_t0}")
I(f"s_add_u32 s{s_mt}, s{s_mt}, s{s_t1}")
I(f"s_lshr_b32 s{s_sl}, s{s_t2}, 1")
I(f"s_add_u32 s{s_sl}, s{s_sl}, 14")
L(f"{P}_dec2")
I(f"s_cmp_ge_u32 s{s_wave}, 4")
I(f"s_cbranch_scc1 {P}_compute")

MUTE[0] = "stages" in args.diag
vX = [2, 3, 4, 5]; vW = [6, 7, 8]; vW2 = 13
vFA, vFS, vFN = 20, 21, 22
I("v_lshrrev_b32 v14, 3, v1")
I("v_lshrrev_b32 v15, 4, v1")
I("v_and_b32 v16, 7, v1")
I("v_xor_b32 v15, v15, v16")
I("v_lshlrev_b32 v14, 10, v14")
I(f"v_lshl_add_u32 v{vX[0]}, v15, 4, v14")
I(f"v_xor_b32 v{vX[1]}, 64, v{vX[0]}")
I(f"v_add_u32 v{vX[1]}, 7168, v{vX[1]}")
I(f"v_add_u32 v{vX[2]}, 14336, v{vX[0]}")
I(f"v_add_u32 v{vX[3]}, 14336, v{vX[1]}")
I(f"s_bitcmp1_b32 s{s_sl}, 0")
I(f"s_cselect_b32 s{s_t0}, -64, 64")
I(f"s_cselect_b32 s{s_t1}, 128, 0")
I(f"s_cmp_eq_u32 s{s_sl}, 14")
I(f"s_cselect_b32 s{s_t0}, 0, s{s_t0}")
I(f"s_mul_i32 s{s_t2}, s{s_t0}, -3")
I(f"s_add_u32 s{s_t2}, s{s_t2}, 2752")
I("v_lshrrev_b32 v14, 2, v1")
I("v_and_b32 v15, 3, v1")
I(f"v_lshl_add_u32 v15, v15, 4, s{s_t1}")
I("v_and_b32 v16, 32, v1")
for j in range(3):
    if j: I(f"v_add_u32 v14, 16, v14")
    I("v_mul_u32_u24 v17, 43, v14")
    if j == 0: I("v_mov_b32 v18, v15")
    if j == 1: I("v_xor_b32 v18, v15, v16")
    if j == 2: I("v_xor_b32 v18, 32, v15")
    I("v_lshrrev_b32 v17, 7, v17")
    I(f"v_mad_i32_i24 v18, v14, s{s_t0}, v18")
    I(f"v_mad_i32_i24 v{vW[j]}, v17, s{s_t2}, v18")
    if j: I(f"v_subrev_u32 v{vW[j]}, {1024*j}, v{vW[j]}")
I(f"s_lshl_b32 s{s_lx}, s{s_wave}, 12")
I(f"s_add_u32 s{s_lx}, s{s_lx}, {SLOT0}")
I(f"s_mul_i32 s{s_lw}, s{s_wave}, 6144")
I(f"s_add_u32 s{s_lw}, s{s_lw}, {SLOT0+16384}")
I(f"s_lshl_b32 s{s_xb}, s{s_mt}, 17")
I(f"s_lshl_b32 s{s_t0}, s{s_wave}, 15")
I(f"s_add_u32 s{s_xb}, s{s_xb}, s{s_t0}")
I(f"s_mul_i32 s{s_wb}, s{s_sl}, 192")
I(f"s_mul_i32 s{s_t0}, s{s_wave}, {16*2752}")
I(f"s_add_u32 s{s_wb}, s{s_wb}, s{s_t0}")
kst_init()
I(f"s_mov_b32 s{s_cnt}, 0")
I(f"s_mov_b32 s{s_ring}, {SLOTSZ}")
srd_tail(sX, XB); srd_tail(sW1, WB); srd_tail(sW3, WB)
I(f"s_cmp_ge_u32 s{s_sl}, 15")
I(f"s_cbranch_scc1 {P}_l_init")
I(f"s_lshl_b32 s{s_t0}, s{s_kst}, 7")
I(f"s_add_u32 s{s_sx}, s{s_xb}, s{s_t0}")
I(f"s_mul_i32 s{s_sw}, s{s_kst}, {64*2752}")
I(f"s_add_u32 s{s_sw}, s{s_sw}, s{s_wb}")
I(f"s_mov_b32 m0, s{s_lx}")
I("s_waitcnt lgkmcnt(0)")
if args.tlbw:
    I(f"s_load_dword s3, s[{sW1}:{sW1+1}], s{s_sw}")
    I(f"s_load_dword s4, s[{sW3}:{sW3+1}], s{s_sw}")
    if args.tlbw > 1:
        I(f"s_load_dword s5, s[{sW2}:{sW2+1}], 0")
        I(f"s_load_dword s6, s[{sO}:{sO+1}], 0")
stamp(1)
def issueS(tag):
    for j in range(4):
        I(f"buffer_load_dwordx4 v{vX[j]}, {srd(sX)}, s{s_sx} offen offset:{1024*j} lds")
    I(f"s_mov_b32 m0, s{s_lw}")
    I(f"s_add_u32 s{s_kst}, s{s_kst}, 1")
    for j in range(3):
        I(f"buffer_load_dwordx4 v{vW[j]}, {srd(sW1)}, s{s_sw} offen offset:{1024*j} lds")
    I("s_add_u32 m0, m0, 3072")
    I(f"s_and_b32 s{s_kst}, s{s_kst}, 7")
    for j in range(3):
        I(f"buffer_load_dwordx4 v{vW[j]}, {srd(sW3)}, s{s_sw} offen offset:{1024*j} lds")
    I(f"s_lshl_b32 s{s_t0}, s{s_kst}, 7")
    I(f"s_add_u32 s{s_sx}, s{s_xb}, s{s_t0}")
    I(f"s_mul_i32 s{s_sw}, s{s_kst}, {64*2752}")
    I(f"s_add_u32 s{s_sw}, s{s_sw}, s{s_wb}")
    I(f"s_cmp_ge_u32 s{s_lx}, {SLOT0+SLOTSZ}")
    I(f"s_cselect_b32 s{s_t0}, {-2*SLOTSZ & 0xffffffff}, s{s_ring}")
    I(f"s_add_u32 s{s_lx}, s{s_lx}, s{s_t0}")
    I(f"s_add_u32 s{s_lw}, s{s_lw}, s{s_t0}")
    I(f"s_mov_b32 m0, s{s_lx}")
    I(f"s_add_u32 s{s_cnt}, s{s_cnt}, 1")
L(f"{P}_l_loop")
issueS("a")
I(f"s_cmp_eq_u32 s{s_cnt}, 1")
I(f"s_cbranch_scc1 {P}_l_loop")

L(f"{P}_l_init")
decode2()
srd_tail(sW2, W2B); srd_tail(sH, WS_REC); srd_tail(sD, 256)
I("v_lshrrev_b32 v14, 3, v1")
I(f"s_and_b32 s{s_t0}, s{s_wave}, 1")
I(f"s_lshl_b32 s{s_t0}, s{s_t0}, 3")
I(f"s_lshr_b32 s{s_t1}, s{s_wave}, 1")
I(f"s_mul_i32 s{s_t1}, s{s_t1}, 688")
I(f"s_add_u32 s{s_t0}, s{s_t0}, s{s_t1}")
I(f"v_add_u32 v14, s{s_t0}, v14")
I("v_lshlrev_b32 v14, 10, v14")
I("v_lshrrev_b32 v15, 2, v1")
I("v_and_b32 v15, 4, v15")
I("v_and_b32 v16, 7, v1")
I("v_xor_b32 v15, v15, v16")
I(f"v_lshl_add_u32 v{vW2}, v15, 4, v14")
I(f"s_lshl_b32 s{s_pbeg}, s{s_cb}, 7")
I(f"s_add_u32 s{s_pend}, s{s_pbeg}, {43*16384}")
I(f"s_lshl_b32 s{s_t0}, s{s_rot2}, 14")
I(f"s_add_u32 s{s_p}, s{s_pbeg}, s{s_t0}")
I(f"s_lshl_b32 s{s_lu}, s{s_wave}, 10")
I(f"s_lshr_b32 s{s_t0}, s{s_rb}, 1")
I(f"s_mul_i32 s{s_fl}, s{s_t0}, {4*HSTR*1024}")
I(f"s_add_u32 s{s_fl}, s{s_fl}, {86*1024}")
I("v_min_u32 v14, 15, v1")
I(f"s_lshl_b32 s{s_valid}, 1, s{s_sl}")
I(f"s_cmp_eq_u32 s{s_t0}, s{s_mt}")
I(f"s_cselect_b32 s{s_t1}, s{s_sl}, 15")
I(f"s_cselect_b32 s{s_valid}, s{s_valid}, 0")
I(f"v_cmp_eq_u32 vcc, s{s_t1}, v14")
I("v_mov_b32 v15, 15")
I("s_nop 0")
I("v_cndmask_b32 v14, v14, v15, vcc")
I("v_lshrrev_b32 v15, 3, v14")
I(f"v_mul_u32_u24 v15, {HSTR*1024}, v15")
I("v_and_b32 v14, 7, v14")
I(f"v_lshl_add_u32 v{vFA}, v14, 7, v15")
I("s_waitcnt lgkmcnt(0)")
I(f"s_cmp_lg_u32 s{s_wave}, 0")
I(f"s_cbranch_scc1 {P}_l_nosamp")
I(f"buffer_load_dword v{vFS}, v{vFA}, {srd(sH)}, s{s_fl} offen sc1")
L(f"{P}_l_nosamp")
I(f"s_cmp_ge_u32 s{s_sl}, 15")
I(f"s_cbranch_scc1 {P}_l_idle")
if args.stouch:
    I(f"s_lshr_b32 s{s_t0}, s2, 3")
    I(f"s_lshl_b32 s{s_t0}, s{s_t0}, 2")
    I(f"s_add_u32 s{s_t0}, s{s_t0}, s{s_wave}")
    I(f"s_mul_i32 s{s_t0}, s{s_t0}, {11*1024}")
    I(f"s_add_u32 s18, s{sW2}, s{s_t0}")
    I(f"s_addc_u32 s19, s{sW2+1}, 0")
L(f"{P}_l_wait")
I("s_waitcnt vmcnt(10)")
if "b0" in args.diag:
    I(f"s_cmp_lg_u32 s{s_cnt}, 2"); I(f"s_cbranch_scc1 {P}_l_nb0"); stamp(7, True); L(f"{P}_l_nb0")
I("s_barrier")
if "stages" in args.diag:
    for c in range(1, 7):
        I(f"s_cmp_lg_u32 s{s_cnt}, {c+2}"); I(f"s_cbranch_scc1 {P}_l_st{c}"); stamp(c, True); L(f"{P}_l_st{c}")
I(f"s_cmp_ge_u32 s{s_cnt}, 8")
I(f"s_cbranch_scc1 {P}_l_tail")
issueS("b")
if args.stouch == 1:
    for c in (0, 1, 2, 4, 5):
        for hh in range(2): I(f"s_load_dword s3, s[18:19], {c*128 + hh*64}")
    I("s_add_u32 s18, s18, 2048"); I("s_addc_u32 s19, s19, 0")
if args.stouch == 2:
    for r in range(2):
        for c in (0, 1, 2, 4, 5): I(f"s_load_dwordx2 s[4:5], s[18:19], {r*1024 + c*128 + 60}")
    I("s_add_u32 s18, s18, 2048"); I("s_addc_u32 s19, s19, 0")
I(f"s_branch {P}_l_wait")
LOADER_TAIL_MARK = len(out)

wcount = [0]
def w_one():
    I(f"buffer_load_dwordx4 v{vW2}, {srd(sW2)}, s{s_p} offen lds")
    I(f"s_add_u32 s{s_p}, s{s_p}, 16384")
    I(f"s_cmp_eq_u32 s{s_p}, s{s_pend}")
    I(f"s_cselect_b32 s{s_p}, s{s_pbeg}, s{s_p}")
    I("s_add_u32 m0, m0, 4096")
    I(f"s_add_u32 s{s_u}, s{s_u}, 1")
def issueW(lim, pace=0):
    lab = f"{P}_l_w{wcount[0]}"; wcount[0] += 1
    I(f"s_cmp_ge_u32 s{s_u}, {lim}")
    I(f"s_cbranch_scc1 {lab}e")
    L(lab)
    if pace: I(f"s_waitcnt vmcnt({pace-1})")
    w_one()
    I(f"s_cmp_lt_u32 s{s_u}, {lim}")
    I(f"s_cbranch_scc1 {lab}")
    L(lab + "e")

pfc = [0]
def prefetch_jobs():
    tag = pfc[0]; pfc[0] += 1
    I(f"s_bfe_u32 s{s_t2}, s2, {3 | (1 << 16)}")
    if args.jobX:
        kst_init()
        I("v_lshlrev_b32 v40, 10, v1")
        if args.jobX == 2:
            I(f"s_cmp_ge_u32 s{s_mg4}, 8")
            I(f"s_cbranch_scc1 {P}_pf{tag}_e")
            I(f"s_add_u32 s{s_t0}, s{s_mg4}, 8")
            I(f"s_lshl_b32 s{s_t0}, s{s_t0}, 17")
            I(f"s_lshl_b32 s{s_t1}, s{s_wave}, 16")
            I(f"s_add_u32 s{s_t0}, s{s_t0}, s{s_t1}")
            I(f"s_add_u32 s{s_t1}, s{s_kst}, s{s_t2}")
            I(f"s_lshl_b32 s{s_t1}, s{s_t1}, 7")
            I(f"s_add_u32 s{s_t0}, s{s_t0}, s{s_t1}")
            I(f"buffer_load_dword v42, v40, {srd(sX)}, s{s_t0} offen")
            L(f"{P}_pf{tag}_e")
        I(f"s_lshl_b32 s{s_t0}, s{s_mg4}, 17")
        I(f"s_lshl_b32 s{s_t1}, s{s_wave}, 16")
        I(f"s_add_u32 s{s_t0}, s{s_t0}, s{s_t1}")
        I(f"s_add_u32 s{s_t1}, s{s_kst}, s{s_t2}")
        I(f"s_add_u32 s{s_t1}, s{s_t1}, 2")
        I(f"s_and_b32 s{s_t1}, s{s_t1}, 7")
        I(f"s_lshl_b32 s{s_t1}, s{s_t1}, 7")
        I(f"s_add_u32 s{s_t0}, s{s_t0}, s{s_t1}")
        I(f"buffer_load_dword v42, v40, {srd(sX)}, s{s_t0} offen")
    if args.jobx3:
        I("v_and_b32 v40, 31, v1")
        I("v_lshlrev_b32 v40, 10, v40")
        I(f"s_lshl_b32 s{s_t0}, s{s_mg4}, 17")
        I(f"s_lshl_b32 s{s_t1}, s{s_t2}, 18")
        I(f"s_add_u32 s{s_t0}, s{s_t0}, s{s_t1}")
        I(f"s_lshl_b32 s{s_t1}, s{s_wave}, 15")
        I(f"s_add_u32 s{s_t0}, s{s_t0}, s{s_t1}")
        I(f"buffer_load_dword v42, v40, {srd(sX)}, s{s_t0} offen offset:384")
    if args.jobM:
        I("v_lshlrev_b32 v41, 7, v1")
        I(f"s_and_b32 s{s_t0}, s2, 7")
        I(f"s_lshl_b32 s{s_t0}, s{s_t0}, 1")
        I(f"s_add_u32 s{s_t0}, s{s_t0}, s{s_t2}")
        I(f"s_lshl_b32 s{s_t1}, s{s_wave}, 4")
        I(f"s_add_u32 s{s_t0}, s{s_t0}, s{s_t1}")
        I(f"s_lshl_b32 s{s_t0}, s{s_t0}, 13")
        I(f"buffer_load_dword v43, v41, {srd(sW2)}, s{s_t0} offen")
        I(f"s_add_u32 s{s_t0}, s{s_t0}, {128*8192}")
        I(f"s_cmp_ge_u32 s{s_t0}, {W2B}")
        I(f"s_cbranch_scc1 {P}_pf{tag}_m")
        I(f"buffer_load_dword v43, v41, {srd(sW2)}, s{s_t0} offen")
        L(f"{P}_pf{tag}_m")
    if args.job3:
        I("v_min_u32 v44, 42, v1")
        I("v_lshlrev_b32 v44, 10, v44")
        I(f"s_mul_i32 s{s_t0}, s{s_t2}, 688")
        I(f"s_mul_i32 s{s_t1}, s{s_wave}, 86")
        I(f"s_add_u32 s{s_t0}, s{s_t0}, s{s_t1}")
        I(f"s_lshl_b32 s{s_t0}, s{s_t0}, 10")
        I(f"buffer_load_dword v45, v44, {srd(sW2)}, s{s_t0} offen offset:384")
        I(f"s_add_u32 s{s_t0}, s{s_t0}, {43*1024}")
        I(f"buffer_load_dword v45, v44, {srd(sW2)}, s{s_t0} offen offset:384")

L(f"{P}_l_tail")
stamp(2)
I(f"s_mov_b32 m0, s{s_lu}")
I(f"s_mov_b32 s{s_u}, 0")
I(f"v_mov_b32 v17, {LDS_SCR}")
issueW(args.atb6)
I(f"s_waitcnt vmcnt({args.atb6})")
I("s_barrier")
if "stages" in args.diag: stamp(7, True)
stamp(3)
issueW(args.kmin, args.pace)
I("s_setprio 3")
if args.stopat < 0: I(f"s_branch {P}_l_stop")
L(f"{P}_l_str")
I("ds_read_b64 v[18:19], v17 offset:8")
I(f"s_waitcnt vmcnt({args.pace2-1}) lgkmcnt(0)")
I(f"v_readfirstlane_b32 s{s_t0}, v18")
I(f"v_readfirstlane_b32 s{s_t1}, v19")
I(f"s_cmp_eq_u32 s{s_t0}, 4")
I(f"s_cselect_b32 s{s_lim}, 39, 29")
I(f"s_cmp_lg_u32 s{s_t1}, 0")
I(f"s_cbranch_scc1 {P}_l_stop")
I(f"s_cmp_ge_u32 s{s_u}, s{s_lim}")
I(f"s_cbranch_scc1 {P}_l_full")
for bi in range(args.burst):
    if bi:
        I(f"s_cmp_ge_u32 s{s_u}, s{s_lim}")
        I(f"s_cbranch_scc1 {P}_l_full")
        I(f"s_waitcnt vmcnt({args.pace2-1})")
    w_one()
I(f"s_branch {P}_l_str")
L(f"{P}_l_full")
I("s_sleep 1")
I(f"s_cmp_lt_u32 s{s_u}, 39")
I(f"s_cbranch_scc1 {P}_l_str")
L(f"{P}_l_stop")
I("s_setprio 0")
I("s_waitcnt vmcnt(0)")
stamp(4)
if "wk" in args.diag:
    I("s_waitcnt lgkmcnt(0)"); I(f"s_mul_i32 s{s_prof+14}, s{s_u}, 10"); I(f"s_add_u32 s{s_prof+14}, s{s_prof+14}, s{s_prof+8}")
I("s_barrier")
I(f"s_cmp_lg_u32 s{s_wave}, 1")
I(f"s_cbranch_scc1 {P}_l_nofb")
I(f"s_lshl_b32 s{s_sx}, 1, s{s_sl}")
I(f"s_lshl_b32 s{s_sw}, s{s_mt}, 4")
I(f"s_atomic_add s{s_sx}, s[{sD}:{sD+1}], s{s_sw}")
L(f"{P}_l_nofb")
if args.fsleep: I("s_sleep 1")
I(f"s_add_u32 s{s_lim}, s{s_u}, {args.wb1}")
I(f"s_min_u32 s{s_lim}, s{s_lim}, 39")
issueW(f"s{s_lim}")
I(f"s_branch {P}_l_bb")
L(f"{P}_l_idle")
prefetch_jobs()
I(f"s_mov_b32 m0, s{s_lu}")
I(f"s_mov_b32 s{s_u}, 0")
issueW(39)
I("s_waitcnt vmcnt(0)")
I("s_barrier")
L(f"{P}_l_bb")
I("s_barrier")
issueW(39)
I(f"s_mov_b32 m0, s{s_lu}")
issueW(43)
stamp(5)
wdone = args.kmin
L(f"{P}_l_sel")
I(f"s_cmp_lg_u32 s{s_wave}, 0")
I(f"s_cbranch_scc1 {P}_l_go")
I(f"s_lshr_b32 s{s_t1}, s{s_rb}, 1")
I(f"s_lshl_b32 s{s_t1}, s{s_t1}, 4")
I("v_mov_b32 v18, 0")
I(f"v_mov_b32 v17, {LDS_SCR}")
I("v_mov_b32 v19, 1")
I(f"s_mov_b32 s{s_cnt}, 0")
L(f"{P}_l_poll")
I(f"buffer_load_dword v{vFN}, v{vFA}, {srd(sH)}, s{s_fl} offen sc1")
I(f"s_add_u32 s{s_cnt}, s{s_cnt}, 1")
I("s_waitcnt vmcnt(0)")
I(f"v_cmp_ne_u32 vcc, v{vFN}, v{vFS}")
I(f"s_and_b32 s{s_t0}, s{s_cnt}, {0 if 'fbonly' in args.diag else 31}")
if "fbonly" in args.diag: I("s_mov_b64 vcc, 0")
I(f"s_or_b32 s{s_t2}, vcc_lo, s{s_valid}")
I(f"s_and_b32 s{s_t2}, s{s_t2}, 0x7fff")
I(f"s_cmp_eq_u32 s{s_t2}, 0x7fff")
I(f"s_cbranch_scc1 {P}_l_ok")
if args.sleep: I(f"s_sleep {args.sleep}")
I(f"s_cmp_lg_u32 s{s_t0}, 0")
I(f"s_cbranch_scc1 {P}_l_poll")
I(f"buffer_load_dword v16, v18, {srd(sD)}, s{s_t1} offen sc1")
I("s_waitcnt vmcnt(0)")
I(f"v_readfirstlane_b32 s{s_t0}, v16")
I(f"s_cmp_ge_u32 s{s_cnt}, 400000")
I(f"s_cbranch_scc1 {P}_l_ok")
I(f"s_or_b32 s{s_t2}, s{s_t2}, s{s_t0}")
I(f"s_cmp_lg_u32 s{s_t2}, 0x7fff")
I(f"s_cbranch_scc1 {P}_l_poll")
L(f"{P}_l_ok")
I("ds_write_b32 v17, v19")
L(f"{P}_l_go")
stamp(6)
I("s_waitcnt vmcnt(0)")
I("s_barrier")
if args.amp.startswith("L"): amp_block(args.amp[1:], "l")
prof_store()
L(f"{P}_end")
I("s_endpgm")
loader_tail = out[LOADER_TAIL_MARK:]
del out[LOADER_TAIL_MARK:]

MUTE[0] = "p2" in args.diag or "fin" in args.diag
FIN = "fin" in args.diag
L(f"{P}_compute")
vAX = [2, 3]; vAW = [6, 7, 8]
ACC = 64
FA, FB = 160, 200
vOLD = 20
if args.prio: I(f"s_setprio {args.prio}")
I(f"s_and_b32 s{s_t0}, s{s_wave}, 1")
I(f"s_lshl_b32 s{s_t0}, s{s_t0}, 13")
I(f"s_add_u32 s{s_t0}, s{s_t0}, {SLOT0}")
I("v_and_b32 v10, 15, v1")
I("v_lshrrev_b32 v11, 1, v10")
I("v_lshrrev_b32 v12, 4, v1")
I(f"v_lshl_add_u32 v10, v10, 7, s{s_t0}")
I("v_xor_b32 v13, v12, v11")
I("v_and_b32 v11, 1, v12")
I(f"v_lshl_add_u32 v{vAX[0]}, v13, 4, v10")
I(f"v_xor_b32 v{vAX[1]}, 64, v{vAX[0]}")
I("v_lshrrev_b32 v10, 1, v12")
I("v_bfe_u32 v12, v1, 2, 2")
I("v_lshl_add_u32 v12, v11, 3, v12")
I("v_mul_u32_u24 v12, 192, v12")
I("v_mul_u32_u24 v13, 6144, v10")
I("v_and_b32 v10, 3, v1")
I("v_lshl_add_u32 v12, v10, 3, v12")
I(f"s_mov_b32 s{s_t1}, {SLOT0+16384}")
I(f"v_add3_u32 v12, v12, v13, s{s_t1}")
I("v_lshlrev_b32 v11, 5, v11")
I(f"s_bfe_u32 s{s_t0}, s{s_wave}, {1 | (1 << 16)}")
I(f"s_lshl_b32 s{s_t1}, s{s_t0}, 5")
I(f"s_lshl_b32 s{s_t2}, s{s_t0}, 6")
I(f"v_xor_b32 v13, s{s_t1}, v11")
I(f"v_add3_u32 v{vAW[0]}, v12, v13, s{s_t2}")
I(f"v_add_u32 v{vAW[2]}, 64, v{vAW[0]}")
I("v_xor_b32 v13, 32, v13")
I(f"s_lshl_b32 s{s_t2}, s{s_t0}, 7")
I(f"v_add3_u32 v{vAW[1]}, v12, v13, s{s_t2}")
I("v_mov_b32 v21, 0")
I(f"v_mov_b32 v22, {LDS_SCR}")
I("ds_write_b32 v22, v21")
I("ds_write_b32 v22, v21 offset:8")
I("ds_write_b32 v22, v21 offset:12")
I("v_mov_b32 v23, 1")
for r in range(0, 96, 2):
    I(f"v_mov_b64 v[{ACC+r}:{ACC+r+1}], 0")
I(f"s_cmp_eq_u32 s{s_t0}, 0")
I(f"s_cselect_b32 s{s_t1}, 2, 0")
I(f"s_movk_i32 s{s_t2}, 0x543")
I(f"s_cselect_b32 s{s_t2}, 0x210, s{s_t2}")
I(f"s_movk_i32 s{s_t3}, 0x103")
I(f"s_cselect_b32 s{s_t3}, 0x254, s{s_t3}")
I(f"s_cmp_eq_u32 s{s_sl}, 14")
I(f"s_cselect_b32 s{s_valid}, s{s_t1}, 3")
I(f"s_bitcmp1_b32 s{s_sl}, 0")
I(f"s_cselect_b32 s{s_t2}, s{s_t3}, s{s_t2}")
I(f"s_and_b32 s{s_t1}, s{s_wave}, 1")
I(f"s_lshl_b32 s{s_t3}, s{s_mt}, 1")
I(f"s_add_u32 s{s_t1}, s{s_t1}, s{s_t3}")
I(f"s_mul_i32 s{s_t1}, s{s_t1}, {2*HSTR}")
I(f"s_mul_i32 s{s_t3}, s{s_sl}, 6")
I(f"s_add_u32 s{s_t1}, s{s_t1}, s{s_t3}")
for t in range(3):
    I(f"s_bfe_u32 s{s_t3}, s{s_t2}, {4*t | (4 << 16)}")
    I(f"s_add_u32 s{s_t3}, s{s_t3}, s{s_t1}")
    I(f"s_lshl_b32 s{s_hoff+t}, s{s_t3}, 10")
I(f"s_mov_b32 s{s_k}, 0xbfb8aa3b")
I("v_lshlrev_b32 v9, 4, v1")
I(f"v_add_u32 v10, {HSTR*1024}, v9")
I(f"v_mov_b32 v56, s{s_k}"); I(f"v_mov_b32 v57, s{s_k}"); I("v_mov_b32 v58, 1.0"); I("v_mov_b32 v59, 1.0")
I(f"s_mul_i32 s{s_fl}, s{s_mt}, {4*HSTR*1024}")
I(f"s_lshr_b32 s{s_t1}, s{s_sl}, 3")
I(f"s_mul_i32 s{s_t1}, s{s_t1}, {HSTR*1024}")
I(f"s_add_u32 s{s_fl}, s{s_fl}, s{s_t1}")
I(f"s_and_b32 s{s_t1}, s{s_sl}, 7")
I(f"s_lshl_b32 s{s_t1}, s{s_t1}, 7")
I(f"s_add_u32 s{s_fl}, s{s_fl}, s{s_t1}")
I(f"s_add_u32 s{s_fl}, s{s_fl}, {86*1024}")
srd_tail(sH, WS_REC); srd_tail(sO, OB)
I(f"s_mov_b32 s{s_cnt}, 0")
I(f"s_mov_b32 s{s_ring}, 1")
I(f"s_mov_b32 s{s_sx}, {SLOTSZ}")
I("s_waitcnt lgkmcnt(0)")
I(f"s_cmp_ge_u32 s{s_sl}, 15")
I(f"s_cbranch_scc1 {P}_c_idle")
I(f"s_cmp_eq_u32 s{s_valid}, 0")
I(f"s_cbranch_scc1 {P}_c_lazy")

def xr(fs, mt): return fs + 4 * mt
def wr_(fs, t, mat): return fs + 16 + 4 * (2 * t + mat)
def acc(t, mat, mt): return ACC + ((t * 2 + mat) * 4 + mt) * 4
def xrd(ks, fs, mt): return [f"ds_read_b128 v[{xr(fs,mt)}:{xr(fs,mt)+3}], v{vAX[ks]} offset:{2048*mt}"]
def wrd(ks, fs, t, mat):
    d = wr_(fs, t, mat)
    return [f"ds_read_b64_tr_b16 v[{d+2*h}:{d+2*h+1}], v{vAW[t]} offset:{ks*12288+mat*3072+h*768}" for h in range(2)]
def reads(ks, fs):
    if "noread" in args.diag: return ["s_nop 0"] * 16
    if "halfread" in args.diag:
        r = xrd(ks, fs, 0) + wrd(ks, fs, 0, 0) + xrd(ks, fs, 1) + wrd(ks, fs, 0, 1) + wrd(ks, fs, 1, 0)
        return r + ["s_nop 0"] * 8
    r = xrd(ks, fs, 0) + wrd(ks, fs, 0, 0) + xrd(ks, fs, 1) + wrd(ks, fs, 0, 1) + xrd(ks, fs, 2) + xrd(ks, fs, 3)
    for t in (1, 2):
        for mat in range(2): r += wrd(ks, fs, t, mat)
    return r
def mf(fs, t, mat, mt):
    a = acc(t, mat, mt); w = wr_(fs, t, mat); x = xr(fs, mt)
    return f"v_mfma_f32_16x16x32_bf16 v[{a}:{a+3}], v[{w}:{w+3}], v[{x}:{x+3}], v[{a}:{a+3}]"
def mfmas(fs):
    if "halfm" in args.diag:
        return [mf(fs, t, mat, mt) if mat == 0 else "s_nop 1" for t in range(3) for mat in range(2) for mt in range(4)]
    if args.morder == 1:
        return [mf(fs, t, mat, mt if mat == 0 else 3 - mt) for t in range(3) for mat in range(2) for mt in range(4)]
    if args.morder == 2:
        ws = [(t, mat) for t in range(3) for mat in range(2)]
        return [mf(fs, *w, mt) for mt in range(4) for w in (ws if mt % 2 == 0 else ws[::-1])]
    return [mf(fs, t, mat, mt) for t in range(3) for mat in range(2) for mt in range(4)]
if args.prew:
    for t in range(3):
        if t == 2:
            I(f"s_cmp_le_u32 s{s_valid}, 2"); I(f"s_cbranch_scc1 {P}_c_npw")
        for p_ in range(2):
            I(f"buffer_store_dwordx4 v[64:67], v{9+p_}, {srd(sH)}, s{s_hoff+t} offen sc1")
    L(f"{P}_c_npw")
if args.align:
    I(f"s_branch {P}_pg1"); out.append("@COLD@"); e(".p2align 12"); L(f"{P}_pg1")
if "b0" in args.diag: stamp(1)
I("s_barrier")
if "b0" not in args.diag: stamp(1)
r = reads(0, FA)
for x in r[:12]: I(x)
I(f"s_cmp_lg_u32 s{s_wave}, 4")
I(f"s_cbranch_scc1 {P}_c_noold")
I(f"buffer_load_dword v{vOLD}, v21, {srd(sH)}, s{s_fl} offen sc1")
L(f"{P}_c_noold")
I("s_waitcnt lgkmcnt(8)")
for x in r[12:]: I(x)
L(f"{P}_c_loop")
m = mfmas(FA); r = reads(1, FB)
extra = [f"s_add_u32 s{s_ring}, s{s_ring}, 1", f"s_cmp_eq_u32 s{s_ring}, 3",
         f"s_cselect_b32 s{s_t0}, {-2*SLOTSZ & 0xffffffff}, s{s_sx}", f"s_cselect_b32 s{s_ring}, 0, s{s_ring}",
         f"s_add_u32 s{s_cnt}, s{s_cnt}, 1", None]
upd = [f"v_add_u32 v{r}, s{s_t0}, v{r}" for r in vAX + vAW]
need = {0: 8, 8: 10, 12: 12, 16: 14, 20: 16} if args.morder < 2 else {0: 6, 2: 10, 3: 12, 4: 14, 5: 16}
for i in range(24):
    if i in need: I(f"s_waitcnt lgkmcnt({min(15, 16 - need[i] + min(i, 16))})")
    I(m[i])
    if i < 16: I(r[i])
    elif i < 19:
        for x in extra[2*(i-16):2*(i-16)+2]:
            if x: I(x)
    else: I(upd[i-19])
I("s_waitcnt lgkmcnt(0)")
m = mfmas(FB); r = reads(0, FA)
for i in range(24):
    if i == args.barpos: I("s_barrier")
    I(m[i])
    if i >= args.barpos:
        for x in r[(i - args.barpos) * args.rpg:(i - args.barpos + 1) * args.rpg]: I(x)
assert (24 - args.barpos) * args.rpg >= 16
I(f"s_cmp_lt_u32 s{s_cnt}, 7")
I(f"s_cbranch_scc1 {P}_c_loop")
stamp(2)
T = 32
def epi(t, p):
    tm = T + p * 12; o = tm + 8
    g = [acc(t, 0, 2*p + (q >> 2)) + (q & 3) for q in range(8)]
    u = [acc(t, 1, 2*p + (q >> 2)) + (q & 3) for q in range(8)]
    v = []
    if 2 * t + p >= args.pkfrom:
        pr = lambda r: f"v[{r}:{r+1}]"
        for q in range(0, 8, 2): v.append(f"v_pk_mul_f32 {pr(tm+q)}, {pr(g[q])}, v[56:57]")
        for q in range(8): v.append(f"v_exp_f32 v{tm+q}, v{tm+q}")
        for q in range(0, 8, 2): v.append(f"v_pk_add_f32 {pr(tm+q)}, {pr(tm+q)}, v[58:59]")
        for q in range(8): v.append(f"v_rcp_f32 v{tm+q}, v{tm+q}")
        for q in range(0, 8, 2): v.append(f"v_pk_mul_f32 {pr(tm+q)}, {pr(tm+q)}, {pr(g[q])}")
        for q in range(0, 8, 2): v.append(f"v_pk_mul_f32 {pr(tm+q)}, {pr(tm+q)}, {pr(u[q])}")
    else:
        for q in range(8): v.append(f"v_mul_f32 v{tm+q}, s{s_k}, v{g[q]}")
        for q in range(8): v.append(f"v_exp_f32 v{tm+q}, v{tm+q}")
        for q in range(8): v.append(f"v_add_f32 v{tm+q}, 1.0, v{tm+q}")
        for q in range(8): v.append(f"v_rcp_f32 v{tm+q}, v{tm+q}")
        for q in range(8): v.append(f"v_mul_f32 v{tm+q}, v{tm+q}, v{g[q]}")
        for q in range(8): v.append(f"v_mul_f32 v{tm+q}, v{tm+q}, v{u[q]}")
    for q in (0, 2, 1, 3): v.append(f"v_cvt_pk_bf16_f32 v{o+q}, v{tm+2*q}, v{tm+2*q+1}")
    v.append(("swap", o))
    v.append(("store", t, p, o))
    return v
def emit_v(x):
    if isinstance(x, tuple) and x[0] == "swap":
        o = x[1]
        I(f"v_permlane16_swap_b32 v{o}, v{o+2}")
        I("s_nop 0")
        I(f"v_permlane16_swap_b32 v{o+1}, v{o+3}")
    elif isinstance(x, tuple):
        _, t, p, o = x
        if t == 2:
            I(f"s_cmp_le_u32 s{s_valid}, 2")
            I(f"s_cbranch_scc1 {P}_c_ns{t}{p}")
        I(f"buffer_store_dwordx4 v[{o}:{o+3}], v{9+p}, {srd(sH)}, s{s_hoff+t} offen {'' if 'hplain' in args.diag else 'sc1'}")
        if t == 2: L(f"{P}_c_ns{t}{p}")
    else:
        I(x)
blocks = [(t, p) for t in range(3) for p in range(2)]
def bmf(t, p, fs): return [mf(fs, t, mat, 2*p + j) for mat in range(2) for j in range(2)]
rB = reads(1, FB)
I("s_waitcnt lgkmcnt(8)")
pre = bmf(0, 0, FA) + bmf(0, 1, FA)
for i in range(8):
    I(pre[i])
    if i == 3: I("s_waitcnt lgkmcnt(6)")
    I(rB[2*i])
    if i == 7: I("s_waitcnt lgkmcnt(9)")
    I(rB[2*i+1])
I("s_waitcnt lgkmcnt(8)")
seq = []
for bi, (t, p) in enumerate(blocks):
    x = bmf(t, p, FB) if bi < 2 else bmf(t, p, FA) + bmf(t, p, FB)
    seq += [(y, None) for y in x[:-1]] + [(x[-1], bi)]
vq = []; nxt = 0; since = {}
for i, (mi, done) in enumerate(seq):
    if i == 8:
        I("s_waitcnt lgkmcnt(0)")
        I("s_mov_b64 exec, 1"); I("ds_add_u32 v22, v23 offset:8"); I("s_mov_b64 exec, -1")
    I(mi)
    for k in since: since[k] += 1
    if done is not None: since[done] = 0
    n = 0
    while n < args.gapc:
        if not vq:
            if nxt in since and since[nxt] >= 4 and nxt < args.pkfrom:
                if since[nxt] < 9: I(f"s_nop {9 - since[nxt]}")
                vq += epi(*blocks[nxt]); nxt += 1
            else:
                break
        x = vq.pop(0)
        emit_v(x); n += 8 if (isinstance(x, tuple) or "exp" in x or "rcp" in x) else 4
        for k in since: since[k] += 1
while vq or nxt < 6:
    if not vq:
        if since[nxt] < 9: I(f"s_nop {9 - since[nxt]}")
        if nxt == args.stopat: I("ds_write_b32 v22, v23 offset:12")
        vq += epi(*blocks[nxt]); nxt += 1
    emit_v(vq.pop(0))
    for k in since: since[k] += 1
if args.stopat == 6: I("ds_write_b32 v22, v23 offset:12")
L(f"{P}_c_epidone")
stamp(3)
vB = [[10, 11], [12, 13], [14, 15]]
WF = 128; HR = 160; R = args.hring
I("v_lshrrev_b32 v16, 4, v1")
I("v_lshrrev_b32 v17, 5, v1")
I("v_bfe_u32 v18, v1, 2, 2")
I("v_lshl_add_u32 v17, v17, 3, v18")
I("v_lshlrev_b32 v17, 7, v17")
I("v_and_b32 v16, 1, v16")
I("v_and_b32 v19, 1, v1")
I("v_lshl_add_u32 v16, v19, 1, v16")
I("v_lshlrev_b32 v18, 1, v18")
I("v_and_b32 v18, 4, v18")
I(f"s_bfe_u32 s{s_t0}, s{s_wave}, {1 | (1 << 16)}")
I(f"s_lshl_b32 s{s_t1}, s{s_t0}, 2")
I(f"v_xor_b32 v18, s{s_t1}, v18")
I("v_xor_b32 v16, v16, v18")
I("v_lshl_add_u32 v17, v16, 4, v17")
I("v_bfe_u32 v19, v1, 1, 1")
I("v_lshl_add_u32 v17, v19, 3, v17")
I(f"s_lshl_b32 s{s_t1}, s{s_t0}, 11")
I(f"v_add_u32 v{vB[0][0]}, s{s_t1}, v17")
I(f"v_xor_b32 v{vB[0][1]}, 64, v{vB[0][0]}")
for sg in (1, 2):
    for nb in range(2):
        I(f"v_add_u32 v{vB[sg][nb]}, {sg*65536}, v{vB[0][nb]}")
I("s_waitcnt vmcnt(0)")
I(f"v_add_u32 v{vOLD}, 1, v{vOLD}")
I("s_barrier")
I(f"s_cmp_lg_u32 s{s_wave}, 4")
I(f"s_cbranch_scc1 {P}_c_p2")
I(f"s_cmp_ge_u32 s{s_sl}, 15")
I(f"s_cbranch_scc1 {P}_c_p2")
I("s_mov_b64 exec, 1")
I(f"buffer_store_dword v{vOLD}, v21, {srd(sH)}, s{s_fl} offen sc1")
I("s_mov_b64 exec, -1")
L(f"{P}_c_p2")
stamp(4)
def wreads(u, dst):
    a = unit_addr(u); sg = a >> 16; off = a & 0xffff
    return [f"ds_read_b64_tr_b16 v[{dst+4*nb+2*h}:{dst+4*nb+2*h+1}], v{vB[sg][nb]} offset:{off+h*512}" for nb in range(2) for h in range(2)]
NW, NPRE, PRE, TN = 3, 4, 96, args.tailn
def wdst(u):
    if u < 4: return PRE + 8 * u
    if u >= 43 - TN: return PRE + 8 * (u - (43 - TN))
    return WF + 8 * (u % NW)
for u in range(NPRE):
    if u == 3: I("s_waitcnt lgkmcnt(8)")
    for r in wreads(u, wdst(u)): I(r)
I("s_waitcnt lgkmcnt(0)")
I("s_barrier")
decode2()
I(f"s_bfe_u32 s{s_t0}, s{s_wave}, {1 | (1 << 16)}")
I(f"s_and_b32 s{s_t1}, s{s_wave}, 1")
I(f"s_lshl_b32 s{s_t2}, s{s_rb}, 1")
I(f"s_add_u32 s{s_t1}, s{s_t1}, s{s_t2}")
I(f"s_mul_i32 s{s_t2}, s{s_t1}, {HSTR}")
I(f"s_mul_i32 s{s_t3}, s{s_t0}, 43")
I(f"s_add_u32 s{s_t2}, s{s_t2}, s{s_t3}")
I(f"s_lshl_b32 s{s_pbeg}, s{s_t2}, 10")
I(f"s_add_u32 s{s_pend}, s{s_pbeg}, {43*1024}")
I(f"s_lshl_b32 s{s_t2}, s{s_rot2}, 10")
I(f"s_add_u32 s{s_p}, s{s_pbeg}, s{s_t2}")
I("v_and_b32 v16, 31, v1")
I("v_lshlrev_b32 v16, 10, v16")
I("v_and_b32 v17, 32, v1")
I(f"s_lshl_b32 s{s_t1}, s{s_t1}, 15")
I(f"s_lshl_b32 s{s_t2}, s{s_cb}, 7")
I(f"s_add_u32 s{s_t1}, s{s_t1}, s{s_t2}")
I(f"s_lshl_b32 s{s_t2}, s{s_t0}, 6")
I(f"s_add_u32 s{s_t1}, s{s_t1}, s{s_t2}")
I(f"v_add3_u32 v16, v16, v17, s{s_t1}")
I(f"s_and_b32 s{s_t1}, s{s_wave}, 3")
I(f"s_lshl_b32 s{s_t1}, s{s_t1}, 12")
I(f"s_xor_b32 s{s_t2}, s{s_t1}, {2 << 12}")
I(f"s_add_u32 s{s_t1}, s{s_t1}, {XCH}")
I(f"s_add_u32 s{s_t2}, s{s_t2}, {XCH}")
I(f"v_add_u32 v17, s{s_t1}, v9")
I(f"v_add_u32 v18, s{s_t2}, v9")
if args.otr:
    I("v_and_b32 v25, 31, v1")
    I(f"s_and_b32 s{s_t1}, s{s_wave}, 1")
    I(f"s_lshl_b32 s{s_t1}, s{s_t1}, 12")
    I(f"s_add_u32 s{s_t1}, s{s_t1}, {OTR}")
    I(f"v_lshl_add_u32 v26, v25, 7, s{s_t1}")
    I("v_lshrrev_b32 v27, 5, v1")
    I(f"s_lshl_b32 s{s_t2}, s{s_t0}, 1")
    I(f"v_add_lshl_u32 v27, v27, s{s_t2}, 1")
    I("v_and_b32 v25, 7, v25")
    I("v_xor_b32 v27, v27, v25")
    I("v_lshl_add_u32 v25, v27, 4, v26")
    I("v_xor_b32 v26, 16, v25")
    if args.otr == 1:
        I("v_lshrrev_b32 v27, 2, v1")
        I("v_and_b32 v28, 3, v1")
        I(f"s_lshl_b32 s{s_t2}, s{s_t0}, 2")
        I(f"v_add_u32 v28, s{s_t2}, v28")
        rowstep = 16
    else:
        I("v_lshrrev_b32 v27, 3, v1")
        I(f"s_lshl_b32 s{s_t2}, s{s_t0}, 4")
        I(f"v_add_u32 v27, s{s_t2}, v27")
        I("v_and_b32 v28, 7, v1")
        rowstep = 8
    I(f"s_and_b32 s{s_t2}, s{s_wave}, 1")
    I(f"s_lshl_b32 s{s_t3}, s{s_rb}, 1")
    I(f"s_add_u32 s{s_t2}, s{s_t2}, s{s_t3}")
    I(f"s_lshl_b32 s{s_t2}, s{s_t2}, 15")
    I(f"s_lshl_b32 s{s_t3}, s{s_cb}, 7")
    I(f"s_add_u32 s{s_t2}, s{s_t2}, s{s_t3}")
    I(f"v_lshl_add_u32 v16, v27, 10, s{s_t2}")
    I("v_lshl_add_u32 v16, v28, 4, v16")
    I(f"v_add_u32 v29, {rowstep*1024}, v16")
    I("v_and_b32 v30, 7, v27")
    I("v_xor_b32 v28, v28, v30")
    I(f"v_lshl_add_u32 v27, v27, 7, s{s_t1}")
    I("v_lshl_add_u32 v27, v28, 4, v27")
for r in range(0, 32, 2):
    I(f"v_mov_b64 v[{ACC+r}:{ACC+r+1}], 0")
if args.align:
    I(f"s_branch {P}_c_spin"); e(".p2align 12")
L(f"{P}_c_spin")
I("ds_read_b32 v24, v22")
I("s_waitcnt lgkmcnt(0)")
I(f"v_readfirstlane_b32 s{s_t0}, v24")
I("s_nop 0")
I(f"s_cmp_eq_u32 s{s_t0}, 0")
I(f"s_cbranch_scc1 {P}_c_spin")
stamp(5)
if "p2" in args.diag: stamp(1, True)
def hload(s):
    b = HR + 4 * (s % R)
    return [f"buffer_load_dwordx4 v[{b}:{b+3}], v9, {srd(sH)}, s{s_p} offen sc1",
            f"s_add_u32 s{s_p}, s{s_p}, 1024",
            f"s_cmp_eq_u32 s{s_p}, s{s_pend}",
            f"s_cselect_b32 s{s_p}, s{s_pbeg}, s{s_p}"]
for s in range(args.hpro):
    for x in hload(s): I(x)
issued = args.hpro
def mm2(s, nb):
    hb = HR + 4 * (s % R); wd = wdst(s)
    return f"v_mfma_f32_32x32x16_bf16 v[{ACC+16*nb}:{ACC+16*nb+15}], v[{wd+4*nb}:{wd+4*nb+3}], v[{hb}:{hb+3}], v[{ACC+16*nb}:{ACC+16*nb+15}]"
for s in range(43):
    u = s + 2
    young = 1 if NPRE <= s + 1 < 43 else 0
    I(f"s_waitcnt vmcnt({issued - s - 1}) lgkmcnt({4*young})")
    if "p2" in args.diag and s in (0, 5, 11, 21, 32, 42): stamp({0:2, 5:3, 11:4, 21:5, 32:6, 42:7}[s], True)
    if u == wdone: I("s_barrier")
    wr = wreads(u, wdst(u)) if NPRE <= u < 43 else []
    I(mm2(s, 1))
    for r in wr[:2]: I(r)
    if issued < 43 and issued - R < s:
        for x in hload(issued): I(x)
        issued += 1
    if s < 43 - TN: I(mm2(s, 0))
    for r in wr[2:]: I(r)
    if issued < 43 and issued - R < s and issued - s - 1 < R - 1:
        for x in hload(issued): I(x)
        issued += 1
stamp(6)
if FIN: stamp(2, True)
tl = [mm2(s, 0) for s in range(43 - TN, 43)]
if tl: I(tl.pop(0))
I("s_nop 7")
I("s_nop 3")
for q in range(4):
    I(f"ds_write_b128 v17, v[{ACC+16+4*q}:{ACC+19+4*q}] offset:{q*1024}")
    if tl and q % 2 == 1: I(tl.pop(0))
for x in tl: I(x)
I("s_waitcnt lgkmcnt(0)")
if FIN: stamp(3, True)
I("s_barrier")
if FIN: stamp(4, True)
for q in range(4):
    I(f"ds_read_b128 v[{128+4*q}:{131+4*q}], v18 offset:{q*1024}")
I("s_nop 5")
for q in range(4):
    I(f"s_waitcnt lgkmcnt({3-q + (1 if args.otr and q >= 2 else 0)})")
    for p in range(2):
        I(f"v_pk_add_f32 v[{ACC+4*q+2*p}:{ACC+4*q+2*p+1}], v[{ACC+4*q+2*p}:{ACC+4*q+2*p+1}], v[{128+4*q+2*p}:{129+4*q+2*p}]")
    for p in range(2):
        I(f"v_cvt_pk_bf16_f32 v{144+2*q+p}, v{ACC+4*q+2*p}, v{ACC+4*q+2*p+1}")
    if q == 1:
        if args.otr: I("ds_write_b128 v25, v[144:147]")
        else: I(f"buffer_store_dwordx4 v[144:147], v16, {srd(sO)}, 0 offen {args.ost}")
if args.otr:
    I("ds_write_b128 v26, v[148:151]")
    if args.otr == 2:
        I("s_waitcnt lgkmcnt(0)")
        I("s_barrier")
        if FIN: stamp(5, True)
    I("ds_read_b128 v[152:155], v27")
    I(f"ds_read_b128 v[156:159], v27 offset:{rowstep*128}")
    I("s_waitcnt lgkmcnt(1)")
    I(f"buffer_store_dwordx4 v[152:155], v16, {srd(sO)}, 0 offen {args.ost}")
    I("s_waitcnt lgkmcnt(0)")
    I(f"buffer_store_dwordx4 v[156:159], v29, {srd(sO)}, 0 offen {args.ost}")
else:
    I(f"buffer_store_dwordx4 v[148:151], v16, {srd(sO)}, 0 offen offset:16 {args.ost}")
if "dirty" in args.diag:
    n = int(re.search(r"dirty(\d+)", args.diag).group(1))
    I(f"s_mov_b32 s{sH+2}, {64 << 20}")
    I(f"s_lshl_b32 s{s_t0}, s2, 2")
    I(f"s_add_u32 s{s_t0}, s{s_t0}, s{s_wave}")
    I(f"s_mul_i32 s{s_t0}, s{s_t0}, {n*1024}")
    I(f"s_add_u32 s{s_t0}, s{s_t0}, {16 << 20}")
    for i in range(n):
        I(f"buffer_store_dwordx4 v[144:147], v9, {srd(sH)}, s{s_t0} offen")
        I(f"s_add_u32 s{s_t0}, s{s_t0}, 1024")
if FIN: stamp(6, True)
if STAMPS: I("s_waitcnt vmcnt(0)")
stamp(7, True)
if args.amp and args.amp != "none" and not args.amp.startswith("L"): amp_block(args.amp, "c")
prof_store()
I("s_endpgm")
COLD_MARK = len(out)
L(f"{P}_c_lazy")
for i in range(8): I("s_barrier")
I("s_mov_b64 exec, 1"); I("ds_add_u32 v22, v23 offset:8"); I("s_mov_b64 exec, -1")
I(f"s_branch {P}_c_epidone")
L(f"{P}_c_idle")
srd_tail(sX, XB); srd_tail(sW2, W2B)
prefetch_jobs()
I(f"s_branch {P}_c_epidone")
out += loader_tail
if args.align:
    cold = out[COLD_MARK:]; del out[COLD_MARK:]
    i = out.index("@COLD@"); out[i:i+1] = cold
L(f"{P}_codeend")

e('.section .rodata,"a"')
e(".p2align 6")
e(f".amdhsa_kernel {label}")
for l in ("next_free_vgpr 256", "next_free_sgpr 102", "accum_offset 256", "group_segment_fixed_size 0", "kernarg_size 56",
          "user_sgpr_count 2", "user_sgpr_kernarg_segment_ptr 1", "system_sgpr_workgroup_id_x 1", "float_denorm_mode_32 3"):
    e("  .amdhsa_" + l)
e(".end_amdhsa_kernel")

text = "\n".join(out) + "\n"
def symbols(t):
    with tempfile.TemporaryDirectory() as d:
        open(d + "/k.s", "w").write(t)
        subprocess.run(["clang", "-x", "assembler", "-target", "amdgcn-amd-amdhsa", "-mcpu=gfx950", "-c", d + "/k.s", "-o", d + "/k.o"], check=True)
        sym = subprocess.run(["llvm-objdump", "-t", d + "/k.o"], capture_output=True, text=True).stdout
    return {m.group(2): int(m.group(1), 16) for m in re.finditer(r"^([0-9a-f]{16}) .*\s(\S+)$", sym, re.M)}
a = symbols(text.replace("@CODELINES@", "100"))
assert a[f"{P}_codeend"] < 16384
sys.stderr.write(f"code {a[f'{P}_codeend']} B: loop@{a[f'{P}_l_loop']} compute@{a[f'{P}_compute']} cloop@{a[f'{P}_c_loop']} p2@{a[f'{P}_c_p2']} ltail@{a[f'{P}_l_tail']}\n")
open(args.o, "w").write(text)
```

```python
import sys, argparse, subprocess, tempfile, re

ap = argparse.ArgumentParser()
ap.add_argument("-o", default="standalone__glu_gated_swiglu__prompt.s")
ap.add_argument("--prof", action="store_true")
ap.add_argument("--cyc", action="store_true")
ap.add_argument("--amp", default="")
ap.add_argument("--diag", default="")
ap.add_argument("--xrot", type=int, default=4)
ap.add_argument("--hring", type=int, default=12)
ap.add_argument("--hpro", type=int, default=10)
ap.add_argument("--sleep", type=int, default=1)
ap.add_argument("--codepf", type=int, default=1)
ap.add_argument("--prio", type=int, default=1)
ap.add_argument("--atb6", type=int, default=8)
ap.add_argument("--kmin", type=int, default=12)
ap.add_argument("--stopat", type=int, default=4)
ap.add_argument("--pace2", type=int, default=10)
ap.add_argument("--pace", type=int, default=10)
ap.add_argument("--barpos", type=int, default=16)
ap.add_argument("--rpg", type=int, default=2)
ap.add_argument("--gapc", type=int, default=8)
ap.add_argument("--pkfrom", type=int, default=1)
ap.add_argument("--tailn", type=int, default=3)
ap.add_argument("--jobx3", type=int, default=0)
ap.add_argument("--job3", type=int, default=1)
ap.add_argument("--jobM", type=int, default=0)
ap.add_argument("--jobX", type=int, default=1)
ap.add_argument("--otr", type=int, default=2)
ap.add_argument("--ost", default="sc1")
ap.add_argument("--prew", type=int, default=0)
ap.add_argument("--align", type=int, default=1)
ap.add_argument("--sflag", type=int, default=0)
ap.add_argument("--pace3", type=int, default=0)
ap.add_argument("--morder", type=int, default=1)
ap.add_argument("--fsleep", type=int, default=0)
ap.add_argument("--tlbw", type=int, default=0)
ap.add_argument("--map", type=int, default=0)
ap.add_argument("--burst", type=int, default=1)
ap.add_argument("--stouch", type=int, default=0)
ap.add_argument("--wb1", type=int, default=2)
args = ap.parse_args()

NAME = "standalone__glu_gated_swiglu__prompt"
out = []
def e(s=""): out.append(s)
def I(s): out.append("    " + s)
def L(s): out.append(s + ":")

S, D, F = 2048, 512, 1376
XB, WB, W2B, OB = S * D * 2, D * F * 2, F * D * 2, S * D * 2
HSTR = 87
WS_REC = 8 << 20
PROF_OFF = 7 << 20
SLOT0, SLOTSZ, LDS_SCR, LDS_TOTAL = 36864 + 40960, 40960, 159744, 163840
def unit_addr(u): return (u % 39) * 4096
XCH = 4 * 4096
OTR = 8 * 4096

sX, sW1, sW3, sW2, sH, sO, sD = 20, 24, 28, 32, 36, 40, 44
s_wave, s_mg4, s_sh, s_mt, s_sl, s_rb, s_cb = 48, 49, 50, 51, 52, 53, 54
s_t0, s_t1, s_t2, s_t3 = 55, 56, 57, 58
s_cnt, s_kst, s_sx, s_sw, s_ring = 59, 60, 61, 62, 63
s_lx, s_lw, s_rot2, s_fl = 64, 65, 66, 67
s_k = 68
s_xb, s_wb, s_lu = 69, 70, 71
s_hoff = 72
s_p, s_pend, s_pbeg, s_valid = 78, 79, 80, 81
s_u, s_lim = 75, 76
s_prof = 84
def srd(r): return f"s[{r}:{r+3}]"
STAMPS = args.prof or args.amp
MUTE = [False]
def stamp(i, force=False):
    if "clk" in args.diag:
        m = {1: 0, 2: 1, 4: 2, 5: 3}
        if i in m:
            I(f"s_memrealtime s[{s_prof+2*m[i]}:{s_prof+2*m[i]+1}]"); I(f"s_memtime s[{s_prof+8+2*m[i]}:{s_prof+9+2*m[i]}]")
        return
    if MUTE[0] and not force: return
    if STAMPS: I(f"{'s_memtime' if args.cyc else 's_memrealtime'} s[{s_prof+2*i}:{s_prof+2*i+1}]")
def srd_tail(r, nbytes):
    I(f"s_mov_b32 s{r+2}, {nbytes}")
    I(f"s_mov_b32 s{r+3}, 0x20000")
def prof_store():
    if not args.prof: return
    I("s_waitcnt lgkmcnt(0)")
    I(f"s_lshl_b32 s{s_t0}, s2, 3")
    I(f"s_xor_b32 s{s_t1}, s{s_wave}, 4")
    I(f"s_add_u32 s{s_t0}, s{s_t0}, s{s_t1}")
    I(f"s_lshl_b32 s{s_t0}, s{s_t0}, 5")
    I(f"s_add_u32 s{s_t0}, s{s_t0}, {PROF_OFF}")
    for i in range(8): I(f"v_mov_b32 v{240+i}, s{s_prof+2*i}")
    I("v_mov_b32 v248, 0")
    I("s_mov_b64 exec, 1")
    I(f"buffer_store_dwordx4 v[240:243], v248, {srd(sH)}, s{s_t0} offen")
    I(f"buffer_store_dwordx4 v[244:247], v248, {srd(sH)}, s{s_t0} offen offset:16")
    I("s_mov_b64 exec, -1")
P = "K"
def amp_block(spec, tag):
    ai, aj = [int(t) for t in spec.split(",")]
    I("s_waitcnt lgkmcnt(0)")
    I(f"s_sub_u32 s{s_t0}, s{s_prof+2*aj}, s{s_prof+2*ai}")
    I(f"s_cmp_eq_u32 s{s_prof+2*ai}, 0")
    I(f"s_cselect_b32 s{s_t0}, 0, s{s_t0}")
    I(f"s_cmp_eq_u32 s{s_prof+2*aj}, 0")
    I(f"s_cselect_b32 s{s_t0}, 0, s{s_t0}")
    I(f"s_min_u32 s{s_t0}, s{s_t0}, 20000")
    I(f"s_mul_i32 s{s_t0}, s{s_t0}, 10")
    I("s_memrealtime s[82:83]")
    I("s_waitcnt lgkmcnt(0)")
    I(f"s_mov_b32 s{s_t1}, s82")
    L(f"{P}_amp{tag}")
    I("s_memrealtime s[82:83]")
    I("s_waitcnt lgkmcnt(0)")
    I(f"s_sub_u32 s{s_t2}, s82, s{s_t1}")
    I(f"s_cmp_lt_u32 s{s_t2}, s{s_t0}")
    I(f"s_cbranch_scc1 {P}_amp{tag}")

def kst_init():
    if args.map and args.xrot == 1:
        I(f"s_lshl_b32 s{s_kst}, s{s_sh}, 2")
        I(f"s_xor_b32 s{s_kst}, s{s_kst}, s{s_mg4}")
        I(f"s_and_b32 s{s_kst}, s{s_kst}, 4")
    elif args.map and args.xrot == 4:
        I(f"s_lshr_b32 s{s_kst}, s{s_mg4}, 1")
        I(f"s_lshl_b32 s{s_cnt}, s{s_sh}, 2")
        I(f"s_add_u32 s{s_kst}, s{s_kst}, s{s_cnt}")
        I(f"s_and_b32 s{s_kst}, s{s_kst}, 7")
    elif args.xrot == 1:
        I(f"s_add_u32 s{s_kst}, s2, s{s_sh}")
        I(f"s_and_b32 s{s_kst}, s{s_kst}, 1")
        I(f"s_lshl_b32 s{s_kst}, s{s_kst}, 2")
    elif args.xrot == 4:
        I(f"s_lshl_b32 s{s_kst}, s{s_sh}, 1")
        I(f"s_add_u32 s{s_kst}, s{s_kst}, s2")
        I(f"s_and_b32 s{s_kst}, s{s_kst}, 3")
        I(f"s_lshl_b32 s{s_kst}, s{s_kst}, 1")
    elif args.xrot == 5:
        I(f"s_lshl_b32 s{s_kst}, s{s_sh}, 1")
        I(f"s_add_u32 s{s_kst}, s{s_kst}, s2")
        I(f"s_and_b32 s{s_kst}, s{s_kst}, 3")
        I(f"s_add_u32 s{s_cnt}, s{s_mt}, s{s_sl}")
        I(f"s_and_b32 s{s_cnt}, s{s_cnt}, 1")
        I(f"s_lshl_b32 s{s_cnt}, s{s_cnt}, 2")
        I(f"s_add_u32 s{s_kst}, s{s_kst}, s{s_cnt}")
    elif args.xrot == 6:
        I(f"s_add_u32 s{s_kst}, s2, s{s_sh}")
        I(f"s_and_b32 s{s_kst}, s{s_kst}, 1")
        I(f"s_lshl_b32 s{s_kst}, s{s_kst}, 1")
        I(f"s_add_u32 s{s_cnt}, s{s_mt}, s{s_sl}")
        I(f"s_and_b32 s{s_cnt}, s{s_cnt}, 1")
        I(f"s_lshl_b32 s{s_cnt}, s{s_cnt}, 2")
        I(f"s_add_u32 s{s_kst}, s{s_kst}, s{s_cnt}")
    else:
        I(f"s_mov_b32 s{s_kst}, 0")

def decode2():
    I(f"s_lshl_b32 s{s_t0}, s{s_sh}, 1")
    I(f"s_add_u32 s{s_t0}, s{s_t0}, s{s_mg4}")
    I(f"s_lshl_b32 s{s_t0}, s{s_t0}, 1")
    I(f"s_lshr_b32 s{s_t1}, s2, 6")
    I(f"s_add_u32 s{s_rb}, s{s_t0}, s{s_t1}")
    I(f"s_bfe_u32 s{s_cb}, s2, {3 | (3 << 16)}")
    I(f"s_mul_i32 s{s_rot2}, s{s_t1}, 11")

label = NAME + "_kernel"
e(f"; @launch grid=(256,1,1) block=(512,1,1) lds={LDS_TOTAL}")
e('.amdgcn_target "amdgcn-amd-amdhsa--gfx950"')
e(".text")
e(f".globl {label}")
e(".p2align 8")
e(f".type {label},@function")
L(label)
I("s_cmp_ge_u32 s2, 256")
I(f"s_cbranch_scc1 {P}_end")
for r, off in ((sX, 0), (sW1, 8), (sW3, 16), (sW2, 24), (sO, 32), (sD, 40), (sH, 48)):
    I(f"s_load_dwordx2 s[{r}:{r+1}], s[0:1], {off}")
if STAMPS:
    for i in range(8): I(f"s_mov_b32 s{s_prof+2*i}, 0")
if "delay" in args.diag:
    for i in range(int(re.search(r"delay(\d+)", args.diag).group(1))): I("s_sleep 18")
stamp(0)
I("v_lshrrev_b32 v2, 6, v0")
I("v_and_b32 v1, 63, v0")
I(f"v_readfirstlane_b32 s{s_wave}, v2")
if args.map:
    I(f"s_and_b32 s{s_mg4}, s2, 6")
    I(f"s_lshl_b32 s{s_mg4}, s{s_mg4}, 1")
else:
    I(f"s_and_b32 s{s_mg4}, s2, 3")
    I(f"s_lshl_b32 s{s_mg4}, s{s_mg4}, 2")
I(f"s_cmp_lt_u32 s{s_wave}, 4")
I(f"s_cbranch_scc1 {P}_dec")
if args.codepf:
    I("s_getpc_b64 s[18:19]")
    L(f"{P}_pc")
    I("v_bfe_u32 v60, v0, 1, 7")
    I("v_lshlrev_b32 v60, 7, v60")
    I(f"v_min_u32 v60, {P}_codeend-{P}_pc-4, v60")
    I("global_load_dword v61, v60, s[18:19]")
L(f"{P}_dec")
I(f"s_bfe_u32 s{s_sh}, s2, {(0 if args.map else 2) | (1 << 16)}")
I(f"s_bfe_u32 s{s_t2}, s2, {3 | (2 << 16)}")
I(f"s_lshr_b32 s{s_t3}, s2, 5")
I(f"s_add_u32 s{s_mt}, s{s_mg4}, s{s_t2}")
I(f"s_mul_i32 s{s_sl}, s{s_sh}, 7")
I(f"s_add_u32 s{s_sl}, s{s_sl}, s{s_t3}")
I(f"s_cmp_lg_u32 s{s_t3}, 7")
I(f"s_cbranch_scc1 {P}_dec2")
I(f"s_lshl_b32 s{s_t0}, s{s_sh}, 1")
I(f"s_and_b32 s{s_t1}, s{s_t2}, 1")
I(f"s_add_u32 s{s_mt}, s{s_mg4}, s{s_t0}")
I(f"s_add_u32 s{s_mt}, s{s_mt}, s{s_t1}")
I(f"s_lshr_b32 s{s_sl}, s{s_t2}, 1")
I(f"s_add_u32 s{s_sl}, s{s_sl}, 14")
L(f"{P}_dec2")
I(f"s_cmp_ge_u32 s{s_wave}, 4")
I(f"s_cbranch_scc1 {P}_compute")

MUTE[0] = "stages" in args.diag
vX = [2, 3, 4, 5]; vW = [6, 7, 8]; vW2 = 13
vFA, vFS, vFN = 20, 21, 22
I("v_lshrrev_b32 v14, 3, v1")
I("v_lshrrev_b32 v15, 4, v1")
I("v_and_b32 v16, 7, v1")
I("v_xor_b32 v15, v15, v16")
I("v_lshlrev_b32 v14, 10, v14")
I(f"v_lshl_add_u32 v{vX[0]}, v15, 4, v14")
I(f"v_xor_b32 v{vX[1]}, 64, v{vX[0]}")
I(f"v_add_u32 v{vX[1]}, 7168, v{vX[1]}")
I(f"v_add_u32 v{vX[2]}, 14336, v{vX[0]}")
I(f"v_add_u32 v{vX[3]}, 14336, v{vX[1]}")
I(f"s_bitcmp1_b32 s{s_sl}, 0")
I(f"s_cselect_b32 s{s_t0}, -64, 64")
I(f"s_cselect_b32 s{s_t1}, 128, 0")
I(f"s_cmp_eq_u32 s{s_sl}, 14")
I(f"s_cselect_b32 s{s_t0}, {1 << 21}, s{s_t0}")
I(f"s_mul_i32 s{s_t2}, s{s_t0}, -3")
I(f"s_add_u32 s{s_t2}, s{s_t2}, 2752")
I("v_lshrrev_b32 v14, 2, v1")
I("v_and_b32 v15, 3, v1")
I(f"v_lshl_add_u32 v15, v15, 4, s{s_t1}")
I("v_and_b32 v16, 32, v1")
for j in range(3):
    if j: I(f"v_add_u32 v14, 16, v14")
    I("v_mul_u32_u24 v17, 43, v14")
    if j == 0: I("v_mov_b32 v18, v15")
    if j == 1: I("v_xor_b32 v18, v15, v16")
    if j == 2: I("v_xor_b32 v18, 32, v15")
    I("v_lshrrev_b32 v17, 7, v17")
    I(f"v_mad_i32_i24 v18, v14, s{s_t0}, v18")
    I(f"v_mad_i32_i24 v{vW[j]}, v17, s{s_t2}, v18")
    if j: I(f"v_subrev_u32 v{vW[j]}, {1024*j}, v{vW[j]}")
I(f"s_lshl_b32 s{s_lx}, s{s_wave}, 12")
I(f"s_add_u32 s{s_lx}, s{s_lx}, {SLOT0}")
I(f"s_mul_i32 s{s_lw}, s{s_wave}, 6144")
I(f"s_add_u32 s{s_lw}, s{s_lw}, {SLOT0+16384}")
I(f"s_lshl_b32 s{s_xb}, s{s_mt}, 17")
I(f"s_lshl_b32 s{s_t0}, s{s_wave}, 15")
I(f"s_add_u32 s{s_xb}, s{s_xb}, s{s_t0}")
I(f"s_mul_i32 s{s_wb}, s{s_sl}, 192")
I(f"s_mul_i32 s{s_t0}, s{s_wave}, {16*2752}")
I(f"s_add_u32 s{s_wb}, s{s_wb}, s{s_t0}")
kst_init()
I(f"s_mov_b32 s{s_cnt}, 0")
I(f"s_mov_b32 s{s_ring}, {SLOTSZ}")
srd_tail(sX, XB); srd_tail(sW1, WB); srd_tail(sW3, WB)
I(f"s_cmp_ge_u32 s{s_sl}, 15")
I(f"s_cbranch_scc1 {P}_l_init")
I(f"s_lshl_b32 s{s_t0}, s{s_kst}, 7")
I(f"s_add_u32 s{s_sx}, s{s_xb}, s{s_t0}")
I(f"s_mul_i32 s{s_sw}, s{s_kst}, {64*2752}")
I(f"s_add_u32 s{s_sw}, s{s_sw}, s{s_wb}")
I(f"s_mov_b32 m0, s{s_lx}")
I("s_waitcnt lgkmcnt(0)")
if args.tlbw:
    I(f"s_load_dword s3, s[{sW1}:{sW1+1}], s{s_sw}")
    I(f"s_load_dword s4, s[{sW3}:{sW3+1}], s{s_sw}")
    if args.tlbw > 1:
        I(f"s_load_dword s5, s[{sW2}:{sW2+1}], 0")
        I(f"s_load_dword s6, s[{sO}:{sO+1}], 0")
stamp(1)
def issueS(tag):
    for j in range(4):
        I(f"buffer_load_dwordx4 v{vX[j]}, {srd(sX)}, s{s_sx} offen offset:{1024*j} lds")
    I(f"s_mov_b32 m0, s{s_lw}")
    I(f"s_add_u32 s{s_kst}, s{s_kst}, 1")
    for j in range(3):
        I(f"buffer_load_dwordx4 v{vW[j]}, {srd(sW1)}, s{s_sw} offen offset:{1024*j} lds")
    I("s_add_u32 m0, m0, 3072")
    I(f"s_and_b32 s{s_kst}, s{s_kst}, 7")
    for j in range(3):
        I(f"buffer_load_dwordx4 v{vW[j]}, {srd(sW3)}, s{s_sw} offen offset:{1024*j} lds")
    I(f"s_lshl_b32 s{s_t0}, s{s_kst}, 7")
    I(f"s_add_u32 s{s_sx}, s{s_xb}, s{s_t0}")
    I(f"s_mul_i32 s{s_sw}, s{s_kst}, {64*2752}")
    I(f"s_add_u32 s{s_sw}, s{s_sw}, s{s_wb}")
    I(f"s_cmp_ge_u32 s{s_lx}, {SLOT0+SLOTSZ}")
    I(f"s_cselect_b32 s{s_t0}, {-2*SLOTSZ & 0xffffffff}, s{s_ring}")
    I(f"s_add_u32 s{s_lx}, s{s_lx}, s{s_t0}")
    I(f"s_add_u32 s{s_lw}, s{s_lw}, s{s_t0}")
    I(f"s_mov_b32 m0, s{s_lx}")
    I(f"s_add_u32 s{s_cnt}, s{s_cnt}, 1")
L(f"{P}_l_loop")
issueS("a")
I(f"s_cmp_eq_u32 s{s_cnt}, 1")
I(f"s_cbranch_scc1 {P}_l_loop")

L(f"{P}_l_init")
decode2()
srd_tail(sW2, W2B); srd_tail(sH, WS_REC); srd_tail(sD, 256)
I("v_lshrrev_b32 v14, 3, v1")
I(f"s_and_b32 s{s_t0}, s{s_wave}, 1")
I(f"s_lshl_b32 s{s_t0}, s{s_t0}, 3")
I(f"s_lshr_b32 s{s_t1}, s{s_wave}, 1")
I(f"s_mul_i32 s{s_t1}, s{s_t1}, 688")
I(f"s_add_u32 s{s_t0}, s{s_t0}, s{s_t1}")
I(f"v_add_u32 v14, s{s_t0}, v14")
I("v_lshlrev_b32 v14, 10, v14")
I("v_lshrrev_b32 v15, 2, v1")
I("v_and_b32 v15, 4, v15")
I("v_and_b32 v16, 7, v1")
I("v_xor_b32 v15, v15, v16")
I(f"v_lshl_add_u32 v{vW2}, v15, 4, v14")
I(f"s_lshl_b32 s{s_pbeg}, s{s_cb}, 7")
I(f"s_add_u32 s{s_pend}, s{s_pbeg}, {43*16384}")
I(f"s_lshl_b32 s{s_t0}, s{s_rot2}, 14")
I(f"s_add_u32 s{s_p}, s{s_pbeg}, s{s_t0}")
I(f"s_lshl_b32 s{s_lu}, s{s_wave}, 10")
I(f"s_lshr_b32 s{s_t0}, s{s_rb}, 1")
I(f"s_mul_i32 s{s_fl}, s{s_t0}, {4*HSTR*1024}")
I(f"s_add_u32 s{s_fl}, s{s_fl}, {86*1024}")
I("v_min_u32 v14, 15, v1")
I(f"s_lshl_b32 s{s_valid}, 1, s{s_sl}")
I(f"s_cmp_eq_u32 s{s_t0}, s{s_mt}")
I(f"s_cselect_b32 s{s_t1}, s{s_sl}, 15")
I(f"s_cselect_b32 s{s_valid}, s{s_valid}, 0")
I(f"v_cmp_eq_u32 vcc, s{s_t1}, v14")
I("v_mov_b32 v15, 15")
I("s_nop 0")
I("v_cndmask_b32 v14, v14, v15, vcc")
I("v_lshrrev_b32 v15, 3, v14")
I(f"v_mul_u32_u24 v15, {HSTR*1024}, v15")
I("v_and_b32 v14, 7, v14")
I(f"v_lshl_add_u32 v{vFA}, v14, 7, v15")
I("s_waitcnt lgkmcnt(0)")
I(f"s_cmp_lg_u32 s{s_wave}, 0")
I(f"s_cbranch_scc1 {P}_l_nosamp")
I(f"buffer_load_dword v{vFS}, v{vFA}, {srd(sH)}, s{s_fl} offen sc1")
L(f"{P}_l_nosamp")
I(f"s_cmp_ge_u32 s{s_sl}, 15")
I(f"s_cbranch_scc1 {P}_l_idle")
if args.stouch:
    I(f"s_lshr_b32 s{s_t0}, s2, 3")
    I(f"s_lshl_b32 s{s_t0}, s{s_t0}, 2")
    I(f"s_add_u32 s{s_t0}, s{s_t0}, s{s_wave}")
    I(f"s_mul_i32 s{s_t0}, s{s_t0}, {11*1024}")
    I(f"s_add_u32 s18, s{sW2}, s{s_t0}")
    I(f"s_addc_u32 s19, s{sW2+1}, 0")
L(f"{P}_l_wait")
I("s_waitcnt vmcnt(10)")
if "b0" in args.diag:
    I(f"s_cmp_lg_u32 s{s_cnt}, 2"); I(f"s_cbranch_scc1 {P}_l_nb0"); stamp(7, True); L(f"{P}_l_nb0")
I("s_barrier")
if "stages" in args.diag:
    for c in range(1, 7):
        I(f"s_cmp_lg_u32 s{s_cnt}, {c+2}"); I(f"s_cbranch_scc1 {P}_l_st{c}"); stamp(c, True); L(f"{P}_l_st{c}")
I(f"s_cmp_ge_u32 s{s_cnt}, 8")
I(f"s_cbranch_scc1 {P}_l_tail")
issueS("b")
if args.stouch == 1:
    for c in (0, 1, 2, 4, 5):
        for hh in range(2): I(f"s_load_dword s3, s[18:19], {c*128 + hh*64}")
    I("s_add_u32 s18, s18, 2048"); I("s_addc_u32 s19, s19, 0")
if args.stouch == 2:
    for r in range(2):
        for c in (0, 1, 2, 4, 5): I(f"s_load_dwordx2 s[4:5], s[18:19], {r*1024 + c*128 + 60}")
    I("s_add_u32 s18, s18, 2048"); I("s_addc_u32 s19, s19, 0")
I(f"s_branch {P}_l_wait")
LOADER_TAIL_MARK = len(out)

wcount = [0]
def w_one():
    I(f"buffer_load_dwordx4 v{vW2}, {srd(sW2)}, s{s_p} offen lds")
    I(f"s_add_u32 s{s_p}, s{s_p}, 16384")
    I(f"s_cmp_eq_u32 s{s_p}, s{s_pend}")
    I(f"s_cselect_b32 s{s_p}, s{s_pbeg}, s{s_p}")
    I("s_add_u32 m0, m0, 4096")
    I(f"s_add_u32 s{s_u}, s{s_u}, 1")
def issueW(lim, pace=0):
    lab = f"{P}_l_w{wcount[0]}"; wcount[0] += 1
    I(f"s_cmp_ge_u32 s{s_u}, {lim}")
    I(f"s_cbranch_scc1 {lab}e")
    L(lab)
    if pace: I(f"s_waitcnt vmcnt({pace-1})")
    w_one()
    I(f"s_cmp_lt_u32 s{s_u}, {lim}")
    I(f"s_cbranch_scc1 {lab}")
    L(lab + "e")

pfc = [0]
def prefetch_jobs():
    tag = pfc[0]; pfc[0] += 1
    I(f"s_bfe_u32 s{s_t2}, s2, {3 | (1 << 16)}")
    if args.jobX:
        kst_init()
        I("v_lshlrev_b32 v40, 10, v1")
        if args.jobX == 2:
            I(f"s_cmp_ge_u32 s{s_mg4}, 8")
            I(f"s_cbranch_scc1 {P}_pf{tag}_e")
            I(f"s_add_u32 s{s_t0}, s{s_mg4}, 8")
            I(f"s_lshl_b32 s{s_t0}, s{s_t0}, 17")
            I(f"s_lshl_b32 s{s_t1}, s{s_wave}, 16")
            I(f"s_add_u32 s{s_t0}, s{s_t0}, s{s_t1}")
            I(f"s_add_u32 s{s_t1}, s{s_kst}, s{s_t2}")
            I(f"s_lshl_b32 s{s_t1}, s{s_t1}, 7")
            I(f"s_add_u32 s{s_t0}, s{s_t0}, s{s_t1}")
            I(f"buffer_load_dword v42, v40, {srd(sX)}, s{s_t0} offen")
            L(f"{P}_pf{tag}_e")
        I(f"s_lshl_b32 s{s_t0}, s{s_mg4}, 17")
        I(f"s_lshl_b32 s{s_t1}, s{s_wave}, 16")
        I(f"s_add_u32 s{s_t0}, s{s_t0}, s{s_t1}")
        I(f"s_add_u32 s{s_t1}, s{s_kst}, s{s_t2}")
        I(f"s_add_u32 s{s_t1}, s{s_t1}, 2")
        I(f"s_and_b32 s{s_t1}, s{s_t1}, 7")
        I(f"s_lshl_b32 s{s_t1}, s{s_t1}, 7")
        I(f"s_add_u32 s{s_t0}, s{s_t0}, s{s_t1}")
        I(f"buffer_load_dword v42, v40, {srd(sX)}, s{s_t0} offen")
    if args.jobx3:
        I("v_and_b32 v40, 31, v1")
        I("v_lshlrev_b32 v40, 10, v40")
        I(f"s_lshl_b32 s{s_t0}, s{s_mg4}, 17")
        I(f"s_lshl_b32 s{s_t1}, s{s_t2}, 18")
        I(f"s_add_u32 s{s_t0}, s{s_t0}, s{s_t1}")
        I(f"s_lshl_b32 s{s_t1}, s{s_wave}, 15")
        I(f"s_add_u32 s{s_t0}, s{s_t0}, s{s_t1}")
        I(f"buffer_load_dword v42, v40, {srd(sX)}, s{s_t0} offen offset:384")
    if args.jobM:
        I("v_lshlrev_b32 v41, 7, v1")
        I(f"s_and_b32 s{s_t0}, s2, 7")
        I(f"s_lshl_b32 s{s_t0}, s{s_t0}, 1")
        I(f"s_add_u32 s{s_t0}, s{s_t0}, s{s_t2}")
        I(f"s_lshl_b32 s{s_t1}, s{s_wave}, 4")
        I(f"s_add_u32 s{s_t0}, s{s_t0}, s{s_t1}")
        I(f"s_lshl_b32 s{s_t0}, s{s_t0}, 13")
        I(f"buffer_load_dword v43, v41, {srd(sW2)}, s{s_t0} offen")
        I(f"s_add_u32 s{s_t0}, s{s_t0}, {128*8192}")
        I(f"s_cmp_ge_u32 s{s_t0}, {W2B}")
        I(f"s_cbranch_scc1 {P}_pf{tag}_m")
        I(f"buffer_load_dword v43, v41, {srd(sW2)}, s{s_t0} offen")
        L(f"{P}_pf{tag}_m")
    if args.job3:
        I("v_min_u32 v44, 42, v1")
        I("v_lshlrev_b32 v44, 10, v44")
        I(f"s_mul_i32 s{s_t0}, s{s_t2}, 688")
        I(f"s_mul_i32 s{s_t1}, s{s_wave}, 86")
        I(f"s_add_u32 s{s_t0}, s{s_t0}, s{s_t1}")
        I(f"s_lshl_b32 s{s_t0}, s{s_t0}, 10")
        I(f"buffer_load_dword v45, v44, {srd(sW2)}, s{s_t0} offen offset:384")
        I(f"s_add_u32 s{s_t0}, s{s_t0}, {43*1024}")
        I(f"buffer_load_dword v45, v44, {srd(sW2)}, s{s_t0} offen offset:384")

L(f"{P}_l_tail")
stamp(2)
I(f"s_mov_b32 m0, s{s_lu}")
I(f"s_mov_b32 s{s_u}, 0")
I(f"v_mov_b32 v17, {LDS_SCR}")
issueW(args.atb6)
I(f"s_waitcnt vmcnt({args.atb6})")
I("s_barrier")
if "stages" in args.diag: stamp(7, True)
stamp(3)
issueW(args.kmin, args.pace)
I("s_setprio 3")
if args.stopat < 0: I(f"s_branch {P}_l_stop")
L(f"{P}_l_str")
I("ds_read_b64 v[18:19], v17 offset:8")
I(f"s_waitcnt vmcnt({args.pace2-1}) lgkmcnt(0)")
I(f"v_readfirstlane_b32 s{s_t0}, v18")
I(f"v_readfirstlane_b32 s{s_t1}, v19")
I(f"s_cmp_eq_u32 s{s_t0}, 4")
I(f"s_cselect_b32 s{s_lim}, 39, 29")
I(f"s_cmp_lg_u32 s{s_t1}, 0")
I(f"s_cbranch_scc1 {P}_l_stop")
I(f"s_cmp_ge_u32 s{s_u}, s{s_lim}")
I(f"s_cbranch_scc1 {P}_l_full")
for bi in range(args.burst):
    if bi:
        I(f"s_cmp_ge_u32 s{s_u}, s{s_lim}")
        I(f"s_cbranch_scc1 {P}_l_full")
        I(f"s_waitcnt vmcnt({args.pace2-1})")
    if args.pace3:
        I(f"s_cmp_lg_u32 s{s_cb}, 3")
        I(f"s_cbranch_scc1 {P}_l_p3{bi}")
        I(f"s_waitcnt vmcnt({args.pace3-1})")
        L(f"{P}_l_p3{bi}")
    w_one()
I(f"s_branch {P}_l_str")
L(f"{P}_l_full")
I("s_sleep 1")
I(f"s_cmp_lt_u32 s{s_u}, 39")
I(f"s_cbranch_scc1 {P}_l_str")
L(f"{P}_l_stop")
I("s_setprio 0")
I("s_waitcnt vmcnt(0)")
stamp(4)
if "wk" in args.diag:
    I("s_waitcnt lgkmcnt(0)"); I(f"s_mul_i32 s{s_prof+14}, s{s_u}, 10"); I(f"s_add_u32 s{s_prof+14}, s{s_prof+14}, s{s_prof+8}")
if args.sflag:
    I(f"s_mul_i32 s{s_xb}, s{s_mt}, {4*HSTR*1024}")
    I(f"s_lshr_b32 s{s_t1}, s{s_sl}, 3")
    I(f"s_mul_i32 s{s_t1}, s{s_t1}, {HSTR*1024}")
    I(f"s_add_u32 s{s_xb}, s{s_xb}, s{s_t1}")
    I(f"s_and_b32 s{s_t1}, s{s_sl}, 7")
    I(f"s_lshl_b32 s{s_t1}, s{s_t1}, 7")
    I(f"s_add_u32 s{s_xb}, s{s_xb}, s{s_t1}")
    I(f"s_add_u32 s{s_xb}, s{s_xb}, {86*1024}")
    I(f"s_mov_b32 s{s_wb}, 1")
    I(f"s_cmp_lg_u32 s{s_wave}, 2")
I("s_barrier")
if args.sflag:
    I(f"s_cbranch_scc1 {P}_l_nofl")
    I(f"s_atomic_add s{s_wb}, s[{sH}:{sH+1}], s{s_xb}")
    L(f"{P}_l_nofl")
I(f"s_cmp_lg_u32 s{s_wave}, 1")
I(f"s_cbranch_scc1 {P}_l_nofb")
I(f"s_lshl_b32 s{s_sx}, 1, s{s_sl}")
I(f"s_lshl_b32 s{s_sw}, s{s_mt}, 4")
I(f"s_atomic_add s{s_sx}, s[{sD}:{sD+1}], s{s_sw}")
L(f"{P}_l_nofb")
if args.fsleep: I("s_sleep 1")
I(f"s_add_u32 s{s_lim}, s{s_u}, {args.wb1}")
I(f"s_min_u32 s{s_lim}, s{s_lim}, 39")
issueW(f"s{s_lim}")
I(f"s_branch {P}_l_bb")
L(f"{P}_l_idle")
prefetch_jobs()
I(f"s_mov_b32 m0, s{s_lu}")
I(f"s_mov_b32 s{s_u}, 0")
issueW(39)
I("s_waitcnt vmcnt(0)")
I("s_barrier")
L(f"{P}_l_bb")
I("s_barrier")
issueW(39)
I(f"s_mov_b32 m0, s{s_lu}")
issueW(43)
stamp(5)
wdone = args.kmin
L(f"{P}_l_sel")
I(f"s_cmp_lg_u32 s{s_wave}, 0")
I(f"s_cbranch_scc1 {P}_l_go")
I(f"s_lshr_b32 s{s_t1}, s{s_rb}, 1")
I(f"s_lshl_b32 s{s_t1}, s{s_t1}, 4")
I("v_mov_b32 v18, 0")
I(f"v_mov_b32 v17, {LDS_SCR}")
I("v_mov_b32 v19, 1")
I(f"s_mov_b32 s{s_cnt}, 0")
L(f"{P}_l_poll")
I(f"buffer_load_dword v{vFN}, v{vFA}, {srd(sH)}, s{s_fl} offen sc1")
I(f"s_add_u32 s{s_cnt}, s{s_cnt}, 1")
I("s_waitcnt vmcnt(0)")
I(f"v_cmp_ne_u32 vcc, v{vFN}, v{vFS}")
I(f"s_and_b32 s{s_t0}, s{s_cnt}, {0 if 'fbonly' in args.diag else 31}")
if "fbonly" in args.diag: I("s_mov_b64 vcc, 0")
I(f"s_or_b32 s{s_t2}, vcc_lo, s{s_valid}")
I(f"s_and_b32 s{s_t2}, s{s_t2}, 0x7fff")
I(f"s_cmp_eq_u32 s{s_t2}, 0x7fff")
I(f"s_cbranch_scc1 {P}_l_ok")
if args.sleep: I(f"s_sleep {args.sleep}")
I(f"s_cmp_lg_u32 s{s_t0}, 0")
I(f"s_cbranch_scc1 {P}_l_poll")
I(f"buffer_load_dword v16, v18, {srd(sD)}, s{s_t1} offen sc1")
I("s_waitcnt vmcnt(0)")
I(f"v_readfirstlane_b32 s{s_t0}, v16")
I(f"s_cmp_ge_u32 s{s_cnt}, 400000")
I(f"s_cbranch_scc1 {P}_l_ok")
I(f"s_or_b32 s{s_t2}, s{s_t2}, s{s_t0}")
I(f"s_cmp_lg_u32 s{s_t2}, 0x7fff")
I(f"s_cbranch_scc1 {P}_l_poll")
L(f"{P}_l_ok")
I("ds_write_b32 v17, v19")
L(f"{P}_l_go")
stamp(6)
I("s_waitcnt vmcnt(0)")
I("s_barrier")
if args.amp.startswith("L"): amp_block(args.amp[1:], "l")
prof_store()
L(f"{P}_end")
I("s_endpgm")
loader_tail = out[LOADER_TAIL_MARK:]
del out[LOADER_TAIL_MARK:]

MUTE[0] = "p2" in args.diag or "fin" in args.diag
FIN = "fin" in args.diag
L(f"{P}_compute")
vAX = [2, 3]; vAW = [6, 7, 8]
ACC = 64
FA, FB = 160, 200
vOLD = 20
if args.prio: I(f"s_setprio {args.prio}")
I(f"s_and_b32 s{s_t0}, s{s_wave}, 1")
I(f"s_lshl_b32 s{s_t0}, s{s_t0}, 13")
I(f"s_add_u32 s{s_t0}, s{s_t0}, {SLOT0}")
I("v_and_b32 v10, 15, v1")
I("v_lshrrev_b32 v11, 1, v10")
I("v_lshrrev_b32 v12, 4, v1")
I(f"v_lshl_add_u32 v10, v10, 7, s{s_t0}")
I("v_xor_b32 v13, v12, v11")
I("v_and_b32 v11, 1, v12")
I(f"v_lshl_add_u32 v{vAX[0]}, v13, 4, v10")
I(f"v_xor_b32 v{vAX[1]}, 64, v{vAX[0]}")
I("v_lshrrev_b32 v10, 1, v12")
I("v_bfe_u32 v12, v1, 2, 2")
I("v_lshl_add_u32 v12, v11, 3, v12")
I("v_mul_u32_u24 v12, 192, v12")
I("v_mul_u32_u24 v13, 6144, v10")
I("v_and_b32 v10, 3, v1")
I("v_lshl_add_u32 v12, v10, 3, v12")
I(f"s_mov_b32 s{s_t1}, {SLOT0+16384}")
I(f"v_add3_u32 v12, v12, v13, s{s_t1}")
I("v_lshlrev_b32 v11, 5, v11")
I(f"s_bfe_u32 s{s_t0}, s{s_wave}, {1 | (1 << 16)}")
I(f"s_lshl_b32 s{s_t1}, s{s_t0}, 5")
I(f"s_lshl_b32 s{s_t2}, s{s_t0}, 6")
I(f"v_xor_b32 v13, s{s_t1}, v11")
I(f"v_add3_u32 v{vAW[0]}, v12, v13, s{s_t2}")
I(f"v_add_u32 v{vAW[2]}, 64, v{vAW[0]}")
I("v_xor_b32 v13, 32, v13")
I(f"s_lshl_b32 s{s_t2}, s{s_t0}, 7")
I(f"v_add3_u32 v{vAW[1]}, v12, v13, s{s_t2}")
I("v_mov_b32 v21, 0")
I(f"v_mov_b32 v22, {LDS_SCR}")
I("ds_write_b32 v22, v21")
I("ds_write_b32 v22, v21 offset:8")
I("ds_write_b32 v22, v21 offset:12")
I("v_mov_b32 v23, 1")
for r in range(0, 96, 2):
    I(f"v_mov_b64 v[{ACC+r}:{ACC+r+1}], 0")
I(f"s_cmp_eq_u32 s{s_t0}, 0")
I(f"s_cselect_b32 s{s_t1}, 2, 0")
I(f"s_movk_i32 s{s_t2}, 0x543")
I(f"s_cselect_b32 s{s_t2}, 0x210, s{s_t2}")
I(f"s_movk_i32 s{s_t3}, 0x103")
I(f"s_cselect_b32 s{s_t3}, 0x254, s{s_t3}")
I(f"s_cmp_eq_u32 s{s_sl}, 14")
I(f"s_cselect_b32 s{s_valid}, s{s_t1}, 3")
I(f"s_bitcmp1_b32 s{s_sl}, 0")
I(f"s_cselect_b32 s{s_t2}, s{s_t3}, s{s_t2}")
I(f"s_and_b32 s{s_t1}, s{s_wave}, 1")
I(f"s_lshl_b32 s{s_t3}, s{s_mt}, 1")
I(f"s_add_u32 s{s_t1}, s{s_t1}, s{s_t3}")
I(f"s_mul_i32 s{s_t1}, s{s_t1}, {2*HSTR}")
I(f"s_mul_i32 s{s_t3}, s{s_sl}, 6")
I(f"s_add_u32 s{s_t1}, s{s_t1}, s{s_t3}")
for t in range(3):
    I(f"s_bfe_u32 s{s_t3}, s{s_t2}, {4*t | (4 << 16)}")
    I(f"s_add_u32 s{s_t3}, s{s_t3}, s{s_t1}")
    I(f"s_lshl_b32 s{s_hoff+t}, s{s_t3}, 10")
I(f"s_mov_b32 s{s_k}, 0xbfb8aa3b")
I("v_lshlrev_b32 v9, 4, v1")
I(f"v_add_u32 v10, {HSTR*1024}, v9")
I(f"v_mov_b32 v56, s{s_k}"); I(f"v_mov_b32 v57, s{s_k}"); I("v_mov_b32 v58, 1.0"); I("v_mov_b32 v59, 1.0")
if not args.sflag:
    I(f"s_mul_i32 s{s_fl}, s{s_mt}, {4*HSTR*1024}")
    I(f"s_lshr_b32 s{s_t1}, s{s_sl}, 3")
    I(f"s_mul_i32 s{s_t1}, s{s_t1}, {HSTR*1024}")
    I(f"s_add_u32 s{s_fl}, s{s_fl}, s{s_t1}")
    I(f"s_and_b32 s{s_t1}, s{s_sl}, 7")
    I(f"s_lshl_b32 s{s_t1}, s{s_t1}, 7")
    I(f"s_add_u32 s{s_fl}, s{s_fl}, s{s_t1}")
    I(f"s_add_u32 s{s_fl}, s{s_fl}, {86*1024}")
srd_tail(sH, WS_REC); srd_tail(sO, OB)
I(f"s_mov_b32 s{s_cnt}, 0")
I(f"s_mov_b32 s{s_ring}, 1")
I(f"s_mov_b32 s{s_sx}, {SLOTSZ}")
I("s_waitcnt lgkmcnt(0)")
I(f"s_cmp_ge_u32 s{s_sl}, 15")
I(f"s_cbranch_scc1 {P}_c_idle")
I(f"s_cmp_eq_u32 s{s_valid}, 0")
I(f"s_cbranch_scc1 {P}_c_lazy")

def xr(fs, mt): return fs + 4 * mt
def wr_(fs, t, mat): return fs + 16 + 4 * (2 * t + mat)
def acc(t, mat, mt): return ACC + ((t * 2 + mat) * 4 + mt) * 4
def xrd(ks, fs, mt): return [f"ds_read_b128 v[{xr(fs,mt)}:{xr(fs,mt)+3}], v{vAX[ks]} offset:{2048*mt}"]
def wrd(ks, fs, t, mat):
    d = wr_(fs, t, mat)
    return [f"ds_read_b64_tr_b16 v[{d+2*h}:{d+2*h+1}], v{vAW[t]} offset:{ks*12288+mat*3072+h*768}" for h in range(2)]
def reads(ks, fs):
    if "noread" in args.diag: return ["s_nop 0"] * 16
    if "halfread" in args.diag:
        r = xrd(ks, fs, 0) + wrd(ks, fs, 0, 0) + xrd(ks, fs, 1) + wrd(ks, fs, 0, 1) + wrd(ks, fs, 1, 0)
        return r + ["s_nop 0"] * 8
    r = xrd(ks, fs, 0) + wrd(ks, fs, 0, 0) + xrd(ks, fs, 1) + wrd(ks, fs, 0, 1) + xrd(ks, fs, 2) + xrd(ks, fs, 3)
    for t in (1, 2):
        for mat in range(2): r += wrd(ks, fs, t, mat)
    return r
def mf(fs, t, mat, mt):
    a = acc(t, mat, mt); w = wr_(fs, t, mat); x = xr(fs, mt)
    return f"v_mfma_f32_16x16x32_bf16 v[{a}:{a+3}], v[{w}:{w+3}], v[{x}:{x+3}], v[{a}:{a+3}]"
def mfmas(fs):
    if "halfm" in args.diag:
        return [mf(fs, t, mat, mt) if mat == 0 else "s_nop 1" for t in range(3) for mat in range(2) for mt in range(4)]
    if args.morder == 1:
        return [mf(fs, t, mat, mt if mat == 0 else 3 - mt) for t in range(3) for mat in range(2) for mt in range(4)]
    if args.morder == 2:
        ws = [(t, mat) for t in range(3) for mat in range(2)]
        return [mf(fs, *w, mt) for mt in range(4) for w in (ws if mt % 2 == 0 else ws[::-1])]
    return [mf(fs, t, mat, mt) for t in range(3) for mat in range(2) for mt in range(4)]
if args.prew:
    for t in range(3):
        if t == 2:
            I(f"s_cmp_le_u32 s{s_valid}, 2"); I(f"s_cbranch_scc1 {P}_c_npw")
        for p_ in range(2):
            I(f"buffer_store_dwordx4 v[64:67], v{9+p_}, {srd(sH)}, s{s_hoff+t} offen sc1")
    L(f"{P}_c_npw")
if args.align:
    I(f"s_branch {P}_pg1"); out.append("@COLD@"); e(".p2align 12"); L(f"{P}_pg1")
if "b0" in args.diag: stamp(1)
I("s_barrier")
if "b0" not in args.diag: stamp(1)
r = reads(0, FA)
for x in r[:12]: I(x)
if not args.sflag:
    I(f"s_cmp_lg_u32 s{s_wave}, 4")
    I(f"s_cbranch_scc1 {P}_c_noold")
    I(f"buffer_load_dword v{vOLD}, v21, {srd(sH)}, s{s_fl} offen sc1")
    L(f"{P}_c_noold")
I("s_waitcnt lgkmcnt(8)")
for x in r[12:]: I(x)
L(f"{P}_c_loop")
m = mfmas(FA); r = reads(1, FB)
extra = [f"s_add_u32 s{s_ring}, s{s_ring}, 1", f"s_cmp_eq_u32 s{s_ring}, 3",
         f"s_cselect_b32 s{s_t0}, {-2*SLOTSZ & 0xffffffff}, s{s_sx}", f"s_cselect_b32 s{s_ring}, 0, s{s_ring}",
         f"s_add_u32 s{s_cnt}, s{s_cnt}, 1", None]
upd = [f"v_add_u32 v{r}, s{s_t0}, v{r}" for r in vAX + vAW]
need = {0: 8, 8: 10, 12: 12, 16: 14, 20: 16} if args.morder < 2 else {0: 6, 2: 10, 3: 12, 4: 14, 5: 16}
for i in range(24):
    if i in need: I(f"s_waitcnt lgkmcnt({min(15, 16 - need[i] + min(i, 16))})")
    I(m[i])
    if i < 16: I(r[i])
    elif i < 19:
        for x in extra[2*(i-16):2*(i-16)+2]:
            if x: I(x)
    else: I(upd[i-19])
I("s_waitcnt lgkmcnt(0)")
m = mfmas(FB); r = reads(0, FA)
for i in range(24):
    if i == args.barpos: I("s_barrier")
    I(m[i])
    if i >= args.barpos:
        for x in r[(i - args.barpos) * args.rpg:(i - args.barpos + 1) * args.rpg]: I(x)
assert (24 - args.barpos) * args.rpg >= 16
I(f"s_cmp_lt_u32 s{s_cnt}, 7")
I(f"s_cbranch_scc1 {P}_c_loop")
stamp(2)
T = 32
def epi(t, p):
    tm = T + p * 12; o = tm + 8
    g = [acc(t, 0, 2*p + (q >> 2)) + (q & 3) for q in range(8)]
    u = [acc(t, 1, 2*p + (q >> 2)) + (q & 3) for q in range(8)]
    v = []
    if 2 * t + p >= args.pkfrom:
        pr = lambda r: f"v[{r}:{r+1}]"
        for q in range(0, 8, 2): v.append(f"v_pk_mul_f32 {pr(tm+q)}, {pr(g[q])}, v[56:57]")
        for q in range(8): v.append(f"v_exp_f32 v{tm+q}, v{tm+q}")
        for q in range(0, 8, 2): v.append(f"v_pk_add_f32 {pr(tm+q)}, {pr(tm+q)}, v[58:59]")
        for q in range(8): v.append(f"v_rcp_f32 v{tm+q}, v{tm+q}")
        for q in range(0, 8, 2): v.append(f"v_pk_mul_f32 {pr(tm+q)}, {pr(tm+q)}, {pr(g[q])}")
        for q in range(0, 8, 2): v.append(f"v_pk_mul_f32 {pr(tm+q)}, {pr(tm+q)}, {pr(u[q])}")
    else:
        for q in range(8): v.append(f"v_mul_f32 v{tm+q}, s{s_k}, v{g[q]}")
        for q in range(8): v.append(f"v_exp_f32 v{tm+q}, v{tm+q}")
        for q in range(8): v.append(f"v_add_f32 v{tm+q}, 1.0, v{tm+q}")
        for q in range(8): v.append(f"v_rcp_f32 v{tm+q}, v{tm+q}")
        for q in range(8): v.append(f"v_mul_f32 v{tm+q}, v{tm+q}, v{g[q]}")
        for q in range(8): v.append(f"v_mul_f32 v{tm+q}, v{tm+q}, v{u[q]}")
    for q in (0, 2, 1, 3): v.append(f"v_cvt_pk_bf16_f32 v{o+q}, v{tm+2*q}, v{tm+2*q+1}")
    v.append(("swap", o))
    v.append(("store", t, p, o))
    return v
def emit_v(x):
    if isinstance(x, tuple) and x[0] == "swap":
        o = x[1]
        I(f"v_permlane16_swap_b32 v{o}, v{o+2}")
        I("s_nop 0")
        I(f"v_permlane16_swap_b32 v{o+1}, v{o+3}")
    elif isinstance(x, tuple):
        _, t, p, o = x
        if t == 2:
            I(f"s_cmp_le_u32 s{s_valid}, 2")
            I(f"s_cbranch_scc1 {P}_c_ns{t}{p}")
        I(f"buffer_store_dwordx4 v[{o}:{o+3}], v{9+p}, {srd(sH)}, s{s_hoff+t} offen {'' if 'hplain' in args.diag else 'sc1'}")
        if t == 2: L(f"{P}_c_ns{t}{p}")
    else:
        I(x)
blocks = [(t, p) for t in range(3) for p in range(2)]
def bmf(t, p, fs): return [mf(fs, t, mat, 2*p + j) for mat in range(2) for j in range(2)]
rB = reads(1, FB)
I("s_waitcnt lgkmcnt(8)")
pre = bmf(0, 0, FA) + bmf(0, 1, FA)
for i in range(8):
    I(pre[i])
    if i == 3: I("s_waitcnt lgkmcnt(6)")
    I(rB[2*i])
    if i == 7: I("s_waitcnt lgkmcnt(9)")
    I(rB[2*i+1])
I("s_waitcnt lgkmcnt(8)")
seq = []
for bi, (t, p) in enumerate(blocks):
    x = bmf(t, p, FB) if bi < 2 else bmf(t, p, FA) + bmf(t, p, FB)
    seq += [(y, None) for y in x[:-1]] + [(x[-1], bi)]
vq = []; nxt = 0; since = {}
for i, (mi, done) in enumerate(seq):
    if i == 8:
        I("s_waitcnt lgkmcnt(0)")
        I("s_mov_b64 exec, 1"); I("ds_add_u32 v22, v23 offset:8"); I("s_mov_b64 exec, -1")
    I(mi)
    for k in since: since[k] += 1
    if done is not None: since[done] = 0
    n = 0
    while n < args.gapc:
        if not vq:
            if nxt in since and since[nxt] >= 4 and nxt < args.pkfrom:
                if since[nxt] < 9: I(f"s_nop {9 - since[nxt]}")
                vq += epi(*blocks[nxt]); nxt += 1
            else:
                break
        x = vq.pop(0)
        emit_v(x); n += 8 if (isinstance(x, tuple) or "exp" in x or "rcp" in x) else 4
        for k in since: since[k] += 1
while vq or nxt < 6:
    if not vq:
        if since[nxt] < 9: I(f"s_nop {9 - since[nxt]}")
        if nxt == args.stopat: I("ds_write_b32 v22, v23 offset:12")
        vq += epi(*blocks[nxt]); nxt += 1
    emit_v(vq.pop(0))
    for k in since: since[k] += 1
if args.stopat == 6: I("ds_write_b32 v22, v23 offset:12")
L(f"{P}_c_epidone")
stamp(3)
vB = [[10, 11], [12, 13], [14, 15]]
WF = 128; HR = 160; R = args.hring
I("v_lshrrev_b32 v16, 4, v1")
I("v_lshrrev_b32 v17, 5, v1")
I("v_bfe_u32 v18, v1, 2, 2")
I("v_lshl_add_u32 v17, v17, 3, v18")
I("v_lshlrev_b32 v17, 7, v17")
I("v_and_b32 v16, 1, v16")
I("v_and_b32 v19, 1, v1")
I("v_lshl_add_u32 v16, v19, 1, v16")
I("v_lshlrev_b32 v18, 1, v18")
I("v_and_b32 v18, 4, v18")
I(f"s_bfe_u32 s{s_t0}, s{s_wave}, {1 | (1 << 16)}")
I(f"s_lshl_b32 s{s_t1}, s{s_t0}, 2")
I(f"v_xor_b32 v18, s{s_t1}, v18")
I("v_xor_b32 v16, v16, v18")
I("v_lshl_add_u32 v17, v16, 4, v17")
I("v_bfe_u32 v19, v1, 1, 1")
I("v_lshl_add_u32 v17, v19, 3, v17")
I(f"s_lshl_b32 s{s_t1}, s{s_t0}, 11")
I(f"v_add_u32 v{vB[0][0]}, s{s_t1}, v17")
I(f"v_xor_b32 v{vB[0][1]}, 64, v{vB[0][0]}")
for sg in (1, 2):
    for nb in range(2):
        I(f"v_add_u32 v{vB[sg][nb]}, {sg*65536}, v{vB[0][nb]}")
I("s_waitcnt vmcnt(0)")
if not args.sflag: I(f"v_add_u32 v{vOLD}, 1, v{vOLD}")
I("s_barrier")
if not args.sflag:
    I(f"s_cmp_lg_u32 s{s_wave}, 4")
    I(f"s_cbranch_scc1 {P}_c_p2")
    I(f"s_cmp_ge_u32 s{s_sl}, 15")
    I(f"s_cbranch_scc1 {P}_c_p2")
    I("s_mov_b64 exec, 1")
    I(f"buffer_store_dword v{vOLD}, v21, {srd(sH)}, s{s_fl} offen sc1")
    I("s_mov_b64 exec, -1")
L(f"{P}_c_p2")
stamp(4)
def wreads(u, dst):
    a = unit_addr(u); sg = a >> 16; off = a & 0xffff
    return [f"ds_read_b64_tr_b16 v[{dst+4*nb+2*h}:{dst+4*nb+2*h+1}], v{vB[sg][nb]} offset:{off+h*512}" for nb in range(2) for h in range(2)]
NW, NPRE, PRE, TN = 3, 4, 96, args.tailn
def wdst(u):
    if u < 4: return PRE + 8 * u
    if u >= 43 - TN: return PRE + 8 * (u - (43 - TN))
    return WF + 8 * (u % NW)
for u in range(NPRE):
    if u == 3: I("s_waitcnt lgkmcnt(8)")
    for r in wreads(u, wdst(u)): I(r)
I("s_waitcnt lgkmcnt(0)")
I("s_barrier")
decode2()
I(f"s_bfe_u32 s{s_t0}, s{s_wave}, {1 | (1 << 16)}")
I(f"s_and_b32 s{s_t1}, s{s_wave}, 1")
I(f"s_lshl_b32 s{s_t2}, s{s_rb}, 1")
I(f"s_add_u32 s{s_t1}, s{s_t1}, s{s_t2}")
I(f"s_mul_i32 s{s_t2}, s{s_t1}, {HSTR}")
I(f"s_mul_i32 s{s_t3}, s{s_t0}, 43")
I(f"s_add_u32 s{s_t2}, s{s_t2}, s{s_t3}")
I(f"s_lshl_b32 s{s_pbeg}, s{s_t2}, 10")
I(f"s_add_u32 s{s_pend}, s{s_pbeg}, {43*1024}")
I(f"s_lshl_b32 s{s_t2}, s{s_rot2}, 10")
I(f"s_add_u32 s{s_p}, s{s_pbeg}, s{s_t2}")
I("v_and_b32 v16, 31, v1")
I("v_lshlrev_b32 v16, 10, v16")
I("v_and_b32 v17, 32, v1")
I(f"s_lshl_b32 s{s_t1}, s{s_t1}, 15")
I(f"s_lshl_b32 s{s_t2}, s{s_cb}, 7")
I(f"s_add_u32 s{s_t1}, s{s_t1}, s{s_t2}")
I(f"s_lshl_b32 s{s_t2}, s{s_t0}, 6")
I(f"s_add_u32 s{s_t1}, s{s_t1}, s{s_t2}")
I(f"v_add3_u32 v16, v16, v17, s{s_t1}")
I(f"s_and_b32 s{s_t1}, s{s_wave}, 3")
I(f"s_lshl_b32 s{s_t1}, s{s_t1}, 12")
I(f"s_xor_b32 s{s_t2}, s{s_t1}, {2 << 12}")
I(f"s_add_u32 s{s_t1}, s{s_t1}, {XCH}")
I(f"s_add_u32 s{s_t2}, s{s_t2}, {XCH}")
I(f"v_add_u32 v17, s{s_t1}, v9")
I(f"v_add_u32 v18, s{s_t2}, v9")
if args.otr:
    I("v_and_b32 v25, 31, v1")
    I(f"s_and_b32 s{s_t1}, s{s_wave}, 1")
    I(f"s_lshl_b32 s{s_t1}, s{s_t1}, 12")
    I(f"s_add_u32 s{s_t1}, s{s_t1}, {OTR}")
    I(f"v_lshl_add_u32 v26, v25, 7, s{s_t1}")
    I("v_lshrrev_b32 v27, 5, v1")
    I(f"s_lshl_b32 s{s_t2}, s{s_t0}, 1")
    I(f"v_add_lshl_u32 v27, v27, s{s_t2}, 1")
    I("v_and_b32 v25, 7, v25")
    I("v_xor_b32 v27, v27, v25")
    I("v_lshl_add_u32 v25, v27, 4, v26")
    I("v_xor_b32 v26, 16, v25")
    if args.otr == 1:
        I("v_lshrrev_b32 v27, 2, v1")
        I("v_and_b32 v28, 3, v1")
        I(f"s_lshl_b32 s{s_t2}, s{s_t0}, 2")
        I(f"v_add_u32 v28, s{s_t2}, v28")
        rowstep = 16
    else:
        I("v_lshrrev_b32 v27, 3, v1")
        I(f"s_lshl_b32 s{s_t2}, s{s_t0}, 4")
        I(f"v_add_u32 v27, s{s_t2}, v27")
        I("v_and_b32 v28, 7, v1")
        rowstep = 8
    I(f"s_and_b32 s{s_t2}, s{s_wave}, 1")
    I(f"s_lshl_b32 s{s_t3}, s{s_rb}, 1")
    I(f"s_add_u32 s{s_t2}, s{s_t2}, s{s_t3}")
    I(f"s_lshl_b32 s{s_t2}, s{s_t2}, 15")
    I(f"s_lshl_b32 s{s_t3}, s{s_cb}, 7")
    I(f"s_add_u32 s{s_t2}, s{s_t2}, s{s_t3}")
    I(f"v_lshl_add_u32 v16, v27, 10, s{s_t2}")
    I("v_lshl_add_u32 v16, v28, 4, v16")
    I(f"v_add_u32 v29, {rowstep*1024}, v16")
    I("v_and_b32 v30, 7, v27")
    I("v_xor_b32 v28, v28, v30")
    I(f"v_lshl_add_u32 v27, v27, 7, s{s_t1}")
    I("v_lshl_add_u32 v27, v28, 4, v27")
for r in range(0, 32, 2):
    I(f"v_mov_b64 v[{ACC+r}:{ACC+r+1}], 0")
if args.align:
    I(f"s_branch {P}_c_spin"); e(".p2align 12")
L(f"{P}_c_spin")
I("ds_read_b32 v24, v22")
I("s_waitcnt lgkmcnt(0)")
I(f"v_readfirstlane_b32 s{s_t0}, v24")
I("s_nop 0")
I(f"s_cmp_eq_u32 s{s_t0}, 0")
I(f"s_cbranch_scc1 {P}_c_spin")
stamp(5)
if "p2" in args.diag: stamp(1, True)
def hload(s):
    b = HR + 4 * (s % R)
    return [f"buffer_load_dwordx4 v[{b}:{b+3}], v9, {srd(sH)}, s{s_p} offen sc1",
            f"s_add_u32 s{s_p}, s{s_p}, 1024",
            f"s_cmp_eq_u32 s{s_p}, s{s_pend}",
            f"s_cselect_b32 s{s_p}, s{s_pbeg}, s{s_p}"]
for s in range(args.hpro):
    for x in hload(s): I(x)
issued = args.hpro
def mm2(s, nb):
    hb = HR + 4 * (s % R); wd = wdst(s)
    return f"v_mfma_f32_32x32x16_bf16 v[{ACC+16*nb}:{ACC+16*nb+15}], v[{wd+4*nb}:{wd+4*nb+3}], v[{hb}:{hb+3}], v[{ACC+16*nb}:{ACC+16*nb+15}]"
for s in range(43):
    u = s + 2
    young = 1 if NPRE <= s + 1 < 43 else 0
    I(f"s_waitcnt vmcnt({issued - s - 1}) lgkmcnt({4*young})")
    if "p2" in args.diag and s in (0, 5, 11, 21, 32, 42): stamp({0:2, 5:3, 11:4, 21:5, 32:6, 42:7}[s], True)
    if u == wdone: I("s_barrier")
    wr = wreads(u, wdst(u)) if NPRE <= u < 43 else []
    I(mm2(s, 1))
    for r in wr[:2]: I(r)
    if issued < 43 and issued - R < s:
        for x in hload(issued): I(x)
        issued += 1
    if s < 43 - TN: I(mm2(s, 0))
    for r in wr[2:]: I(r)
    if issued < 43 and issued - R < s and issued - s - 1 < R - 1:
        for x in hload(issued): I(x)
        issued += 1
stamp(6)
if FIN: stamp(2, True)
tl = [mm2(s, 0) for s in range(43 - TN, 43)]
if tl: I(tl.pop(0))
I("s_nop 7")
I("s_nop 3")
for q in range(4):
    I(f"ds_write_b128 v17, v[{ACC+16+4*q}:{ACC+19+4*q}] offset:{q*1024}")
    if tl and q % 2 == 1: I(tl.pop(0))
for x in tl: I(x)
I("s_waitcnt lgkmcnt(0)")
if FIN: stamp(3, True)
I("s_barrier")
if FIN: stamp(4, True)
for q in range(4):
    I(f"ds_read_b128 v[{128+4*q}:{131+4*q}], v18 offset:{q*1024}")
I("s_nop 5")
for q in range(4):
    I(f"s_waitcnt lgkmcnt({3-q + (1 if args.otr and q >= 2 else 0)})")
    for p in range(2):
        I(f"v_pk_add_f32 v[{ACC+4*q+2*p}:{ACC+4*q+2*p+1}], v[{ACC+4*q+2*p}:{ACC+4*q+2*p+1}], v[{128+4*q+2*p}:{129+4*q+2*p}]")
    for p in range(2):
        I(f"v_cvt_pk_bf16_f32 v{144+2*q+p}, v{ACC+4*q+2*p}, v{ACC+4*q+2*p+1}")
    if q == 1:
        if args.otr: I("ds_write_b128 v25, v[144:147]")
        else: I(f"buffer_store_dwordx4 v[144:147], v16, {srd(sO)}, 0 offen {args.ost}")
if args.otr:
    I("ds_write_b128 v26, v[148:151]")
    if args.otr == 2:
        I("s_waitcnt lgkmcnt(0)")
        I("s_barrier")
        if FIN: stamp(5, True)
    I("ds_read_b128 v[152:155], v27")
    I(f"ds_read_b128 v[156:159], v27 offset:{rowstep*128}")
    I("s_waitcnt lgkmcnt(1)")
    I(f"buffer_store_dwordx4 v[152:155], v16, {srd(sO)}, 0 offen {args.ost}")
    I("s_waitcnt lgkmcnt(0)")
    I(f"buffer_store_dwordx4 v[156:159], v29, {srd(sO)}, 0 offen {args.ost}")
else:
    I(f"buffer_store_dwordx4 v[148:151], v16, {srd(sO)}, 0 offen offset:16 {args.ost}")
if "dirty" in args.diag:
    n = int(re.search(r"dirty(\d+)", args.diag).group(1))
    I(f"s_mov_b32 s{sH+2}, {64 << 20}")
    I(f"s_lshl_b32 s{s_t0}, s2, 2")
    I(f"s_add_u32 s{s_t0}, s{s_t0}, s{s_wave}")
    I(f"s_mul_i32 s{s_t0}, s{s_t0}, {n*1024}")
    I(f"s_add_u32 s{s_t0}, s{s_t0}, {16 << 20}")
    for i in range(n):
        I(f"buffer_store_dwordx4 v[144:147], v9, {srd(sH)}, s{s_t0} offen")
        I(f"s_add_u32 s{s_t0}, s{s_t0}, 1024")
if FIN: stamp(6, True)
if STAMPS: I("s_waitcnt vmcnt(0)")
stamp(7, True)
if args.amp and args.amp != "none" and not args.amp.startswith("L"): amp_block(args.amp, "c")
prof_store()
I("s_endpgm")
COLD_MARK = len(out)
L(f"{P}_c_lazy")
for i in range(8): I("s_barrier")
I("s_mov_b64 exec, 1"); I("ds_add_u32 v22, v23 offset:8"); I("s_mov_b64 exec, -1")
I(f"s_branch {P}_c_epidone")
L(f"{P}_c_idle")
srd_tail(sX, XB); srd_tail(sW2, W2B)
prefetch_jobs()
I(f"s_branch {P}_c_epidone")
out += loader_tail
if args.align:
    cold = out[COLD_MARK:]; del out[COLD_MARK:]
    i = out.index("@COLD@"); out[i:i+1] = cold
L(f"{P}_codeend")

e('.section .rodata,"a"')
e(".p2align 6")
e(f".amdhsa_kernel {label}")
for l in ("next_free_vgpr 256", "next_free_sgpr 102", "accum_offset 256", "group_segment_fixed_size 0", "kernarg_size 56",
          "user_sgpr_count 2", "user_sgpr_kernarg_segment_ptr 1", "system_sgpr_workgroup_id_x 1", "float_denorm_mode_32 3"):
    e("  .amdhsa_" + l)
e(".end_amdhsa_kernel")

text = "\n".join(out) + "\n"
def symbols(t):
    with tempfile.TemporaryDirectory() as d:
        open(d + "/k.s", "w").write(t)
        subprocess.run(["clang", "-x", "assembler", "-target", "amdgcn-amd-amdhsa", "-mcpu=gfx950", "-c", d + "/k.s", "-o", d + "/k.o"], check=True)
        sym = subprocess.run(["llvm-objdump", "-t", d + "/k.o"], capture_output=True, text=True).stdout
    return {m.group(2): int(m.group(1), 16) for m in re.finditer(r"^([0-9a-f]{16}) .*\s(\S+)$", sym, re.M)}
a = symbols(text.replace("@CODELINES@", "100"))
assert a[f"{P}_codeend"] < 16384
sys.stderr.write(f"code {a[f'{P}_codeend']} B: loop@{a[f'{P}_l_loop']} compute@{a[f'{P}_compute']} cloop@{a[f'{P}_c_loop']} p2@{a[f'{P}_c_p2']} ltail@{a[f'{P}_l_tail']}\n")
open(args.o, "w").write(text)
```

```python
import sys, argparse, subprocess, tempfile, re

ap = argparse.ArgumentParser()
ap.add_argument("-o", default="standalone__glu_gated_swiglu__prompt.s")
ap.add_argument("--prof", action="store_true")
ap.add_argument("--cyc", action="store_true")
ap.add_argument("--amp", default="")
ap.add_argument("--diag", default="")
ap.add_argument("--xrot", type=int, default=4)
ap.add_argument("--hring", type=int, default=12)
ap.add_argument("--hpro", type=int, default=10)
ap.add_argument("--sleep", type=int, default=1)
ap.add_argument("--codepf", type=int, default=1)
ap.add_argument("--prio", type=int, default=1)
ap.add_argument("--atb6", type=int, default=8)
ap.add_argument("--kmin", type=int, default=12)
ap.add_argument("--stopat", type=int, default=3)
ap.add_argument("--pace2", type=int, default=10)
ap.add_argument("--pace", type=int, default=10)
ap.add_argument("--barpos", type=int, default=16)
ap.add_argument("--rpg", type=int, default=2)
ap.add_argument("--gapc", type=int, default=8)
ap.add_argument("--pkfrom", type=int, default=1)
ap.add_argument("--tailn", type=int, default=3)
ap.add_argument("--jobx3", type=int, default=0)
ap.add_argument("--job3", type=int, default=1)
ap.add_argument("--jobM", type=int, default=0)
ap.add_argument("--jobX", type=int, default=1)
ap.add_argument("--otr", type=int, default=2)
ap.add_argument("--ost", default="sc1")
ap.add_argument("--prew", type=int, default=0)
ap.add_argument("--align", type=int, default=1)
ap.add_argument("--post", type=int, default=10)
ap.add_argument("--sflag", type=int, default=1)
ap.add_argument("--pace3", type=int, default=0)
ap.add_argument("--morder", type=int, default=1)
ap.add_argument("--fsleep", type=int, default=0)
ap.add_argument("--tlbw", type=int, default=0)
ap.add_argument("--map", type=int, default=0)
ap.add_argument("--burst", type=int, default=2)
ap.add_argument("--stouch", type=int, default=0)
ap.add_argument("--wb1", type=int, default=0)
args = ap.parse_args()

NAME = "standalone__glu_gated_swiglu__prompt"
out = []
def e(s=""): out.append(s)
def I(s): out.append("    " + s)
def L(s): out.append(s + ":")

S, D, F = 2048, 512, 1376
XB, WB, W2B, OB = S * D * 2, D * F * 2, F * D * 2, S * D * 2
HSTR = 87
WS_REC = 8 << 20
PROF_OFF = 7 << 20
SLOT0, SLOTSZ, LDS_SCR, LDS_TOTAL = 36864 + 40960, 40960, 159744, 163840
def unit_addr(u): return (u % 39) * 4096
XCH = 4 * 4096
OTR = 8 * 4096

sX, sW1, sW3, sW2, sH, sO, sD = 20, 24, 28, 32, 36, 40, 44
s_wave, s_mg4, s_sh, s_mt, s_sl, s_rb, s_cb = 48, 49, 50, 51, 52, 53, 54
s_t0, s_t1, s_t2, s_t3 = 55, 56, 57, 58
s_cnt, s_kst, s_sx, s_sw, s_ring = 59, 60, 61, 62, 63
s_lx, s_lw, s_rot2, s_fl = 64, 65, 66, 67
s_k = 68
s_xb, s_wb, s_lu = 69, 70, 71
s_hoff = 72
s_p, s_pend, s_pbeg, s_valid = 78, 79, 80, 81
s_u, s_lim = 75, 76
s_prof = 84
def srd(r): return f"s[{r}:{r+3}]"
STAMPS = args.prof or args.amp
MUTE = [False]
def stamp(i, force=False):
    if "clk" in args.diag:
        m = {1: 0, 2: 1, 4: 2, 5: 3}
        if i in m:
            I(f"s_memrealtime s[{s_prof+2*m[i]}:{s_prof+2*m[i]+1}]"); I(f"s_memtime s[{s_prof+8+2*m[i]}:{s_prof+9+2*m[i]}]")
        return
    if MUTE[0] and not force: return
    if STAMPS: I(f"{'s_memtime' if args.cyc else 's_memrealtime'} s[{s_prof+2*i}:{s_prof+2*i+1}]")
def srd_tail(r, nbytes):
    I(f"s_mov_b32 s{r+2}, {nbytes}")
    I(f"s_mov_b32 s{r+3}, 0x20000")
def prof_store():
    if not args.prof: return
    I("s_waitcnt lgkmcnt(0)")
    I(f"s_lshl_b32 s{s_t0}, s2, 3")
    I(f"s_xor_b32 s{s_t1}, s{s_wave}, 4")
    I(f"s_add_u32 s{s_t0}, s{s_t0}, s{s_t1}")
    I(f"s_lshl_b32 s{s_t0}, s{s_t0}, 5")
    I(f"s_add_u32 s{s_t0}, s{s_t0}, {PROF_OFF}")
    for i in range(8): I(f"v_mov_b32 v{240+i}, s{s_prof+2*i}")
    I("v_mov_b32 v248, 0")
    I("s_mov_b64 exec, 1")
    I(f"buffer_store_dwordx4 v[240:243], v248, {srd(sH)}, s{s_t0} offen")
    I(f"buffer_store_dwordx4 v[244:247], v248, {srd(sH)}, s{s_t0} offen offset:16")
    I("s_mov_b64 exec, -1")
P = "K"
def amp_block(spec, tag):
    ai, aj = [int(t) for t in spec.split(",")]
    I("s_waitcnt lgkmcnt(0)")
    I(f"s_sub_u32 s{s_t0}, s{s_prof+2*aj}, s{s_prof+2*ai}")
    I(f"s_cmp_eq_u32 s{s_prof+2*ai}, 0")
    I(f"s_cselect_b32 s{s_t0}, 0, s{s_t0}")
    I(f"s_cmp_eq_u32 s{s_prof+2*aj}, 0")
    I(f"s_cselect_b32 s{s_t0}, 0, s{s_t0}")
    I(f"s_min_u32 s{s_t0}, s{s_t0}, 20000")
    I(f"s_mul_i32 s{s_t0}, s{s_t0}, 10")
    I("s_memrealtime s[82:83]")
    I("s_waitcnt lgkmcnt(0)")
    I(f"s_mov_b32 s{s_t1}, s82")
    L(f"{P}_amp{tag}")
    I("s_memrealtime s[82:83]")
    I("s_waitcnt lgkmcnt(0)")
    I(f"s_sub_u32 s{s_t2}, s82, s{s_t1}")
    I(f"s_cmp_lt_u32 s{s_t2}, s{s_t0}")
    I(f"s_cbranch_scc1 {P}_amp{tag}")

def kst_init():
    if args.map and args.xrot == 1:
        I(f"s_lshl_b32 s{s_kst}, s{s_sh}, 2")
        I(f"s_xor_b32 s{s_kst}, s{s_kst}, s{s_mg4}")
        I(f"s_and_b32 s{s_kst}, s{s_kst}, 4")
    elif args.map and args.xrot == 4:
        I(f"s_lshr_b32 s{s_kst}, s{s_mg4}, 1")
        I(f"s_lshl_b32 s{s_cnt}, s{s_sh}, 2")
        I(f"s_add_u32 s{s_kst}, s{s_kst}, s{s_cnt}")
        I(f"s_and_b32 s{s_kst}, s{s_kst}, 7")
    elif args.xrot == 1:
        I(f"s_add_u32 s{s_kst}, s2, s{s_sh}")
        I(f"s_and_b32 s{s_kst}, s{s_kst}, 1")
        I(f"s_lshl_b32 s{s_kst}, s{s_kst}, 2")
    elif args.xrot == 4:
        I(f"s_lshl_b32 s{s_kst}, s{s_sh}, 1")
        I(f"s_add_u32 s{s_kst}, s{s_kst}, s2")
        I(f"s_and_b32 s{s_kst}, s{s_kst}, 3")
        I(f"s_lshl_b32 s{s_kst}, s{s_kst}, 1")
    elif args.xrot == 5:
        I(f"s_lshl_b32 s{s_kst}, s{s_sh}, 1")
        I(f"s_add_u32 s{s_kst}, s{s_kst}, s2")
        I(f"s_and_b32 s{s_kst}, s{s_kst}, 3")
        I(f"s_add_u32 s{s_cnt}, s{s_mt}, s{s_sl}")
        I(f"s_and_b32 s{s_cnt}, s{s_cnt}, 1")
        I(f"s_lshl_b32 s{s_cnt}, s{s_cnt}, 2")
        I(f"s_add_u32 s{s_kst}, s{s_kst}, s{s_cnt}")
    elif args.xrot == 6:
        I(f"s_add_u32 s{s_kst}, s2, s{s_sh}")
        I(f"s_and_b32 s{s_kst}, s{s_kst}, 1")
        I(f"s_lshl_b32 s{s_kst}, s{s_kst}, 1")
        I(f"s_add_u32 s{s_cnt}, s{s_mt}, s{s_sl}")
        I(f"s_and_b32 s{s_cnt}, s{s_cnt}, 1")
        I(f"s_lshl_b32 s{s_cnt}, s{s_cnt}, 2")
        I(f"s_add_u32 s{s_kst}, s{s_kst}, s{s_cnt}")
    else:
        I(f"s_mov_b32 s{s_kst}, 0")

def decode2():
    I(f"s_lshl_b32 s{s_t0}, s{s_sh}, 1")
    I(f"s_add_u32 s{s_t0}, s{s_t0}, s{s_mg4}")
    I(f"s_lshl_b32 s{s_t0}, s{s_t0}, 1")
    I(f"s_lshr_b32 s{s_t1}, s2, 6")
    I(f"s_add_u32 s{s_rb}, s{s_t0}, s{s_t1}")
    I(f"s_bfe_u32 s{s_cb}, s2, {3 | (3 << 16)}")
    I(f"s_mul_i32 s{s_rot2}, s{s_t1}, 11")

label = NAME + "_kernel"
e(f"; @launch grid=(256,1,1) block=(512,1,1) lds={LDS_TOTAL}")
e('.amdgcn_target "amdgcn-amd-amdhsa--gfx950"')
e(".text")
e(f".globl {label}")
e(".p2align 8")
e(f".type {label},@function")
L(label)
I("s_cmp_ge_u32 s2, 256")
I(f"s_cbranch_scc1 {P}_end")
for r, off in ((sX, 0), (sW1, 8), (sW3, 16), (sW2, 24), (sO, 32), (sD, 40), (sH, 48)):
    I(f"s_load_dwordx2 s[{r}:{r+1}], s[0:1], {off}")
if STAMPS:
    for i in range(8): I(f"s_mov_b32 s{s_prof+2*i}, 0")
if "delay" in args.diag:
    for i in range(int(re.search(r"delay(\d+)", args.diag).group(1))): I("s_sleep 18")
stamp(0)
I("v_lshrrev_b32 v2, 6, v0")
I("v_and_b32 v1, 63, v0")
I(f"v_readfirstlane_b32 s{s_wave}, v2")
if args.map:
    I(f"s_and_b32 s{s_mg4}, s2, 6")
    I(f"s_lshl_b32 s{s_mg4}, s{s_mg4}, 1")
else:
    I(f"s_and_b32 s{s_mg4}, s2, 3")
    I(f"s_lshl_b32 s{s_mg4}, s{s_mg4}, 2")
I(f"s_cmp_lt_u32 s{s_wave}, 4")
I(f"s_cbranch_scc1 {P}_dec")
if args.codepf:
    I("s_getpc_b64 s[18:19]")
    L(f"{P}_pc")
    I("v_bfe_u32 v60, v0, 1, 7")
    I("v_lshlrev_b32 v60, 7, v60")
    I(f"v_min_u32 v60, {P}_codeend-{P}_pc-4, v60")
    I("global_load_dword v61, v60, s[18:19]")
L(f"{P}_dec")
I(f"s_bfe_u32 s{s_sh}, s2, {(0 if args.map else 2) | (1 << 16)}")
I(f"s_bfe_u32 s{s_t2}, s2, {3 | (2 << 16)}")
I(f"s_lshr_b32 s{s_t3}, s2, 5")
I(f"s_add_u32 s{s_mt}, s{s_mg4}, s{s_t2}")
I(f"s_mul_i32 s{s_sl}, s{s_sh}, 7")
I(f"s_add_u32 s{s_sl}, s{s_sl}, s{s_t3}")
I(f"s_cmp_lg_u32 s{s_t3}, 7")
I(f"s_cbranch_scc1 {P}_dec2")
I(f"s_lshl_b32 s{s_t0}, s{s_sh}, 1")
I(f"s_and_b32 s{s_t1}, s{s_t2}, 1")
I(f"s_add_u32 s{s_mt}, s{s_mg4}, s{s_t0}")
I(f"s_add_u32 s{s_mt}, s{s_mt}, s{s_t1}")
I(f"s_lshr_b32 s{s_sl}, s{s_t2}, 1")
I(f"s_add_u32 s{s_sl}, s{s_sl}, 14")
L(f"{P}_dec2")
I(f"s_cmp_ge_u32 s{s_wave}, 4")
I(f"s_cbranch_scc1 {P}_compute")

MUTE[0] = "stages" in args.diag
vX = [2, 3, 4, 5]; vW = [6, 7, 8]; vW2 = 13
vFA, vFS, vFN = 20, 21, 22
I("v_lshrrev_b32 v14, 3, v1")
I("v_lshrrev_b32 v15, 4, v1")
I("v_and_b32 v16, 7, v1")
I("v_xor_b32 v15, v15, v16")
I("v_lshlrev_b32 v14, 10, v14")
I(f"v_lshl_add_u32 v{vX[0]}, v15, 4, v14")
I(f"v_xor_b32 v{vX[1]}, 64, v{vX[0]}")
I(f"v_add_u32 v{vX[1]}, 7168, v{vX[1]}")
I(f"v_add_u32 v{vX[2]}, 14336, v{vX[0]}")
I(f"v_add_u32 v{vX[3]}, 14336, v{vX[1]}")
I(f"s_bitcmp1_b32 s{s_sl}, 0")
I(f"s_cselect_b32 s{s_t0}, -64, 64")
I(f"s_cselect_b32 s{s_t1}, 128, 0")
I(f"s_cmp_eq_u32 s{s_sl}, 14")
I(f"s_cselect_b32 s{s_t0}, {1 << 21}, s{s_t0}")
I(f"s_mul_i32 s{s_t2}, s{s_t0}, -3")
I(f"s_add_u32 s{s_t2}, s{s_t2}, 2752")
I("v_lshrrev_b32 v14, 2, v1")
I("v_and_b32 v15, 3, v1")
I(f"v_lshl_add_u32 v15, v15, 4, s{s_t1}")
I("v_and_b32 v16, 32, v1")
for j in range(3):
    if j: I(f"v_add_u32 v14, 16, v14")
    I("v_mul_u32_u24 v17, 43, v14")
    if j == 0: I("v_mov_b32 v18, v15")
    if j == 1: I("v_xor_b32 v18, v15, v16")
    if j == 2: I("v_xor_b32 v18, 32, v15")
    I("v_lshrrev_b32 v17, 7, v17")
    I(f"v_mad_i32_i24 v18, v14, s{s_t0}, v18")
    I(f"v_mad_i32_i24 v{vW[j]}, v17, s{s_t2}, v18")
    if j: I(f"v_subrev_u32 v{vW[j]}, {1024*j}, v{vW[j]}")
I(f"s_lshl_b32 s{s_lx}, s{s_wave}, 12")
I(f"s_add_u32 s{s_lx}, s{s_lx}, {SLOT0}")
I(f"s_mul_i32 s{s_lw}, s{s_wave}, 6144")
I(f"s_add_u32 s{s_lw}, s{s_lw}, {SLOT0+16384}")
I(f"s_lshl_b32 s{s_xb}, s{s_mt}, 17")
I(f"s_lshl_b32 s{s_t0}, s{s_wave}, 15")
I(f"s_add_u32 s{s_xb}, s{s_xb}, s{s_t0}")
I(f"s_mul_i32 s{s_wb}, s{s_sl}, 192")
I(f"s_mul_i32 s{s_t0}, s{s_wave}, {16*2752}")
I(f"s_add_u32 s{s_wb}, s{s_wb}, s{s_t0}")
kst_init()
I(f"s_mov_b32 s{s_cnt}, 0")
I(f"s_mov_b32 s{s_ring}, {SLOTSZ}")
srd_tail(sX, XB); srd_tail(sW1, WB); srd_tail(sW3, WB)
I(f"s_cmp_ge_u32 s{s_sl}, 15")
I(f"s_cbranch_scc1 {P}_l_init")
I(f"s_lshl_b32 s{s_t0}, s{s_kst}, 7")
I(f"s_add_u32 s{s_sx}, s{s_xb}, s{s_t0}")
I(f"s_mul_i32 s{s_sw}, s{s_kst}, {64*2752}")
I(f"s_add_u32 s{s_sw}, s{s_sw}, s{s_wb}")
I(f"s_mov_b32 m0, s{s_lx}")
I("s_waitcnt lgkmcnt(0)")
if args.tlbw:
    I(f"s_load_dword s3, s[{sW1}:{sW1+1}], s{s_sw}")
    I(f"s_load_dword s4, s[{sW3}:{sW3+1}], s{s_sw}")
    if args.tlbw > 1:
        I(f"s_load_dword s5, s[{sW2}:{sW2+1}], 0")
        I(f"s_load_dword s6, s[{sO}:{sO+1}], 0")
stamp(1)
def issueS(tag):
    for j in range(4):
        I(f"buffer_load_dwordx4 v{vX[j]}, {srd(sX)}, s{s_sx} offen offset:{1024*j} lds")
    I(f"s_mov_b32 m0, s{s_lw}")
    I(f"s_add_u32 s{s_kst}, s{s_kst}, 1")
    for j in range(3):
        I(f"buffer_load_dwordx4 v{vW[j]}, {srd(sW1)}, s{s_sw} offen offset:{1024*j} lds")
    I("s_add_u32 m0, m0, 3072")
    I(f"s_and_b32 s{s_kst}, s{s_kst}, 7")
    for j in range(3):
        I(f"buffer_load_dwordx4 v{vW[j]}, {srd(sW3)}, s{s_sw} offen offset:{1024*j} lds")
    I(f"s_lshl_b32 s{s_t0}, s{s_kst}, 7")
    I(f"s_add_u32 s{s_sx}, s{s_xb}, s{s_t0}")
    I(f"s_mul_i32 s{s_sw}, s{s_kst}, {64*2752}")
    I(f"s_add_u32 s{s_sw}, s{s_sw}, s{s_wb}")
    I(f"s_cmp_ge_u32 s{s_lx}, {SLOT0+SLOTSZ}")
    I(f"s_cselect_b32 s{s_t0}, {-2*SLOTSZ & 0xffffffff}, s{s_ring}")
    I(f"s_add_u32 s{s_lx}, s{s_lx}, s{s_t0}")
    I(f"s_add_u32 s{s_lw}, s{s_lw}, s{s_t0}")
    I(f"s_mov_b32 m0, s{s_lx}")
    I(f"s_add_u32 s{s_cnt}, s{s_cnt}, 1")
L(f"{P}_l_loop")
issueS("a")
I(f"s_cmp_eq_u32 s{s_cnt}, 1")
I(f"s_cbranch_scc1 {P}_l_loop")

L(f"{P}_l_init")
decode2()
srd_tail(sW2, W2B); srd_tail(sH, WS_REC); srd_tail(sD, 256)
I("v_lshrrev_b32 v14, 3, v1")
I(f"s_and_b32 s{s_t0}, s{s_wave}, 1")
I(f"s_lshl_b32 s{s_t0}, s{s_t0}, 3")
I(f"s_lshr_b32 s{s_t1}, s{s_wave}, 1")
I(f"s_mul_i32 s{s_t1}, s{s_t1}, 688")
I(f"s_add_u32 s{s_t0}, s{s_t0}, s{s_t1}")
I(f"v_add_u32 v14, s{s_t0}, v14")
I("v_lshlrev_b32 v14, 10, v14")
I("v_lshrrev_b32 v15, 2, v1")
I("v_and_b32 v15, 4, v15")
I("v_and_b32 v16, 7, v1")
I("v_xor_b32 v15, v15, v16")
I(f"v_lshl_add_u32 v{vW2}, v15, 4, v14")
I(f"s_lshl_b32 s{s_pbeg}, s{s_cb}, 7")
I(f"s_add_u32 s{s_pend}, s{s_pbeg}, {43*16384}")
I(f"s_lshl_b32 s{s_t0}, s{s_rot2}, 14")
I(f"s_add_u32 s{s_p}, s{s_pbeg}, s{s_t0}")
I(f"s_lshl_b32 s{s_lu}, s{s_wave}, 10")
I(f"s_lshr_b32 s{s_t0}, s{s_rb}, 1")
I(f"s_mul_i32 s{s_fl}, s{s_t0}, {4*HSTR*1024}")
I(f"s_add_u32 s{s_fl}, s{s_fl}, {86*1024}")
I("v_min_u32 v14, 15, v1")
I(f"s_lshl_b32 s{s_valid}, 1, s{s_sl}")
I(f"s_cmp_eq_u32 s{s_t0}, s{s_mt}")
I(f"s_cselect_b32 s{s_t1}, s{s_sl}, 15")
I(f"s_cselect_b32 s{s_valid}, s{s_valid}, 0")
I(f"v_cmp_eq_u32 vcc, s{s_t1}, v14")
I("v_mov_b32 v15, 15")
I("s_nop 0")
I("v_cndmask_b32 v14, v14, v15, vcc")
I("v_lshrrev_b32 v15, 3, v14")
I(f"v_mul_u32_u24 v15, {HSTR*1024}, v15")
I("v_and_b32 v14, 7, v14")
I(f"v_lshl_add_u32 v{vFA}, v14, 7, v15")
I("s_waitcnt lgkmcnt(0)")
I(f"s_cmp_lg_u32 s{s_wave}, 0")
I(f"s_cbranch_scc1 {P}_l_nosamp")
I(f"buffer_load_dword v{vFS}, v{vFA}, {srd(sH)}, s{s_fl} offen sc1")
L(f"{P}_l_nosamp")
I(f"s_cmp_ge_u32 s{s_sl}, 15")
I(f"s_cbranch_scc1 {P}_l_idle")
if args.stouch:
    I(f"s_lshr_b32 s{s_t0}, s2, 3")
    I(f"s_lshl_b32 s{s_t0}, s{s_t0}, 2")
    I(f"s_add_u32 s{s_t0}, s{s_t0}, s{s_wave}")
    I(f"s_mul_i32 s{s_t0}, s{s_t0}, {11*1024}")
    I(f"s_add_u32 s18, s{sW2}, s{s_t0}")
    I(f"s_addc_u32 s19, s{sW2+1}, 0")
L(f"{P}_l_wait")
I("s_waitcnt vmcnt(10)")
if "b0" in args.diag:
    I(f"s_cmp_lg_u32 s{s_cnt}, 2"); I(f"s_cbranch_scc1 {P}_l_nb0"); stamp(7, True); L(f"{P}_l_nb0")
I("s_barrier")
if "stages" in args.diag:
    for c in range(1, 7):
        I(f"s_cmp_lg_u32 s{s_cnt}, {c+2}"); I(f"s_cbranch_scc1 {P}_l_st{c}"); stamp(c, True); L(f"{P}_l_st{c}")
I(f"s_cmp_ge_u32 s{s_cnt}, 8")
I(f"s_cbranch_scc1 {P}_l_tail")
issueS("b")
if args.stouch == 1:
    for c in (0, 1, 2, 4, 5):
        for hh in range(2): I(f"s_load_dword s3, s[18:19], {c*128 + hh*64}")
    I("s_add_u32 s18, s18, 2048"); I("s_addc_u32 s19, s19, 0")
if args.stouch == 2:
    for r in range(2):
        for c in (0, 1, 2, 4, 5): I(f"s_load_dwordx2 s[4:5], s[18:19], {r*1024 + c*128 + 60}")
    I("s_add_u32 s18, s18, 2048"); I("s_addc_u32 s19, s19, 0")
I(f"s_branch {P}_l_wait")
LOADER_TAIL_MARK = len(out)

wcount = [0]
def w_one():
    I(f"buffer_load_dwordx4 v{vW2}, {srd(sW2)}, s{s_p} offen lds")
    I(f"s_add_u32 s{s_p}, s{s_p}, 16384")
    I(f"s_cmp_eq_u32 s{s_p}, s{s_pend}")
    I(f"s_cselect_b32 s{s_p}, s{s_pbeg}, s{s_p}")
    I("s_add_u32 m0, m0, 4096")
    I(f"s_add_u32 s{s_u}, s{s_u}, 1")
def issueW(lim, pace=0):
    lab = f"{P}_l_w{wcount[0]}"; wcount[0] += 1
    I(f"s_cmp_ge_u32 s{s_u}, {lim}")
    I(f"s_cbranch_scc1 {lab}e")
    L(lab)
    if pace: I(f"s_waitcnt vmcnt({pace-1})")
    w_one()
    I(f"s_cmp_lt_u32 s{s_u}, {lim}")
    I(f"s_cbranch_scc1 {lab}")
    L(lab + "e")

pfc = [0]
def prefetch_jobs():
    tag = pfc[0]; pfc[0] += 1
    I(f"s_bfe_u32 s{s_t2}, s2, {3 | (1 << 16)}")
    if args.jobX:
        kst_init()
        I("v_lshlrev_b32 v40, 10, v1")
        if args.jobX == 2:
            I(f"s_cmp_ge_u32 s{s_mg4}, 8")
            I(f"s_cbranch_scc1 {P}_pf{tag}_e")
            I(f"s_add_u32 s{s_t0}, s{s_mg4}, 8")
            I(f"s_lshl_b32 s{s_t0}, s{s_t0}, 17")
            I(f"s_lshl_b32 s{s_t1}, s{s_wave}, 16")
            I(f"s_add_u32 s{s_t0}, s{s_t0}, s{s_t1}")
            I(f"s_add_u32 s{s_t1}, s{s_kst}, s{s_t2}")
            I(f"s_lshl_b32 s{s_t1}, s{s_t1}, 7")
            I(f"s_add_u32 s{s_t0}, s{s_t0}, s{s_t1}")
            I(f"buffer_load_dword v42, v40, {srd(sX)}, s{s_t0} offen")
            L(f"{P}_pf{tag}_e")
        I(f"s_lshl_b32 s{s_t0}, s{s_mg4}, 17")
        I(f"s_lshl_b32 s{s_t1}, s{s_wave}, 16")
        I(f"s_add_u32 s{s_t0}, s{s_t0}, s{s_t1}")
        I(f"s_add_u32 s{s_t1}, s{s_kst}, s{s_t2}")
        I(f"s_add_u32 s{s_t1}, s{s_t1}, 2")
        I(f"s_and_b32 s{s_t1}, s{s_t1}, 7")
        I(f"s_lshl_b32 s{s_t1}, s{s_t1}, 7")
        I(f"s_add_u32 s{s_t0}, s{s_t0}, s{s_t1}")
        I(f"buffer_load_dword v42, v40, {srd(sX)}, s{s_t0} offen")
    if args.jobx3:
        I("v_and_b32 v40, 31, v1")
        I("v_lshlrev_b32 v40, 10, v40")
        I(f"s_lshl_b32 s{s_t0}, s{s_mg4}, 17")
        I(f"s_lshl_b32 s{s_t1}, s{s_t2}, 18")
        I(f"s_add_u32 s{s_t0}, s{s_t0}, s{s_t1}")
        I(f"s_lshl_b32 s{s_t1}, s{s_wave}, 15")
        I(f"s_add_u32 s{s_t0}, s{s_t0}, s{s_t1}")
        I(f"buffer_load_dword v42, v40, {srd(sX)}, s{s_t0} offen offset:384")
    if args.jobM:
        I("v_lshlrev_b32 v41, 7, v1")
        I(f"s_and_b32 s{s_t0}, s2, 7")
        I(f"s_lshl_b32 s{s_t0}, s{s_t0}, 1")
        I(f"s_add_u32 s{s_t0}, s{s_t0}, s{s_t2}")
        I(f"s_lshl_b32 s{s_t1}, s{s_wave}, 4")
        I(f"s_add_u32 s{s_t0}, s{s_t0}, s{s_t1}")
        I(f"s_lshl_b32 s{s_t0}, s{s_t0}, 13")
        I(f"buffer_load_dword v43, v41, {srd(sW2)}, s{s_t0} offen")
        I(f"s_add_u32 s{s_t0}, s{s_t0}, {128*8192}")
        I(f"s_cmp_ge_u32 s{s_t0}, {W2B}")
        I(f"s_cbranch_scc1 {P}_pf{tag}_m")
        I(f"buffer_load_dword v43, v41, {srd(sW2)}, s{s_t0} offen")
        L(f"{P}_pf{tag}_m")
    if args.job3:
        I("v_min_u32 v44, 42, v1")
        I("v_lshlrev_b32 v44, 10, v44")
        I(f"s_mul_i32 s{s_t0}, s{s_t2}, 688")
        I(f"s_mul_i32 s{s_t1}, s{s_wave}, 86")
        I(f"s_add_u32 s{s_t0}, s{s_t0}, s{s_t1}")
        I(f"s_lshl_b32 s{s_t0}, s{s_t0}, 10")
        I(f"buffer_load_dword v45, v44, {srd(sW2)}, s{s_t0} offen offset:384")
        I(f"s_add_u32 s{s_t0}, s{s_t0}, {43*1024}")
        I(f"buffer_load_dword v45, v44, {srd(sW2)}, s{s_t0} offen offset:384")

L(f"{P}_l_tail")
stamp(2)
I(f"s_mov_b32 m0, s{s_lu}")
I(f"s_mov_b32 s{s_u}, 0")
I(f"v_mov_b32 v17, {LDS_SCR}")
issueW(args.atb6)
I(f"s_waitcnt vmcnt({args.atb6})")
I("s_barrier")
if "stages" in args.diag: stamp(7, True)
stamp(3)
issueW(args.kmin, args.pace)
I("s_setprio 3")
if args.stopat < 0: I(f"s_branch {P}_l_stop")
L(f"{P}_l_str")
I("ds_read_b64 v[18:19], v17 offset:8")
I(f"s_waitcnt vmcnt({args.pace2-1}) lgkmcnt(0)")
I(f"v_readfirstlane_b32 s{s_t0}, v18")
I(f"v_readfirstlane_b32 s{s_t1}, v19")
I(f"s_cmp_eq_u32 s{s_t0}, 4")
I(f"s_cselect_b32 s{s_lim}, 39, 29")
I(f"s_cmp_lg_u32 s{s_t1}, 0")
I(f"s_cbranch_scc1 {P}_l_stop")
I(f"s_cmp_ge_u32 s{s_u}, s{s_lim}")
I(f"s_cbranch_scc1 {P}_l_full")
for bi in range(args.burst):
    if bi:
        I(f"s_cmp_ge_u32 s{s_u}, s{s_lim}")
        I(f"s_cbranch_scc1 {P}_l_full")
        I(f"s_waitcnt vmcnt({args.pace2-1})")
    if args.pace3:
        I(f"s_cmp_lg_u32 s{s_cb}, 3")
        I(f"s_cbranch_scc1 {P}_l_p3{bi}")
        I(f"s_waitcnt vmcnt({args.pace3-1})")
        L(f"{P}_l_p3{bi}")
    w_one()
I(f"s_branch {P}_l_str")
L(f"{P}_l_full")
I("s_sleep 1")
I(f"s_cmp_lt_u32 s{s_u}, 39")
I(f"s_cbranch_scc1 {P}_l_str")
L(f"{P}_l_stop")
I("s_waitcnt vmcnt(0)")
if args.post:
    I(f"s_add_u32 s{s_lim}, s{s_u}, {args.post}")
    I(f"s_min_u32 s{s_lim}, s{s_lim}, 39")
    L(f"{P}_l_last")
    I("ds_read_b32 v18, v17 offset:4")
    I("s_waitcnt lgkmcnt(0)")
    I(f"v_readfirstlane_b32 s{s_t0}, v18")
    I("s_nop 0")
    I(f"s_cmp_lt_u32 s{s_t0}, 4")
    I(f"s_cbranch_scc1 {P}_l_last")
    issueW(f"s{s_lim}")
I("s_setprio 0")
stamp(4)
if "wk" in args.diag:
    I("s_waitcnt lgkmcnt(0)"); I(f"s_mul_i32 s{s_prof+14}, s{s_u}, 10"); I(f"s_add_u32 s{s_prof+14}, s{s_prof+14}, s{s_prof+8}")
if args.sflag:
    I(f"s_mul_i32 s{s_xb}, s{s_mt}, {4*HSTR*1024}")
    I(f"s_lshr_b32 s{s_t1}, s{s_sl}, 3")
    I(f"s_mul_i32 s{s_t1}, s{s_t1}, {HSTR*1024}")
    I(f"s_add_u32 s{s_xb}, s{s_xb}, s{s_t1}")
    I(f"s_and_b32 s{s_t1}, s{s_sl}, 7")
    I(f"s_lshl_b32 s{s_t1}, s{s_t1}, 7")
    I(f"s_add_u32 s{s_xb}, s{s_xb}, s{s_t1}")
    I(f"s_add_u32 s{s_xb}, s{s_xb}, {86*1024}")
    I(f"s_mov_b32 s{s_wb}, 1")
    I(f"s_cmp_lg_u32 s{s_wave}, 2")
I("s_barrier")
if args.sflag:
    I(f"s_cbranch_scc1 {P}_l_nofl")
    I(f"s_atomic_add s{s_wb}, s[{sH}:{sH+1}], s{s_xb}")
    L(f"{P}_l_nofl")
I(f"s_cmp_lg_u32 s{s_wave}, 1")
I(f"s_cbranch_scc1 {P}_l_nofb")
I(f"s_lshl_b32 s{s_sx}, 1, s{s_sl}")
I(f"s_lshl_b32 s{s_sw}, s{s_mt}, 4")
I(f"s_atomic_add s{s_sx}, s[{sD}:{sD+1}], s{s_sw}")
L(f"{P}_l_nofb")
if args.fsleep: I("s_sleep 1")
I(f"s_add_u32 s{s_lim}, s{s_u}, {args.wb1}")
I(f"s_min_u32 s{s_lim}, s{s_lim}, 39")
issueW(f"s{s_lim}")
I(f"s_branch {P}_l_bb")
L(f"{P}_l_idle")
prefetch_jobs()
I(f"s_mov_b32 m0, s{s_lu}")
I(f"s_mov_b32 s{s_u}, 0")
issueW(39)
I("s_waitcnt vmcnt(0)")
I("s_barrier")
L(f"{P}_l_bb")
I("s_barrier")
issueW(39)
I(f"s_mov_b32 m0, s{s_lu}")
issueW(43)
stamp(5)
wdone = args.kmin
L(f"{P}_l_sel")
I(f"s_cmp_lg_u32 s{s_wave}, 0")
I(f"s_cbranch_scc1 {P}_l_go")
I(f"s_lshr_b32 s{s_t1}, s{s_rb}, 1")
I(f"s_lshl_b32 s{s_t1}, s{s_t1}, 4")
I("v_mov_b32 v18, 0")
I(f"v_mov_b32 v17, {LDS_SCR}")
I("v_mov_b32 v19, 1")
I(f"s_mov_b32 s{s_cnt}, 0")
L(f"{P}_l_poll")
I(f"buffer_load_dword v{vFN}, v{vFA}, {srd(sH)}, s{s_fl} offen sc1")
I(f"s_add_u32 s{s_cnt}, s{s_cnt}, 1")
I("s_waitcnt vmcnt(0)")
I(f"v_cmp_ne_u32 vcc, v{vFN}, v{vFS}")
I(f"s_and_b32 s{s_t0}, s{s_cnt}, {0 if 'fbonly' in args.diag else 31}")
if "fbonly" in args.diag: I("s_mov_b64 vcc, 0")
I(f"s_or_b32 s{s_t2}, vcc_lo, s{s_valid}")
I(f"s_and_b32 s{s_t2}, s{s_t2}, 0x7fff")
I(f"s_cmp_eq_u32 s{s_t2}, 0x7fff")
I(f"s_cbranch_scc1 {P}_l_ok")
if args.sleep: I(f"s_sleep {args.sleep}")
I(f"s_cmp_lg_u32 s{s_t0}, 0")
I(f"s_cbranch_scc1 {P}_l_poll")
I(f"buffer_load_dword v16, v18, {srd(sD)}, s{s_t1} offen sc1")
I("s_waitcnt vmcnt(0)")
I(f"v_readfirstlane_b32 s{s_t0}, v16")
I(f"s_cmp_ge_u32 s{s_cnt}, 400000")
I(f"s_cbranch_scc1 {P}_l_ok")
I(f"s_or_b32 s{s_t2}, s{s_t2}, s{s_t0}")
I(f"s_cmp_lg_u32 s{s_t2}, 0x7fff")
I(f"s_cbranch_scc1 {P}_l_poll")
L(f"{P}_l_ok")
I("ds_write_b32 v17, v19")
L(f"{P}_l_go")
stamp(6)
I("s_waitcnt vmcnt(0)")
I("s_barrier")
if args.amp.startswith("L"): amp_block(args.amp[1:], "l")
prof_store()
L(f"{P}_end")
I("s_endpgm")
loader_tail = out[LOADER_TAIL_MARK:]
del out[LOADER_TAIL_MARK:]

MUTE[0] = "p2" in args.diag or "fin" in args.diag
FIN = "fin" in args.diag
L(f"{P}_compute")
vAX = [2, 3]; vAW = [6, 7, 8]
ACC = 64
FA, FB = 160, 200
vOLD = 20
if args.prio: I(f"s_setprio {args.prio}")
I(f"s_and_b32 s{s_t0}, s{s_wave}, 1")
I(f"s_lshl_b32 s{s_t0}, s{s_t0}, 13")
I(f"s_add_u32 s{s_t0}, s{s_t0}, {SLOT0}")
I("v_and_b32 v10, 15, v1")
I("v_lshrrev_b32 v11, 1, v10")
I("v_lshrrev_b32 v12, 4, v1")
I(f"v_lshl_add_u32 v10, v10, 7, s{s_t0}")
I("v_xor_b32 v13, v12, v11")
I("v_and_b32 v11, 1, v12")
I(f"v_lshl_add_u32 v{vAX[0]}, v13, 4, v10")
I(f"v_xor_b32 v{vAX[1]}, 64, v{vAX[0]}")
I("v_lshrrev_b32 v10, 1, v12")
I("v_bfe_u32 v12, v1, 2, 2")
I("v_lshl_add_u32 v12, v11, 3, v12")
I("v_mul_u32_u24 v12, 192, v12")
I("v_mul_u32_u24 v13, 6144, v10")
I("v_and_b32 v10, 3, v1")
I("v_lshl_add_u32 v12, v10, 3, v12")
I(f"s_mov_b32 s{s_t1}, {SLOT0+16384}")
I(f"v_add3_u32 v12, v12, v13, s{s_t1}")
I("v_lshlrev_b32 v11, 5, v11")
I(f"s_bfe_u32 s{s_t0}, s{s_wave}, {1 | (1 << 16)}")
I(f"s_lshl_b32 s{s_t1}, s{s_t0}, 5")
I(f"s_lshl_b32 s{s_t2}, s{s_t0}, 6")
I(f"v_xor_b32 v13, s{s_t1}, v11")
I(f"v_add3_u32 v{vAW[0]}, v12, v13, s{s_t2}")
I(f"v_add_u32 v{vAW[2]}, 64, v{vAW[0]}")
I("v_xor_b32 v13, 32, v13")
I(f"s_lshl_b32 s{s_t2}, s{s_t0}, 7")
I(f"v_add3_u32 v{vAW[1]}, v12, v13, s{s_t2}")
I("v_mov_b32 v21, 0")
I(f"v_mov_b32 v22, {LDS_SCR}")
I("ds_write_b32 v22, v21")
I("ds_write_b32 v22, v21 offset:4")
I("ds_write_b32 v22, v21 offset:8")
I("ds_write_b32 v22, v21 offset:12")
I("v_mov_b32 v23, 1")
for r in range(0, 96, 2):
    I(f"v_mov_b64 v[{ACC+r}:{ACC+r+1}], 0")
I(f"s_cmp_eq_u32 s{s_t0}, 0")
I(f"s_cselect_b32 s{s_t1}, 2, 0")
I(f"s_movk_i32 s{s_t2}, 0x543")
I(f"s_cselect_b32 s{s_t2}, 0x210, s{s_t2}")
I(f"s_movk_i32 s{s_t3}, 0x103")
I(f"s_cselect_b32 s{s_t3}, 0x254, s{s_t3}")
I(f"s_cmp_eq_u32 s{s_sl}, 14")
I(f"s_cselect_b32 s{s_valid}, s{s_t1}, 3")
I(f"s_bitcmp1_b32 s{s_sl}, 0")
I(f"s_cselect_b32 s{s_t2}, s{s_t3}, s{s_t2}")
I(f"s_and_b32 s{s_t1}, s{s_wave}, 1")
I(f"s_lshl_b32 s{s_t3}, s{s_mt}, 1")
I(f"s_add_u32 s{s_t1}, s{s_t1}, s{s_t3}")
I(f"s_mul_i32 s{s_t1}, s{s_t1}, {2*HSTR}")
I(f"s_mul_i32 s{s_t3}, s{s_sl}, 6")
I(f"s_add_u32 s{s_t1}, s{s_t1}, s{s_t3}")
for t in range(3):
    I(f"s_bfe_u32 s{s_t3}, s{s_t2}, {4*t | (4 << 16)}")
    I(f"s_add_u32 s{s_t3}, s{s_t3}, s{s_t1}")
    I(f"s_lshl_b32 s{s_hoff+t}, s{s_t3}, 10")
I(f"s_mov_b32 s{s_k}, 0xbfb8aa3b")
I("v_lshlrev_b32 v9, 4, v1")
I(f"v_add_u32 v10, {HSTR*1024}, v9")
I(f"v_mov_b32 v56, s{s_k}"); I(f"v_mov_b32 v57, s{s_k}"); I("v_mov_b32 v58, 1.0"); I("v_mov_b32 v59, 1.0")
if not args.sflag:
    I(f"s_mul_i32 s{s_fl}, s{s_mt}, {4*HSTR*1024}")
    I(f"s_lshr_b32 s{s_t1}, s{s_sl}, 3")
    I(f"s_mul_i32 s{s_t1}, s{s_t1}, {HSTR*1024}")
    I(f"s_add_u32 s{s_fl}, s{s_fl}, s{s_t1}")
    I(f"s_and_b32 s{s_t1}, s{s_sl}, 7")
    I(f"s_lshl_b32 s{s_t1}, s{s_t1}, 7")
    I(f"s_add_u32 s{s_fl}, s{s_fl}, s{s_t1}")
    I(f"s_add_u32 s{s_fl}, s{s_fl}, {86*1024}")
srd_tail(sH, WS_REC); srd_tail(sO, OB)
I(f"s_mov_b32 s{s_cnt}, 0")
I(f"s_mov_b32 s{s_ring}, 1")
I(f"s_mov_b32 s{s_sx}, {SLOTSZ}")
I("s_waitcnt lgkmcnt(0)")
I(f"s_cmp_ge_u32 s{s_sl}, 15")
I(f"s_cbranch_scc1 {P}_c_idle")
I(f"s_cmp_eq_u32 s{s_valid}, 0")
I(f"s_cbranch_scc1 {P}_c_lazy")

def xr(fs, mt): return fs + 4 * mt
def wr_(fs, t, mat): return fs + 16 + 4 * (2 * t + mat)
def acc(t, mat, mt): return ACC + ((t * 2 + mat) * 4 + mt) * 4
def xrd(ks, fs, mt): return [f"ds_read_b128 v[{xr(fs,mt)}:{xr(fs,mt)+3}], v{vAX[ks]} offset:{2048*mt}"]
def wrd(ks, fs, t, mat):
    d = wr_(fs, t, mat)
    return [f"ds_read_b64_tr_b16 v[{d+2*h}:{d+2*h+1}], v{vAW[t]} offset:{ks*12288+mat*3072+h*768}" for h in range(2)]
def reads(ks, fs):
    if "noread" in args.diag: return ["s_nop 0"] * 16
    if "halfread" in args.diag:
        r = xrd(ks, fs, 0) + wrd(ks, fs, 0, 0) + xrd(ks, fs, 1) + wrd(ks, fs, 0, 1) + wrd(ks, fs, 1, 0)
        return r + ["s_nop 0"] * 8
    r = xrd(ks, fs, 0) + wrd(ks, fs, 0, 0) + xrd(ks, fs, 1) + wrd(ks, fs, 0, 1) + xrd(ks, fs, 2) + xrd(ks, fs, 3)
    for t in (1, 2):
        for mat in range(2): r += wrd(ks, fs, t, mat)
    return r
def mf(fs, t, mat, mt):
    a = acc(t, mat, mt); w = wr_(fs, t, mat); x = xr(fs, mt)
    return f"v_mfma_f32_16x16x32_bf16 v[{a}:{a+3}], v[{w}:{w+3}], v[{x}:{x+3}], v[{a}:{a+3}]"
def mfmas(fs):
    if "halfm" in args.diag:
        return [mf(fs, t, mat, mt) if mat == 0 else "s_nop 1" for t in range(3) for mat in range(2) for mt in range(4)]
    if args.morder == 1:
        return [mf(fs, t, mat, mt if mat == 0 else 3 - mt) for t in range(3) for mat in range(2) for mt in range(4)]
    if args.morder == 2:
        ws = [(t, mat) for t in range(3) for mat in range(2)]
        return [mf(fs, *w, mt) for mt in range(4) for w in (ws if mt % 2 == 0 else ws[::-1])]
    return [mf(fs, t, mat, mt) for t in range(3) for mat in range(2) for mt in range(4)]
if args.prew:
    for t in range(3):
        if t == 2:
            I(f"s_cmp_le_u32 s{s_valid}, 2"); I(f"s_cbranch_scc1 {P}_c_npw")
        for p_ in range(2):
            I(f"buffer_store_dwordx4 v[64:67], v{9+p_}, {srd(sH)}, s{s_hoff+t} offen sc1")
    L(f"{P}_c_npw")
if args.align:
    I(f"s_branch {P}_pg1"); out.append("@COLD@"); e(".p2align 12"); L(f"{P}_pg1")
if "b0" in args.diag: stamp(1)
I("s_barrier")
if "b0" not in args.diag: stamp(1)
r = reads(0, FA)
for x in r[:12]: I(x)
if not args.sflag:
    I(f"s_cmp_lg_u32 s{s_wave}, 4")
    I(f"s_cbranch_scc1 {P}_c_noold")
    I(f"buffer_load_dword v{vOLD}, v21, {srd(sH)}, s{s_fl} offen sc1")
    L(f"{P}_c_noold")
I("s_waitcnt lgkmcnt(8)")
for x in r[12:]: I(x)
L(f"{P}_c_loop")
m = mfmas(FA); r = reads(1, FB)
extra = [f"s_add_u32 s{s_ring}, s{s_ring}, 1", f"s_cmp_eq_u32 s{s_ring}, 3",
         f"s_cselect_b32 s{s_t0}, {-2*SLOTSZ & 0xffffffff}, s{s_sx}", f"s_cselect_b32 s{s_ring}, 0, s{s_ring}",
         f"s_add_u32 s{s_cnt}, s{s_cnt}, 1", None]
upd = [f"v_add_u32 v{r}, s{s_t0}, v{r}" for r in vAX + vAW]
need = {0: 8, 8: 10, 12: 12, 16: 14, 20: 16} if args.morder < 2 else {0: 6, 2: 10, 3: 12, 4: 14, 5: 16}
for i in range(24):
    if i in need: I(f"s_waitcnt lgkmcnt({min(15, 16 - need[i] + min(i, 16))})")
    I(m[i])
    if i < 16: I(r[i])
    elif i < 19:
        for x in extra[2*(i-16):2*(i-16)+2]:
            if x: I(x)
    else: I(upd[i-19])
I("s_waitcnt lgkmcnt(0)")
m = mfmas(FB); r = reads(0, FA)
for i in range(24):
    if i == args.barpos: I("s_barrier")
    I(m[i])
    if i >= args.barpos:
        for x in r[(i - args.barpos) * args.rpg:(i - args.barpos + 1) * args.rpg]: I(x)
assert (24 - args.barpos) * args.rpg >= 16
I(f"s_cmp_lt_u32 s{s_cnt}, 7")
I(f"s_cbranch_scc1 {P}_c_loop")
stamp(2)
T = 32
def epi(t, p):
    tm = T + p * 12; o = tm + 8
    g = [acc(t, 0, 2*p + (q >> 2)) + (q & 3) for q in range(8)]
    u = [acc(t, 1, 2*p + (q >> 2)) + (q & 3) for q in range(8)]
    v = []
    if 2 * t + p >= args.pkfrom:
        pr = lambda r: f"v[{r}:{r+1}]"
        for q in range(0, 8, 2): v.append(f"v_pk_mul_f32 {pr(tm+q)}, {pr(g[q])}, v[56:57]")
        for q in range(8): v.append(f"v_exp_f32 v{tm+q}, v{tm+q}")
        for q in range(0, 8, 2): v.append(f"v_pk_add_f32 {pr(tm+q)}, {pr(tm+q)}, v[58:59]")
        for q in range(8): v.append(f"v_rcp_f32 v{tm+q}, v{tm+q}")
        for q in range(0, 8, 2): v.append(f"v_pk_mul_f32 {pr(tm+q)}, {pr(tm+q)}, {pr(g[q])}")
        for q in range(0, 8, 2): v.append(f"v_pk_mul_f32 {pr(tm+q)}, {pr(tm+q)}, {pr(u[q])}")
    else:
        for q in range(8): v.append(f"v_mul_f32 v{tm+q}, s{s_k}, v{g[q]}")
        for q in range(8): v.append(f"v_exp_f32 v{tm+q}, v{tm+q}")
        for q in range(8): v.append(f"v_add_f32 v{tm+q}, 1.0, v{tm+q}")
        for q in range(8): v.append(f"v_rcp_f32 v{tm+q}, v{tm+q}")
        for q in range(8): v.append(f"v_mul_f32 v{tm+q}, v{tm+q}, v{g[q]}")
        for q in range(8): v.append(f"v_mul_f32 v{tm+q}, v{tm+q}, v{u[q]}")
    for q in (0, 2, 1, 3): v.append(f"v_cvt_pk_bf16_f32 v{o+q}, v{tm+2*q}, v{tm+2*q+1}")
    v.append(("swap", o))
    v.append(("store", t, p, o))
    return v
def emit_v(x):
    if isinstance(x, tuple) and x[0] == "swap":
        o = x[1]
        I(f"v_permlane16_swap_b32 v{o}, v{o+2}")
        I("s_nop 0")
        I(f"v_permlane16_swap_b32 v{o+1}, v{o+3}")
    elif isinstance(x, tuple):
        _, t, p, o = x
        if t == 2:
            I(f"s_cmp_le_u32 s{s_valid}, 2")
            I(f"s_cbranch_scc1 {P}_c_ns{t}{p}")
        I(f"buffer_store_dwordx4 v[{o}:{o+3}], v{9+p}, {srd(sH)}, s{s_hoff+t} offen {'' if 'hplain' in args.diag else 'sc1'}")
        if t == 2: L(f"{P}_c_ns{t}{p}")
    else:
        I(x)
blocks = [(t, p) for t in range(3) for p in range(2)]
def bmf(t, p, fs): return [mf(fs, t, mat, 2*p + j) for mat in range(2) for j in range(2)]
rB = reads(1, FB)
I("s_waitcnt lgkmcnt(8)")
pre = bmf(0, 0, FA) + bmf(0, 1, FA)
for i in range(8):
    I(pre[i])
    if i == 3: I("s_waitcnt lgkmcnt(6)")
    I(rB[2*i])
    if i == 7: I("s_waitcnt lgkmcnt(9)")
    I(rB[2*i+1])
I("s_waitcnt lgkmcnt(8)")
seq = []
for bi, (t, p) in enumerate(blocks):
    x = bmf(t, p, FB) if bi < 2 else bmf(t, p, FA) + bmf(t, p, FB)
    seq += [(y, None) for y in x[:-1]] + [(x[-1], bi)]
vq = []; nxt = 0; since = {}
for i, (mi, done) in enumerate(seq):
    if i == 8:
        I("s_waitcnt lgkmcnt(0)")
        I("s_mov_b64 exec, 1"); I("ds_add_u32 v22, v23 offset:8"); I("s_mov_b64 exec, -1")
    I(mi)
    for k in since: since[k] += 1
    if done is not None: since[done] = 0
    n = 0
    while n < args.gapc:
        if not vq:
            if nxt in since and since[nxt] >= 4 and nxt < args.pkfrom:
                if since[nxt] < 9: I(f"s_nop {9 - since[nxt]}")
                vq += epi(*blocks[nxt]); nxt += 1
            else:
                break
        x = vq.pop(0)
        emit_v(x); n += 8 if (isinstance(x, tuple) or "exp" in x or "rcp" in x) else 4
        for k in since: since[k] += 1
while vq or nxt < 6:
    if not vq:
        if since[nxt] < 9: I(f"s_nop {9 - since[nxt]}")
        if nxt == args.stopat: I("ds_write_b32 v22, v23 offset:12")
        vq += epi(*blocks[nxt]); nxt += 1
    emit_v(vq.pop(0))
    for k in since: since[k] += 1
if args.stopat == 6: I("ds_write_b32 v22, v23 offset:12")
L(f"{P}_c_epidone")
if args.post:
    I("s_mov_b64 exec, 1"); I("ds_add_u32 v22, v23 offset:4"); I("s_mov_b64 exec, -1")
stamp(3)
vB = [[10, 11], [12, 13], [14, 15]]
WF = 128; HR = 160; R = args.hring
I("v_lshrrev_b32 v16, 4, v1")
I("v_lshrrev_b32 v17, 5, v1")
I("v_bfe_u32 v18, v1, 2, 2")
I("v_lshl_add_u32 v17, v17, 3, v18")
I("v_lshlrev_b32 v17, 7, v17")
I("v_and_b32 v16, 1, v16")
I("v_and_b32 v19, 1, v1")
I("v_lshl_add_u32 v16, v19, 1, v16")
I("v_lshlrev_b32 v18, 1, v18")
I("v_and_b32 v18, 4, v18")
I(f"s_bfe_u32 s{s_t0}, s{s_wave}, {1 | (1 << 16)}")
I(f"s_lshl_b32 s{s_t1}, s{s_t0}, 2")
I(f"v_xor_b32 v18, s{s_t1}, v18")
I("v_xor_b32 v16, v16, v18")
I("v_lshl_add_u32 v17, v16, 4, v17")
I("v_bfe_u32 v19, v1, 1, 1")
I("v_lshl_add_u32 v17, v19, 3, v17")
I(f"s_lshl_b32 s{s_t1}, s{s_t0}, 11")
I(f"v_add_u32 v{vB[0][0]}, s{s_t1}, v17")
I(f"v_xor_b32 v{vB[0][1]}, 64, v{vB[0][0]}")
for sg in (1, 2):
    for nb in range(2):
        I(f"v_add_u32 v{vB[sg][nb]}, {sg*65536}, v{vB[0][nb]}")
I("s_waitcnt vmcnt(0)")
if not args.sflag: I(f"v_add_u32 v{vOLD}, 1, v{vOLD}")
I("s_barrier")
if not args.sflag:
    I(f"s_cmp_lg_u32 s{s_wave}, 4")
    I(f"s_cbranch_scc1 {P}_c_p2")
    I(f"s_cmp_ge_u32 s{s_sl}, 15")
    I(f"s_cbranch_scc1 {P}_c_p2")
    I("s_mov_b64 exec, 1")
    I(f"buffer_store_dword v{vOLD}, v21, {srd(sH)}, s{s_fl} offen sc1")
    I("s_mov_b64 exec, -1")
L(f"{P}_c_p2")
stamp(4)
def wreads(u, dst):
    a = unit_addr(u); sg = a >> 16; off = a & 0xffff
    return [f"ds_read_b64_tr_b16 v[{dst+4*nb+2*h}:{dst+4*nb+2*h+1}], v{vB[sg][nb]} offset:{off+h*512}" for nb in range(2) for h in range(2)]
NW, NPRE, PRE, TN = 3, 4, 96, args.tailn
def wdst(u):
    if u < 4: return PRE + 8 * u
    if u >= 43 - TN: return PRE + 8 * (u - (43 - TN))
    return WF + 8 * (u % NW)
for u in range(NPRE):
    if u == 3: I("s_waitcnt lgkmcnt(8)")
    for r in wreads(u, wdst(u)): I(r)
I("s_waitcnt lgkmcnt(0)")
I("s_barrier")
decode2()
I(f"s_bfe_u32 s{s_t0}, s{s_wave}, {1 | (1 << 16)}")
I(f"s_and_b32 s{s_t1}, s{s_wave}, 1")
I(f"s_lshl_b32 s{s_t2}, s{s_rb}, 1")
I(f"s_add_u32 s{s_t1}, s{s_t1}, s{s_t2}")
I(f"s_mul_i32 s{s_t2}, s{s_t1}, {HSTR}")
I(f"s_mul_i32 s{s_t3}, s{s_t0}, 43")
I(f"s_add_u32 s{s_t2}, s{s_t2}, s{s_t3}")
I(f"s_lshl_b32 s{s_pbeg}, s{s_t2}, 10")
I(f"s_add_u32 s{s_pend}, s{s_pbeg}, {43*1024}")
I(f"s_lshl_b32 s{s_t2}, s{s_rot2}, 10")
I(f"s_add_u32 s{s_p}, s{s_pbeg}, s{s_t2}")
I("v_and_b32 v16, 31, v1")
I("v_lshlrev_b32 v16, 10, v16")
I("v_and_b32 v17, 32, v1")
I(f"s_lshl_b32 s{s_t1}, s{s_t1}, 15")
I(f"s_lshl_b32 s{s_t2}, s{s_cb}, 7")
I(f"s_add_u32 s{s_t1}, s{s_t1}, s{s_t2}")
I(f"s_lshl_b32 s{s_t2}, s{s_t0}, 6")
I(f"s_add_u32 s{s_t1}, s{s_t1}, s{s_t2}")
I(f"v_add3_u32 v16, v16, v17, s{s_t1}")
I(f"s_and_b32 s{s_t1}, s{s_wave}, 3")
I(f"s_lshl_b32 s{s_t1}, s{s_t1}, 12")
I(f"s_xor_b32 s{s_t2}, s{s_t1}, {2 << 12}")
I(f"s_add_u32 s{s_t1}, s{s_t1}, {XCH}")
I(f"s_add_u32 s{s_t2}, s{s_t2}, {XCH}")
I(f"v_add_u32 v17, s{s_t1}, v9")
I(f"v_add_u32 v18, s{s_t2}, v9")
if args.otr:
    I("v_and_b32 v25, 31, v1")
    I(f"s_and_b32 s{s_t1}, s{s_wave}, 1")
    I(f"s_lshl_b32 s{s_t1}, s{s_t1}, 12")
    I(f"s_add_u32 s{s_t1}, s{s_t1}, {OTR}")
    I(f"v_lshl_add_u32 v26, v25, 7, s{s_t1}")
    I("v_lshrrev_b32 v27, 5, v1")
    I(f"s_lshl_b32 s{s_t2}, s{s_t0}, 1")
    I(f"v_add_lshl_u32 v27, v27, s{s_t2}, 1")
    I("v_and_b32 v25, 7, v25")
    I("v_xor_b32 v27, v27, v25")
    I("v_lshl_add_u32 v25, v27, 4, v26")
    I("v_xor_b32 v26, 16, v25")
    if args.otr == 1:
        I("v_lshrrev_b32 v27, 2, v1")
        I("v_and_b32 v28, 3, v1")
        I(f"s_lshl_b32 s{s_t2}, s{s_t0}, 2")
        I(f"v_add_u32 v28, s{s_t2}, v28")
        rowstep = 16
    else:
        I("v_lshrrev_b32 v27, 3, v1")
        I(f"s_lshl_b32 s{s_t2}, s{s_t0}, 4")
        I(f"v_add_u32 v27, s{s_t2}, v27")
        I("v_and_b32 v28, 7, v1")
        rowstep = 8
    I(f"s_and_b32 s{s_t2}, s{s_wave}, 1")
    I(f"s_lshl_b32 s{s_t3}, s{s_rb}, 1")
    I(f"s_add_u32 s{s_t2}, s{s_t2}, s{s_t3}")
    I(f"s_lshl_b32 s{s_t2}, s{s_t2}, 15")
    I(f"s_lshl_b32 s{s_t3}, s{s_cb}, 7")
    I(f"s_add_u32 s{s_t2}, s{s_t2}, s{s_t3}")
    I(f"v_lshl_add_u32 v16, v27, 10, s{s_t2}")
    I("v_lshl_add_u32 v16, v28, 4, v16")
    I(f"v_add_u32 v29, {rowstep*1024}, v16")
    I("v_and_b32 v30, 7, v27")
    I("v_xor_b32 v28, v28, v30")
    I(f"v_lshl_add_u32 v27, v27, 7, s{s_t1}")
    I("v_lshl_add_u32 v27, v28, 4, v27")
for r in range(0, 32, 2):
    I(f"v_mov_b64 v[{ACC+r}:{ACC+r+1}], 0")
if args.align:
    I(f"s_branch {P}_c_spin"); e(".p2align 12")
L(f"{P}_c_spin")
I("ds_read_b32 v24, v22")
I("s_waitcnt lgkmcnt(0)")
I(f"v_readfirstlane_b32 s{s_t0}, v24")
I("s_nop 0")
I(f"s_cmp_eq_u32 s{s_t0}, 0")
I(f"s_cbranch_scc1 {P}_c_spin")
stamp(5)
if "p2" in args.diag: stamp(1, True)
def hload(s):
    b = HR + 4 * (s % R)
    return [f"buffer_load_dwordx4 v[{b}:{b+3}], v9, {srd(sH)}, s{s_p} offen sc1",
            f"s_add_u32 s{s_p}, s{s_p}, 1024",
            f"s_cmp_eq_u32 s{s_p}, s{s_pend}",
            f"s_cselect_b32 s{s_p}, s{s_pbeg}, s{s_p}"]
for s in range(args.hpro):
    for x in hload(s): I(x)
issued = args.hpro
def mm2(s, nb):
    hb = HR + 4 * (s % R); wd = wdst(s)
    return f"v_mfma_f32_32x32x16_bf16 v[{ACC+16*nb}:{ACC+16*nb+15}], v[{wd+4*nb}:{wd+4*nb+3}], v[{hb}:{hb+3}], v[{ACC+16*nb}:{ACC+16*nb+15}]"
for s in range(43):
    u = s + 2
    young = 1 if NPRE <= s + 1 < 43 else 0
    I(f"s_waitcnt vmcnt({issued - s - 1}) lgkmcnt({4*young})")
    if "p2" in args.diag and s in (0, 5, 11, 21, 32, 42): stamp({0:2, 5:3, 11:4, 21:5, 32:6, 42:7}[s], True)
    if u == wdone: I("s_barrier")
    wr = wreads(u, wdst(u)) if NPRE <= u < 43 else []
    I(mm2(s, 1))
    for r in wr[:2]: I(r)
    if issued < 43 and issued - R < s:
        for x in hload(issued): I(x)
        issued += 1
    if s < 43 - TN: I(mm2(s, 0))
    for r in wr[2:]: I(r)
    if issued < 43 and issued - R < s and issued - s - 1 < R - 1:
        for x in hload(issued): I(x)
        issued += 1
stamp(6)
if FIN: stamp(2, True)
tl = [mm2(s, 0) for s in range(43 - TN, 43)]
if tl: I(tl.pop(0))
I("s_nop 7")
I("s_nop 3")
for q in range(4):
    I(f"ds_write_b128 v17, v[{ACC+16+4*q}:{ACC+19+4*q}] offset:{q*1024}")
    if tl and q % 2 == 1: I(tl.pop(0))
for x in tl: I(x)
I("s_waitcnt lgkmcnt(0)")
if FIN: stamp(3, True)
I("s_barrier")
if FIN: stamp(4, True)
for q in range(4):
    I(f"ds_read_b128 v[{128+4*q}:{131+4*q}], v18 offset:{q*1024}")
I("s_nop 5")
for q in range(4):
    I(f"s_waitcnt lgkmcnt({3-q + (1 if args.otr and q >= 2 else 0)})")
    for p in range(2):
        I(f"v_pk_add_f32 v[{ACC+4*q+2*p}:{ACC+4*q+2*p+1}], v[{ACC+4*q+2*p}:{ACC+4*q+2*p+1}], v[{128+4*q+2*p}:{129+4*q+2*p}]")
    for p in range(2):
        I(f"v_cvt_pk_bf16_f32 v{144+2*q+p}, v{ACC+4*q+2*p}, v{ACC+4*q+2*p+1}")
    if q == 1:
        if args.otr: I("ds_write_b128 v25, v[144:147]")
        else: I(f"buffer_store_dwordx4 v[144:147], v16, {srd(sO)}, 0 offen {args.ost}")
if args.otr:
    I("ds_write_b128 v26, v[148:151]")
    if args.otr == 2:
        I("s_waitcnt lgkmcnt(0)")
        I("s_barrier")
        if FIN: stamp(5, True)
    I("ds_read_b128 v[152:155], v27")
    I(f"ds_read_b128 v[156:159], v27 offset:{rowstep*128}")
    I("s_waitcnt lgkmcnt(1)")
    I(f"buffer_store_dwordx4 v[152:155], v16, {srd(sO)}, 0 offen {args.ost}")
    I("s_waitcnt lgkmcnt(0)")
    I(f"buffer_store_dwordx4 v[156:159], v29, {srd(sO)}, 0 offen {args.ost}")
else:
    I(f"buffer_store_dwordx4 v[148:151], v16, {srd(sO)}, 0 offen offset:16 {args.ost}")
if "dirty" in args.diag:
    n = int(re.search(r"dirty(\d+)", args.diag).group(1))
    I(f"s_mov_b32 s{sH+2}, {64 << 20}")
    I(f"s_lshl_b32 s{s_t0}, s2, 2")
    I(f"s_add_u32 s{s_t0}, s{s_t0}, s{s_wave}")
    I(f"s_mul_i32 s{s_t0}, s{s_t0}, {n*1024}")
    I(f"s_add_u32 s{s_t0}, s{s_t0}, {16 << 20}")
    for i in range(n):
        I(f"buffer_store_dwordx4 v[144:147], v9, {srd(sH)}, s{s_t0} offen")
        I(f"s_add_u32 s{s_t0}, s{s_t0}, 1024")
if FIN: stamp(6, True)
if STAMPS: I("s_waitcnt vmcnt(0)")
stamp(7, True)
if args.amp and args.amp != "none" and not args.amp.startswith("L"): amp_block(args.amp, "c")
prof_store()
I("s_endpgm")
COLD_MARK = len(out)
L(f"{P}_c_lazy")
for i in range(8): I("s_barrier")
I("s_mov_b64 exec, 1"); I("ds_add_u32 v22, v23 offset:8"); I("s_mov_b64 exec, -1")
I(f"s_branch {P}_c_epidone")
L(f"{P}_c_idle")
srd_tail(sX, XB); srd_tail(sW2, W2B)
prefetch_jobs()
I(f"s_branch {P}_c_epidone")
out += loader_tail
if args.align:
    cold = out[COLD_MARK:]; del out[COLD_MARK:]
    i = out.index("@COLD@"); out[i:i+1] = cold
L(f"{P}_codeend")

e('.section .rodata,"a"')
e(".p2align 6")
e(f".amdhsa_kernel {label}")
for l in ("next_free_vgpr 256", "next_free_sgpr 102", "accum_offset 256", "group_segment_fixed_size 0", "kernarg_size 56",
          "user_sgpr_count 2", "user_sgpr_kernarg_segment_ptr 1", "system_sgpr_workgroup_id_x 1", "float_denorm_mode_32 3"):
    e("  .amdhsa_" + l)
e(".end_amdhsa_kernel")

text = "\n".join(out) + "\n"
def symbols(t):
    with tempfile.TemporaryDirectory() as d:
        open(d + "/k.s", "w").write(t)
        subprocess.run(["clang", "-x", "assembler", "-target", "amdgcn-amd-amdhsa", "-mcpu=gfx950", "-c", d + "/k.s", "-o", d + "/k.o"], check=True)
        sym = subprocess.run(["llvm-objdump", "-t", d + "/k.o"], capture_output=True, text=True).stdout
    return {m.group(2): int(m.group(1), 16) for m in re.finditer(r"^([0-9a-f]{16}) .*\s(\S+)$", sym, re.M)}
a = symbols(text.replace("@CODELINES@", "100"))
assert a[f"{P}_codeend"] < 16384
sys.stderr.write(f"code {a[f'{P}_codeend']} B: loop@{a[f'{P}_l_loop']} compute@{a[f'{P}_compute']} cloop@{a[f'{P}_c_loop']} p2@{a[f'{P}_c_p2']} ltail@{a[f'{P}_l_tail']}\n")
open(args.o, "w").write(text)
```

```python
import sys, argparse, subprocess, tempfile, re

ap = argparse.ArgumentParser()
ap.add_argument("-o", default="standalone__glu_gated_swiglu__prompt.s")
ap.add_argument("--prof", action="store_true")
ap.add_argument("--cyc", action="store_true")
ap.add_argument("--amp", default="")
ap.add_argument("--diag", default="")
ap.add_argument("--xrot", type=int, default=4)
ap.add_argument("--hring", type=int, default=12)
ap.add_argument("--hpro", type=int, default=10)
ap.add_argument("--sleep", type=int, default=1)
ap.add_argument("--codepf", type=int, default=1)
ap.add_argument("--prio", type=int, default=1)
ap.add_argument("--atb6", type=int, default=8)
ap.add_argument("--kmin", type=int, default=12)
ap.add_argument("--stopat", type=int, default=3)
ap.add_argument("--pace2", type=int, default=10)
ap.add_argument("--pace", type=int, default=10)
ap.add_argument("--barpos", type=int, default=16)
ap.add_argument("--rpg", type=int, default=2)
ap.add_argument("--gapc", type=int, default=8)
ap.add_argument("--pkfrom", type=int, default=1)
ap.add_argument("--tailn", type=int, default=3)
ap.add_argument("--jobx3", type=int, default=0)
ap.add_argument("--job3", type=int, default=1)
ap.add_argument("--jobM", type=int, default=0)
ap.add_argument("--jobX", type=int, default=1)
ap.add_argument("--otr", type=int, default=2)
ap.add_argument("--ost", default="sc1")
ap.add_argument("--prew", type=int, default=0)
ap.add_argument("--align", type=int, default=1)
ap.add_argument("--trk", type=int, default=0)
ap.add_argument("--post", type=int, default=10)
ap.add_argument("--sflag", type=int, default=1)
ap.add_argument("--pace3", type=int, default=0)
ap.add_argument("--morder", type=int, default=1)
ap.add_argument("--fsleep", type=int, default=0)
ap.add_argument("--tlbw", type=int, default=0)
ap.add_argument("--map", type=int, default=0)
ap.add_argument("--burst", type=int, default=2)
ap.add_argument("--stouch", type=int, default=0)
ap.add_argument("--wb1", type=int, default=0)
args = ap.parse_args()

NAME = "standalone__glu_gated_swiglu__prompt"
out = []
def e(s=""): out.append(s)
def I(s): out.append("    " + s)
def L(s): out.append(s + ":")

S, D, F = 2048, 512, 1376
XB, WB, W2B, OB = S * D * 2, D * F * 2, F * D * 2, S * D * 2
HSTR = 87
WS_REC = 8 << 20
PROF_OFF = 7 << 20
SLOT0, SLOTSZ, LDS_SCR, LDS_TOTAL = 36864 + 40960, 40960, 159744, 163840
def unit_addr(u): return (u % 39) * 4096
XCH = 4 * 4096
OTR = 8 * 4096

sX, sW1, sW3, sW2, sH, sO, sD = 20, 24, 28, 32, 36, 40, 44
s_wave, s_mg4, s_sh, s_mt, s_sl, s_rb, s_cb = 48, 49, 50, 51, 52, 53, 54
s_t0, s_t1, s_t2, s_t3 = 55, 56, 57, 58
s_cnt, s_kst, s_sx, s_sw, s_ring = 59, 60, 61, 62, 63
s_lx, s_lw, s_rot2, s_fl = 64, 65, 66, 67
s_k = 68
s_xb, s_wb, s_lu = 69, 70, 71
s_hoff = 72
s_p, s_pend, s_pbeg, s_valid = 78, 79, 80, 81
s_u, s_lim = 75, 76
s_prof = 84
def srd(r): return f"s[{r}:{r+3}]"
STAMPS = args.prof or args.amp
MUTE = [False]
def stamp(i, force=False):
    if "clk" in args.diag:
        m = {1: 0, 2: 1, 4: 2, 5: 3}
        if i in m:
            I(f"s_memrealtime s[{s_prof+2*m[i]}:{s_prof+2*m[i]+1}]"); I(f"s_memtime s[{s_prof+8+2*m[i]}:{s_prof+9+2*m[i]}]")
        return
    if MUTE[0] and not force: return
    if STAMPS: I(f"{'s_memtime' if args.cyc else 's_memrealtime'} s[{s_prof+2*i}:{s_prof+2*i+1}]")
def srd_tail(r, nbytes):
    I(f"s_mov_b32 s{r+2}, {nbytes}")
    I(f"s_mov_b32 s{r+3}, 0x20000")
def prof_store():
    if not args.prof: return
    I("s_waitcnt lgkmcnt(0)")
    I(f"s_lshl_b32 s{s_t0}, s2, 3")
    I(f"s_xor_b32 s{s_t1}, s{s_wave}, 4")
    I(f"s_add_u32 s{s_t0}, s{s_t0}, s{s_t1}")
    I(f"s_lshl_b32 s{s_t0}, s{s_t0}, 5")
    I(f"s_add_u32 s{s_t0}, s{s_t0}, {PROF_OFF}")
    for i in range(8): I(f"v_mov_b32 v{240+i}, s{s_prof+2*i}")
    I("v_mov_b32 v248, 0")
    I("s_mov_b64 exec, 1")
    I(f"buffer_store_dwordx4 v[240:243], v248, {srd(sH)}, s{s_t0} offen")
    I(f"buffer_store_dwordx4 v[244:247], v248, {srd(sH)}, s{s_t0} offen offset:16")
    I("s_mov_b64 exec, -1")
P = "K"
def amp_block(spec, tag):
    ai, aj = [int(t) for t in spec.split(",")]
    I("s_waitcnt lgkmcnt(0)")
    I(f"s_sub_u32 s{s_t0}, s{s_prof+2*aj}, s{s_prof+2*ai}")
    I(f"s_cmp_eq_u32 s{s_prof+2*ai}, 0")
    I(f"s_cselect_b32 s{s_t0}, 0, s{s_t0}")
    I(f"s_cmp_eq_u32 s{s_prof+2*aj}, 0")
    I(f"s_cselect_b32 s{s_t0}, 0, s{s_t0}")
    I(f"s_min_u32 s{s_t0}, s{s_t0}, 20000")
    I(f"s_mul_i32 s{s_t0}, s{s_t0}, 10")
    I("s_memrealtime s[82:83]")
    I("s_waitcnt lgkmcnt(0)")
    I(f"s_mov_b32 s{s_t1}, s82")
    L(f"{P}_amp{tag}")
    I("s_memrealtime s[82:83]")
    I("s_waitcnt lgkmcnt(0)")
    I(f"s_sub_u32 s{s_t2}, s82, s{s_t1}")
    I(f"s_cmp_lt_u32 s{s_t2}, s{s_t0}")
    I(f"s_cbranch_scc1 {P}_amp{tag}")

def kst_init():
    if args.map and args.xrot == 1:
        I(f"s_lshl_b32 s{s_kst}, s{s_sh}, 2")
        I(f"s_xor_b32 s{s_kst}, s{s_kst}, s{s_mg4}")
        I(f"s_and_b32 s{s_kst}, s{s_kst}, 4")
    elif args.map and args.xrot == 4:
        I(f"s_lshr_b32 s{s_kst}, s{s_mg4}, 1")
        I(f"s_lshl_b32 s{s_cnt}, s{s_sh}, 2")
        I(f"s_add_u32 s{s_kst}, s{s_kst}, s{s_cnt}")
        I(f"s_and_b32 s{s_kst}, s{s_kst}, 7")
    elif args.xrot == 1:
        I(f"s_add_u32 s{s_kst}, s2, s{s_sh}")
        I(f"s_and_b32 s{s_kst}, s{s_kst}, 1")
        I(f"s_lshl_b32 s{s_kst}, s{s_kst}, 2")
    elif args.xrot == 4:
        I(f"s_lshl_b32 s{s_kst}, s{s_sh}, 1")
        I(f"s_add_u32 s{s_kst}, s{s_kst}, s2")
        I(f"s_and_b32 s{s_kst}, s{s_kst}, 3")
        I(f"s_lshl_b32 s{s_kst}, s{s_kst}, 1")
    elif args.xrot == 5:
        I(f"s_lshl_b32 s{s_kst}, s{s_sh}, 1")
        I(f"s_add_u32 s{s_kst}, s{s_kst}, s2")
        I(f"s_and_b32 s{s_kst}, s{s_kst}, 3")
        I(f"s_add_u32 s{s_cnt}, s{s_mt}, s{s_sl}")
        I(f"s_and_b32 s{s_cnt}, s{s_cnt}, 1")
        I(f"s_lshl_b32 s{s_cnt}, s{s_cnt}, 2")
        I(f"s_add_u32 s{s_kst}, s{s_kst}, s{s_cnt}")
    elif args.xrot == 6:
        I(f"s_add_u32 s{s_kst}, s2, s{s_sh}")
        I(f"s_and_b32 s{s_kst}, s{s_kst}, 1")
        I(f"s_lshl_b32 s{s_kst}, s{s_kst}, 1")
        I(f"s_add_u32 s{s_cnt}, s{s_mt}, s{s_sl}")
        I(f"s_and_b32 s{s_cnt}, s{s_cnt}, 1")
        I(f"s_lshl_b32 s{s_cnt}, s{s_cnt}, 2")
        I(f"s_add_u32 s{s_kst}, s{s_kst}, s{s_cnt}")
    else:
        I(f"s_mov_b32 s{s_kst}, 0")

def decode2():
    I(f"s_lshl_b32 s{s_t0}, s{s_sh}, 1")
    I(f"s_add_u32 s{s_t0}, s{s_t0}, s{s_mg4}")
    I(f"s_lshl_b32 s{s_t0}, s{s_t0}, 1")
    I(f"s_lshr_b32 s{s_t1}, s2, 6")
    I(f"s_add_u32 s{s_rb}, s{s_t0}, s{s_t1}")
    I(f"s_bfe_u32 s{s_cb}, s2, {3 | (3 << 16)}")
    I(f"s_mul_i32 s{s_rot2}, s{s_t1}, 11")

label = NAME + "_kernel"
e(f"; @launch grid=(256,1,1) block=(512,1,1) lds={LDS_TOTAL}")
e('.amdgcn_target "amdgcn-amd-amdhsa--gfx950"')
e(".text")
e(f".globl {label}")
e(".p2align 8")
e(f".type {label},@function")
L(label)
I("s_cmp_ge_u32 s2, 256")
I(f"s_cbranch_scc1 {P}_end")
for r, off in ((sX, 0), (sW1, 8), (sW3, 16), (sW2, 24), (sO, 32), (sD, 40), (sH, 48)):
    I(f"s_load_dwordx2 s[{r}:{r+1}], s[0:1], {off}")
if STAMPS:
    for i in range(8): I(f"s_mov_b32 s{s_prof+2*i}, 0")
if "delay" in args.diag:
    for i in range(int(re.search(r"delay(\d+)", args.diag).group(1))): I("s_sleep 18")
stamp(0)
I("v_lshrrev_b32 v2, 6, v0")
I("v_and_b32 v1, 63, v0")
I(f"v_readfirstlane_b32 s{s_wave}, v2")
if args.map:
    I(f"s_and_b32 s{s_mg4}, s2, 6")
    I(f"s_lshl_b32 s{s_mg4}, s{s_mg4}, 1")
else:
    I(f"s_and_b32 s{s_mg4}, s2, 3")
    I(f"s_lshl_b32 s{s_mg4}, s{s_mg4}, 2")
I(f"s_cmp_lt_u32 s{s_wave}, 4")
I(f"s_cbranch_scc1 {P}_dec")
if args.codepf:
    I("s_getpc_b64 s[18:19]")
    L(f"{P}_pc")
    I("v_bfe_u32 v60, v0, 1, 7")
    I("v_lshlrev_b32 v60, 7, v60")
    I(f"v_min_u32 v60, {P}_codeend-{P}_pc-4, v60")
    I("global_load_dword v61, v60, s[18:19]")
L(f"{P}_dec")
I(f"s_bfe_u32 s{s_sh}, s2, {(0 if args.map else 2) | (1 << 16)}")
I(f"s_bfe_u32 s{s_t2}, s2, {3 | (2 << 16)}")
I(f"s_lshr_b32 s{s_t3}, s2, 5")
I(f"s_add_u32 s{s_mt}, s{s_mg4}, s{s_t2}")
I(f"s_mul_i32 s{s_sl}, s{s_sh}, 7")
I(f"s_add_u32 s{s_sl}, s{s_sl}, s{s_t3}")
I(f"s_cmp_lg_u32 s{s_t3}, 7")
I(f"s_cbranch_scc1 {P}_dec2")
I(f"s_lshl_b32 s{s_t0}, s{s_sh}, 1")
I(f"s_and_b32 s{s_t1}, s{s_t2}, 1")
I(f"s_add_u32 s{s_mt}, s{s_mg4}, s{s_t0}")
I(f"s_add_u32 s{s_mt}, s{s_mt}, s{s_t1}")
I(f"s_lshr_b32 s{s_sl}, s{s_t2}, 1")
I(f"s_add_u32 s{s_sl}, s{s_sl}, 14")
L(f"{P}_dec2")
I(f"s_cmp_ge_u32 s{s_wave}, 4")
I(f"s_cbranch_scc1 {P}_compute")

MUTE[0] = "stages" in args.diag
vX = [2, 3, 4, 5]; vW = [6, 7, 8]; vW2 = 13
vFA, vFS, vFN = 20, 21, 22
I("v_lshrrev_b32 v14, 3, v1")
I("v_lshrrev_b32 v15, 4, v1")
I("v_and_b32 v16, 7, v1")
I("v_xor_b32 v15, v15, v16")
I("v_lshlrev_b32 v14, 10, v14")
I(f"v_lshl_add_u32 v{vX[0]}, v15, 4, v14")
I(f"v_xor_b32 v{vX[1]}, 64, v{vX[0]}")
I(f"v_add_u32 v{vX[1]}, 7168, v{vX[1]}")
I(f"v_add_u32 v{vX[2]}, 14336, v{vX[0]}")
I(f"v_add_u32 v{vX[3]}, 14336, v{vX[1]}")
I(f"s_bitcmp1_b32 s{s_sl}, 0")
I(f"s_cselect_b32 s{s_t0}, -64, 64")
I(f"s_cselect_b32 s{s_t1}, 128, 0")
I(f"s_cmp_eq_u32 s{s_sl}, 14")
I(f"s_cselect_b32 s{s_t0}, {1 << 21}, s{s_t0}")
I(f"s_mul_i32 s{s_t2}, s{s_t0}, -3")
I(f"s_add_u32 s{s_t2}, s{s_t2}, 2752")
I("v_lshrrev_b32 v14, 2, v1")
I("v_and_b32 v15, 3, v1")
I(f"v_lshl_add_u32 v15, v15, 4, s{s_t1}")
I("v_and_b32 v16, 32, v1")
for j in range(3):
    if j: I(f"v_add_u32 v14, 16, v14")
    I("v_mul_u32_u24 v17, 43, v14")
    if j == 0: I("v_mov_b32 v18, v15")
    if j == 1: I("v_xor_b32 v18, v15, v16")
    if j == 2: I("v_xor_b32 v18, 32, v15")
    I("v_lshrrev_b32 v17, 7, v17")
    I(f"v_mad_i32_i24 v18, v14, s{s_t0}, v18")
    I(f"v_mad_i32_i24 v{vW[j]}, v17, s{s_t2}, v18")
    if j: I(f"v_subrev_u32 v{vW[j]}, {1024*j}, v{vW[j]}")
I(f"s_lshl_b32 s{s_lx}, s{s_wave}, 12")
I(f"s_add_u32 s{s_lx}, s{s_lx}, {SLOT0}")
I(f"s_mul_i32 s{s_lw}, s{s_wave}, 6144")
I(f"s_add_u32 s{s_lw}, s{s_lw}, {SLOT0+16384}")
I(f"s_lshl_b32 s{s_xb}, s{s_mt}, 17")
I(f"s_lshl_b32 s{s_t0}, s{s_wave}, 15")
I(f"s_add_u32 s{s_xb}, s{s_xb}, s{s_t0}")
I(f"s_mul_i32 s{s_wb}, s{s_sl}, 192")
I(f"s_mul_i32 s{s_t0}, s{s_wave}, {16*2752}")
I(f"s_add_u32 s{s_wb}, s{s_wb}, s{s_t0}")
kst_init()
I(f"s_mov_b32 s{s_cnt}, 0")
I(f"s_mov_b32 s{s_ring}, {SLOTSZ}")
srd_tail(sX, XB); srd_tail(sW1, WB); srd_tail(sW3, WB)
I(f"s_cmp_ge_u32 s{s_sl}, 15")
I(f"s_cbranch_scc1 {P}_l_init")
I(f"s_lshl_b32 s{s_t0}, s{s_kst}, 7")
I(f"s_add_u32 s{s_sx}, s{s_xb}, s{s_t0}")
I(f"s_mul_i32 s{s_sw}, s{s_kst}, {64*2752}")
I(f"s_add_u32 s{s_sw}, s{s_sw}, s{s_wb}")
I(f"s_mov_b32 m0, s{s_lx}")
I("s_waitcnt lgkmcnt(0)")
if args.tlbw:
    I(f"s_load_dword s3, s[{sW1}:{sW1+1}], s{s_sw}")
    I(f"s_load_dword s4, s[{sW3}:{sW3+1}], s{s_sw}")
    if args.tlbw > 1:
        I(f"s_load_dword s5, s[{sW2}:{sW2+1}], 0")
        I(f"s_load_dword s6, s[{sO}:{sO+1}], 0")
stamp(1)
def issueS(tag):
    for j in range(4):
        I(f"buffer_load_dwordx4 v{vX[j]}, {srd(sX)}, s{s_sx} offen offset:{1024*j} lds")
    I(f"s_mov_b32 m0, s{s_lw}")
    I(f"s_add_u32 s{s_kst}, s{s_kst}, 1")
    for j in range(3):
        I(f"buffer_load_dwordx4 v{vW[j]}, {srd(sW1)}, s{s_sw} offen offset:{1024*j} lds")
    I("s_add_u32 m0, m0, 3072")
    I(f"s_and_b32 s{s_kst}, s{s_kst}, 7")
    for j in range(3):
        I(f"buffer_load_dwordx4 v{vW[j]}, {srd(sW3)}, s{s_sw} offen offset:{1024*j} lds")
    I(f"s_lshl_b32 s{s_t0}, s{s_kst}, 7")
    I(f"s_add_u32 s{s_sx}, s{s_xb}, s{s_t0}")
    I(f"s_mul_i32 s{s_sw}, s{s_kst}, {64*2752}")
    I(f"s_add_u32 s{s_sw}, s{s_sw}, s{s_wb}")
    I(f"s_cmp_ge_u32 s{s_lx}, {SLOT0+SLOTSZ}")
    I(f"s_cselect_b32 s{s_t0}, {-2*SLOTSZ & 0xffffffff}, s{s_ring}")
    I(f"s_add_u32 s{s_lx}, s{s_lx}, s{s_t0}")
    I(f"s_add_u32 s{s_lw}, s{s_lw}, s{s_t0}")
    I(f"s_mov_b32 m0, s{s_lx}")
    I(f"s_add_u32 s{s_cnt}, s{s_cnt}, 1")
L(f"{P}_l_loop")
issueS("a")
I(f"s_cmp_eq_u32 s{s_cnt}, 1")
I(f"s_cbranch_scc1 {P}_l_loop")

wcount = [0]
def w_one():
    I(f"buffer_load_dwordx4 v{vW2}, {srd(sW2)}, s{s_p} offen lds")
    I(f"s_add_u32 s{s_p}, s{s_p}, 16384")
    I(f"s_cmp_eq_u32 s{s_p}, s{s_pend}")
    I(f"s_cselect_b32 s{s_p}, s{s_pbeg}, s{s_p}")
    I("s_add_u32 m0, m0, 4096")
    I(f"s_add_u32 s{s_u}, s{s_u}, 1")
def issueW(lim, pace=0):
    lab = f"{P}_l_w{wcount[0]}"; wcount[0] += 1
    I(f"s_cmp_ge_u32 s{s_u}, {lim}")
    I(f"s_cbranch_scc1 {lab}e")
    L(lab)
    if pace: I(f"s_waitcnt vmcnt({pace-1})")
    w_one()
    I(f"s_cmp_lt_u32 s{s_u}, {lim}")
    I(f"s_cbranch_scc1 {lab}")
    L(lab + "e")

L(f"{P}_l_init")
decode2()
srd_tail(sW2, W2B); srd_tail(sH, WS_REC); srd_tail(sD, 256)
I("v_lshrrev_b32 v14, 3, v1")
I(f"s_and_b32 s{s_t0}, s{s_wave}, 1")
I(f"s_lshl_b32 s{s_t0}, s{s_t0}, 3")
I(f"s_lshr_b32 s{s_t1}, s{s_wave}, 1")
I(f"s_mul_i32 s{s_t1}, s{s_t1}, 688")
I(f"s_add_u32 s{s_t0}, s{s_t0}, s{s_t1}")
I(f"v_add_u32 v14, s{s_t0}, v14")
I("v_lshlrev_b32 v14, 10, v14")
I("v_lshrrev_b32 v15, 2, v1")
I("v_and_b32 v15, 4, v15")
I("v_and_b32 v16, 7, v1")
I("v_xor_b32 v15, v15, v16")
I(f"v_lshl_add_u32 v{vW2}, v15, 4, v14")
I(f"s_lshl_b32 s{s_pbeg}, s{s_cb}, 7")
I(f"s_add_u32 s{s_pend}, s{s_pbeg}, {43*16384}")
I(f"s_lshl_b32 s{s_t0}, s{s_rot2}, 14")
I(f"s_add_u32 s{s_p}, s{s_pbeg}, s{s_t0}")
I(f"s_lshl_b32 s{s_lu}, s{s_wave}, 10")
I(f"s_lshr_b32 s{s_t0}, s{s_rb}, 1")
I(f"s_mul_i32 s{s_fl}, s{s_t0}, {4*HSTR*1024}")
I(f"s_add_u32 s{s_fl}, s{s_fl}, {86*1024}")
I("v_min_u32 v14, 15, v1")
I(f"s_lshl_b32 s{s_valid}, 1, s{s_sl}")
I(f"s_cmp_eq_u32 s{s_t0}, s{s_mt}")
I(f"s_cselect_b32 s{s_t1}, s{s_sl}, 15")
I(f"s_cselect_b32 s{s_valid}, s{s_valid}, 0")
I(f"v_cmp_eq_u32 vcc, s{s_t1}, v14")
I("v_mov_b32 v15, 15")
I("s_nop 0")
I("v_cndmask_b32 v14, v14, v15, vcc")
I("v_lshrrev_b32 v15, 3, v14")
I(f"v_mul_u32_u24 v15, {HSTR*1024}, v15")
I("v_and_b32 v14, 7, v14")
I(f"v_lshl_add_u32 v{vFA}, v14, 7, v15")
I("s_waitcnt lgkmcnt(0)")
I(f"s_cmp_lg_u32 s{s_wave}, 0")
I(f"s_cbranch_scc1 {P}_l_nosamp")
I(f"buffer_load_dword v{vFS}, v{vFA}, {srd(sH)}, s{s_fl} offen sc1")
L(f"{P}_l_nosamp")
I(f"s_cmp_ge_u32 s{s_sl}, 15")
I(f"s_cbranch_scc1 {P}_l_idle")
if args.stouch:
    I(f"s_lshr_b32 s{s_t0}, s2, 3")
    I(f"s_lshl_b32 s{s_t0}, s{s_t0}, 2")
    I(f"s_add_u32 s{s_t0}, s{s_t0}, s{s_wave}")
    I(f"s_mul_i32 s{s_t0}, s{s_t0}, {11*1024}")
    I(f"s_add_u32 s18, s{sW2}, s{s_t0}")
    I(f"s_addc_u32 s19, s{sW2+1}, 0")
I(f"s_mov_b32 s{s_u}, 0")
I("s_waitcnt vmcnt(10)")
L(f"{P}_l_wait")
I(f"s_waitcnt vmcnt({10 + args.trk})")
if "b0" in args.diag:
    I(f"s_cmp_lg_u32 s{s_cnt}, 2"); I(f"s_cbranch_scc1 {P}_l_nb0"); stamp(7, True); L(f"{P}_l_nb0")
I("s_barrier")
if "stages" in args.diag:
    for c in range(1, 7):
        I(f"s_cmp_lg_u32 s{s_cnt}, {c+2}"); I(f"s_cbranch_scc1 {P}_l_st{c}"); stamp(c, True); L(f"{P}_l_st{c}")
I(f"s_cmp_ge_u32 s{s_cnt}, 8")
I(f"s_cbranch_scc1 {P}_l_tail")
issueS("b")
if args.trk:
    I(f"s_lshl_b32 s{s_t0}, s{s_u}, 12")
    I(f"s_add_u32 m0, s{s_lu}, s{s_t0}")
    I("s_nop 0")
    for i in range(args.trk): w_one()
    I(f"s_mov_b32 m0, s{s_lx}")
I(f"s_branch {P}_l_wait")
LOADER_TAIL_MARK = len(out)

pfc = [0]
def prefetch_jobs():
    tag = pfc[0]; pfc[0] += 1
    I(f"s_bfe_u32 s{s_t2}, s2, {3 | (1 << 16)}")
    if args.jobX:
        kst_init()
        I("v_lshlrev_b32 v40, 10, v1")
        if args.jobX == 2:
            I(f"s_cmp_ge_u32 s{s_mg4}, 8")
            I(f"s_cbranch_scc1 {P}_pf{tag}_e")
            I(f"s_add_u32 s{s_t0}, s{s_mg4}, 8")
            I(f"s_lshl_b32 s{s_t0}, s{s_t0}, 17")
            I(f"s_lshl_b32 s{s_t1}, s{s_wave}, 16")
            I(f"s_add_u32 s{s_t0}, s{s_t0}, s{s_t1}")
            I(f"s_add_u32 s{s_t1}, s{s_kst}, s{s_t2}")
            I(f"s_lshl_b32 s{s_t1}, s{s_t1}, 7")
            I(f"s_add_u32 s{s_t0}, s{s_t0}, s{s_t1}")
            I(f"buffer_load_dword v42, v40, {srd(sX)}, s{s_t0} offen")
            L(f"{P}_pf{tag}_e")
        I(f"s_lshl_b32 s{s_t0}, s{s_mg4}, 17")
        I(f"s_lshl_b32 s{s_t1}, s{s_wave}, 16")
        I(f"s_add_u32 s{s_t0}, s{s_t0}, s{s_t1}")
        I(f"s_add_u32 s{s_t1}, s{s_kst}, s{s_t2}")
        I(f"s_add_u32 s{s_t1}, s{s_t1}, 2")
        I(f"s_and_b32 s{s_t1}, s{s_t1}, 7")
        I(f"s_lshl_b32 s{s_t1}, s{s_t1}, 7")
        I(f"s_add_u32 s{s_t0}, s{s_t0}, s{s_t1}")
        I(f"buffer_load_dword v42, v40, {srd(sX)}, s{s_t0} offen")
    if args.jobx3:
        I("v_and_b32 v40, 31, v1")
        I("v_lshlrev_b32 v40, 10, v40")
        I(f"s_lshl_b32 s{s_t0}, s{s_mg4}, 17")
        I(f"s_lshl_b32 s{s_t1}, s{s_t2}, 18")
        I(f"s_add_u32 s{s_t0}, s{s_t0}, s{s_t1}")
        I(f"s_lshl_b32 s{s_t1}, s{s_wave}, 15")
        I(f"s_add_u32 s{s_t0}, s{s_t0}, s{s_t1}")
        I(f"buffer_load_dword v42, v40, {srd(sX)}, s{s_t0} offen offset:384")
    if args.jobM:
        I("v_lshlrev_b32 v41, 7, v1")
        I(f"s_and_b32 s{s_t0}, s2, 7")
        I(f"s_lshl_b32 s{s_t0}, s{s_t0}, 1")
        I(f"s_add_u32 s{s_t0}, s{s_t0}, s{s_t2}")
        I(f"s_lshl_b32 s{s_t1}, s{s_wave}, 4")
        I(f"s_add_u32 s{s_t0}, s{s_t0}, s{s_t1}")
        I(f"s_lshl_b32 s{s_t0}, s{s_t0}, 13")
        I(f"buffer_load_dword v43, v41, {srd(sW2)}, s{s_t0} offen")
        I(f"s_add_u32 s{s_t0}, s{s_t0}, {128*8192}")
        I(f"s_cmp_ge_u32 s{s_t0}, {W2B}")
        I(f"s_cbranch_scc1 {P}_pf{tag}_m")
        I(f"buffer_load_dword v43, v41, {srd(sW2)}, s{s_t0} offen")
        L(f"{P}_pf{tag}_m")
    if args.job3:
        I("v_min_u32 v44, 42, v1")
        I("v_lshlrev_b32 v44, 10, v44")
        I(f"s_mul_i32 s{s_t0}, s{s_t2}, 688")
        I(f"s_mul_i32 s{s_t1}, s{s_wave}, 86")
        I(f"s_add_u32 s{s_t0}, s{s_t0}, s{s_t1}")
        I(f"s_lshl_b32 s{s_t0}, s{s_t0}, 10")
        I(f"buffer_load_dword v45, v44, {srd(sW2)}, s{s_t0} offen offset:384")
        I(f"s_add_u32 s{s_t0}, s{s_t0}, {43*1024}")
        I(f"buffer_load_dword v45, v44, {srd(sW2)}, s{s_t0} offen offset:384")

L(f"{P}_l_tail")
stamp(2)
I(f"s_add_u32 m0, s{s_lu}, {6*args.trk*4096}")
I(f"v_mov_b32 v17, {LDS_SCR}")
assert 6 * args.trk <= 9 and 6 * args.trk + args.atb6 <= 19
issueW(6 * args.trk + args.atb6)
I(f"s_waitcnt vmcnt({args.atb6 + args.trk})")
I("s_barrier")
if "stages" in args.diag: stamp(7, True)
stamp(3)
issueW(args.kmin, args.pace)
I("s_setprio 3")
if args.stopat < 0: I(f"s_branch {P}_l_stop")
L(f"{P}_l_str")
I("ds_read_b64 v[18:19], v17 offset:8")
I(f"s_waitcnt vmcnt({args.pace2-1}) lgkmcnt(0)")
I(f"v_readfirstlane_b32 s{s_t0}, v18")
I(f"v_readfirstlane_b32 s{s_t1}, v19")
I(f"s_cmp_eq_u32 s{s_t0}, 4")
I(f"s_cselect_b32 s{s_lim}, 39, 29")
I(f"s_cmp_lg_u32 s{s_t1}, 0")
I(f"s_cbranch_scc1 {P}_l_stop")
I(f"s_cmp_ge_u32 s{s_u}, s{s_lim}")
I(f"s_cbranch_scc1 {P}_l_full")
for bi in range(args.burst):
    if bi:
        I(f"s_cmp_ge_u32 s{s_u}, s{s_lim}")
        I(f"s_cbranch_scc1 {P}_l_full")
        I(f"s_waitcnt vmcnt({args.pace2-1})")
    if args.pace3:
        I(f"s_cmp_lg_u32 s{s_cb}, 3")
        I(f"s_cbranch_scc1 {P}_l_p3{bi}")
        I(f"s_waitcnt vmcnt({args.pace3-1})")
        L(f"{P}_l_p3{bi}")
    w_one()
I(f"s_branch {P}_l_str")
L(f"{P}_l_full")
I("s_sleep 1")
I(f"s_cmp_lt_u32 s{s_u}, 39")
I(f"s_cbranch_scc1 {P}_l_str")
L(f"{P}_l_stop")
I("s_waitcnt vmcnt(0)")
if args.post:
    I(f"s_add_u32 s{s_lim}, s{s_u}, {args.post}")
    I(f"s_min_u32 s{s_lim}, s{s_lim}, 39")
    L(f"{P}_l_last")
    I("ds_read_b32 v18, v17 offset:4")
    I("s_waitcnt lgkmcnt(0)")
    I(f"v_readfirstlane_b32 s{s_t0}, v18")
    I("s_nop 0")
    I(f"s_cmp_lt_u32 s{s_t0}, 4")
    I(f"s_cbranch_scc1 {P}_l_last")
    issueW(f"s{s_lim}")
I("s_setprio 0")
stamp(4)
if "wk" in args.diag:
    I("s_waitcnt lgkmcnt(0)"); I(f"s_mul_i32 s{s_prof+14}, s{s_u}, 10"); I(f"s_add_u32 s{s_prof+14}, s{s_prof+14}, s{s_prof+8}")
if args.sflag:
    I(f"s_mul_i32 s{s_xb}, s{s_mt}, {4*HSTR*1024}")
    I(f"s_lshr_b32 s{s_t1}, s{s_sl}, 3")
    I(f"s_mul_i32 s{s_t1}, s{s_t1}, {HSTR*1024}")
    I(f"s_add_u32 s{s_xb}, s{s_xb}, s{s_t1}")
    I(f"s_and_b32 s{s_t1}, s{s_sl}, 7")
    I(f"s_lshl_b32 s{s_t1}, s{s_t1}, 7")
    I(f"s_add_u32 s{s_xb}, s{s_xb}, s{s_t1}")
    I(f"s_add_u32 s{s_xb}, s{s_xb}, {86*1024}")
    I(f"s_mov_b32 s{s_wb}, 1")
    I(f"s_cmp_lg_u32 s{s_wave}, 2")
I("s_barrier")
if args.sflag:
    I(f"s_cbranch_scc1 {P}_l_nofl")
    I(f"s_atomic_add s{s_wb}, s[{sH}:{sH+1}], s{s_xb}")
    L(f"{P}_l_nofl")
I(f"s_cmp_lg_u32 s{s_wave}, 1")
I(f"s_cbranch_scc1 {P}_l_nofb")
I(f"s_lshl_b32 s{s_sx}, 1, s{s_sl}")
I(f"s_lshl_b32 s{s_sw}, s{s_mt}, 4")
I(f"s_atomic_add s{s_sx}, s[{sD}:{sD+1}], s{s_sw}")
L(f"{P}_l_nofb")
if args.fsleep: I("s_sleep 1")
I(f"s_add_u32 s{s_lim}, s{s_u}, {args.wb1}")
I(f"s_min_u32 s{s_lim}, s{s_lim}, 39")
issueW(f"s{s_lim}")
I(f"s_branch {P}_l_bb")
L(f"{P}_l_idle")
prefetch_jobs()
I(f"s_mov_b32 m0, s{s_lu}")
I(f"s_mov_b32 s{s_u}, 0")
issueW(39)
I("s_waitcnt vmcnt(0)")
I("s_barrier")
L(f"{P}_l_bb")
I("s_barrier")
issueW(39)
I(f"s_mov_b32 m0, s{s_lu}")
issueW(43)
stamp(5)
wdone = args.kmin
L(f"{P}_l_sel")
I(f"s_cmp_lg_u32 s{s_wave}, 0")
I(f"s_cbranch_scc1 {P}_l_go")
I(f"s_lshr_b32 s{s_t1}, s{s_rb}, 1")
I(f"s_lshl_b32 s{s_t1}, s{s_t1}, 4")
I("v_mov_b32 v18, 0")
I(f"v_mov_b32 v17, {LDS_SCR}")
I("v_mov_b32 v19, 1")
I(f"s_mov_b32 s{s_cnt}, 0")
L(f"{P}_l_poll")
I(f"buffer_load_dword v{vFN}, v{vFA}, {srd(sH)}, s{s_fl} offen sc1")
I(f"s_add_u32 s{s_cnt}, s{s_cnt}, 1")
I("s_waitcnt vmcnt(0)")
I(f"v_cmp_ne_u32 vcc, v{vFN}, v{vFS}")
I(f"s_and_b32 s{s_t0}, s{s_cnt}, {0 if 'fbonly' in args.diag else 31}")
if "fbonly" in args.diag: I("s_mov_b64 vcc, 0")
I(f"s_or_b32 s{s_t2}, vcc_lo, s{s_valid}")
I(f"s_and_b32 s{s_t2}, s{s_t2}, 0x7fff")
I(f"s_cmp_eq_u32 s{s_t2}, 0x7fff")
I(f"s_cbranch_scc1 {P}_l_ok")
if args.sleep: I(f"s_sleep {args.sleep}")
I(f"s_cmp_lg_u32 s{s_t0}, 0")
I(f"s_cbranch_scc1 {P}_l_poll")
I(f"buffer_load_dword v16, v18, {srd(sD)}, s{s_t1} offen sc1")
I("s_waitcnt vmcnt(0)")
I(f"v_readfirstlane_b32 s{s_t0}, v16")
I(f"s_cmp_ge_u32 s{s_cnt}, 400000")
I(f"s_cbranch_scc1 {P}_l_ok")
I(f"s_or_b32 s{s_t2}, s{s_t2}, s{s_t0}")
I(f"s_cmp_lg_u32 s{s_t2}, 0x7fff")
I(f"s_cbranch_scc1 {P}_l_poll")
L(f"{P}_l_ok")
I("ds_write_b32 v17, v19")
L(f"{P}_l_go")
stamp(6)
I("s_waitcnt vmcnt(0)")
I("s_barrier")
if args.amp.startswith("L"): amp_block(args.amp[1:], "l")
prof_store()
L(f"{P}_end")
I("s_endpgm")
loader_tail = out[LOADER_TAIL_MARK:]
del out[LOADER_TAIL_MARK:]

MUTE[0] = "p2" in args.diag or "fin" in args.diag
FIN = "fin" in args.diag
L(f"{P}_compute")
vAX = [2, 3]; vAW = [6, 7, 8]
ACC = 64
FA, FB = 160, 200
vOLD = 20
if args.prio: I(f"s_setprio {args.prio}")
I(f"s_and_b32 s{s_t0}, s{s_wave}, 1")
I(f"s_lshl_b32 s{s_t0}, s{s_t0}, 13")
I(f"s_add_u32 s{s_t0}, s{s_t0}, {SLOT0}")
I("v_and_b32 v10, 15, v1")
I("v_lshrrev_b32 v11, 1, v10")
I("v_lshrrev_b32 v12, 4, v1")
I(f"v_lshl_add_u32 v10, v10, 7, s{s_t0}")
I("v_xor_b32 v13, v12, v11")
I("v_and_b32 v11, 1, v12")
I(f"v_lshl_add_u32 v{vAX[0]}, v13, 4, v10")
I(f"v_xor_b32 v{vAX[1]}, 64, v{vAX[0]}")
I("v_lshrrev_b32 v10, 1, v12")
I("v_bfe_u32 v12, v1, 2, 2")
I("v_lshl_add_u32 v12, v11, 3, v12")
I("v_mul_u32_u24 v12, 192, v12")
I("v_mul_u32_u24 v13, 6144, v10")
I("v_and_b32 v10, 3, v1")
I("v_lshl_add_u32 v12, v10, 3, v12")
I(f"s_mov_b32 s{s_t1}, {SLOT0+16384}")
I(f"v_add3_u32 v12, v12, v13, s{s_t1}")
I("v_lshlrev_b32 v11, 5, v11")
I(f"s_bfe_u32 s{s_t0}, s{s_wave}, {1 | (1 << 16)}")
I(f"s_lshl_b32 s{s_t1}, s{s_t0}, 5")
I(f"s_lshl_b32 s{s_t2}, s{s_t0}, 6")
I(f"v_xor_b32 v13, s{s_t1}, v11")
I(f"v_add3_u32 v{vAW[0]}, v12, v13, s{s_t2}")
I(f"v_add_u32 v{vAW[2]}, 64, v{vAW[0]}")
I("v_xor_b32 v13, 32, v13")
I(f"s_lshl_b32 s{s_t2}, s{s_t0}, 7")
I(f"v_add3_u32 v{vAW[1]}, v12, v13, s{s_t2}")
I("v_mov_b32 v21, 0")
I(f"v_mov_b32 v22, {LDS_SCR}")
I("ds_write_b32 v22, v21")
I("ds_write_b32 v22, v21 offset:4")
I("ds_write_b32 v22, v21 offset:8")
I("ds_write_b32 v22, v21 offset:12")
I("v_mov_b32 v23, 1")
for r in range(0, 96, 2):
    I(f"v_mov_b64 v[{ACC+r}:{ACC+r+1}], 0")
I(f"s_cmp_eq_u32 s{s_t0}, 0")
I(f"s_cselect_b32 s{s_t1}, 2, 0")
I(f"s_movk_i32 s{s_t2}, 0x543")
I(f"s_cselect_b32 s{s_t2}, 0x210, s{s_t2}")
I(f"s_movk_i32 s{s_t3}, 0x103")
I(f"s_cselect_b32 s{s_t3}, 0x254, s{s_t3}")
I(f"s_cmp_eq_u32 s{s_sl}, 14")
I(f"s_cselect_b32 s{s_valid}, s{s_t1}, 3")
I(f"s_bitcmp1_b32 s{s_sl}, 0")
I(f"s_cselect_b32 s{s_t2}, s{s_t3}, s{s_t2}")
I(f"s_and_b32 s{s_t1}, s{s_wave}, 1")
I(f"s_lshl_b32 s{s_t3}, s{s_mt}, 1")
I(f"s_add_u32 s{s_t1}, s{s_t1}, s{s_t3}")
I(f"s_mul_i32 s{s_t1}, s{s_t1}, {2*HSTR}")
I(f"s_mul_i32 s{s_t3}, s{s_sl}, 6")
I(f"s_add_u32 s{s_t1}, s{s_t1}, s{s_t3}")
for t in range(3):
    I(f"s_bfe_u32 s{s_t3}, s{s_t2}, {4*t | (4 << 16)}")
    I(f"s_add_u32 s{s_t3}, s{s_t3}, s{s_t1}")
    I(f"s_lshl_b32 s{s_hoff+t}, s{s_t3}, 10")
I(f"s_mov_b32 s{s_k}, 0xbfb8aa3b")
I("v_lshlrev_b32 v9, 4, v1")
I(f"v_add_u32 v10, {HSTR*1024}, v9")
I(f"v_mov_b32 v56, s{s_k}"); I(f"v_mov_b32 v57, s{s_k}"); I("v_mov_b32 v58, 1.0"); I("v_mov_b32 v59, 1.0")
if not args.sflag:
    I(f"s_mul_i32 s{s_fl}, s{s_mt}, {4*HSTR*1024}")
    I(f"s_lshr_b32 s{s_t1}, s{s_sl}, 3")
    I(f"s_mul_i32 s{s_t1}, s{s_t1}, {HSTR*1024}")
    I(f"s_add_u32 s{s_fl}, s{s_fl}, s{s_t1}")
    I(f"s_and_b32 s{s_t1}, s{s_sl}, 7")
    I(f"s_lshl_b32 s{s_t1}, s{s_t1}, 7")
    I(f"s_add_u32 s{s_fl}, s{s_fl}, s{s_t1}")
    I(f"s_add_u32 s{s_fl}, s{s_fl}, {86*1024}")
srd_tail(sH, WS_REC); srd_tail(sO, OB)
I(f"s_mov_b32 s{s_cnt}, 0")
I(f"s_mov_b32 s{s_ring}, 1")
I(f"s_mov_b32 s{s_sx}, {SLOTSZ}")
I("s_waitcnt lgkmcnt(0)")
I(f"s_cmp_ge_u32 s{s_sl}, 15")
I(f"s_cbranch_scc1 {P}_c_idle")
I(f"s_cmp_eq_u32 s{s_valid}, 0")
I(f"s_cbranch_scc1 {P}_c_lazy")

def xr(fs, mt): return fs + 4 * mt
def wr_(fs, t, mat): return fs + 16 + 4 * (2 * t + mat)
def acc(t, mat, mt): return ACC + ((t * 2 + mat) * 4 + mt) * 4
def xrd(ks, fs, mt): return [f"ds_read_b128 v[{xr(fs,mt)}:{xr(fs,mt)+3}], v{vAX[ks]} offset:{2048*mt}"]
def wrd(ks, fs, t, mat):
    d = wr_(fs, t, mat)
    return [f"ds_read_b64_tr_b16 v[{d+2*h}:{d+2*h+1}], v{vAW[t]} offset:{ks*12288+mat*3072+h*768}" for h in range(2)]
def reads(ks, fs):
    if "noread" in args.diag: return ["s_nop 0"] * 16
    if "halfread" in args.diag:
        r = xrd(ks, fs, 0) + wrd(ks, fs, 0, 0) + xrd(ks, fs, 1) + wrd(ks, fs, 0, 1) + wrd(ks, fs, 1, 0)
        return r + ["s_nop 0"] * 8
    r = xrd(ks, fs, 0) + wrd(ks, fs, 0, 0) + xrd(ks, fs, 1) + wrd(ks, fs, 0, 1) + xrd(ks, fs, 2) + xrd(ks, fs, 3)
    for t in (1, 2):
        for mat in range(2): r += wrd(ks, fs, t, mat)
    return r
def mf(fs, t, mat, mt):
    a = acc(t, mat, mt); w = wr_(fs, t, mat); x = xr(fs, mt)
    return f"v_mfma_f32_16x16x32_bf16 v[{a}:{a+3}], v[{w}:{w+3}], v[{x}:{x+3}], v[{a}:{a+3}]"
def mfmas(fs):
    if "halfm" in args.diag:
        return [mf(fs, t, mat, mt) if mat == 0 else "s_nop 1" for t in range(3) for mat in range(2) for mt in range(4)]
    if args.morder == 1:
        return [mf(fs, t, mat, mt if mat == 0 else 3 - mt) for t in range(3) for mat in range(2) for mt in range(4)]
    if args.morder == 2:
        ws = [(t, mat) for t in range(3) for mat in range(2)]
        return [mf(fs, *w, mt) for mt in range(4) for w in (ws if mt % 2 == 0 else ws[::-1])]
    return [mf(fs, t, mat, mt) for t in range(3) for mat in range(2) for mt in range(4)]
if args.prew:
    for t in range(3):
        if t == 2:
            I(f"s_cmp_le_u32 s{s_valid}, 2"); I(f"s_cbranch_scc1 {P}_c_npw")
        for p_ in range(2):
            I(f"buffer_store_dwordx4 v[64:67], v{9+p_}, {srd(sH)}, s{s_hoff+t} offen sc1")
    L(f"{P}_c_npw")
if args.align:
    I(f"s_branch {P}_pg1"); out.append("@COLD@"); e(".p2align 12"); L(f"{P}_pg1")
if "b0" in args.diag: stamp(1)
I("s_barrier")
if "b0" not in args.diag: stamp(1)
r = reads(0, FA)
for x in r[:12]: I(x)
if not args.sflag:
    I(f"s_cmp_lg_u32 s{s_wave}, 4")
    I(f"s_cbranch_scc1 {P}_c_noold")
    I(f"buffer_load_dword v{vOLD}, v21, {srd(sH)}, s{s_fl} offen sc1")
    L(f"{P}_c_noold")
I("s_waitcnt lgkmcnt(8)")
for x in r[12:]: I(x)
L(f"{P}_c_loop")
m = mfmas(FA); r = reads(1, FB)
extra = [f"s_add_u32 s{s_ring}, s{s_ring}, 1", f"s_cmp_eq_u32 s{s_ring}, 3",
         f"s_cselect_b32 s{s_t0}, {-2*SLOTSZ & 0xffffffff}, s{s_sx}", f"s_cselect_b32 s{s_ring}, 0, s{s_ring}",
         f"s_add_u32 s{s_cnt}, s{s_cnt}, 1", None]
upd = [f"v_add_u32 v{r}, s{s_t0}, v{r}" for r in vAX + vAW]
need = {0: 8, 8: 10, 12: 12, 16: 14, 20: 16} if args.morder < 2 else {0: 6, 2: 10, 3: 12, 4: 14, 5: 16}
for i in range(24):
    if i in need: I(f"s_waitcnt lgkmcnt({min(15, 16 - need[i] + min(i, 16))})")
    I(m[i])
    if i < 16: I(r[i])
    elif i < 19:
        for x in extra[2*(i-16):2*(i-16)+2]:
            if x: I(x)
    else: I(upd[i-19])
I("s_waitcnt lgkmcnt(0)")
m = mfmas(FB); r = reads(0, FA)
for i in range(24):
    if i == args.barpos: I("s_barrier")
    I(m[i])
    if i >= args.barpos:
        for x in r[(i - args.barpos) * args.rpg:(i - args.barpos + 1) * args.rpg]: I(x)
assert (24 - args.barpos) * args.rpg >= 16
I(f"s_cmp_lt_u32 s{s_cnt}, 7")
I(f"s_cbranch_scc1 {P}_c_loop")
stamp(2)
T = 32
def epi(t, p):
    tm = T + p * 12; o = tm + 8
    g = [acc(t, 0, 2*p + (q >> 2)) + (q & 3) for q in range(8)]
    u = [acc(t, 1, 2*p + (q >> 2)) + (q & 3) for q in range(8)]
    v = []
    if 2 * t + p >= args.pkfrom:
        pr = lambda r: f"v[{r}:{r+1}]"
        for q in range(0, 8, 2): v.append(f"v_pk_mul_f32 {pr(tm+q)}, {pr(g[q])}, v[56:57]")
        for q in range(8): v.append(f"v_exp_f32 v{tm+q}, v{tm+q}")
        for q in range(0, 8, 2): v.append(f"v_pk_add_f32 {pr(tm+q)}, {pr(tm+q)}, v[58:59]")
        for q in range(8): v.append(f"v_rcp_f32 v{tm+q}, v{tm+q}")
        for q in range(0, 8, 2): v.append(f"v_pk_mul_f32 {pr(tm+q)}, {pr(tm+q)}, {pr(g[q])}")
        for q in range(0, 8, 2): v.append(f"v_pk_mul_f32 {pr(tm+q)}, {pr(tm+q)}, {pr(u[q])}")
    else:
        for q in range(8): v.append(f"v_mul_f32 v{tm+q}, s{s_k}, v{g[q]}")
        for q in range(8): v.append(f"v_exp_f32 v{tm+q}, v{tm+q}")
        for q in range(8): v.append(f"v_add_f32 v{tm+q}, 1.0, v{tm+q}")
        for q in range(8): v.append(f"v_rcp_f32 v{tm+q}, v{tm+q}")
        for q in range(8): v.append(f"v_mul_f32 v{tm+q}, v{tm+q}, v{g[q]}")
        for q in range(8): v.append(f"v_mul_f32 v{tm+q}, v{tm+q}, v{u[q]}")
    for q in (0, 2, 1, 3): v.append(f"v_cvt_pk_bf16_f32 v{o+q}, v{tm+2*q}, v{tm+2*q+1}")
    v.append(("swap", o))
    v.append(("store", t, p, o))
    return v
def emit_v(x):
    if isinstance(x, tuple) and x[0] == "swap":
        o = x[1]
        I(f"v_permlane16_swap_b32 v{o}, v{o+2}")
        I("s_nop 0")
        I(f"v_permlane16_swap_b32 v{o+1}, v{o+3}")
    elif isinstance(x, tuple):
        _, t, p, o = x
        if t == 2:
            I(f"s_cmp_le_u32 s{s_valid}, 2")
            I(f"s_cbranch_scc1 {P}_c_ns{t}{p}")
        I(f"buffer_store_dwordx4 v[{o}:{o+3}], v{9+p}, {srd(sH)}, s{s_hoff+t} offen {'' if 'hplain' in args.diag else 'sc1'}")
        if t == 2: L(f"{P}_c_ns{t}{p}")
    else:
        I(x)
blocks = [(t, p) for t in range(3) for p in range(2)]
def bmf(t, p, fs): return [mf(fs, t, mat, 2*p + j) for mat in range(2) for j in range(2)]
rB = reads(1, FB)
I("s_waitcnt lgkmcnt(8)")
pre = bmf(0, 0, FA) + bmf(0, 1, FA)
for i in range(8):
    I(pre[i])
    if i == 3: I("s_waitcnt lgkmcnt(6)")
    I(rB[2*i])
    if i == 7: I("s_waitcnt lgkmcnt(9)")
    I(rB[2*i+1])
I("s_waitcnt lgkmcnt(8)")
seq = []
for bi, (t, p) in enumerate(blocks):
    x = bmf(t, p, FB) if bi < 2 else bmf(t, p, FA) + bmf(t, p, FB)
    seq += [(y, None) for y in x[:-1]] + [(x[-1], bi)]
vq = []; nxt = 0; since = {}
for i, (mi, done) in enumerate(seq):
    if i == 8:
        I("s_waitcnt lgkmcnt(0)")
        I("s_mov_b64 exec, 1"); I("ds_add_u32 v22, v23 offset:8"); I("s_mov_b64 exec, -1")
    I(mi)
    for k in since: since[k] += 1
    if done is not None: since[done] = 0
    n = 0
    while n < args.gapc:
        if not vq:
            if nxt in since and since[nxt] >= 4 and nxt < args.pkfrom:
                if since[nxt] < 9: I(f"s_nop {9 - since[nxt]}")
                vq += epi(*blocks[nxt]); nxt += 1
            else:
                break
        x = vq.pop(0)
        emit_v(x); n += 8 if (isinstance(x, tuple) or "exp" in x or "rcp" in x) else 4
        for k in since: since[k] += 1
while vq or nxt < 6:
    if not vq:
        if since[nxt] < 9: I(f"s_nop {9 - since[nxt]}")
        if nxt == args.stopat: I("ds_write_b32 v22, v23 offset:12")
        vq += epi(*blocks[nxt]); nxt += 1
    emit_v(vq.pop(0))
    for k in since: since[k] += 1
if args.stopat == 6: I("ds_write_b32 v22, v23 offset:12")
L(f"{P}_c_epidone")
if args.post:
    I("s_mov_b64 exec, 1"); I("ds_add_u32 v22, v23 offset:4"); I("s_mov_b64 exec, -1")
stamp(3)
vB = [[10, 11], [12, 13], [14, 15]]
WF = 128; HR = 160; R = args.hring
I("v_lshrrev_b32 v16, 4, v1")
I("v_lshrrev_b32 v17, 5, v1")
I("v_bfe_u32 v18, v1, 2, 2")
I("v_lshl_add_u32 v17, v17, 3, v18")
I("v_lshlrev_b32 v17, 7, v17")
I("v_and_b32 v16, 1, v16")
I("v_and_b32 v19, 1, v1")
I("v_lshl_add_u32 v16, v19, 1, v16")
I("v_lshlrev_b32 v18, 1, v18")
I("v_and_b32 v18, 4, v18")
I(f"s_bfe_u32 s{s_t0}, s{s_wave}, {1 | (1 << 16)}")
I(f"s_lshl_b32 s{s_t1}, s{s_t0}, 2")
I(f"v_xor_b32 v18, s{s_t1}, v18")
I("v_xor_b32 v16, v16, v18")
I("v_lshl_add_u32 v17, v16, 4, v17")
I("v_bfe_u32 v19, v1, 1, 1")
I("v_lshl_add_u32 v17, v19, 3, v17")
I(f"s_lshl_b32 s{s_t1}, s{s_t0}, 11")
I(f"v_add_u32 v{vB[0][0]}, s{s_t1}, v17")
I(f"v_xor_b32 v{vB[0][1]}, 64, v{vB[0][0]}")
for sg in (1, 2):
    for nb in range(2):
        I(f"v_add_u32 v{vB[sg][nb]}, {sg*65536}, v{vB[0][nb]}")
I("s_waitcnt vmcnt(0)")
if not args.sflag: I(f"v_add_u32 v{vOLD}, 1, v{vOLD}")
I("s_barrier")
if not args.sflag:
    I(f"s_cmp_lg_u32 s{s_wave}, 4")
    I(f"s_cbranch_scc1 {P}_c_p2")
    I(f"s_cmp_ge_u32 s{s_sl}, 15")
    I(f"s_cbranch_scc1 {P}_c_p2")
    I("s_mov_b64 exec, 1")
    I(f"buffer_store_dword v{vOLD}, v21, {srd(sH)}, s{s_fl} offen sc1")
    I("s_mov_b64 exec, -1")
L(f"{P}_c_p2")
stamp(4)
def wreads(u, dst):
    a = unit_addr(u); sg = a >> 16; off = a & 0xffff
    return [f"ds_read_b64_tr_b16 v[{dst+4*nb+2*h}:{dst+4*nb+2*h+1}], v{vB[sg][nb]} offset:{off+h*512}" for nb in range(2) for h in range(2)]
NW, NPRE, PRE, TN = 3, 4, 96, args.tailn
def wdst(u):
    if u < 4: return PRE + 8 * u
    if u >= 43 - TN: return PRE + 8 * (u - (43 - TN))
    return WF + 8 * (u % NW)
for u in range(NPRE):
    if u == 3: I("s_waitcnt lgkmcnt(8)")
    for r in wreads(u, wdst(u)): I(r)
I("s_waitcnt lgkmcnt(0)")
I("s_barrier")
decode2()
I(f"s_bfe_u32 s{s_t0}, s{s_wave}, {1 | (1 << 16)}")
I(f"s_and_b32 s{s_t1}, s{s_wave}, 1")
I(f"s_lshl_b32 s{s_t2}, s{s_rb}, 1")
I(f"s_add_u32 s{s_t1}, s{s_t1}, s{s_t2}")
I(f"s_mul_i32 s{s_t2}, s{s_t1}, {HSTR}")
I(f"s_mul_i32 s{s_t3}, s{s_t0}, 43")
I(f"s_add_u32 s{s_t2}, s{s_t2}, s{s_t3}")
I(f"s_lshl_b32 s{s_pbeg}, s{s_t2}, 10")
I(f"s_add_u32 s{s_pend}, s{s_pbeg}, {43*1024}")
I(f"s_lshl_b32 s{s_t2}, s{s_rot2}, 10")
I(f"s_add_u32 s{s_p}, s{s_pbeg}, s{s_t2}")
I("v_and_b32 v16, 31, v1")
I("v_lshlrev_b32 v16, 10, v16")
I("v_and_b32 v17, 32, v1")
I(f"s_lshl_b32 s{s_t1}, s{s_t1}, 15")
I(f"s_lshl_b32 s{s_t2}, s{s_cb}, 7")
I(f"s_add_u32 s{s_t1}, s{s_t1}, s{s_t2}")
I(f"s_lshl_b32 s{s_t2}, s{s_t0}, 6")
I(f"s_add_u32 s{s_t1}, s{s_t1}, s{s_t2}")
I(f"v_add3_u32 v16, v16, v17, s{s_t1}")
I(f"s_and_b32 s{s_t1}, s{s_wave}, 3")
I(f"s_lshl_b32 s{s_t1}, s{s_t1}, 12")
I(f"s_xor_b32 s{s_t2}, s{s_t1}, {2 << 12}")
I(f"s_add_u32 s{s_t1}, s{s_t1}, {XCH}")
I(f"s_add_u32 s{s_t2}, s{s_t2}, {XCH}")
I(f"v_add_u32 v17, s{s_t1}, v9")
I(f"v_add_u32 v18, s{s_t2}, v9")
if args.otr:
    I("v_and_b32 v25, 31, v1")
    I(f"s_and_b32 s{s_t1}, s{s_wave}, 1")
    I(f"s_lshl_b32 s{s_t1}, s{s_t1}, 12")
    I(f"s_add_u32 s{s_t1}, s{s_t1}, {OTR}")
    I(f"v_lshl_add_u32 v26, v25, 7, s{s_t1}")
    I("v_lshrrev_b32 v27, 5, v1")
    I(f"s_lshl_b32 s{s_t2}, s{s_t0}, 1")
    I(f"v_add_lshl_u32 v27, v27, s{s_t2}, 1")
    I("v_and_b32 v25, 7, v25")
    I("v_xor_b32 v27, v27, v25")
    I("v_lshl_add_u32 v25, v27, 4, v26")
    I("v_xor_b32 v26, 16, v25")
    if args.otr == 1:
        I("v_lshrrev_b32 v27, 2, v1")
        I("v_and_b32 v28, 3, v1")
        I(f"s_lshl_b32 s{s_t2}, s{s_t0}, 2")
        I(f"v_add_u32 v28, s{s_t2}, v28")
        rowstep = 16
    else:
        I("v_lshrrev_b32 v27, 3, v1")
        I(f"s_lshl_b32 s{s_t2}, s{s_t0}, 4")
        I(f"v_add_u32 v27, s{s_t2}, v27")
        I("v_and_b32 v28, 7, v1")
        rowstep = 8
    I(f"s_and_b32 s{s_t2}, s{s_wave}, 1")
    I(f"s_lshl_b32 s{s_t3}, s{s_rb}, 1")
    I(f"s_add_u32 s{s_t2}, s{s_t2}, s{s_t3}")
    I(f"s_lshl_b32 s{s_t2}, s{s_t2}, 15")
    I(f"s_lshl_b32 s{s_t3}, s{s_cb}, 7")
    I(f"s_add_u32 s{s_t2}, s{s_t2}, s{s_t3}")
    I(f"v_lshl_add_u32 v16, v27, 10, s{s_t2}")
    I("v_lshl_add_u32 v16, v28, 4, v16")
    I(f"v_add_u32 v29, {rowstep*1024}, v16")
    I("v_and_b32 v30, 7, v27")
    I("v_xor_b32 v28, v28, v30")
    I(f"v_lshl_add_u32 v27, v27, 7, s{s_t1}")
    I("v_lshl_add_u32 v27, v28, 4, v27")
for r in range(0, 32, 2):
    I(f"v_mov_b64 v[{ACC+r}:{ACC+r+1}], 0")
if args.align:
    I(f"s_branch {P}_c_spin"); e(".p2align 12")
L(f"{P}_c_spin")
I("ds_read_b32 v24, v22")
I("s_waitcnt lgkmcnt(0)")
I(f"v_readfirstlane_b32 s{s_t0}, v24")
I("s_nop 0")
I(f"s_cmp_eq_u32 s{s_t0}, 0")
I(f"s_cbranch_scc1 {P}_c_spin")
stamp(5)
if "p2" in args.diag: stamp(1, True)
def hload(s):
    b = HR + 4 * (s % R)
    return [f"buffer_load_dwordx4 v[{b}:{b+3}], v9, {srd(sH)}, s{s_p} offen sc1",
            f"s_add_u32 s{s_p}, s{s_p}, 1024",
            f"s_cmp_eq_u32 s{s_p}, s{s_pend}",
            f"s_cselect_b32 s{s_p}, s{s_pbeg}, s{s_p}"]
for s in range(args.hpro):
    for x in hload(s): I(x)
issued = args.hpro
def mm2(s, nb):
    hb = HR + 4 * (s % R); wd = wdst(s)
    return f"v_mfma_f32_32x32x16_bf16 v[{ACC+16*nb}:{ACC+16*nb+15}], v[{wd+4*nb}:{wd+4*nb+3}], v[{hb}:{hb+3}], v[{ACC+16*nb}:{ACC+16*nb+15}]"
for s in range(43):
    u = s + 2
    young = 1 if NPRE <= s + 1 < 43 else 0
    I(f"s_waitcnt vmcnt({issued - s - 1}) lgkmcnt({4*young})")
    if "p2" in args.diag and s in (0, 5, 11, 21, 32, 42): stamp({0:2, 5:3, 11:4, 21:5, 32:6, 42:7}[s], True)
    if u == wdone: I("s_barrier")
    wr = wreads(u, wdst(u)) if NPRE <= u < 43 else []
    I(mm2(s, 1))
    for r in wr[:2]: I(r)
    if issued < 43 and issued - R < s:
        for x in hload(issued): I(x)
        issued += 1
    if s < 43 - TN: I(mm2(s, 0))
    for r in wr[2:]: I(r)
    if issued < 43 and issued - R < s and issued - s - 1 < R - 1:
        for x in hload(issued): I(x)
        issued += 1
stamp(6)
if FIN: stamp(2, True)
tl = [mm2(s, 0) for s in range(43 - TN, 43)]
if tl: I(tl.pop(0))
I("s_nop 7")
I("s_nop 3")
for q in range(4):
    I(f"ds_write_b128 v17, v[{ACC+16+4*q}:{ACC+19+4*q}] offset:{q*1024}")
    if tl and q % 2 == 1: I(tl.pop(0))
for x in tl: I(x)
I("s_waitcnt lgkmcnt(0)")
if FIN: stamp(3, True)
I("s_barrier")
if FIN: stamp(4, True)
for q in range(4):
    I(f"ds_read_b128 v[{128+4*q}:{131+4*q}], v18 offset:{q*1024}")
I("s_nop 5")
for q in range(4):
    I(f"s_waitcnt lgkmcnt({3-q + (1 if args.otr and q >= 2 else 0)})")
    for p in range(2):
        I(f"v_pk_add_f32 v[{ACC+4*q+2*p}:{ACC+4*q+2*p+1}], v[{ACC+4*q+2*p}:{ACC+4*q+2*p+1}], v[{128+4*q+2*p}:{129+4*q+2*p}]")
    for p in range(2):
        I(f"v_cvt_pk_bf16_f32 v{144+2*q+p}, v{ACC+4*q+2*p}, v{ACC+4*q+2*p+1}")
    if q == 1:
        if args.otr: I("ds_write_b128 v25, v[144:147]")
        else: I(f"buffer_store_dwordx4 v[144:147], v16, {srd(sO)}, 0 offen {args.ost}")
if args.otr:
    I("ds_write_b128 v26, v[148:151]")
    if args.otr == 2:
        I("s_waitcnt lgkmcnt(0)")
        I("s_barrier")
        if FIN: stamp(5, True)
    I("ds_read_b128 v[152:155], v27")
    I(f"ds_read_b128 v[156:159], v27 offset:{rowstep*128}")
    I("s_waitcnt lgkmcnt(1)")
    I(f"buffer_store_dwordx4 v[152:155], v16, {srd(sO)}, 0 offen {args.ost}")
    I("s_waitcnt lgkmcnt(0)")
    I(f"buffer_store_dwordx4 v[156:159], v29, {srd(sO)}, 0 offen {args.ost}")
else:
    I(f"buffer_store_dwordx4 v[148:151], v16, {srd(sO)}, 0 offen offset:16 {args.ost}")
if "dirty" in args.diag:
    n = int(re.search(r"dirty(\d+)", args.diag).group(1))
    I(f"s_mov_b32 s{sH+2}, {64 << 20}")
    I(f"s_lshl_b32 s{s_t0}, s2, 2")
    I(f"s_add_u32 s{s_t0}, s{s_t0}, s{s_wave}")
    I(f"s_mul_i32 s{s_t0}, s{s_t0}, {n*1024}")
    I(f"s_add_u32 s{s_t0}, s{s_t0}, {16 << 20}")
    for i in range(n):
        I(f"buffer_store_dwordx4 v[144:147], v9, {srd(sH)}, s{s_t0} offen")
        I(f"s_add_u32 s{s_t0}, s{s_t0}, 1024")
if FIN: stamp(6, True)
if STAMPS: I("s_waitcnt vmcnt(0)")
stamp(7, True)
if args.amp and args.amp != "none" and not args.amp.startswith("L"): amp_block(args.amp, "c")
prof_store()
I("s_endpgm")
COLD_MARK = len(out)
L(f"{P}_c_lazy")
for i in range(8): I("s_barrier")
I("s_mov_b64 exec, 1"); I("ds_add_u32 v22, v23 offset:8"); I("s_mov_b64 exec, -1")
I(f"s_branch {P}_c_epidone")
L(f"{P}_c_idle")
srd_tail(sX, XB); srd_tail(sW2, W2B)
prefetch_jobs()
I(f"s_branch {P}_c_epidone")
out += loader_tail
if args.align:
    cold = out[COLD_MARK:]; del out[COLD_MARK:]
    i = out.index("@COLD@"); out[i:i+1] = cold
L(f"{P}_codeend")

e('.section .rodata,"a"')
e(".p2align 6")
e(f".amdhsa_kernel {label}")
for l in ("next_free_vgpr 256", "next_free_sgpr 102", "accum_offset 256", "group_segment_fixed_size 0", "kernarg_size 56",
          "user_sgpr_count 2", "user_sgpr_kernarg_segment_ptr 1", "system_sgpr_workgroup_id_x 1", "float_denorm_mode_32 3"):
    e("  .amdhsa_" + l)
e(".end_amdhsa_kernel")

text = "\n".join(out) + "\n"
def symbols(t):
    with tempfile.TemporaryDirectory() as d:
        open(d + "/k.s", "w").write(t)
        subprocess.run(["clang", "-x", "assembler", "-target", "amdgcn-amd-amdhsa", "-mcpu=gfx950", "-c", d + "/k.s", "-o", d + "/k.o"], check=True)
        sym = subprocess.run(["llvm-objdump", "-t", d + "/k.o"], capture_output=True, text=True).stdout
    return {m.group(2): int(m.group(1), 16) for m in re.finditer(r"^([0-9a-f]{16}) .*\s(\S+)$", sym, re.M)}
a = symbols(text.replace("@CODELINES@", "100"))
assert a[f"{P}_codeend"] < 16384
sys.stderr.write(f"code {a[f'{P}_codeend']} B: loop@{a[f'{P}_l_loop']} compute@{a[f'{P}_compute']} cloop@{a[f'{P}_c_loop']} p2@{a[f'{P}_c_p2']} ltail@{a[f'{P}_l_tail']}\n")
open(args.o, "w").write(text)
```

```python
import sys, argparse, subprocess, tempfile, re

ap = argparse.ArgumentParser()
ap.add_argument("-o", default="standalone__glu_gated_swiglu__prompt.s")
ap.add_argument("--prof", action="store_true")
ap.add_argument("--cyc", action="store_true")
ap.add_argument("--amp", default="")
ap.add_argument("--diag", default="")
ap.add_argument("--xrot", type=int, default=1)
ap.add_argument("--hring", type=int, default=12)
ap.add_argument("--hpro", type=int, default=10)
ap.add_argument("--sleep", type=int, default=1)
ap.add_argument("--codepf", type=int, default=1)
ap.add_argument("--prio", type=int, default=1)
ap.add_argument("--atb6", type=int, default=8)
ap.add_argument("--kmin", type=int, default=20)
ap.add_argument("--stopat", type=int, default=-1)
ap.add_argument("--pace2", type=int, default=10)
ap.add_argument("--pace", type=int, default=13)
ap.add_argument("--barpos", type=int, default=16)
ap.add_argument("--rpg", type=int, default=2)
ap.add_argument("--gapc", type=int, default=8)
ap.add_argument("--pkfrom", type=int, default=1)
ap.add_argument("--tailn", type=int, default=3)
ap.add_argument("--jobx3", type=int, default=0)
ap.add_argument("--job3", type=int, default=1)
ap.add_argument("--jobM", type=int, default=0)
ap.add_argument("--jobX", type=int, default=1)
ap.add_argument("--otr", type=int, default=1)
ap.add_argument("--ost", default="sc1")
ap.add_argument("--prew", type=int, default=0)
ap.add_argument("--align", type=int, default=1)
ap.add_argument("--lprio", type=int, default=0)
ap.add_argument("--wfirst", type=int, default=1)
ap.add_argument("--sprio", type=int, default=0)
ap.add_argument("--dlate", type=int, default=1)
ap.add_argument("--trk", type=int, default=0)
ap.add_argument("--post", type=int, default=10)
ap.add_argument("--sflag", type=int, default=1)
ap.add_argument("--pace3", type=int, default=0)
ap.add_argument("--morder", type=int, default=1)
ap.add_argument("--fsleep", type=int, default=0)
ap.add_argument("--tlbw", type=int, default=0)
ap.add_argument("--map", type=int, default=0)
ap.add_argument("--burst", type=int, default=2)
ap.add_argument("--stouch", type=int, default=0)
ap.add_argument("--wb1", type=int, default=0)
args = ap.parse_args()

NAME = "standalone__glu_gated_swiglu__prompt"
out = []
def e(s=""): out.append(s)
def I(s): out.append("    " + s)
def L(s): out.append(s + ":")

S, D, F = 2048, 512, 1376
XB, WB, W2B, OB = S * D * 2, D * F * 2, F * D * 2, S * D * 2
HSTR = 87
WS_REC = 8 << 20
PROF_OFF = 7 << 20
SLOT0, SLOTSZ, LDS_SCR, LDS_TOTAL = 36864 + 40960, 40960, 159744, 163840
def unit_addr(u): return (u % 39) * 4096
XCH = 4 * 4096
OTR = 8 * 4096

sX, sW1, sW3, sW2, sH, sO, sD = 20, 24, 28, 32, 36, 40, 44
s_wave, s_mg4, s_sh, s_mt, s_sl, s_rb, s_cb = 48, 49, 50, 51, 52, 53, 54
s_t0, s_t1, s_t2, s_t3 = 55, 56, 57, 58
s_cnt, s_kst, s_sx, s_sw, s_ring = 59, 60, 61, 62, 63
s_lx, s_lw, s_rot2, s_fl = 64, 65, 66, 67
s_k = 68
s_xb, s_wb, s_lu = 69, 70, 71
s_hoff = 72
s_p, s_pend, s_pbeg, s_valid = 78, 79, 80, 81
s_u, s_lim = 75, 76
s_prof = 84
def srd(r): return f"s[{r}:{r+3}]"
STAMPS = args.prof or args.amp
MUTE = [False]
def stamp(i, force=False):
    if "clk" in args.diag:
        m = {1: 0, 2: 1, 4: 2, 5: 3}
        if i in m:
            I(f"s_memrealtime s[{s_prof+2*m[i]}:{s_prof+2*m[i]+1}]"); I(f"s_memtime s[{s_prof+8+2*m[i]}:{s_prof+9+2*m[i]}]")
        return
    if MUTE[0] and not force: return
    if STAMPS: I(f"{'s_memtime' if args.cyc else 's_memrealtime'} s[{s_prof+2*i}:{s_prof+2*i+1}]")
def srd_tail(r, nbytes):
    I(f"s_mov_b32 s{r+2}, {nbytes}")
    I(f"s_mov_b32 s{r+3}, 0x20000")
def prof_store():
    if not args.prof: return
    I("s_waitcnt lgkmcnt(0)")
    I(f"s_lshl_b32 s{s_t0}, s2, 3")
    I(f"s_xor_b32 s{s_t1}, s{s_wave}, 4")
    I(f"s_add_u32 s{s_t0}, s{s_t0}, s{s_t1}")
    I(f"s_lshl_b32 s{s_t0}, s{s_t0}, 5")
    I(f"s_add_u32 s{s_t0}, s{s_t0}, {PROF_OFF}")
    for i in range(8): I(f"v_mov_b32 v{240+i}, s{s_prof+2*i}")
    I("v_mov_b32 v248, 0")
    I("s_mov_b64 exec, 1")
    I(f"buffer_store_dwordx4 v[240:243], v248, {srd(sH)}, s{s_t0} offen")
    I(f"buffer_store_dwordx4 v[244:247], v248, {srd(sH)}, s{s_t0} offen offset:16")
    I("s_mov_b64 exec, -1")
P = "K"
def amp_block(spec, tag):
    ai, aj = [int(t) for t in spec.split(",")]
    I("s_waitcnt lgkmcnt(0)")
    I(f"s_sub_u32 s{s_t0}, s{s_prof+2*aj}, s{s_prof+2*ai}")
    I(f"s_cmp_eq_u32 s{s_prof+2*ai}, 0")
    I(f"s_cselect_b32 s{s_t0}, 0, s{s_t0}")
    I(f"s_cmp_eq_u32 s{s_prof+2*aj}, 0")
    I(f"s_cselect_b32 s{s_t0}, 0, s{s_t0}")
    I(f"s_min_u32 s{s_t0}, s{s_t0}, 20000")
    I(f"s_mul_i32 s{s_t0}, s{s_t0}, 10")
    I("s_memrealtime s[82:83]")
    I("s_waitcnt lgkmcnt(0)")
    I(f"s_mov_b32 s{s_t1}, s82")
    L(f"{P}_amp{tag}")
    I("s_memrealtime s[82:83]")
    I("s_waitcnt lgkmcnt(0)")
    I(f"s_sub_u32 s{s_t2}, s82, s{s_t1}")
    I(f"s_cmp_lt_u32 s{s_t2}, s{s_t0}")
    I(f"s_cbranch_scc1 {P}_amp{tag}")

def kst_init():
    if args.map and args.xrot == 1:
        I(f"s_lshl_b32 s{s_kst}, s{s_sh}, 2")
        I(f"s_xor_b32 s{s_kst}, s{s_kst}, s{s_mg4}")
        I(f"s_and_b32 s{s_kst}, s{s_kst}, 4")
    elif args.map and args.xrot == 4:
        I(f"s_lshr_b32 s{s_kst}, s{s_mg4}, 1")
        I(f"s_lshl_b32 s{s_cnt}, s{s_sh}, 2")
        I(f"s_add_u32 s{s_kst}, s{s_kst}, s{s_cnt}")
        I(f"s_and_b32 s{s_kst}, s{s_kst}, 7")
    elif args.xrot == 1:
        I(f"s_add_u32 s{s_kst}, s2, s{s_sh}")
        I(f"s_and_b32 s{s_kst}, s{s_kst}, 1")
        I(f"s_lshl_b32 s{s_kst}, s{s_kst}, 2")
    elif args.xrot == 4:
        I(f"s_lshl_b32 s{s_kst}, s{s_sh}, 1")
        I(f"s_add_u32 s{s_kst}, s{s_kst}, s2")
        I(f"s_and_b32 s{s_kst}, s{s_kst}, 3")
        I(f"s_lshl_b32 s{s_kst}, s{s_kst}, 1")
    elif args.xrot == 5:
        I(f"s_lshl_b32 s{s_kst}, s{s_sh}, 1")
        I(f"s_add_u32 s{s_kst}, s{s_kst}, s2")
        I(f"s_and_b32 s{s_kst}, s{s_kst}, 3")
        I(f"s_add_u32 s{s_cnt}, s{s_mt}, s{s_sl}")
        I(f"s_and_b32 s{s_cnt}, s{s_cnt}, 1")
        I(f"s_lshl_b32 s{s_cnt}, s{s_cnt}, 2")
        I(f"s_add_u32 s{s_kst}, s{s_kst}, s{s_cnt}")
    elif args.xrot == 6:
        I(f"s_add_u32 s{s_kst}, s2, s{s_sh}")
        I(f"s_and_b32 s{s_kst}, s{s_kst}, 1")
        I(f"s_lshl_b32 s{s_kst}, s{s_kst}, 1")
        I(f"s_add_u32 s{s_cnt}, s{s_mt}, s{s_sl}")
        I(f"s_and_b32 s{s_cnt}, s{s_cnt}, 1")
        I(f"s_lshl_b32 s{s_cnt}, s{s_cnt}, 2")
        I(f"s_add_u32 s{s_kst}, s{s_kst}, s{s_cnt}")
    else:
        I(f"s_mov_b32 s{s_kst}, 0")

def decode2():
    I(f"s_lshl_b32 s{s_t0}, s{s_sh}, 1")
    I(f"s_add_u32 s{s_t0}, s{s_t0}, s{s_mg4}")
    I(f"s_lshl_b32 s{s_t0}, s{s_t0}, 1")
    I(f"s_lshr_b32 s{s_t1}, s2, 6")
    I(f"s_add_u32 s{s_rb}, s{s_t0}, s{s_t1}")
    I(f"s_bfe_u32 s{s_cb}, s2, {3 | (3 << 16)}")
    I(f"s_mul_i32 s{s_rot2}, s{s_t1}, 11")

label = NAME + "_kernel"
e(f"; @launch grid=(256,1,1) block=(512,1,1) lds={LDS_TOTAL}")
e('.amdgcn_target "amdgcn-amd-amdhsa--gfx950"')
e(".text")
e(f".globl {label}")
e(".p2align 8")
e(f".type {label},@function")
L(label)
I("s_cmp_ge_u32 s2, 256")
I(f"s_cbranch_scc1 {P}_end")
for r, off in ((sX, 0), (sW1, 8), (sW3, 16), (sW2, 24), (sO, 32), (sD, 40), (sH, 48)):
    I(f"s_load_dwordx2 s[{r}:{r+1}], s[0:1], {off}")
if STAMPS:
    for i in range(8): I(f"s_mov_b32 s{s_prof+2*i}, 0")
if "delay" in args.diag:
    for i in range(int(re.search(r"delay(\d+)", args.diag).group(1))): I("s_sleep 18")
stamp(0)
I("v_lshrrev_b32 v2, 6, v0")
I("v_and_b32 v1, 63, v0")
I(f"v_readfirstlane_b32 s{s_wave}, v2")
if args.map:
    I(f"s_and_b32 s{s_mg4}, s2, 6")
    I(f"s_lshl_b32 s{s_mg4}, s{s_mg4}, 1")
else:
    I(f"s_and_b32 s{s_mg4}, s2, 3")
    I(f"s_lshl_b32 s{s_mg4}, s{s_mg4}, 2")
I(f"s_cmp_lt_u32 s{s_wave}, 4")
I(f"s_cbranch_scc1 {P}_dec")
if args.codepf:
    I("s_getpc_b64 s[18:19]")
    L(f"{P}_pc")
    I("v_bfe_u32 v60, v0, 1, 7")
    I("v_lshlrev_b32 v60, 7, v60")
    I(f"v_min_u32 v60, {P}_codeend-{P}_pc-4, v60")
    I("global_load_dword v61, v60, s[18:19]")
L(f"{P}_dec")
I(f"s_bfe_u32 s{s_sh}, s2, {(0 if args.map else 2) | (1 << 16)}")
I(f"s_bfe_u32 s{s_t2}, s2, {3 | (2 << 16)}")
I(f"s_lshr_b32 s{s_t3}, s2, 5")
I(f"s_add_u32 s{s_mt}, s{s_mg4}, s{s_t2}")
I(f"s_mul_i32 s{s_sl}, s{s_sh}, 7")
I(f"s_add_u32 s{s_sl}, s{s_sl}, s{s_t3}")
I(f"s_cmp_lg_u32 s{s_t3}, 7")
I(f"s_cbranch_scc1 {P}_dec2")
I(f"s_lshl_b32 s{s_t0}, s{s_sh}, 1")
I(f"s_and_b32 s{s_t1}, s{s_t2}, 1")
I(f"s_add_u32 s{s_mt}, s{s_mg4}, s{s_t0}")
I(f"s_add_u32 s{s_mt}, s{s_mt}, s{s_t1}")
I(f"s_lshr_b32 s{s_sl}, s{s_t2}, 1")
I(f"s_add_u32 s{s_sl}, s{s_sl}, 14")
L(f"{P}_dec2")
I(f"s_cmp_ge_u32 s{s_wave}, 4")
I(f"s_cbranch_scc1 {P}_compute")

MUTE[0] = "stages" in args.diag
vX = [2, 3, 4, 5]; vW = [6, 7, 8]; vW2 = 13
vFA, vFS, vFN = 20, 21, 22
if args.lprio: I(f"s_setprio {args.lprio}")
I("v_lshrrev_b32 v14, 3, v1")
I("v_lshrrev_b32 v15, 4, v1")
I("v_and_b32 v16, 7, v1")
I("v_xor_b32 v15, v15, v16")
I("v_lshlrev_b32 v14, 10, v14")
I(f"v_lshl_add_u32 v{vX[0]}, v15, 4, v14")
I(f"v_xor_b32 v{vX[1]}, 64, v{vX[0]}")
I(f"v_add_u32 v{vX[1]}, 7168, v{vX[1]}")
I(f"v_add_u32 v{vX[2]}, 14336, v{vX[0]}")
I(f"v_add_u32 v{vX[3]}, 14336, v{vX[1]}")
I(f"s_bitcmp1_b32 s{s_sl}, 0")
I(f"s_cselect_b32 s{s_t0}, -64, 64")
I(f"s_cselect_b32 s{s_t1}, 128, 0")
I(f"s_cmp_eq_u32 s{s_sl}, 14")
I(f"s_cselect_b32 s{s_t0}, {1 << 21}, s{s_t0}")
I(f"s_mul_i32 s{s_t2}, s{s_t0}, -3")
I(f"s_add_u32 s{s_t2}, s{s_t2}, 2752")
I("v_lshrrev_b32 v14, 2, v1")
I("v_and_b32 v15, 3, v1")
I(f"v_lshl_add_u32 v15, v15, 4, s{s_t1}")
I("v_and_b32 v16, 32, v1")
for j in range(3):
    if j: I(f"v_add_u32 v14, 16, v14")
    I("v_mul_u32_u24 v17, 43, v14")
    if j == 0: I("v_mov_b32 v18, v15")
    if j == 1: I("v_xor_b32 v18, v15, v16")
    if j == 2: I("v_xor_b32 v18, 32, v15")
    I("v_lshrrev_b32 v17, 7, v17")
    I(f"v_mad_i32_i24 v18, v14, s{s_t0}, v18")
    I(f"v_mad_i32_i24 v{vW[j]}, v17, s{s_t2}, v18")
    if j: I(f"v_subrev_u32 v{vW[j]}, {1024*j}, v{vW[j]}")
I(f"s_lshl_b32 s{s_lx}, s{s_wave}, 12")
I(f"s_add_u32 s{s_lx}, s{s_lx}, {SLOT0}")
I(f"s_mul_i32 s{s_lw}, s{s_wave}, 6144")
I(f"s_add_u32 s{s_lw}, s{s_lw}, {SLOT0+16384}")
I(f"s_lshl_b32 s{s_xb}, s{s_mt}, 17")
I(f"s_lshl_b32 s{s_t0}, s{s_wave}, 15")
I(f"s_add_u32 s{s_xb}, s{s_xb}, s{s_t0}")
I(f"s_mul_i32 s{s_wb}, s{s_sl}, 192")
I(f"s_mul_i32 s{s_t0}, s{s_wave}, {16*2752}")
I(f"s_add_u32 s{s_wb}, s{s_wb}, s{s_t0}")
kst_init()
I(f"s_mov_b32 s{s_cnt}, 0")
I(f"s_mov_b32 s{s_ring}, {SLOTSZ}")
srd_tail(sX, XB); srd_tail(sW1, WB); srd_tail(sW3, WB)
I(f"s_cmp_ge_u32 s{s_sl}, 15")
I(f"s_cbranch_scc1 {P}_l_init")
I(f"s_lshl_b32 s{s_t0}, s{s_kst}, 7")
I(f"s_add_u32 s{s_sx}, s{s_xb}, s{s_t0}")
I(f"s_mul_i32 s{s_sw}, s{s_kst}, {64*2752}")
I(f"s_add_u32 s{s_sw}, s{s_sw}, s{s_wb}")
I(f"s_mov_b32 m0, s{s_lx}")
I("s_waitcnt lgkmcnt(0)")
if args.tlbw:
    I(f"s_load_dword s3, s[{sW1}:{sW1+1}], s{s_sw}")
    I(f"s_load_dword s4, s[{sW3}:{sW3+1}], s{s_sw}")
    if args.tlbw > 1:
        I(f"s_load_dword s5, s[{sW2}:{sW2+1}], 0")
        I(f"s_load_dword s6, s[{sO}:{sO+1}], 0")
stamp(1)
def issueS(tag):
    for j in range(0 if args.wfirst else 4):
        I(f"buffer_load_dwordx4 v{vX[j]}, {srd(sX)}, s{s_sx} offen offset:{1024*j} lds")
    I(f"s_mov_b32 m0, s{s_lw}")
    I(f"s_add_u32 s{s_kst}, s{s_kst}, 1")
    for j in range(3):
        I(f"buffer_load_dwordx4 v{vW[j]}, {srd(sW1)}, s{s_sw} offen offset:{1024*j} lds")
    I("s_add_u32 m0, m0, 3072")
    I(f"s_and_b32 s{s_kst}, s{s_kst}, 7")
    for j in range(3):
        I(f"buffer_load_dwordx4 v{vW[j]}, {srd(sW3)}, s{s_sw} offen offset:{1024*j} lds")
    if args.wfirst:
        I(f"s_mov_b32 m0, s{s_lx}"); I("s_nop 0")
        for j in range(4):
            I(f"buffer_load_dwordx4 v{vX[j]}, {srd(sX)}, s{s_sx} offen offset:{1024*j} lds")
    I(f"s_lshl_b32 s{s_t0}, s{s_kst}, 7")
    I(f"s_add_u32 s{s_sx}, s{s_xb}, s{s_t0}")
    I(f"s_mul_i32 s{s_sw}, s{s_kst}, {64*2752}")
    I(f"s_add_u32 s{s_sw}, s{s_sw}, s{s_wb}")
    I(f"s_cmp_ge_u32 s{s_lx}, {SLOT0+SLOTSZ}")
    I(f"s_cselect_b32 s{s_t0}, {-2*SLOTSZ & 0xffffffff}, s{s_ring}")
    I(f"s_add_u32 s{s_lx}, s{s_lx}, s{s_t0}")
    I(f"s_add_u32 s{s_lw}, s{s_lw}, s{s_t0}")
    I(f"s_mov_b32 m0, s{s_lx}")
    I(f"s_add_u32 s{s_cnt}, s{s_cnt}, 1")
L(f"{P}_l_loop")
issueS("a")
I(f"s_cmp_eq_u32 s{s_cnt}, 1")
I(f"s_cbranch_scc1 {P}_l_loop")

wcount = [0]
def w_one():
    I(f"buffer_load_dwordx4 v{vW2}, {srd(sW2)}, s{s_p} offen lds")
    I(f"s_add_u32 s{s_p}, s{s_p}, 16384")
    I(f"s_cmp_eq_u32 s{s_p}, s{s_pend}")
    I(f"s_cselect_b32 s{s_p}, s{s_pbeg}, s{s_p}")
    I("s_add_u32 m0, m0, 4096")
    I(f"s_add_u32 s{s_u}, s{s_u}, 1")
def issueW(lim, pace=0):
    lab = f"{P}_l_w{wcount[0]}"; wcount[0] += 1
    I(f"s_cmp_ge_u32 s{s_u}, {lim}")
    I(f"s_cbranch_scc1 {lab}e")
    L(lab)
    if pace: I(f"s_waitcnt vmcnt({pace-1})")
    w_one()
    I(f"s_cmp_lt_u32 s{s_u}, {lim}")
    I(f"s_cbranch_scc1 {lab}")
    L(lab + "e")

L(f"{P}_l_init")
decode2()
srd_tail(sW2, W2B); srd_tail(sH, WS_REC); srd_tail(sD, 256)
I("v_lshrrev_b32 v14, 3, v1")
I(f"s_and_b32 s{s_t0}, s{s_wave}, 1")
I(f"s_lshl_b32 s{s_t0}, s{s_t0}, 3")
I(f"s_lshr_b32 s{s_t1}, s{s_wave}, 1")
I(f"s_mul_i32 s{s_t1}, s{s_t1}, 688")
I(f"s_add_u32 s{s_t0}, s{s_t0}, s{s_t1}")
I(f"v_add_u32 v14, s{s_t0}, v14")
I("v_lshlrev_b32 v14, 10, v14")
I("v_lshrrev_b32 v15, 2, v1")
I("v_and_b32 v15, 4, v15")
I("v_and_b32 v16, 7, v1")
I("v_xor_b32 v15, v15, v16")
I(f"v_lshl_add_u32 v{vW2}, v15, 4, v14")
I(f"s_lshl_b32 s{s_pbeg}, s{s_cb}, 7")
I(f"s_add_u32 s{s_pend}, s{s_pbeg}, {43*16384}")
I(f"s_lshl_b32 s{s_t0}, s{s_rot2}, 14")
I(f"s_add_u32 s{s_p}, s{s_pbeg}, s{s_t0}")
I(f"s_lshl_b32 s{s_lu}, s{s_wave}, 10")
I(f"s_lshr_b32 s{s_t0}, s{s_rb}, 1")
I(f"s_mul_i32 s{s_fl}, s{s_t0}, {4*HSTR*1024}")
I(f"s_add_u32 s{s_fl}, s{s_fl}, {86*1024}")
I("v_min_u32 v14, 15, v1")
I(f"s_lshl_b32 s{s_valid}, 1, s{s_sl}")
I(f"s_cmp_eq_u32 s{s_t0}, s{s_mt}")
I(f"s_cselect_b32 s{s_t1}, s{s_sl}, 15")
I(f"s_cselect_b32 s{s_valid}, s{s_valid}, 0")
I(f"v_cmp_eq_u32 vcc, s{s_t1}, v14")
I("v_mov_b32 v15, 15")
I("s_nop 0")
I("v_cndmask_b32 v14, v14, v15, vcc")
I("v_lshrrev_b32 v15, 3, v14")
I(f"v_mul_u32_u24 v15, {HSTR*1024}, v15")
I("v_and_b32 v14, 7, v14")
I(f"v_lshl_add_u32 v{vFA}, v14, 7, v15")
I("s_waitcnt lgkmcnt(0)")
I(f"s_cmp_lg_u32 s{s_wave}, 0")
I(f"s_cbranch_scc1 {P}_l_nosamp")
I(f"buffer_load_dword v{vFS}, v{vFA}, {srd(sH)}, s{s_fl} offen sc1")
L(f"{P}_l_nosamp")
I(f"s_cmp_ge_u32 s{s_sl}, 15")
I(f"s_cbranch_scc1 {P}_l_idle")
if args.stouch:
    I(f"s_lshr_b32 s{s_t0}, s2, 3")
    I(f"s_lshl_b32 s{s_t0}, s{s_t0}, 2")
    I(f"s_add_u32 s{s_t0}, s{s_t0}, s{s_wave}")
    I(f"s_mul_i32 s{s_t0}, s{s_t0}, {11*1024}")
    I(f"s_add_u32 s18, s{sW2}, s{s_t0}")
    I(f"s_addc_u32 s19, s{sW2+1}, 0")
I(f"s_mov_b32 s{s_u}, 0")
if args.trk: I("s_waitcnt vmcnt(10)")
L(f"{P}_l_wait")
I(f"s_waitcnt vmcnt({10 + args.trk})")
if "b0" in args.diag:
    I(f"s_cmp_lg_u32 s{s_cnt}, 2"); I(f"s_cbranch_scc1 {P}_l_nb0"); stamp(7, True); L(f"{P}_l_nb0")
I("s_barrier")
if "stages" in args.diag:
    for c in range(1, 7):
        I(f"s_cmp_lg_u32 s{s_cnt}, {c+2}"); I(f"s_cbranch_scc1 {P}_l_st{c}"); stamp(c, True); L(f"{P}_l_st{c}")
I(f"s_cmp_ge_u32 s{s_cnt}, 8")
I(f"s_cbranch_scc1 {P}_l_tail")
issueS("b")
if args.trk:
    I(f"s_lshl_b32 s{s_t0}, s{s_u}, 12")
    I(f"s_add_u32 m0, s{s_lu}, s{s_t0}")
    I("s_nop 0")
    for i in range(args.trk): w_one()
    I(f"s_mov_b32 m0, s{s_lx}")
I(f"s_branch {P}_l_wait")
LOADER_TAIL_MARK = len(out)

pfc = [0]
def prefetch_jobs():
    tag = pfc[0]; pfc[0] += 1
    I(f"s_bfe_u32 s{s_t2}, s2, {3 | (1 << 16)}")
    if args.jobX:
        kst_init()
        I("v_lshlrev_b32 v40, 10, v1")
        if args.jobX == 2:
            I(f"s_cmp_ge_u32 s{s_mg4}, 8")
            I(f"s_cbranch_scc1 {P}_pf{tag}_e")
            I(f"s_add_u32 s{s_t0}, s{s_mg4}, 8")
            I(f"s_lshl_b32 s{s_t0}, s{s_t0}, 17")
            I(f"s_lshl_b32 s{s_t1}, s{s_wave}, 16")
            I(f"s_add_u32 s{s_t0}, s{s_t0}, s{s_t1}")
            I(f"s_add_u32 s{s_t1}, s{s_kst}, s{s_t2}")
            I(f"s_lshl_b32 s{s_t1}, s{s_t1}, 7")
            I(f"s_add_u32 s{s_t0}, s{s_t0}, s{s_t1}")
            I(f"buffer_load_dword v42, v40, {srd(sX)}, s{s_t0} offen")
            L(f"{P}_pf{tag}_e")
        I(f"s_lshl_b32 s{s_t0}, s{s_mg4}, 17")
        I(f"s_lshl_b32 s{s_t1}, s{s_wave}, 16")
        I(f"s_add_u32 s{s_t0}, s{s_t0}, s{s_t1}")
        I(f"s_add_u32 s{s_t1}, s{s_kst}, s{s_t2}")
        I(f"s_add_u32 s{s_t1}, s{s_t1}, 2")
        I(f"s_and_b32 s{s_t1}, s{s_t1}, 7")
        I(f"s_lshl_b32 s{s_t1}, s{s_t1}, 7")
        I(f"s_add_u32 s{s_t0}, s{s_t0}, s{s_t1}")
        I(f"buffer_load_dword v42, v40, {srd(sX)}, s{s_t0} offen")
    def jobB():
        I(f"s_xor_b32 s{s_t0}, s{s_mt}, 2")
        I(f"s_lshl_b32 s{s_t0}, s{s_t0}, 17")
        I(f"s_and_b32 s{s_t1}, s{s_wave}, 1")
        I(f"s_lshl_b32 s{s_t1}, s{s_t1}, 16")
        I(f"s_add_u32 s{s_t0}, s{s_t0}, s{s_t1}")
        I(f"s_lshr_b32 s{s_t1}, s{s_wave}, 1")
        I(f"s_add_u32 s{s_t1}, s{s_t1}, s{s_kst}")
        I(f"s_add_u32 s{s_t1}, s{s_t1}, 4")
        I(f"s_and_b32 s{s_t1}, s{s_t1}, 7")
        I(f"s_lshl_b32 s{s_t1}, s{s_t1}, 7")
        I(f"s_add_u32 s{s_t0}, s{s_t0}, s{s_t1}")
        I(f"buffer_load_dword v42, v40, {srd(sX)}, s{s_t0} offen")
    if args.jobX == 3: jobB()
    if args.jobx3:
        I("v_and_b32 v40, 31, v1")
        I("v_lshlrev_b32 v40, 10, v40")
        I(f"s_lshl_b32 s{s_t0}, s{s_mg4}, 17")
        I(f"s_lshl_b32 s{s_t1}, s{s_t2}, 18")
        I(f"s_add_u32 s{s_t0}, s{s_t0}, s{s_t1}")
        I(f"s_lshl_b32 s{s_t1}, s{s_wave}, 15")
        I(f"s_add_u32 s{s_t0}, s{s_t0}, s{s_t1}")
        I(f"buffer_load_dword v42, v40, {srd(sX)}, s{s_t0} offen offset:384")
    if args.jobM:
        I("v_lshlrev_b32 v41, 7, v1")
        I(f"s_and_b32 s{s_t0}, s2, 7")
        I(f"s_lshl_b32 s{s_t0}, s{s_t0}, 1")
        I(f"s_add_u32 s{s_t0}, s{s_t0}, s{s_t2}")
        I(f"s_lshl_b32 s{s_t1}, s{s_wave}, 4")
        I(f"s_add_u32 s{s_t0}, s{s_t0}, s{s_t1}")
        I(f"s_lshl_b32 s{s_t0}, s{s_t0}, 13")
        I(f"buffer_load_dword v43, v41, {srd(sW2)}, s{s_t0} offen")
        I(f"s_add_u32 s{s_t0}, s{s_t0}, {128*8192}")
        I(f"s_cmp_ge_u32 s{s_t0}, {W2B}")
        I(f"s_cbranch_scc1 {P}_pf{tag}_m")
        I(f"buffer_load_dword v43, v41, {srd(sW2)}, s{s_t0} offen")
        L(f"{P}_pf{tag}_m")
    if args.job3:
        I("v_min_u32 v44, 42, v1")
        I("v_lshlrev_b32 v44, 10, v44")
        I(f"s_mul_i32 s{s_t0}, s{s_t2}, 688")
        I(f"s_mul_i32 s{s_t1}, s{s_wave}, 86")
        I(f"s_add_u32 s{s_t0}, s{s_t0}, s{s_t1}")
        I(f"s_lshl_b32 s{s_t0}, s{s_t0}, 10")
        I(f"buffer_load_dword v45, v44, {srd(sW2)}, s{s_t0} offen offset:384")
        I(f"s_add_u32 s{s_t0}, s{s_t0}, {43*1024}")
        I(f"buffer_load_dword v45, v44, {srd(sW2)}, s{s_t0} offen offset:384")
    if args.jobX == 4: jobB()

L(f"{P}_l_tail")
stamp(2)
I(f"s_add_u32 m0, s{s_lu}, {6*args.trk*4096}")
I(f"v_mov_b32 v17, {LDS_SCR}")
assert 6 * args.trk <= 9 and 6 * args.trk + args.atb6 <= 19
issueW(6 * args.trk + args.atb6)
I(f"s_waitcnt vmcnt({args.atb6 + args.trk})")
I("s_barrier")
if "stages" in args.diag: stamp(7, True)
stamp(3)
issueW(args.kmin, args.pace)
ADAPT = args.stopat >= 0
assert args.kmin <= 29
if ADAPT:
    I(f"s_setprio {args.sprio}")
    if args.stopat < 0: I(f"s_branch {P}_l_stop")
    L(f"{P}_l_str")
    I("ds_read_b64 v[18:19], v17 offset:8")
    I(f"s_waitcnt vmcnt({args.pace2-1}) lgkmcnt(0)")
    I(f"v_readfirstlane_b32 s{s_t0}, v18")
    I(f"v_readfirstlane_b32 s{s_t1}, v19")
    I(f"s_cmp_eq_u32 s{s_t0}, 4")
    I(f"s_cselect_b32 s{s_lim}, 39, 29")
    I(f"s_cmp_lg_u32 s{s_t1}, 0")
    I(f"s_cbranch_scc1 {P}_l_stop")
    I(f"s_cmp_ge_u32 s{s_u}, s{s_lim}")
    I(f"s_cbranch_scc1 {P}_l_full")
    for bi in range(args.burst):
        if bi:
            I(f"s_cmp_ge_u32 s{s_u}, s{s_lim}")
            I(f"s_cbranch_scc1 {P}_l_full")
            I(f"s_waitcnt vmcnt({args.pace2-1})")
        if args.pace3:
            I(f"s_cmp_lg_u32 s{s_cb}, 3")
            I(f"s_cbranch_scc1 {P}_l_p3{bi}")
            I(f"s_waitcnt vmcnt({args.pace3-1})")
            L(f"{P}_l_p3{bi}")
        w_one()
    I(f"s_branch {P}_l_str")
    L(f"{P}_l_full")
    I("s_sleep 1")
    I(f"s_cmp_lt_u32 s{s_u}, 39")
    I(f"s_cbranch_scc1 {P}_l_str")
L(f"{P}_l_stop")
if args.sflag:
    I(f"s_mul_i32 s{s_xb}, s{s_mt}, {4*HSTR*1024}")
    I(f"s_lshr_b32 s{s_t1}, s{s_sl}, 3")
    I(f"s_mul_i32 s{s_t1}, s{s_t1}, {HSTR*1024}")
    I(f"s_add_u32 s{s_xb}, s{s_xb}, s{s_t1}")
    I(f"s_and_b32 s{s_t1}, s{s_sl}, 7")
    I(f"s_lshl_b32 s{s_t1}, s{s_t1}, 7")
    I(f"s_add_u32 s{s_xb}, s{s_xb}, s{s_t1}")
    I(f"s_add_u32 s{s_xb}, s{s_xb}, {86*1024}")
    I(f"s_mov_b32 s{s_wb}, 1")
I("s_waitcnt vmcnt(0)")
if args.post:
    I(f"s_add_u32 s{s_lim}, s{s_u}, {args.post}")
    I(f"s_min_u32 s{s_lim}, s{s_lim}, 39")
    L(f"{P}_l_last")
    I("ds_read_b32 v18, v17 offset:4")
    I("s_waitcnt lgkmcnt(0)")
    I(f"v_readfirstlane_b32 s{s_t0}, v18")
    I("s_nop 0")
    I(f"s_cmp_lt_u32 s{s_t0}, 4")
    I(f"s_cbranch_scc1 {P}_l_last")
    issueW(f"s{s_lim}")
if ADAPT: I("s_setprio 0")
stamp(4)
if "wk" in args.diag:
    I("s_waitcnt lgkmcnt(0)"); I(f"s_mul_i32 s{s_prof+14}, s{s_u}, 10"); I(f"s_add_u32 s{s_prof+14}, s{s_prof+14}, s{s_prof+8}")
if args.sflag:
    I(f"s_cmp_lg_u32 s{s_wave}, 2")
I("s_barrier")
if args.sflag:
    I(f"s_cbranch_scc1 {P}_l_nofl")
    I(f"s_atomic_add s{s_wb}, s[{sH}:{sH+1}], s{s_xb}")
    L(f"{P}_l_nofl")
if not args.dlate:
    I(f"s_cmp_lg_u32 s{s_wave}, 1")
    I(f"s_cbranch_scc1 {P}_l_nofb")
    I(f"s_lshl_b32 s{s_sx}, 1, s{s_sl}")
    I(f"s_lshl_b32 s{s_sw}, s{s_mt}, 4")
    I(f"s_atomic_add s{s_sx}, s[{sD}:{sD+1}], s{s_sw}")
    L(f"{P}_l_nofb")
if args.fsleep: I("s_sleep 1")
if args.wb1:
    I(f"s_add_u32 s{s_lim}, s{s_u}, {args.wb1}")
    I(f"s_min_u32 s{s_lim}, s{s_lim}, 39")
    issueW(f"s{s_lim}")
I(f"s_branch {P}_l_bb")
L(f"{P}_l_idle")
prefetch_jobs()
I(f"s_mov_b32 m0, s{s_lu}")
I(f"s_mov_b32 s{s_u}, 0")
issueW(39)
I("s_waitcnt vmcnt(0)")
I("s_barrier")
L(f"{P}_l_bb")
I("s_barrier")
issueW(39)
I(f"s_mov_b32 m0, s{s_lu}")
issueW(43)
stamp(5)
wdone = args.kmin
if args.dlate:
    I(f"s_cmp_lg_u32 s{s_wave}, 1")
    I(f"s_cbranch_scc1 {P}_l_nofb")
    I(f"s_cmp_ge_u32 s{s_sl}, 15")
    I(f"s_cbranch_scc1 {P}_l_nofb")
    I(f"s_lshl_b32 s{s_sx}, 1, s{s_sl}")
    I(f"s_lshl_b32 s{s_sw}, s{s_mt}, 4")
    I(f"s_atomic_add s{s_sx}, s[{sD}:{sD+1}], s{s_sw}")
    L(f"{P}_l_nofb")
L(f"{P}_l_sel")
I(f"s_cmp_lg_u32 s{s_wave}, 0")
I(f"s_cbranch_scc1 {P}_l_go")
I(f"s_lshr_b32 s{s_t1}, s{s_rb}, 1")
I(f"s_lshl_b32 s{s_t1}, s{s_t1}, 4")
I("v_mov_b32 v18, 0")
I(f"v_mov_b32 v17, {LDS_SCR}")
I("v_mov_b32 v19, 1")
I(f"s_mov_b32 s{s_cnt}, 0")
L(f"{P}_l_poll")
I(f"buffer_load_dword v{vFN}, v{vFA}, {srd(sH)}, s{s_fl} offen sc1")
I(f"s_add_u32 s{s_cnt}, s{s_cnt}, 1")
I("s_waitcnt vmcnt(0)")
I(f"v_cmp_ne_u32 vcc, v{vFN}, v{vFS}")
I(f"s_and_b32 s{s_t0}, s{s_cnt}, {0 if 'fbonly' in args.diag else 31}")
if "fbonly" in args.diag: I("s_mov_b64 vcc, 0")
I(f"s_or_b32 s{s_t2}, vcc_lo, s{s_valid}")
I(f"s_and_b32 s{s_t2}, s{s_t2}, 0x7fff")
I(f"s_cmp_eq_u32 s{s_t2}, 0x7fff")
I(f"s_cbranch_scc1 {P}_l_ok")
if args.sleep: I(f"s_sleep {args.sleep}")
I(f"s_cmp_lg_u32 s{s_t0}, 0")
I(f"s_cbranch_scc1 {P}_l_poll")
I(f"buffer_load_dword v16, v18, {srd(sD)}, s{s_t1} offen sc1")
I("s_waitcnt vmcnt(0)")
I(f"v_readfirstlane_b32 s{s_t0}, v16")
I(f"s_cmp_ge_u32 s{s_cnt}, 400000")
I(f"s_cbranch_scc1 {P}_l_ok")
I(f"s_or_b32 s{s_t2}, s{s_t2}, s{s_t0}")
I(f"s_cmp_lg_u32 s{s_t2}, 0x7fff")
I(f"s_cbranch_scc1 {P}_l_poll")
L(f"{P}_l_ok")
I("ds_write_b32 v17, v19")
L(f"{P}_l_go")
stamp(6)
I("s_waitcnt vmcnt(0)")
I("s_barrier")
if args.amp.startswith("L"): amp_block(args.amp[1:], "l")
prof_store()
L(f"{P}_end")
I("s_endpgm")
loader_tail = out[LOADER_TAIL_MARK:]
del out[LOADER_TAIL_MARK:]

MUTE[0] = "p2" in args.diag or "fin" in args.diag
FIN = "fin" in args.diag
L(f"{P}_compute")
vAX = [2, 3]; vAW = [6, 7, 8]
ACC = 64
FA, FB = 160, 200
vOLD = 20
if args.prio: I(f"s_setprio {args.prio}")
I(f"s_and_b32 s{s_t0}, s{s_wave}, 1")
I(f"s_lshl_b32 s{s_t0}, s{s_t0}, 13")
I(f"s_add_u32 s{s_t0}, s{s_t0}, {SLOT0}")
I("v_and_b32 v10, 15, v1")
I("v_lshrrev_b32 v11, 1, v10")
I("v_lshrrev_b32 v12, 4, v1")
I(f"v_lshl_add_u32 v10, v10, 7, s{s_t0}")
I("v_xor_b32 v13, v12, v11")
I("v_and_b32 v11, 1, v12")
I(f"v_lshl_add_u32 v{vAX[0]}, v13, 4, v10")
I(f"v_xor_b32 v{vAX[1]}, 64, v{vAX[0]}")
I("v_lshrrev_b32 v10, 1, v12")
I("v_bfe_u32 v12, v1, 2, 2")
I("v_lshl_add_u32 v12, v11, 3, v12")
I("v_mul_u32_u24 v12, 192, v12")
I("v_mul_u32_u24 v13, 6144, v10")
I("v_and_b32 v10, 3, v1")
I("v_lshl_add_u32 v12, v10, 3, v12")
I(f"s_mov_b32 s{s_t1}, {SLOT0+16384}")
I(f"v_add3_u32 v12, v12, v13, s{s_t1}")
I("v_lshlrev_b32 v11, 5, v11")
I(f"s_bfe_u32 s{s_t0}, s{s_wave}, {1 | (1 << 16)}")
I(f"s_lshl_b32 s{s_t1}, s{s_t0}, 5")
I(f"s_lshl_b32 s{s_t2}, s{s_t0}, 6")
I(f"v_xor_b32 v13, s{s_t1}, v11")
I(f"v_add3_u32 v{vAW[0]}, v12, v13, s{s_t2}")
I(f"v_add_u32 v{vAW[2]}, 64, v{vAW[0]}")
I("v_xor_b32 v13, 32, v13")
I(f"s_lshl_b32 s{s_t2}, s{s_t0}, 7")
I(f"v_add3_u32 v{vAW[1]}, v12, v13, s{s_t2}")
I("v_mov_b32 v21, 0")
I(f"v_mov_b32 v22, {LDS_SCR}")
I("ds_write_b32 v22, v21")
I("ds_write_b32 v22, v21 offset:4")
if ADAPT:
    I("ds_write_b32 v22, v21 offset:8")
    I("ds_write_b32 v22, v21 offset:12")
I("v_mov_b32 v23, 1")
for r in range(0, 96, 2):
    I(f"v_mov_b64 v[{ACC+r}:{ACC+r+1}], 0")
I(f"s_cmp_eq_u32 s{s_t0}, 0")
I(f"s_cselect_b32 s{s_t1}, 2, 0")
I(f"s_movk_i32 s{s_t2}, 0x543")
I(f"s_cselect_b32 s{s_t2}, 0x210, s{s_t2}")
I(f"s_movk_i32 s{s_t3}, 0x103")
I(f"s_cselect_b32 s{s_t3}, 0x254, s{s_t3}")
I(f"s_cmp_eq_u32 s{s_sl}, 14")
I(f"s_cselect_b32 s{s_valid}, s{s_t1}, 3")
I(f"s_bitcmp1_b32 s{s_sl}, 0")
I(f"s_cselect_b32 s{s_t2}, s{s_t3}, s{s_t2}")
I(f"s_and_b32 s{s_t1}, s{s_wave}, 1")
I(f"s_lshl_b32 s{s_t3}, s{s_mt}, 1")
I(f"s_add_u32 s{s_t1}, s{s_t1}, s{s_t3}")
I(f"s_mul_i32 s{s_t1}, s{s_t1}, {2*HSTR}")
I(f"s_mul_i32 s{s_t3}, s{s_sl}, 6")
I(f"s_add_u32 s{s_t1}, s{s_t1}, s{s_t3}")
for t in range(3):
    I(f"s_bfe_u32 s{s_t3}, s{s_t2}, {4*t | (4 << 16)}")
    I(f"s_add_u32 s{s_t3}, s{s_t3}, s{s_t1}")
    I(f"s_lshl_b32 s{s_hoff+t}, s{s_t3}, 10")
I(f"s_mov_b32 s{s_k}, 0xbfb8aa3b")
I("v_lshlrev_b32 v9, 4, v1")
I(f"v_add_u32 v10, {HSTR*1024}, v9")
I(f"v_mov_b32 v56, s{s_k}"); I(f"v_mov_b32 v57, s{s_k}"); I("v_mov_b32 v58, 1.0"); I("v_mov_b32 v59, 1.0")
if not args.sflag:
    I(f"s_mul_i32 s{s_fl}, s{s_mt}, {4*HSTR*1024}")
    I(f"s_lshr_b32 s{s_t1}, s{s_sl}, 3")
    I(f"s_mul_i32 s{s_t1}, s{s_t1}, {HSTR*1024}")
    I(f"s_add_u32 s{s_fl}, s{s_fl}, s{s_t1}")
    I(f"s_and_b32 s{s_t1}, s{s_sl}, 7")
    I(f"s_lshl_b32 s{s_t1}, s{s_t1}, 7")
    I(f"s_add_u32 s{s_fl}, s{s_fl}, s{s_t1}")
    I(f"s_add_u32 s{s_fl}, s{s_fl}, {86*1024}")
srd_tail(sH, WS_REC); srd_tail(sO, OB)
I(f"s_mov_b32 s{s_cnt}, 0")
I(f"s_mov_b32 s{s_ring}, 1")
I(f"s_mov_b32 s{s_sx}, {SLOTSZ}")
I("s_waitcnt lgkmcnt(0)")
I(f"s_cmp_ge_u32 s{s_sl}, 15")
I(f"s_cbranch_scc1 {P}_c_idle")
I(f"s_cmp_eq_u32 s{s_valid}, 0")
I(f"s_cbranch_scc1 {P}_c_lazy")

def xr(fs, mt): return fs + 4 * mt
def wr_(fs, t, mat): return fs + 16 + 4 * (2 * t + mat)
def acc(t, mat, mt): return ACC + ((t * 2 + mat) * 4 + mt) * 4
def xrd(ks, fs, mt): return [f"ds_read_b128 v[{xr(fs,mt)}:{xr(fs,mt)+3}], v{vAX[ks]} offset:{2048*mt}"]
def wrd(ks, fs, t, mat):
    d = wr_(fs, t, mat)
    return [f"ds_read_b64_tr_b16 v[{d+2*h}:{d+2*h+1}], v{vAW[t]} offset:{ks*12288+mat*3072+h*768}" for h in range(2)]
def reads(ks, fs):
    if "noread" in args.diag: return ["s_nop 0"] * 16
    if "halfread" in args.diag:
        r = xrd(ks, fs, 0) + wrd(ks, fs, 0, 0) + xrd(ks, fs, 1) + wrd(ks, fs, 0, 1) + wrd(ks, fs, 1, 0)
        return r + ["s_nop 0"] * 8
    r = xrd(ks, fs, 0) + wrd(ks, fs, 0, 0) + xrd(ks, fs, 1) + wrd(ks, fs, 0, 1) + xrd(ks, fs, 2) + xrd(ks, fs, 3)
    for t in (1, 2):
        for mat in range(2): r += wrd(ks, fs, t, mat)
    return r
def mf(fs, t, mat, mt):
    a = acc(t, mat, mt); w = wr_(fs, t, mat); x = xr(fs, mt)
    return f"v_mfma_f32_16x16x32_bf16 v[{a}:{a+3}], v[{w}:{w+3}], v[{x}:{x+3}], v[{a}:{a+3}]"
def mfmas(fs):
    if "halfm" in args.diag:
        return [mf(fs, t, mat, mt) if mat == 0 else "s_nop 1" for t in range(3) for mat in range(2) for mt in range(4)]
    if args.morder == 1:
        return [mf(fs, t, mat, mt if mat == 0 else 3 - mt) for t in range(3) for mat in range(2) for mt in range(4)]
    if args.morder == 2:
        ws = [(t, mat) for t in range(3) for mat in range(2)]
        return [mf(fs, *w, mt) for mt in range(4) for w in (ws if mt % 2 == 0 else ws[::-1])]
    return [mf(fs, t, mat, mt) for t in range(3) for mat in range(2) for mt in range(4)]
if args.prew:
    for t in range(3):
        if t == 2:
            I(f"s_cmp_le_u32 s{s_valid}, 2"); I(f"s_cbranch_scc1 {P}_c_npw")
        for p_ in range(2):
            I(f"buffer_store_dwordx4 v[64:67], v{9+p_}, {srd(sH)}, s{s_hoff+t} offen sc1")
    L(f"{P}_c_npw")
if args.align:
    I(f"s_branch {P}_pg1"); out.append("@COLD@"); e(".p2align 12"); L(f"{P}_pg1")
if "b0" in args.diag: stamp(1)
I("s_barrier")
if "b0" not in args.diag: stamp(1)
r = reads(0, FA)
for x in r[:12]: I(x)
if not args.sflag:
    I(f"s_cmp_lg_u32 s{s_wave}, 4")
    I(f"s_cbranch_scc1 {P}_c_noold")
    I(f"buffer_load_dword v{vOLD}, v21, {srd(sH)}, s{s_fl} offen sc1")
    L(f"{P}_c_noold")
I("s_waitcnt lgkmcnt(8)")
for x in r[12:]: I(x)
L(f"{P}_c_loop")
m = mfmas(FA); r = reads(1, FB)
extra = [f"s_add_u32 s{s_ring}, s{s_ring}, 1", f"s_cmp_eq_u32 s{s_ring}, 3",
         f"s_cselect_b32 s{s_t0}, {-2*SLOTSZ & 0xffffffff}, s{s_sx}", f"s_cselect_b32 s{s_ring}, 0, s{s_ring}",
         f"s_add_u32 s{s_cnt}, s{s_cnt}, 1", None]
upd = [f"v_add_u32 v{r}, s{s_t0}, v{r}" for r in vAX + vAW]
need = {0: 8, 8: 10, 12: 12, 16: 14, 20: 16} if args.morder < 2 else {0: 6, 2: 10, 3: 12, 4: 14, 5: 16}
for i in range(24):
    if i in need: I(f"s_waitcnt lgkmcnt({min(15, 16 - need[i] + min(i, 16))})")
    I(m[i])
    if i < 16: I(r[i])
    elif i < 19:
        for x in extra[2*(i-16):2*(i-16)+2]:
            if x: I(x)
    else: I(upd[i-19])
I("s_waitcnt lgkmcnt(0)")
m = mfmas(FB); r = reads(0, FA)
for i in range(24):
    if i == args.barpos: I("s_barrier")
    I(m[i])
    if i >= args.barpos:
        for x in r[(i - args.barpos) * args.rpg:(i - args.barpos + 1) * args.rpg]: I(x)
assert (24 - args.barpos) * args.rpg >= 16
I(f"s_cmp_lt_u32 s{s_cnt}, 7")
I(f"s_cbranch_scc1 {P}_c_loop")
stamp(2)
T = 32
def epi(t, p):
    tm = T + p * 12; o = tm + 8
    g = [acc(t, 0, 2*p + (q >> 2)) + (q & 3) for q in range(8)]
    u = [acc(t, 1, 2*p + (q >> 2)) + (q & 3) for q in range(8)]
    v = []
    if 2 * t + p >= args.pkfrom:
        pr = lambda r: f"v[{r}:{r+1}]"
        for q in range(0, 8, 2): v.append(f"v_pk_mul_f32 {pr(tm+q)}, {pr(g[q])}, v[56:57]")
        for q in range(8): v.append(f"v_exp_f32 v{tm+q}, v{tm+q}")
        for q in range(0, 8, 2): v.append(f"v_pk_add_f32 {pr(tm+q)}, {pr(tm+q)}, v[58:59]")
        for q in range(8): v.append(f"v_rcp_f32 v{tm+q}, v{tm+q}")
        for q in range(0, 8, 2): v.append(f"v_pk_mul_f32 {pr(tm+q)}, {pr(tm+q)}, {pr(g[q])}")
        for q in range(0, 8, 2): v.append(f"v_pk_mul_f32 {pr(tm+q)}, {pr(tm+q)}, {pr(u[q])}")
    else:
        for q in range(8): v.append(f"v_mul_f32 v{tm+q}, s{s_k}, v{g[q]}")
        for q in range(8): v.append(f"v_exp_f32 v{tm+q}, v{tm+q}")
        for q in range(8): v.append(f"v_add_f32 v{tm+q}, 1.0, v{tm+q}")
        for q in range(8): v.append(f"v_rcp_f32 v{tm+q}, v{tm+q}")
        for q in range(8): v.append(f"v_mul_f32 v{tm+q}, v{tm+q}, v{g[q]}")
        for q in range(8): v.append(f"v_mul_f32 v{tm+q}, v{tm+q}, v{u[q]}")
    for q in (0, 2, 1, 3): v.append(f"v_cvt_pk_bf16_f32 v{o+q}, v{tm+2*q}, v{tm+2*q+1}")
    v.append(("swap", o))
    v.append(("store", t, p, o))
    return v
def emit_v(x):
    if isinstance(x, tuple) and x[0] == "swap":
        o = x[1]
        I(f"v_permlane16_swap_b32 v{o}, v{o+2}")
        I("s_nop 0")
        I(f"v_permlane16_swap_b32 v{o+1}, v{o+3}")
    elif isinstance(x, tuple):
        _, t, p, o = x
        if t == 2:
            I(f"s_cmp_le_u32 s{s_valid}, 2")
            I(f"s_cbranch_scc1 {P}_c_ns{t}{p}")
        I(f"buffer_store_dwordx4 v[{o}:{o+3}], v{9+p}, {srd(sH)}, s{s_hoff+t} offen {'' if 'hplain' in args.diag else 'sc1'}")
        if t == 2: L(f"{P}_c_ns{t}{p}")
    else:
        I(x)
blocks = [(t, p) for t in range(3) for p in range(2)]
def bmf(t, p, fs): return [mf(fs, t, mat, 2*p + j) for mat in range(2) for j in range(2)]
rB = reads(1, FB)
I("s_waitcnt lgkmcnt(8)")
pre = bmf(0, 0, FA) + bmf(0, 1, FA)
for i in range(8):
    I(pre[i])
    if i == 3: I("s_waitcnt lgkmcnt(6)")
    I(rB[2*i])
    if i == 7: I("s_waitcnt lgkmcnt(9)")
    I(rB[2*i+1])
I("s_waitcnt lgkmcnt(8)")
seq = []
for bi, (t, p) in enumerate(blocks):
    x = bmf(t, p, FB) if bi < 2 else bmf(t, p, FA) + bmf(t, p, FB)
    seq += [(y, None) for y in x[:-1]] + [(x[-1], bi)]
vq = []; nxt = 0; since = {}
for i, (mi, done) in enumerate(seq):
    if i == 8:
        I("s_waitcnt lgkmcnt(0)")
        if ADAPT: I("s_mov_b64 exec, 1"); I("ds_add_u32 v22, v23 offset:8"); I("s_mov_b64 exec, -1")
    I(mi)
    for k in since: since[k] += 1
    if done is not None: since[done] = 0
    n = 0
    while n < args.gapc:
        if not vq:
            if nxt in since and since[nxt] >= 4 and nxt < args.pkfrom:
                if since[nxt] < 9: I(f"s_nop {9 - since[nxt]}")
                vq += epi(*blocks[nxt]); nxt += 1
            else:
                break
        x = vq.pop(0)
        emit_v(x); n += 8 if (isinstance(x, tuple) or "exp" in x or "rcp" in x) else 4
        for k in since: since[k] += 1
while vq or nxt < 6:
    if not vq:
        if since[nxt] < 9: I(f"s_nop {9 - since[nxt]}")
        if nxt == args.stopat: I("ds_write_b32 v22, v23 offset:12")
        vq += epi(*blocks[nxt]); nxt += 1
    emit_v(vq.pop(0))
    for k in since: since[k] += 1
if args.stopat == 6: I("ds_write_b32 v22, v23 offset:12")
L(f"{P}_c_epidone")
if args.post:
    I("s_mov_b64 exec, 1"); I("ds_add_u32 v22, v23 offset:4"); I("s_mov_b64 exec, -1")
stamp(3)
vB = [[10, 11], [12, 13], [14, 15]]
WF = 128; HR = 160; R = args.hring
I("v_lshrrev_b32 v16, 4, v1")
I("v_lshrrev_b32 v17, 5, v1")
I("v_bfe_u32 v18, v1, 2, 2")
I("v_lshl_add_u32 v17, v17, 3, v18")
I("v_lshlrev_b32 v17, 7, v17")
I("v_and_b32 v16, 1, v16")
I("v_and_b32 v19, 1, v1")
I("v_lshl_add_u32 v16, v19, 1, v16")
I("v_lshlrev_b32 v18, 1, v18")
I("v_and_b32 v18, 4, v18")
I(f"s_bfe_u32 s{s_t0}, s{s_wave}, {1 | (1 << 16)}")
I(f"s_lshl_b32 s{s_t1}, s{s_t0}, 2")
I(f"v_xor_b32 v18, s{s_t1}, v18")
I("v_xor_b32 v16, v16, v18")
I("v_lshl_add_u32 v17, v16, 4, v17")
I("v_bfe_u32 v19, v1, 1, 1")
I("v_lshl_add_u32 v17, v19, 3, v17")
I(f"s_lshl_b32 s{s_t1}, s{s_t0}, 11")
I(f"v_add_u32 v{vB[0][0]}, s{s_t1}, v17")
I(f"v_xor_b32 v{vB[0][1]}, 64, v{vB[0][0]}")
for sg in (1, 2):
    for nb in range(2):
        I(f"v_add_u32 v{vB[sg][nb]}, {sg*65536}, v{vB[0][nb]}")
I("s_waitcnt vmcnt(0)")
if not args.sflag: I(f"v_add_u32 v{vOLD}, 1, v{vOLD}")
I("s_barrier")
if not args.sflag:
    I(f"s_cmp_lg_u32 s{s_wave}, 4")
    I(f"s_cbranch_scc1 {P}_c_p2")
    I(f"s_cmp_ge_u32 s{s_sl}, 15")
    I(f"s_cbranch_scc1 {P}_c_p2")
    I("s_mov_b64 exec, 1")
    I(f"buffer_store_dword v{vOLD}, v21, {srd(sH)}, s{s_fl} offen sc1")
    I("s_mov_b64 exec, -1")
L(f"{P}_c_p2")
stamp(4)
def wreads(u, dst):
    a = unit_addr(u); sg = a >> 16; off = a & 0xffff
    return [f"ds_read_b64_tr_b16 v[{dst+4*nb+2*h}:{dst+4*nb+2*h+1}], v{vB[sg][nb]} offset:{off+h*512}" for nb in range(2) for h in range(2)]
NW, NPRE, PRE, TN = 3, 4, 96, args.tailn
def wdst(u):
    if u < 4: return PRE + 8 * u
    if u >= 43 - TN: return PRE + 8 * (u - (43 - TN))
    return WF + 8 * (u % NW)
for u in range(NPRE):
    if u == 3: I("s_waitcnt lgkmcnt(8)")
    for r in wreads(u, wdst(u)): I(r)
I("s_waitcnt lgkmcnt(0)")
I("s_barrier")
decode2()
I(f"s_bfe_u32 s{s_t0}, s{s_wave}, {1 | (1 << 16)}")
I(f"s_and_b32 s{s_t1}, s{s_wave}, 1")
I(f"s_lshl_b32 s{s_t2}, s{s_rb}, 1")
I(f"s_add_u32 s{s_t1}, s{s_t1}, s{s_t2}")
I(f"s_mul_i32 s{s_t2}, s{s_t1}, {HSTR}")
I(f"s_mul_i32 s{s_t3}, s{s_t0}, 43")
I(f"s_add_u32 s{s_t2}, s{s_t2}, s{s_t3}")
I(f"s_lshl_b32 s{s_pbeg}, s{s_t2}, 10")
I(f"s_add_u32 s{s_pend}, s{s_pbeg}, {43*1024}")
I(f"s_lshl_b32 s{s_t2}, s{s_rot2}, 10")
I(f"s_add_u32 s{s_p}, s{s_pbeg}, s{s_t2}")
I("v_and_b32 v16, 31, v1")
I("v_lshlrev_b32 v16, 10, v16")
I("v_and_b32 v17, 32, v1")
I(f"s_lshl_b32 s{s_t1}, s{s_t1}, 15")
I(f"s_lshl_b32 s{s_t2}, s{s_cb}, 7")
I(f"s_add_u32 s{s_t1}, s{s_t1}, s{s_t2}")
I(f"s_lshl_b32 s{s_t2}, s{s_t0}, 6")
I(f"s_add_u32 s{s_t1}, s{s_t1}, s{s_t2}")
I(f"v_add3_u32 v16, v16, v17, s{s_t1}")
I(f"s_and_b32 s{s_t1}, s{s_wave}, 3")
I(f"s_lshl_b32 s{s_t1}, s{s_t1}, 12")
I(f"s_xor_b32 s{s_t2}, s{s_t1}, {2 << 12}")
I(f"s_add_u32 s{s_t1}, s{s_t1}, {XCH}")
I(f"s_add_u32 s{s_t2}, s{s_t2}, {XCH}")
I(f"v_add_u32 v17, s{s_t1}, v9")
I(f"v_add_u32 v18, s{s_t2}, v9")
if args.otr:
    I("v_and_b32 v25, 31, v1")
    I(f"s_and_b32 s{s_t1}, s{s_wave}, 1")
    I(f"s_lshl_b32 s{s_t1}, s{s_t1}, 12")
    I(f"s_add_u32 s{s_t1}, s{s_t1}, {OTR}")
    I(f"v_lshl_add_u32 v26, v25, 7, s{s_t1}")
    I("v_lshrrev_b32 v27, 5, v1")
    I(f"s_lshl_b32 s{s_t2}, s{s_t0}, 1")
    I(f"v_add_lshl_u32 v27, v27, s{s_t2}, 1")
    I("v_and_b32 v25, 7, v25")
    I("v_xor_b32 v27, v27, v25")
    I("v_lshl_add_u32 v25, v27, 4, v26")
    I("v_xor_b32 v26, 16, v25")
    if args.otr == 1:
        I("v_lshrrev_b32 v27, 2, v1")
        I("v_and_b32 v28, 3, v1")
        I(f"s_lshl_b32 s{s_t2}, s{s_t0}, 2")
        I(f"v_add_u32 v28, s{s_t2}, v28")
        rowstep = 16
    else:
        I("v_lshrrev_b32 v27, 3, v1")
        I(f"s_lshl_b32 s{s_t2}, s{s_t0}, 4")
        I(f"v_add_u32 v27, s{s_t2}, v27")
        I("v_and_b32 v28, 7, v1")
        rowstep = 8
    I(f"s_and_b32 s{s_t2}, s{s_wave}, 1")
    I(f"s_lshl_b32 s{s_t3}, s{s_rb}, 1")
    I(f"s_add_u32 s{s_t2}, s{s_t2}, s{s_t3}")
    I(f"s_lshl_b32 s{s_t2}, s{s_t2}, 15")
    I(f"s_lshl_b32 s{s_t3}, s{s_cb}, 7")
    I(f"s_add_u32 s{s_t2}, s{s_t2}, s{s_t3}")
    I(f"v_lshl_add_u32 v16, v27, 10, s{s_t2}")
    I("v_lshl_add_u32 v16, v28, 4, v16")
    I(f"v_add_u32 v29, {rowstep*1024}, v16")
    I("v_and_b32 v30, 7, v27")
    I("v_xor_b32 v28, v28, v30")
    I(f"v_lshl_add_u32 v27, v27, 7, s{s_t1}")
    I("v_lshl_add_u32 v27, v28, 4, v27")
for r in range(0, 32, 2):
    I(f"v_mov_b64 v[{ACC+r}:{ACC+r+1}], 0")
if args.align:
    I(f"s_branch {P}_c_spin"); e(".p2align 12")
L(f"{P}_c_spin")
I("ds_read_b32 v24, v22")
I("s_waitcnt lgkmcnt(0)")
I(f"v_readfirstlane_b32 s{s_t0}, v24")
I("s_nop 0")
I(f"s_cmp_eq_u32 s{s_t0}, 0")
I(f"s_cbranch_scc1 {P}_c_spin")
stamp(5)
if "p2" in args.diag: stamp(1, True)
def hload(s):
    b = HR + 4 * (s % R)
    return [f"buffer_load_dwordx4 v[{b}:{b+3}], v9, {srd(sH)}, s{s_p} offen sc1",
            f"s_add_u32 s{s_p}, s{s_p}, 1024",
            f"s_cmp_eq_u32 s{s_p}, s{s_pend}",
            f"s_cselect_b32 s{s_p}, s{s_pbeg}, s{s_p}"]
for s in range(args.hpro):
    for x in hload(s): I(x)
issued = args.hpro
def mm2(s, nb):
    hb = HR + 4 * (s % R); wd = wdst(s)
    return f"v_mfma_f32_32x32x16_bf16 v[{ACC+16*nb}:{ACC+16*nb+15}], v[{wd+4*nb}:{wd+4*nb+3}], v[{hb}:{hb+3}], v[{ACC+16*nb}:{ACC+16*nb+15}]"
for s in range(43):
    u = s + 2
    young = 1 if NPRE <= s + 1 < 43 else 0
    I(f"s_waitcnt vmcnt({issued - s - 1}) lgkmcnt({4*young})")
    if "p2" in args.diag and s in (0, 5, 11, 21, 32, 42): stamp({0:2, 5:3, 11:4, 21:5, 32:6, 42:7}[s], True)
    if u == wdone: I("s_barrier")
    wr = wreads(u, wdst(u)) if NPRE <= u < 43 else []
    I(mm2(s, 1))
    for r in wr[:2]: I(r)
    if issued < 43 and issued - R < s:
        for x in hload(issued): I(x)
        issued += 1
    if s < 43 - TN: I(mm2(s, 0))
    for r in wr[2:]: I(r)
    if issued < 43 and issued - R < s and issued - s - 1 < R - 1:
        for x in hload(issued): I(x)
        issued += 1
stamp(6)
if FIN: stamp(2, True)
tl = [mm2(s, 0) for s in range(43 - TN, 43)]
if tl: I(tl.pop(0))
I("s_nop 7")
I("s_nop 3")
for q in range(4):
    I(f"ds_write_b128 v17, v[{ACC+16+4*q}:{ACC+19+4*q}] offset:{q*1024}")
    if tl and q % 2 == 1: I(tl.pop(0))
for x in tl: I(x)
I("s_waitcnt lgkmcnt(0)")
if FIN: stamp(3, True)
I("s_barrier")
if FIN: stamp(4, True)
for q in range(4):
    I(f"ds_read_b128 v[{128+4*q}:{131+4*q}], v18 offset:{q*1024}")
I("s_nop 5")
for q in range(4):
    I(f"s_waitcnt lgkmcnt({3-q + (1 if args.otr and q >= 2 else 0)})")
    for p in range(2):
        I(f"v_pk_add_f32 v[{ACC+4*q+2*p}:{ACC+4*q+2*p+1}], v[{ACC+4*q+2*p}:{ACC+4*q+2*p+1}], v[{128+4*q+2*p}:{129+4*q+2*p}]")
    for p in range(2):
        I(f"v_cvt_pk_bf16_f32 v{144+2*q+p}, v{ACC+4*q+2*p}, v{ACC+4*q+2*p+1}")
    if q == 1:
        if args.otr: I("ds_write_b128 v25, v[144:147]")
        else: I(f"buffer_store_dwordx4 v[144:147], v16, {srd(sO)}, 0 offen {args.ost}")
if args.otr:
    I("ds_write_b128 v26, v[148:151]")
    if args.otr == 2:
        I("s_waitcnt lgkmcnt(0)")
        I("s_barrier")
        if FIN: stamp(5, True)
    I("ds_read_b128 v[152:155], v27")
    I(f"ds_read_b128 v[156:159], v27 offset:{rowstep*128}")
    I("s_waitcnt lgkmcnt(1)")
    I(f"buffer_store_dwordx4 v[152:155], v16, {srd(sO)}, 0 offen {args.ost}")
    I("s_waitcnt lgkmcnt(0)")
    I(f"buffer_store_dwordx4 v[156:159], v29, {srd(sO)}, 0 offen {args.ost}")
else:
    I(f"buffer_store_dwordx4 v[148:151], v16, {srd(sO)}, 0 offen offset:16 {args.ost}")
if "dirty" in args.diag:
    n = int(re.search(r"dirty(\d+)", args.diag).group(1))
    I(f"s_mov_b32 s{sH+2}, {64 << 20}")
    I(f"s_lshl_b32 s{s_t0}, s2, 2")
    I(f"s_add_u32 s{s_t0}, s{s_t0}, s{s_wave}")
    I(f"s_mul_i32 s{s_t0}, s{s_t0}, {n*1024}")
    I(f"s_add_u32 s{s_t0}, s{s_t0}, {16 << 20}")
    for i in range(n):
        I(f"buffer_store_dwordx4 v[144:147], v9, {srd(sH)}, s{s_t0} offen")
        I(f"s_add_u32 s{s_t0}, s{s_t0}, 1024")
if FIN: stamp(6, True)
if STAMPS: I("s_waitcnt vmcnt(0)")
stamp(7, True)
if args.amp and args.amp != "none" and not args.amp.startswith("L"): amp_block(args.amp, "c")
prof_store()
I("s_endpgm")
COLD_MARK = len(out)
L(f"{P}_c_lazy")
for i in range(8): I("s_barrier")
if ADAPT: I("s_mov_b64 exec, 1"); I("ds_add_u32 v22, v23 offset:8"); I("s_mov_b64 exec, -1")
I(f"s_branch {P}_c_epidone")
L(f"{P}_c_idle")
srd_tail(sX, XB); srd_tail(sW2, W2B)
prefetch_jobs()
I(f"s_branch {P}_c_epidone")
out += loader_tail
if args.align:
    cold = out[COLD_MARK:]; del out[COLD_MARK:]
    i = out.index("@COLD@"); out[i:i+1] = cold
L(f"{P}_codeend")

e('.section .rodata,"a"')
e(".p2align 6")
e(f".amdhsa_kernel {label}")
for l in ("next_free_vgpr 256", "next_free_sgpr 102", "accum_offset 256", "group_segment_fixed_size 0", "kernarg_size 56",
          "user_sgpr_count 2", "user_sgpr_kernarg_segment_ptr 1", "system_sgpr_workgroup_id_x 1", "float_denorm_mode_32 3"):
    e("  .amdhsa_" + l)
e(".end_amdhsa_kernel")

text = "\n".join(out) + "\n"
def symbols(t):
    with tempfile.TemporaryDirectory() as d:
        open(d + "/k.s", "w").write(t)
        subprocess.run(["clang", "-x", "assembler", "-target", "amdgcn-amd-amdhsa", "-mcpu=gfx950", "-c", d + "/k.s", "-o", d + "/k.o"], check=True)
        sym = subprocess.run(["llvm-objdump", "-t", d + "/k.o"], capture_output=True, text=True).stdout
    return {m.group(2): int(m.group(1), 16) for m in re.finditer(r"^([0-9a-f]{16}) .*\s(\S+)$", sym, re.M)}
a = symbols(text.replace("@CODELINES@", "100"))
assert a[f"{P}_codeend"] < 16384
sys.stderr.write(f"code {a[f'{P}_codeend']} B: loop@{a[f'{P}_l_loop']} compute@{a[f'{P}_compute']} cloop@{a[f'{P}_c_loop']} p2@{a[f'{P}_c_p2']} ltail@{a[f'{P}_l_tail']}\n")
open(args.o, "w").write(text)
```

```python
import sys, argparse, subprocess, tempfile, re

ap = argparse.ArgumentParser()
ap.add_argument("-o", default="standalone__glu_gated_swiglu__prompt.s")
ap.add_argument("--prof", action="store_true")
ap.add_argument("--cyc", action="store_true")
ap.add_argument("--amp", default="")
ap.add_argument("--diag", default="")
ap.add_argument("--xrot", type=int, default=4)
ap.add_argument("--hring", type=int, default=12)
ap.add_argument("--hpro", type=int, default=10)
ap.add_argument("--sleep", type=int, default=0)
ap.add_argument("--codepf", type=int, default=1)
ap.add_argument("--prio", type=int, default=1)
ap.add_argument("--atb6", type=int, default=8)
ap.add_argument("--kmin", type=int, default=20)
ap.add_argument("--stopat", type=int, default=-1)
ap.add_argument("--pace2", type=int, default=10)
ap.add_argument("--pace", type=int, default=13)
ap.add_argument("--barpos", type=int, default=16)
ap.add_argument("--rpg", type=int, default=2)
ap.add_argument("--gapc", type=int, default=8)
ap.add_argument("--pkfrom", type=int, default=1)
ap.add_argument("--tailn", type=int, default=3)
ap.add_argument("--jobx3", type=int, default=0)
ap.add_argument("--job3", type=int, default=1)
ap.add_argument("--jobM", type=int, default=0)
ap.add_argument("--jobX", type=int, default=1)
ap.add_argument("--otr", type=int, default=1)
ap.add_argument("--ost", default="sc1")
ap.add_argument("--prew", type=int, default=0)
ap.add_argument("--align", type=int, default=1)
ap.add_argument("--lprio", type=int, default=0)
ap.add_argument("--wfirst", type=int, default=1)
ap.add_argument("--sprio", type=int, default=0)
ap.add_argument("--dlate", type=int, default=1)
ap.add_argument("--trk", type=int, default=0)
ap.add_argument("--post", type=int, default=10)
ap.add_argument("--sflag", type=int, default=1)
ap.add_argument("--pace3", type=int, default=0)
ap.add_argument("--morder", type=int, default=1)
ap.add_argument("--fsleep", type=int, default=0)
ap.add_argument("--tlbw", type=int, default=0)
ap.add_argument("--map", type=int, default=0)
ap.add_argument("--burst", type=int, default=2)
ap.add_argument("--stouch", type=int, default=0)
ap.add_argument("--wb1", type=int, default=0)
args = ap.parse_args()

NAME = "standalone__glu_gated_swiglu__prompt"
out = []
def e(s=""): out.append(s)
def I(s): out.append("    " + s)
def L(s): out.append(s + ":")

S, D, F = 2048, 512, 1376
XB, WB, W2B, OB = S * D * 2, D * F * 2, F * D * 2, S * D * 2
HSTR = 87
WS_REC = 8 << 20
PROF_OFF = 7 << 20
SLOT0, SLOTSZ, LDS_SCR, LDS_TOTAL = 36864 + 40960, 40960, 159744, 163840
def unit_addr(u): return (u % 39) * 4096
XCH = 4 * 4096
OTR = 8 * 4096

sX, sW1, sW3, sW2, sH, sO, sD = 20, 24, 28, 32, 36, 40, 44
s_wave, s_mg4, s_sh, s_mt, s_sl, s_rb, s_cb = 48, 49, 50, 51, 52, 53, 54
s_t0, s_t1, s_t2, s_t3 = 55, 56, 57, 58
s_cnt, s_kst, s_sx, s_sw, s_ring = 59, 60, 61, 62, 63
s_lx, s_lw, s_rot2, s_fl = 64, 65, 66, 67
s_k = 68
s_xb, s_wb, s_lu = 69, 70, 71
s_hoff = 72
s_p, s_pend, s_pbeg, s_valid = 78, 79, 80, 81
s_u, s_lim = 75, 76
s_prof = 84
def srd(r): return f"s[{r}:{r+3}]"
STAMPS = args.prof or args.amp
MUTE = [False]
def stamp(i, force=False):
    if "clk" in args.diag:
        m = {1: 0, 2: 1, 4: 2, 5: 3}
        if i in m:
            I(f"s_memrealtime s[{s_prof+2*m[i]}:{s_prof+2*m[i]+1}]"); I(f"s_memtime s[{s_prof+8+2*m[i]}:{s_prof+9+2*m[i]}]")
        return
    if MUTE[0] and not force: return
    if STAMPS: I(f"{'s_memtime' if args.cyc else 's_memrealtime'} s[{s_prof+2*i}:{s_prof+2*i+1}]")
def srd_tail(r, nbytes):
    I(f"s_mov_b32 s{r+2}, {nbytes}")
    I(f"s_mov_b32 s{r+3}, 0x20000")
def prof_store():
    if not args.prof: return
    I("s_waitcnt lgkmcnt(0)")
    I(f"s_lshl_b32 s{s_t0}, s2, 3")
    I(f"s_xor_b32 s{s_t1}, s{s_wave}, 4")
    I(f"s_add_u32 s{s_t0}, s{s_t0}, s{s_t1}")
    I(f"s_lshl_b32 s{s_t0}, s{s_t0}, 5")
    I(f"s_add_u32 s{s_t0}, s{s_t0}, {PROF_OFF}")
    for i in range(8): I(f"v_mov_b32 v{240+i}, s{s_prof+2*i}")
    I("v_mov_b32 v248, 0")
    I("s_mov_b64 exec, 1")
    I(f"buffer_store_dwordx4 v[240:243], v248, {srd(sH)}, s{s_t0} offen")
    I(f"buffer_store_dwordx4 v[244:247], v248, {srd(sH)}, s{s_t0} offen offset:16")
    I("s_mov_b64 exec, -1")
P = "K"
def amp_block(spec, tag):
    ai, aj = [int(t) for t in spec.split(",")]
    I("s_waitcnt lgkmcnt(0)")
    I(f"s_sub_u32 s{s_t0}, s{s_prof+2*aj}, s{s_prof+2*ai}")
    I(f"s_cmp_eq_u32 s{s_prof+2*ai}, 0")
    I(f"s_cselect_b32 s{s_t0}, 0, s{s_t0}")
    I(f"s_cmp_eq_u32 s{s_prof+2*aj}, 0")
    I(f"s_cselect_b32 s{s_t0}, 0, s{s_t0}")
    I(f"s_min_u32 s{s_t0}, s{s_t0}, 20000")
    I(f"s_mul_i32 s{s_t0}, s{s_t0}, 10")
    I("s_memrealtime s[82:83]")
    I("s_waitcnt lgkmcnt(0)")
    I(f"s_mov_b32 s{s_t1}, s82")
    L(f"{P}_amp{tag}")
    I("s_memrealtime s[82:83]")
    I("s_waitcnt lgkmcnt(0)")
    I(f"s_sub_u32 s{s_t2}, s82, s{s_t1}")
    I(f"s_cmp_lt_u32 s{s_t2}, s{s_t0}")
    I(f"s_cbranch_scc1 {P}_amp{tag}")

def kst_init():
    if args.map and args.xrot == 1:
        I(f"s_lshl_b32 s{s_kst}, s{s_sh}, 2")
        I(f"s_xor_b32 s{s_kst}, s{s_kst}, s{s_mg4}")
        I(f"s_and_b32 s{s_kst}, s{s_kst}, 4")
    elif args.map and args.xrot == 4:
        I(f"s_lshr_b32 s{s_kst}, s{s_mg4}, 1")
        I(f"s_lshl_b32 s{s_cnt}, s{s_sh}, 2")
        I(f"s_add_u32 s{s_kst}, s{s_kst}, s{s_cnt}")
        I(f"s_and_b32 s{s_kst}, s{s_kst}, 7")
    elif args.xrot == 1:
        I(f"s_add_u32 s{s_kst}, s2, s{s_sh}")
        I(f"s_and_b32 s{s_kst}, s{s_kst}, 1")
        I(f"s_lshl_b32 s{s_kst}, s{s_kst}, 2")
    elif args.xrot == 4:
        I(f"s_lshl_b32 s{s_kst}, s{s_sh}, 1")
        I(f"s_add_u32 s{s_kst}, s{s_kst}, s2")
        I(f"s_and_b32 s{s_kst}, s{s_kst}, 3")
        I(f"s_lshl_b32 s{s_kst}, s{s_kst}, 1")
    elif args.xrot == 5:
        I(f"s_lshl_b32 s{s_kst}, s{s_sh}, 1")
        I(f"s_add_u32 s{s_kst}, s{s_kst}, s2")
        I(f"s_and_b32 s{s_kst}, s{s_kst}, 3")
        I(f"s_add_u32 s{s_cnt}, s{s_mt}, s{s_sl}")
        I(f"s_and_b32 s{s_cnt}, s{s_cnt}, 1")
        I(f"s_lshl_b32 s{s_cnt}, s{s_cnt}, 2")
        I(f"s_add_u32 s{s_kst}, s{s_kst}, s{s_cnt}")
    elif args.xrot == 6:
        I(f"s_add_u32 s{s_kst}, s2, s{s_sh}")
        I(f"s_and_b32 s{s_kst}, s{s_kst}, 1")
        I(f"s_lshl_b32 s{s_kst}, s{s_kst}, 1")
        I(f"s_add_u32 s{s_cnt}, s{s_mt}, s{s_sl}")
        I(f"s_and_b32 s{s_cnt}, s{s_cnt}, 1")
        I(f"s_lshl_b32 s{s_cnt}, s{s_cnt}, 2")
        I(f"s_add_u32 s{s_kst}, s{s_kst}, s{s_cnt}")
    else:
        I(f"s_mov_b32 s{s_kst}, 0")

def decode2():
    I(f"s_lshl_b32 s{s_t0}, s{s_sh}, 1")
    I(f"s_add_u32 s{s_t0}, s{s_t0}, s{s_mg4}")
    I(f"s_lshl_b32 s{s_t0}, s{s_t0}, 1")
    I(f"s_lshr_b32 s{s_t1}, s2, 6")
    I(f"s_add_u32 s{s_rb}, s{s_t0}, s{s_t1}")
    I(f"s_bfe_u32 s{s_cb}, s2, {3 | (3 << 16)}")
    I(f"s_mul_i32 s{s_rot2}, s{s_t1}, 11")

label = NAME + "_kernel"
e(f"; @launch grid=(256,1,1) block=(512,1,1) lds={LDS_TOTAL}")
e('.amdgcn_target "amdgcn-amd-amdhsa--gfx950"')
e(".text")
e(f".globl {label}")
e(".p2align 8")
e(f".type {label},@function")
L(label)
I("s_cmp_ge_u32 s2, 256")
I(f"s_cbranch_scc1 {P}_end")
for r, off in ((sX, 0), (sW1, 8), (sW3, 16), (sW2, 24), (sO, 32), (sD, 40), (sH, 48)):
    I(f"s_load_dwordx2 s[{r}:{r+1}], s[0:1], {off}")
if STAMPS:
    for i in range(8): I(f"s_mov_b32 s{s_prof+2*i}, 0")
if "delay" in args.diag:
    for i in range(int(re.search(r"delay(\d+)", args.diag).group(1))): I("s_sleep 18")
stamp(0)
I("v_lshrrev_b32 v2, 6, v0")
I("v_and_b32 v1, 63, v0")
I(f"v_readfirstlane_b32 s{s_wave}, v2")
if args.map:
    I(f"s_and_b32 s{s_mg4}, s2, 6")
    I(f"s_lshl_b32 s{s_mg4}, s{s_mg4}, 1")
else:
    I(f"s_and_b32 s{s_mg4}, s2, 3")
    I(f"s_lshl_b32 s{s_mg4}, s{s_mg4}, 2")
I(f"s_cmp_lt_u32 s{s_wave}, 4")
I(f"s_cbranch_scc1 {P}_dec")
if args.codepf:
    I("s_getpc_b64 s[18:19]")
    L(f"{P}_pc")
    I("v_bfe_u32 v60, v0, 1, 7")
    I("v_lshlrev_b32 v60, 7, v60")
    I(f"v_min_u32 v60, {P}_codeend-{P}_pc-4, v60")
    I("global_load_dword v61, v60, s[18:19]")
L(f"{P}_dec")
I(f"s_bfe_u32 s{s_sh}, s2, {(0 if args.map else 2) | (1 << 16)}")
I(f"s_bfe_u32 s{s_t2}, s2, {3 | (2 << 16)}")
I(f"s_lshr_b32 s{s_t3}, s2, 5")
I(f"s_add_u32 s{s_mt}, s{s_mg4}, s{s_t2}")
I(f"s_mul_i32 s{s_sl}, s{s_sh}, 7")
I(f"s_add_u32 s{s_sl}, s{s_sl}, s{s_t3}")
I(f"s_cmp_lg_u32 s{s_t3}, 7")
I(f"s_cbranch_scc1 {P}_dec2")
I(f"s_lshl_b32 s{s_t0}, s{s_sh}, 1")
I(f"s_and_b32 s{s_t1}, s{s_t2}, 1")
I(f"s_add_u32 s{s_mt}, s{s_mg4}, s{s_t0}")
I(f"s_add_u32 s{s_mt}, s{s_mt}, s{s_t1}")
I(f"s_lshr_b32 s{s_sl}, s{s_t2}, 1")
I(f"s_add_u32 s{s_sl}, s{s_sl}, 14")
L(f"{P}_dec2")
I(f"s_cmp_ge_u32 s{s_wave}, 4")
I(f"s_cbranch_scc1 {P}_compute")

MUTE[0] = "stages" in args.diag
vX = [2, 3, 4, 5]; vW = [6, 7, 8]; vW2 = 13
vFA, vFS, vFN = 20, 21, 22
if args.lprio: I(f"s_setprio {args.lprio}")
I("v_lshrrev_b32 v14, 3, v1")
I("v_lshrrev_b32 v15, 4, v1")
I("v_and_b32 v16, 7, v1")
I("v_xor_b32 v15, v15, v16")
I("v_lshlrev_b32 v14, 10, v14")
I(f"v_lshl_add_u32 v{vX[0]}, v15, 4, v14")
I(f"v_xor_b32 v{vX[1]}, 64, v{vX[0]}")
I(f"v_add_u32 v{vX[1]}, 7168, v{vX[1]}")
I(f"v_add_u32 v{vX[2]}, 14336, v{vX[0]}")
I(f"v_add_u32 v{vX[3]}, 14336, v{vX[1]}")
I(f"s_bitcmp1_b32 s{s_sl}, 0")
I(f"s_cselect_b32 s{s_t0}, -64, 64")
I(f"s_cselect_b32 s{s_t1}, 128, 0")
I(f"s_cmp_eq_u32 s{s_sl}, 14")
I(f"s_cselect_b32 s{s_t0}, {1 << 21}, s{s_t0}")
I(f"s_mul_i32 s{s_t2}, s{s_t0}, -3")
I(f"s_add_u32 s{s_t2}, s{s_t2}, 2752")
I("v_lshrrev_b32 v14, 2, v1")
I("v_and_b32 v15, 3, v1")
I(f"v_lshl_add_u32 v15, v15, 4, s{s_t1}")
I("v_and_b32 v16, 32, v1")
for j in range(3):
    if j: I(f"v_add_u32 v14, 16, v14")
    I("v_mul_u32_u24 v17, 43, v14")
    if j == 0: I("v_mov_b32 v18, v15")
    if j == 1: I("v_xor_b32 v18, v15, v16")
    if j == 2: I("v_xor_b32 v18, 32, v15")
    I("v_lshrrev_b32 v17, 7, v17")
    I(f"v_mad_i32_i24 v18, v14, s{s_t0}, v18")
    I(f"v_mad_i32_i24 v{vW[j]}, v17, s{s_t2}, v18")
    if j: I(f"v_subrev_u32 v{vW[j]}, {1024*j}, v{vW[j]}")
I(f"s_lshl_b32 s{s_lx}, s{s_wave}, 12")
I(f"s_add_u32 s{s_lx}, s{s_lx}, {SLOT0}")
I(f"s_mul_i32 s{s_lw}, s{s_wave}, 6144")
I(f"s_add_u32 s{s_lw}, s{s_lw}, {SLOT0+16384}")
I(f"s_lshl_b32 s{s_xb}, s{s_mt}, 17")
I(f"s_lshl_b32 s{s_t0}, s{s_wave}, 15")
I(f"s_add_u32 s{s_xb}, s{s_xb}, s{s_t0}")
I(f"s_mul_i32 s{s_wb}, s{s_sl}, 192")
I(f"s_mul_i32 s{s_t0}, s{s_wave}, {16*2752}")
I(f"s_add_u32 s{s_wb}, s{s_wb}, s{s_t0}")
kst_init()
I(f"s_mov_b32 s{s_cnt}, 0")
I(f"s_mov_b32 s{s_ring}, {SLOTSZ}")
srd_tail(sX, XB); srd_tail(sW1, WB); srd_tail(sW3, WB)
I(f"s_cmp_ge_u32 s{s_sl}, 15")
I(f"s_cbranch_scc1 {P}_l_init")
I(f"s_lshl_b32 s{s_t0}, s{s_kst}, 7")
I(f"s_add_u32 s{s_sx}, s{s_xb}, s{s_t0}")
I(f"s_mul_i32 s{s_sw}, s{s_kst}, {64*2752}")
I(f"s_add_u32 s{s_sw}, s{s_sw}, s{s_wb}")
I(f"s_mov_b32 m0, s{s_lx}")
I("s_waitcnt lgkmcnt(0)")
if args.tlbw:
    I(f"s_load_dword s3, s[{sW1}:{sW1+1}], s{s_sw}")
    I(f"s_load_dword s4, s[{sW3}:{sW3+1}], s{s_sw}")
    if args.tlbw > 1:
        I(f"s_load_dword s5, s[{sW2}:{sW2+1}], 0")
        I(f"s_load_dword s6, s[{sO}:{sO+1}], 0")
stamp(1)
def issueS(tag):
    for j in range(0 if args.wfirst else 4):
        I(f"buffer_load_dwordx4 v{vX[j]}, {srd(sX)}, s{s_sx} offen offset:{1024*j} lds")
    I(f"s_mov_b32 m0, s{s_lw}")
    I(f"s_add_u32 s{s_kst}, s{s_kst}, 1")
    for j in range(3):
        I(f"buffer_load_dwordx4 v{vW[j]}, {srd(sW1)}, s{s_sw} offen offset:{1024*j} lds")
    I("s_add_u32 m0, m0, 3072")
    I(f"s_and_b32 s{s_kst}, s{s_kst}, 7")
    for j in range(3):
        I(f"buffer_load_dwordx4 v{vW[j]}, {srd(sW3)}, s{s_sw} offen offset:{1024*j} lds")
    if args.wfirst:
        I(f"s_mov_b32 m0, s{s_lx}"); I("s_nop 0")
        for j in range(4):
            I(f"buffer_load_dwordx4 v{vX[j]}, {srd(sX)}, s{s_sx} offen offset:{1024*j} lds")
    I(f"s_lshl_b32 s{s_t0}, s{s_kst}, 7")
    I(f"s_add_u32 s{s_sx}, s{s_xb}, s{s_t0}")
    I(f"s_mul_i32 s{s_sw}, s{s_kst}, {64*2752}")
    I(f"s_add_u32 s{s_sw}, s{s_sw}, s{s_wb}")
    I(f"s_cmp_ge_u32 s{s_lx}, {SLOT0+SLOTSZ}")
    I(f"s_cselect_b32 s{s_t0}, {-2*SLOTSZ & 0xffffffff}, s{s_ring}")
    I(f"s_add_u32 s{s_lx}, s{s_lx}, s{s_t0}")
    I(f"s_add_u32 s{s_lw}, s{s_lw}, s{s_t0}")
    I(f"s_mov_b32 m0, s{s_lx}")
    I(f"s_add_u32 s{s_cnt}, s{s_cnt}, 1")
L(f"{P}_l_loop")
issueS("a")
I(f"s_cmp_eq_u32 s{s_cnt}, 1")
I(f"s_cbranch_scc1 {P}_l_loop")

wcount = [0]
def w_one():
    I(f"buffer_load_dwordx4 v{vW2}, {srd(sW2)}, s{s_p} offen lds")
    I(f"s_add_u32 s{s_p}, s{s_p}, 16384")
    I(f"s_cmp_eq_u32 s{s_p}, s{s_pend}")
    I(f"s_cselect_b32 s{s_p}, s{s_pbeg}, s{s_p}")
    I("s_add_u32 m0, m0, 4096")
    I(f"s_add_u32 s{s_u}, s{s_u}, 1")
def issueW(lim, pace=0):
    lab = f"{P}_l_w{wcount[0]}"; wcount[0] += 1
    I(f"s_cmp_ge_u32 s{s_u}, {lim}")
    I(f"s_cbranch_scc1 {lab}e")
    L(lab)
    if pace: I(f"s_waitcnt vmcnt({pace-1})")
    w_one()
    I(f"s_cmp_lt_u32 s{s_u}, {lim}")
    I(f"s_cbranch_scc1 {lab}")
    L(lab + "e")

L(f"{P}_l_init")
decode2()
srd_tail(sW2, W2B); srd_tail(sH, WS_REC); srd_tail(sD, 256)
I("v_lshrrev_b32 v14, 3, v1")
I(f"s_and_b32 s{s_t0}, s{s_wave}, 1")
I(f"s_lshl_b32 s{s_t0}, s{s_t0}, 3")
I(f"s_lshr_b32 s{s_t1}, s{s_wave}, 1")
I(f"s_mul_i32 s{s_t1}, s{s_t1}, 688")
I(f"s_add_u32 s{s_t0}, s{s_t0}, s{s_t1}")
I(f"v_add_u32 v14, s{s_t0}, v14")
I("v_lshlrev_b32 v14, 10, v14")
I("v_lshrrev_b32 v15, 2, v1")
I("v_and_b32 v15, 4, v15")
I("v_and_b32 v16, 7, v1")
I("v_xor_b32 v15, v15, v16")
I(f"v_lshl_add_u32 v{vW2}, v15, 4, v14")
I(f"s_lshl_b32 s{s_pbeg}, s{s_cb}, 7")
I(f"s_add_u32 s{s_pend}, s{s_pbeg}, {43*16384}")
I(f"s_lshl_b32 s{s_t0}, s{s_rot2}, 14")
I(f"s_add_u32 s{s_p}, s{s_pbeg}, s{s_t0}")
I(f"s_lshl_b32 s{s_lu}, s{s_wave}, 10")
I(f"s_lshr_b32 s{s_t0}, s{s_rb}, 1")
I(f"s_mul_i32 s{s_fl}, s{s_t0}, {4*HSTR*1024}")
I(f"s_add_u32 s{s_fl}, s{s_fl}, {86*1024}")
I("v_min_u32 v14, 15, v1")
I(f"s_lshl_b32 s{s_valid}, 1, s{s_sl}")
I(f"s_cmp_eq_u32 s{s_t0}, s{s_mt}")
I(f"s_cselect_b32 s{s_t1}, s{s_sl}, 15")
I(f"s_cselect_b32 s{s_valid}, s{s_valid}, 0")
I(f"v_cmp_eq_u32 vcc, s{s_t1}, v14")
I("v_mov_b32 v15, 15")
I("s_nop 0")
I("v_cndmask_b32 v14, v14, v15, vcc")
I("v_lshrrev_b32 v15, 3, v14")
I(f"v_mul_u32_u24 v15, {HSTR*1024}, v15")
I("v_and_b32 v14, 7, v14")
I(f"v_lshl_add_u32 v{vFA}, v14, 7, v15")
I("s_waitcnt lgkmcnt(0)")
I(f"s_cmp_lg_u32 s{s_wave}, 0")
I(f"s_cbranch_scc1 {P}_l_nosamp")
I(f"buffer_load_dword v{vFS}, v{vFA}, {srd(sH)}, s{s_fl} offen sc1")
L(f"{P}_l_nosamp")
I(f"s_cmp_ge_u32 s{s_sl}, 15")
I(f"s_cbranch_scc1 {P}_l_idle")
if args.stouch:
    I(f"s_lshr_b32 s{s_t0}, s2, 3")
    I(f"s_lshl_b32 s{s_t0}, s{s_t0}, 2")
    I(f"s_add_u32 s{s_t0}, s{s_t0}, s{s_wave}")
    I(f"s_mul_i32 s{s_t0}, s{s_t0}, {11*1024}")
    I(f"s_add_u32 s18, s{sW2}, s{s_t0}")
    I(f"s_addc_u32 s19, s{sW2+1}, 0")
I(f"s_mov_b32 s{s_u}, 0")
if args.trk: I("s_waitcnt vmcnt(10)")
L(f"{P}_l_wait")
I(f"s_waitcnt vmcnt({10 + args.trk})")
if "b0" in args.diag:
    I(f"s_cmp_lg_u32 s{s_cnt}, 2"); I(f"s_cbranch_scc1 {P}_l_nb0"); stamp(7, True); L(f"{P}_l_nb0")
I("s_barrier")
if "stages" in args.diag:
    for c in range(1, 7):
        I(f"s_cmp_lg_u32 s{s_cnt}, {c+2}"); I(f"s_cbranch_scc1 {P}_l_st{c}"); stamp(c, True); L(f"{P}_l_st{c}")
I(f"s_cmp_ge_u32 s{s_cnt}, 8")
I(f"s_cbranch_scc1 {P}_l_tail")
issueS("b")
if args.trk:
    I(f"s_lshl_b32 s{s_t0}, s{s_u}, 12")
    I(f"s_add_u32 m0, s{s_lu}, s{s_t0}")
    I("s_nop 0")
    for i in range(args.trk): w_one()
    I(f"s_mov_b32 m0, s{s_lx}")
I(f"s_branch {P}_l_wait")
LOADER_TAIL_MARK = len(out)

pfc = [0]
def prefetch_jobs():
    tag = pfc[0]; pfc[0] += 1
    I(f"s_bfe_u32 s{s_t2}, s2, {3 | (1 << 16)}")
    if args.jobX:
        kst_init()
        I("v_lshlrev_b32 v40, 10, v1")
        if args.jobX == 2:
            I(f"s_cmp_ge_u32 s{s_mg4}, 8")
            I(f"s_cbranch_scc1 {P}_pf{tag}_e")
            I(f"s_add_u32 s{s_t0}, s{s_mg4}, 8")
            I(f"s_lshl_b32 s{s_t0}, s{s_t0}, 17")
            I(f"s_lshl_b32 s{s_t1}, s{s_wave}, 16")
            I(f"s_add_u32 s{s_t0}, s{s_t0}, s{s_t1}")
            I(f"s_add_u32 s{s_t1}, s{s_kst}, s{s_t2}")
            I(f"s_lshl_b32 s{s_t1}, s{s_t1}, 7")
            I(f"s_add_u32 s{s_t0}, s{s_t0}, s{s_t1}")
            I(f"buffer_load_dword v42, v40, {srd(sX)}, s{s_t0} offen")
            L(f"{P}_pf{tag}_e")
        I(f"s_lshl_b32 s{s_t0}, s{s_mg4}, 17")
        I(f"s_lshl_b32 s{s_t1}, s{s_wave}, 16")
        I(f"s_add_u32 s{s_t0}, s{s_t0}, s{s_t1}")
        I(f"s_add_u32 s{s_t1}, s{s_kst}, s{s_t2}")
        I(f"s_add_u32 s{s_t1}, s{s_t1}, 2")
        I(f"s_and_b32 s{s_t1}, s{s_t1}, 7")
        I(f"s_lshl_b32 s{s_t1}, s{s_t1}, 7")
        I(f"s_add_u32 s{s_t0}, s{s_t0}, s{s_t1}")
        I(f"buffer_load_dword v42, v40, {srd(sX)}, s{s_t0} offen")
    def jobB():
        I(f"s_xor_b32 s{s_t0}, s{s_mt}, 2")
        I(f"s_lshl_b32 s{s_t0}, s{s_t0}, 17")
        I(f"s_and_b32 s{s_t1}, s{s_wave}, 1")
        I(f"s_lshl_b32 s{s_t1}, s{s_t1}, 16")
        I(f"s_add_u32 s{s_t0}, s{s_t0}, s{s_t1}")
        I(f"s_lshr_b32 s{s_t1}, s{s_wave}, 1")
        I(f"s_add_u32 s{s_t1}, s{s_t1}, s{s_kst}")
        I(f"s_add_u32 s{s_t1}, s{s_t1}, 4")
        I(f"s_and_b32 s{s_t1}, s{s_t1}, 7")
        I(f"s_lshl_b32 s{s_t1}, s{s_t1}, 7")
        I(f"s_add_u32 s{s_t0}, s{s_t0}, s{s_t1}")
        I(f"buffer_load_dword v42, v40, {srd(sX)}, s{s_t0} offen")
    if args.jobX == 3: jobB()
    if args.jobx3:
        I("v_and_b32 v40, 31, v1")
        I("v_lshlrev_b32 v40, 10, v40")
        I(f"s_lshl_b32 s{s_t0}, s{s_mg4}, 17")
        I(f"s_lshl_b32 s{s_t1}, s{s_t2}, 18")
        I(f"s_add_u32 s{s_t0}, s{s_t0}, s{s_t1}")
        I(f"s_lshl_b32 s{s_t1}, s{s_wave}, 15")
        I(f"s_add_u32 s{s_t0}, s{s_t0}, s{s_t1}")
        I(f"buffer_load_dword v42, v40, {srd(sX)}, s{s_t0} offen offset:384")
    if args.jobM:
        I("v_lshlrev_b32 v41, 7, v1")
        I(f"s_and_b32 s{s_t0}, s2, 7")
        I(f"s_lshl_b32 s{s_t0}, s{s_t0}, 1")
        I(f"s_add_u32 s{s_t0}, s{s_t0}, s{s_t2}")
        I(f"s_lshl_b32 s{s_t1}, s{s_wave}, 4")
        I(f"s_add_u32 s{s_t0}, s{s_t0}, s{s_t1}")
        I(f"s_lshl_b32 s{s_t0}, s{s_t0}, 13")
        I(f"buffer_load_dword v43, v41, {srd(sW2)}, s{s_t0} offen")
        I(f"s_add_u32 s{s_t0}, s{s_t0}, {128*8192}")
        I(f"s_cmp_ge_u32 s{s_t0}, {W2B}")
        I(f"s_cbranch_scc1 {P}_pf{tag}_m")
        I(f"buffer_load_dword v43, v41, {srd(sW2)}, s{s_t0} offen")
        L(f"{P}_pf{tag}_m")
    if args.job3:
        I("v_min_u32 v44, 42, v1")
        I("v_lshlrev_b32 v44, 10, v44")
        I(f"s_mul_i32 s{s_t0}, s{s_t2}, 688")
        I(f"s_mul_i32 s{s_t1}, s{s_wave}, 86")
        I(f"s_add_u32 s{s_t0}, s{s_t0}, s{s_t1}")
        I(f"s_lshl_b32 s{s_t0}, s{s_t0}, 10")
        I(f"buffer_load_dword v45, v44, {srd(sW2)}, s{s_t0} offen offset:384")
        I(f"s_add_u32 s{s_t0}, s{s_t0}, {43*1024}")
        I(f"buffer_load_dword v45, v44, {srd(sW2)}, s{s_t0} offen offset:384")
    if args.jobX == 4: jobB()

L(f"{P}_l_tail")
stamp(2)
I(f"s_add_u32 m0, s{s_lu}, {6*args.trk*4096}")
I(f"v_mov_b32 v17, {LDS_SCR}")
assert 6 * args.trk <= 9 and 6 * args.trk + args.atb6 <= 19
issueW(6 * args.trk + args.atb6)
I(f"s_waitcnt vmcnt({args.atb6 + args.trk})")
I("s_barrier")
if "stages" in args.diag: stamp(7, True)
stamp(3)
issueW(args.kmin, args.pace)
ADAPT = args.stopat >= 0
assert args.kmin <= 29
if ADAPT:
    I(f"s_setprio {args.sprio}")
    if args.stopat < 0: I(f"s_branch {P}_l_stop")
    L(f"{P}_l_str")
    I("ds_read_b64 v[18:19], v17 offset:8")
    I(f"s_waitcnt vmcnt({args.pace2-1}) lgkmcnt(0)")
    I(f"v_readfirstlane_b32 s{s_t0}, v18")
    I(f"v_readfirstlane_b32 s{s_t1}, v19")
    I(f"s_cmp_eq_u32 s{s_t0}, 4")
    I(f"s_cselect_b32 s{s_lim}, 39, 29")
    I(f"s_cmp_lg_u32 s{s_t1}, 0")
    I(f"s_cbranch_scc1 {P}_l_stop")
    I(f"s_cmp_ge_u32 s{s_u}, s{s_lim}")
    I(f"s_cbranch_scc1 {P}_l_full")
    for bi in range(args.burst):
        if bi:
            I(f"s_cmp_ge_u32 s{s_u}, s{s_lim}")
            I(f"s_cbranch_scc1 {P}_l_full")
            I(f"s_waitcnt vmcnt({args.pace2-1})")
        if args.pace3:
            I(f"s_cmp_lg_u32 s{s_cb}, 3")
            I(f"s_cbranch_scc1 {P}_l_p3{bi}")
            I(f"s_waitcnt vmcnt({args.pace3-1})")
            L(f"{P}_l_p3{bi}")
        w_one()
    I(f"s_branch {P}_l_str")
    L(f"{P}_l_full")
    I("s_sleep 1")
    I(f"s_cmp_lt_u32 s{s_u}, 39")
    I(f"s_cbranch_scc1 {P}_l_str")
L(f"{P}_l_stop")
if args.sflag:
    I(f"s_mul_i32 s{s_xb}, s{s_mt}, {4*HSTR*1024}")
    I(f"s_lshr_b32 s{s_t1}, s{s_sl}, 3")
    I(f"s_mul_i32 s{s_t1}, s{s_t1}, {HSTR*1024}")
    I(f"s_add_u32 s{s_xb}, s{s_xb}, s{s_t1}")
    I(f"s_and_b32 s{s_t1}, s{s_sl}, 7")
    I(f"s_lshl_b32 s{s_t1}, s{s_t1}, 7")
    I(f"s_add_u32 s{s_xb}, s{s_xb}, s{s_t1}")
    I(f"s_add_u32 s{s_xb}, s{s_xb}, {86*1024}")
    I(f"s_mov_b32 s{s_wb}, 1")
I("s_waitcnt vmcnt(0)")
if args.post:
    I(f"s_add_u32 s{s_lim}, s{s_u}, {args.post}")
    I(f"s_min_u32 s{s_lim}, s{s_lim}, 39")
    L(f"{P}_l_last")
    I("ds_read_b32 v18, v17 offset:4")
    I("s_waitcnt lgkmcnt(0)")
    I(f"v_readfirstlane_b32 s{s_t0}, v18")
    I("s_nop 0")
    I(f"s_cmp_lt_u32 s{s_t0}, 4")
    I(f"s_cbranch_scc1 {P}_l_last")
    issueW(f"s{s_lim}")
if ADAPT: I("s_setprio 0")
stamp(4)
if "wk" in args.diag:
    I("s_waitcnt lgkmcnt(0)"); I(f"s_mul_i32 s{s_prof+14}, s{s_u}, 10"); I(f"s_add_u32 s{s_prof+14}, s{s_prof+14}, s{s_prof+8}")
if args.sflag:
    I(f"s_cmp_lg_u32 s{s_wave}, 2")
I("s_barrier")
if args.sflag:
    I(f"s_cbranch_scc1 {P}_l_nofl")
    I(f"s_atomic_add s{s_wb}, s[{sH}:{sH+1}], s{s_xb}")
    L(f"{P}_l_nofl")
if not args.dlate:
    I(f"s_cmp_lg_u32 s{s_wave}, 1")
    I(f"s_cbranch_scc1 {P}_l_nofb")
    I(f"s_lshl_b32 s{s_sx}, 1, s{s_sl}")
    I(f"s_lshl_b32 s{s_sw}, s{s_mt}, 4")
    I(f"s_atomic_add s{s_sx}, s[{sD}:{sD+1}], s{s_sw}")
    L(f"{P}_l_nofb")
if args.fsleep: I("s_sleep 1")
if args.wb1:
    I(f"s_add_u32 s{s_lim}, s{s_u}, {args.wb1}")
    I(f"s_min_u32 s{s_lim}, s{s_lim}, 39")
    issueW(f"s{s_lim}")
I(f"s_branch {P}_l_bb")
L(f"{P}_l_idle")
prefetch_jobs()
I(f"s_mov_b32 m0, s{s_lu}")
I(f"s_mov_b32 s{s_u}, 0")
issueW(39)
I("s_waitcnt vmcnt(0)")
I("s_barrier")
L(f"{P}_l_bb")
I("s_barrier")
issueW(39)
I(f"s_mov_b32 m0, s{s_lu}")
issueW(43)
stamp(5)
wdone = args.kmin
if args.dlate:
    I(f"s_cmp_lg_u32 s{s_wave}, 1")
    I(f"s_cbranch_scc1 {P}_l_nofb")
    I(f"s_cmp_ge_u32 s{s_sl}, 15")
    I(f"s_cbranch_scc1 {P}_l_nofb")
    I(f"s_lshl_b32 s{s_sx}, 1, s{s_sl}")
    I(f"s_lshl_b32 s{s_sw}, s{s_mt}, 4")
    I(f"s_atomic_add s{s_sx}, s[{sD}:{sD+1}], s{s_sw}")
    L(f"{P}_l_nofb")
L(f"{P}_l_sel")
I(f"s_cmp_lg_u32 s{s_wave}, 0")
I(f"s_cbranch_scc1 {P}_l_go")
I(f"s_lshr_b32 s{s_t1}, s{s_rb}, 1")
I(f"s_lshl_b32 s{s_t1}, s{s_t1}, 4")
I("v_mov_b32 v18, 0")
I(f"v_mov_b32 v17, {LDS_SCR}")
I("v_mov_b32 v19, 1")
I(f"s_mov_b32 s{s_cnt}, 0")
L(f"{P}_l_poll")
I(f"buffer_load_dword v{vFN}, v{vFA}, {srd(sH)}, s{s_fl} offen sc1")
I(f"s_add_u32 s{s_cnt}, s{s_cnt}, 1")
I("s_waitcnt vmcnt(0)")
I(f"v_cmp_ne_u32 vcc, v{vFN}, v{vFS}")
I(f"s_and_b32 s{s_t0}, s{s_cnt}, {0 if 'fbonly' in args.diag else 31}")
if "fbonly" in args.diag: I("s_mov_b64 vcc, 0")
I(f"s_or_b32 s{s_t2}, vcc_lo, s{s_valid}")
I(f"s_and_b32 s{s_t2}, s{s_t2}, 0x7fff")
I(f"s_cmp_eq_u32 s{s_t2}, 0x7fff")
I(f"s_cbranch_scc1 {P}_l_ok")
if args.sleep: I(f"s_sleep {args.sleep}")
I(f"s_cmp_lg_u32 s{s_t0}, 0")
I(f"s_cbranch_scc1 {P}_l_poll")
I(f"buffer_load_dword v16, v18, {srd(sD)}, s{s_t1} offen sc1")
I("s_waitcnt vmcnt(0)")
I(f"v_readfirstlane_b32 s{s_t0}, v16")
I(f"s_cmp_ge_u32 s{s_cnt}, 4000000")
I(f"s_cbranch_scc1 {P}_l_ok")
I(f"s_or_b32 s{s_t2}, s{s_t2}, s{s_t0}")
I(f"s_cmp_lg_u32 s{s_t2}, 0x7fff")
I(f"s_cbranch_scc1 {P}_l_poll")
L(f"{P}_l_ok")
I("ds_write_b32 v17, v19")
L(f"{P}_l_go")
stamp(6)
I("s_waitcnt vmcnt(0)")
I("s_barrier")
if args.amp.startswith("L"): amp_block(args.amp[1:], "l")
prof_store()
L(f"{P}_end")
I("s_endpgm")
loader_tail = out[LOADER_TAIL_MARK:]
del out[LOADER_TAIL_MARK:]

MUTE[0] = "p2" in args.diag or "fin" in args.diag
FIN = "fin" in args.diag
L(f"{P}_compute")
vAX = [2, 3]; vAW = [6, 7, 8]
ACC = 64
FA, FB = 160, 200
vOLD = 20
if args.prio: I(f"s_setprio {args.prio}")
I(f"s_and_b32 s{s_t0}, s{s_wave}, 1")
I(f"s_lshl_b32 s{s_t0}, s{s_t0}, 13")
I(f"s_add_u32 s{s_t0}, s{s_t0}, {SLOT0}")
I("v_and_b32 v10, 15, v1")
I("v_lshrrev_b32 v11, 1, v10")
I("v_lshrrev_b32 v12, 4, v1")
I(f"v_lshl_add_u32 v10, v10, 7, s{s_t0}")
I("v_xor_b32 v13, v12, v11")
I("v_and_b32 v11, 1, v12")
I(f"v_lshl_add_u32 v{vAX[0]}, v13, 4, v10")
I(f"v_xor_b32 v{vAX[1]}, 64, v{vAX[0]}")
I("v_lshrrev_b32 v10, 1, v12")
I("v_bfe_u32 v12, v1, 2, 2")
I("v_lshl_add_u32 v12, v11, 3, v12")
I("v_mul_u32_u24 v12, 192, v12")
I("v_mul_u32_u24 v13, 6144, v10")
I("v_and_b32 v10, 3, v1")
I("v_lshl_add_u32 v12, v10, 3, v12")
I(f"s_mov_b32 s{s_t1}, {SLOT0+16384}")
I(f"v_add3_u32 v12, v12, v13, s{s_t1}")
I("v_lshlrev_b32 v11, 5, v11")
I(f"s_bfe_u32 s{s_t0}, s{s_wave}, {1 | (1 << 16)}")
I(f"s_lshl_b32 s{s_t1}, s{s_t0}, 5")
I(f"s_lshl_b32 s{s_t2}, s{s_t0}, 6")
I(f"v_xor_b32 v13, s{s_t1}, v11")
I(f"v_add3_u32 v{vAW[0]}, v12, v13, s{s_t2}")
I(f"v_add_u32 v{vAW[2]}, 64, v{vAW[0]}")
I("v_xor_b32 v13, 32, v13")
I(f"s_lshl_b32 s{s_t2}, s{s_t0}, 7")
I(f"v_add3_u32 v{vAW[1]}, v12, v13, s{s_t2}")
I("v_mov_b32 v21, 0")
I(f"v_mov_b32 v22, {LDS_SCR}")
I("ds_write_b32 v22, v21")
I("ds_write_b32 v22, v21 offset:4")
if ADAPT:
    I("ds_write_b32 v22, v21 offset:8")
    I("ds_write_b32 v22, v21 offset:12")
I("v_mov_b32 v23, 1")
for r in range(0, 96, 2):
    I(f"v_mov_b64 v[{ACC+r}:{ACC+r+1}], 0")
I(f"s_cmp_eq_u32 s{s_t0}, 0")
I(f"s_cselect_b32 s{s_t1}, 2, 0")
I(f"s_movk_i32 s{s_t2}, 0x543")
I(f"s_cselect_b32 s{s_t2}, 0x210, s{s_t2}")
I(f"s_movk_i32 s{s_t3}, 0x103")
I(f"s_cselect_b32 s{s_t3}, 0x254, s{s_t3}")
I(f"s_cmp_eq_u32 s{s_sl}, 14")
I(f"s_cselect_b32 s{s_valid}, s{s_t1}, 3")
I(f"s_bitcmp1_b32 s{s_sl}, 0")
I(f"s_cselect_b32 s{s_t2}, s{s_t3}, s{s_t2}")
I(f"s_and_b32 s{s_t1}, s{s_wave}, 1")
I(f"s_lshl_b32 s{s_t3}, s{s_mt}, 1")
I(f"s_add_u32 s{s_t1}, s{s_t1}, s{s_t3}")
I(f"s_mul_i32 s{s_t1}, s{s_t1}, {2*HSTR}")
I(f"s_mul_i32 s{s_t3}, s{s_sl}, 6")
I(f"s_add_u32 s{s_t1}, s{s_t1}, s{s_t3}")
for t in range(3):
    I(f"s_bfe_u32 s{s_t3}, s{s_t2}, {4*t | (4 << 16)}")
    I(f"s_add_u32 s{s_t3}, s{s_t3}, s{s_t1}")
    I(f"s_lshl_b32 s{s_hoff+t}, s{s_t3}, 10")
I(f"s_mov_b32 s{s_k}, 0xbfb8aa3b")
I("v_lshlrev_b32 v9, 4, v1")
I(f"v_add_u32 v10, {HSTR*1024}, v9")
I(f"v_mov_b32 v56, s{s_k}"); I(f"v_mov_b32 v57, s{s_k}"); I("v_mov_b32 v58, 1.0"); I("v_mov_b32 v59, 1.0")
if not args.sflag:
    I(f"s_mul_i32 s{s_fl}, s{s_mt}, {4*HSTR*1024}")
    I(f"s_lshr_b32 s{s_t1}, s{s_sl}, 3")
    I(f"s_mul_i32 s{s_t1}, s{s_t1}, {HSTR*1024}")
    I(f"s_add_u32 s{s_fl}, s{s_fl}, s{s_t1}")
    I(f"s_and_b32 s{s_t1}, s{s_sl}, 7")
    I(f"s_lshl_b32 s{s_t1}, s{s_t1}, 7")
    I(f"s_add_u32 s{s_fl}, s{s_fl}, s{s_t1}")
    I(f"s_add_u32 s{s_fl}, s{s_fl}, {86*1024}")
srd_tail(sH, WS_REC); srd_tail(sO, OB)
I(f"s_mov_b32 s{s_cnt}, 0")
I(f"s_mov_b32 s{s_ring}, 1")
I(f"s_mov_b32 s{s_sx}, {SLOTSZ}")
I("s_waitcnt lgkmcnt(0)")
I(f"s_cmp_ge_u32 s{s_sl}, 15")
I(f"s_cbranch_scc1 {P}_c_idle")
I(f"s_cmp_eq_u32 s{s_valid}, 0")
I(f"s_cbranch_scc1 {P}_c_lazy")

def xr(fs, mt): return fs + 4 * mt
def wr_(fs, t, mat): return fs + 16 + 4 * (2 * t + mat)
def acc(t, mat, mt): return ACC + ((t * 2 + mat) * 4 + mt) * 4
def xrd(ks, fs, mt): return [f"ds_read_b128 v[{xr(fs,mt)}:{xr(fs,mt)+3}], v{vAX[ks]} offset:{2048*mt}"]
def wrd(ks, fs, t, mat):
    d = wr_(fs, t, mat)
    return [f"ds_read_b64_tr_b16 v[{d+2*h}:{d+2*h+1}], v{vAW[t]} offset:{ks*12288+mat*3072+h*768}" for h in range(2)]
def reads(ks, fs):
    if "noread" in args.diag: return ["s_nop 0"] * 16
    if "halfread" in args.diag:
        r = xrd(ks, fs, 0) + wrd(ks, fs, 0, 0) + xrd(ks, fs, 1) + wrd(ks, fs, 0, 1) + wrd(ks, fs, 1, 0)
        return r + ["s_nop 0"] * 8
    r = xrd(ks, fs, 0) + wrd(ks, fs, 0, 0) + xrd(ks, fs, 1) + wrd(ks, fs, 0, 1) + xrd(ks, fs, 2) + xrd(ks, fs, 3)
    for t in (1, 2):
        for mat in range(2): r += wrd(ks, fs, t, mat)
    return r
def mf(fs, t, mat, mt):
    a = acc(t, mat, mt); w = wr_(fs, t, mat); x = xr(fs, mt)
    return f"v_mfma_f32_16x16x32_bf16 v[{a}:{a+3}], v[{w}:{w+3}], v[{x}:{x+3}], v[{a}:{a+3}]"
def mfmas(fs):
    if "halfm" in args.diag:
        return [mf(fs, t, mat, mt) if mat == 0 else "s_nop 1" for t in range(3) for mat in range(2) for mt in range(4)]
    if args.morder == 1:
        return [mf(fs, t, mat, mt if mat == 0 else 3 - mt) for t in range(3) for mat in range(2) for mt in range(4)]
    if args.morder == 2:
        ws = [(t, mat) for t in range(3) for mat in range(2)]
        return [mf(fs, *w, mt) for mt in range(4) for w in (ws if mt % 2 == 0 else ws[::-1])]
    return [mf(fs, t, mat, mt) for t in range(3) for mat in range(2) for mt in range(4)]
if args.prew:
    for t in range(3):
        if t == 2:
            I(f"s_cmp_le_u32 s{s_valid}, 2"); I(f"s_cbranch_scc1 {P}_c_npw")
        for p_ in range(2):
            I(f"buffer_store_dwordx4 v[64:67], v{9+p_}, {srd(sH)}, s{s_hoff+t} offen sc1")
    L(f"{P}_c_npw")
if args.align:
    I(f"s_branch {P}_pg1"); out.append("@COLD@"); e(".p2align 12"); L(f"{P}_pg1")
if "b0" in args.diag: stamp(1)
I("s_barrier")
if "b0" not in args.diag: stamp(1)
r = reads(0, FA)
for x in r[:12]: I(x)
if not args.sflag:
    I(f"s_cmp_lg_u32 s{s_wave}, 4")
    I(f"s_cbranch_scc1 {P}_c_noold")
    I(f"buffer_load_dword v{vOLD}, v21, {srd(sH)}, s{s_fl} offen sc1")
    L(f"{P}_c_noold")
I("s_waitcnt lgkmcnt(8)")
for x in r[12:]: I(x)
L(f"{P}_c_loop")
m = mfmas(FA); r = reads(1, FB)
extra = [f"s_add_u32 s{s_ring}, s{s_ring}, 1", f"s_cmp_eq_u32 s{s_ring}, 3",
         f"s_cselect_b32 s{s_t0}, {-2*SLOTSZ & 0xffffffff}, s{s_sx}", f"s_cselect_b32 s{s_ring}, 0, s{s_ring}",
         f"s_add_u32 s{s_cnt}, s{s_cnt}, 1", None]
upd = [f"v_add_u32 v{r}, s{s_t0}, v{r}" for r in vAX + vAW]
need = {0: 8, 8: 10, 12: 12, 16: 14, 20: 16} if args.morder < 2 else {0: 6, 2: 10, 3: 12, 4: 14, 5: 16}
for i in range(24):
    if i in need: I(f"s_waitcnt lgkmcnt({min(15, 16 - need[i] + min(i, 16))})")
    I(m[i])
    if i < 16: I(r[i])
    elif i < 19:
        for x in extra[2*(i-16):2*(i-16)+2]:
            if x: I(x)
    else: I(upd[i-19])
I("s_waitcnt lgkmcnt(0)")
m = mfmas(FB); r = reads(0, FA)
for i in range(24):
    if i == args.barpos: I("s_barrier")
    I(m[i])
    if i >= args.barpos:
        for x in r[(i - args.barpos) * args.rpg:(i - args.barpos + 1) * args.rpg]: I(x)
assert (24 - args.barpos) * args.rpg >= 16
I(f"s_cmp_lt_u32 s{s_cnt}, 7")
I(f"s_cbranch_scc1 {P}_c_loop")
stamp(2)
T = 32
def epi(t, p):
    tm = T + p * 12; o = tm + 8
    g = [acc(t, 0, 2*p + (q >> 2)) + (q & 3) for q in range(8)]
    u = [acc(t, 1, 2*p + (q >> 2)) + (q & 3) for q in range(8)]
    v = []
    if 2 * t + p >= args.pkfrom:
        pr = lambda r: f"v[{r}:{r+1}]"
        for q in range(0, 8, 2): v.append(f"v_pk_mul_f32 {pr(tm+q)}, {pr(g[q])}, v[56:57]")
        for q in range(8): v.append(f"v_exp_f32 v{tm+q}, v{tm+q}")
        for q in range(0, 8, 2): v.append(f"v_pk_add_f32 {pr(tm+q)}, {pr(tm+q)}, v[58:59]")
        for q in range(8): v.append(f"v_rcp_f32 v{tm+q}, v{tm+q}")
        for q in range(0, 8, 2): v.append(f"v_pk_mul_f32 {pr(tm+q)}, {pr(tm+q)}, {pr(g[q])}")
        for q in range(0, 8, 2): v.append(f"v_pk_mul_f32 {pr(tm+q)}, {pr(tm+q)}, {pr(u[q])}")
    else:
        for q in range(8): v.append(f"v_mul_f32 v{tm+q}, s{s_k}, v{g[q]}")
        for q in range(8): v.append(f"v_exp_f32 v{tm+q}, v{tm+q}")
        for q in range(8): v.append(f"v_add_f32 v{tm+q}, 1.0, v{tm+q}")
        for q in range(8): v.append(f"v_rcp_f32 v{tm+q}, v{tm+q}")
        for q in range(8): v.append(f"v_mul_f32 v{tm+q}, v{tm+q}, v{g[q]}")
        for q in range(8): v.append(f"v_mul_f32 v{tm+q}, v{tm+q}, v{u[q]}")
    for q in (0, 2, 1, 3): v.append(f"v_cvt_pk_bf16_f32 v{o+q}, v{tm+2*q}, v{tm+2*q+1}")
    v.append(("swap", o))
    v.append(("store", t, p, o))
    return v
def emit_v(x):
    if isinstance(x, tuple) and x[0] == "swap":
        o = x[1]
        I(f"v_permlane16_swap_b32 v{o}, v{o+2}")
        I("s_nop 0")
        I(f"v_permlane16_swap_b32 v{o+1}, v{o+3}")
    elif isinstance(x, tuple):
        _, t, p, o = x
        if t == 2:
            I(f"s_cmp_le_u32 s{s_valid}, 2")
            I(f"s_cbranch_scc1 {P}_c_ns{t}{p}")
        I(f"buffer_store_dwordx4 v[{o}:{o+3}], v{9+p}, {srd(sH)}, s{s_hoff+t} offen {'' if 'hplain' in args.diag else 'sc1'}")
        if t == 2: L(f"{P}_c_ns{t}{p}")
    else:
        I(x)
blocks = [(t, p) for t in range(3) for p in range(2)]
def bmf(t, p, fs): return [mf(fs, t, mat, 2*p + j) for mat in range(2) for j in range(2)]
rB = reads(1, FB)
I("s_waitcnt lgkmcnt(8)")
pre = bmf(0, 0, FA) + bmf(0, 1, FA)
for i in range(8):
    I(pre[i])
    if i == 3: I("s_waitcnt lgkmcnt(6)")
    I(rB[2*i])
    if i == 7: I("s_waitcnt lgkmcnt(9)")
    I(rB[2*i+1])
I("s_waitcnt lgkmcnt(8)")
seq = []
for bi, (t, p) in enumerate(blocks):
    x = bmf(t, p, FB) if bi < 2 else bmf(t, p, FA) + bmf(t, p, FB)
    seq += [(y, None) for y in x[:-1]] + [(x[-1], bi)]
vq = []; nxt = 0; since = {}
for i, (mi, done) in enumerate(seq):
    if i == 8:
        I("s_waitcnt lgkmcnt(0)")
        if ADAPT: I("s_mov_b64 exec, 1"); I("ds_add_u32 v22, v23 offset:8"); I("s_mov_b64 exec, -1")
    I(mi)
    for k in since: since[k] += 1
    if done is not None: since[done] = 0
    n = 0
    while n < args.gapc:
        if not vq:
            if nxt in since and since[nxt] >= 4 and nxt < args.pkfrom:
                if since[nxt] < 9: I(f"s_nop {9 - since[nxt]}")
                vq += epi(*blocks[nxt]); nxt += 1
            else:
                break
        x = vq.pop(0)
        emit_v(x); n += 8 if (isinstance(x, tuple) or "exp" in x or "rcp" in x) else 4
        for k in since: since[k] += 1
while vq or nxt < 6:
    if not vq:
        if since[nxt] < 9: I(f"s_nop {9 - since[nxt]}")
        if nxt == args.stopat: I("ds_write_b32 v22, v23 offset:12")
        vq += epi(*blocks[nxt]); nxt += 1
    emit_v(vq.pop(0))
    for k in since: since[k] += 1
if args.stopat == 6: I("ds_write_b32 v22, v23 offset:12")
L(f"{P}_c_epidone")
if args.post:
    I("s_mov_b64 exec, 1"); I("ds_add_u32 v22, v23 offset:4"); I("s_mov_b64 exec, -1")
stamp(3)
vB = [[10, 11], [12, 13], [14, 15]]
WF = 128; HR = 160; R = args.hring
I("v_lshrrev_b32 v16, 4, v1")
I("v_lshrrev_b32 v17, 5, v1")
I("v_bfe_u32 v18, v1, 2, 2")
I("v_lshl_add_u32 v17, v17, 3, v18")
I("v_lshlrev_b32 v17, 7, v17")
I("v_and_b32 v16, 1, v16")
I("v_and_b32 v19, 1, v1")
I("v_lshl_add_u32 v16, v19, 1, v16")
I("v_lshlrev_b32 v18, 1, v18")
I("v_and_b32 v18, 4, v18")
I(f"s_bfe_u32 s{s_t0}, s{s_wave}, {1 | (1 << 16)}")
I(f"s_lshl_b32 s{s_t1}, s{s_t0}, 2")
I(f"v_xor_b32 v18, s{s_t1}, v18")
I("v_xor_b32 v16, v16, v18")
I("v_lshl_add_u32 v17, v16, 4, v17")
I("v_bfe_u32 v19, v1, 1, 1")
I("v_lshl_add_u32 v17, v19, 3, v17")
I(f"s_lshl_b32 s{s_t1}, s{s_t0}, 11")
I(f"v_add_u32 v{vB[0][0]}, s{s_t1}, v17")
I(f"v_xor_b32 v{vB[0][1]}, 64, v{vB[0][0]}")
for sg in (1, 2):
    for nb in range(2):
        I(f"v_add_u32 v{vB[sg][nb]}, {sg*65536}, v{vB[0][nb]}")
I("s_waitcnt vmcnt(0)")
if not args.sflag: I(f"v_add_u32 v{vOLD}, 1, v{vOLD}")
I("s_barrier")
if not args.sflag:
    I(f"s_cmp_lg_u32 s{s_wave}, 4")
    I(f"s_cbranch_scc1 {P}_c_p2")
    I(f"s_cmp_ge_u32 s{s_sl}, 15")
    I(f"s_cbranch_scc1 {P}_c_p2")
    I("s_mov_b64 exec, 1")
    I(f"buffer_store_dword v{vOLD}, v21, {srd(sH)}, s{s_fl} offen sc1")
    I("s_mov_b64 exec, -1")
L(f"{P}_c_p2")
stamp(4)
def wreads(u, dst):
    a = unit_addr(u); sg = a >> 16; off = a & 0xffff
    return [f"ds_read_b64_tr_b16 v[{dst+4*nb+2*h}:{dst+4*nb+2*h+1}], v{vB[sg][nb]} offset:{off+h*512}" for nb in range(2) for h in range(2)]
NW, NPRE, PRE, TN = 3, 4, 96, args.tailn
def wdst(u):
    if u < 4: return PRE + 8 * u
    if u >= 43 - TN: return PRE + 8 * (u - (43 - TN))
    return WF + 8 * (u % NW)
for u in range(NPRE):
    if u == 3: I("s_waitcnt lgkmcnt(8)")
    for r in wreads(u, wdst(u)): I(r)
I("s_waitcnt lgkmcnt(0)")
I("s_barrier")
decode2()
I(f"s_bfe_u32 s{s_t0}, s{s_wave}, {1 | (1 << 16)}")
I(f"s_and_b32 s{s_t1}, s{s_wave}, 1")
I(f"s_lshl_b32 s{s_t2}, s{s_rb}, 1")
I(f"s_add_u32 s{s_t1}, s{s_t1}, s{s_t2}")
I(f"s_mul_i32 s{s_t2}, s{s_t1}, {HSTR}")
I(f"s_mul_i32 s{s_t3}, s{s_t0}, 43")
I(f"s_add_u32 s{s_t2}, s{s_t2}, s{s_t3}")
I(f"s_lshl_b32 s{s_pbeg}, s{s_t2}, 10")
I(f"s_add_u32 s{s_pend}, s{s_pbeg}, {43*1024}")
I(f"s_lshl_b32 s{s_t2}, s{s_rot2}, 10")
I(f"s_add_u32 s{s_p}, s{s_pbeg}, s{s_t2}")
I("v_and_b32 v16, 31, v1")
I("v_lshlrev_b32 v16, 10, v16")
I("v_and_b32 v17, 32, v1")
I(f"s_lshl_b32 s{s_t1}, s{s_t1}, 15")
I(f"s_lshl_b32 s{s_t2}, s{s_cb}, 7")
I(f"s_add_u32 s{s_t1}, s{s_t1}, s{s_t2}")
I(f"s_lshl_b32 s{s_t2}, s{s_t0}, 6")
I(f"s_add_u32 s{s_t1}, s{s_t1}, s{s_t2}")
I(f"v_add3_u32 v16, v16, v17, s{s_t1}")
I(f"s_and_b32 s{s_t1}, s{s_wave}, 3")
I(f"s_lshl_b32 s{s_t1}, s{s_t1}, 12")
I(f"s_xor_b32 s{s_t2}, s{s_t1}, {2 << 12}")
I(f"s_add_u32 s{s_t1}, s{s_t1}, {XCH}")
I(f"s_add_u32 s{s_t2}, s{s_t2}, {XCH}")
I(f"v_add_u32 v17, s{s_t1}, v9")
I(f"v_add_u32 v18, s{s_t2}, v9")
if args.otr:
    I("v_and_b32 v25, 31, v1")
    I(f"s_and_b32 s{s_t1}, s{s_wave}, 1")
    I(f"s_lshl_b32 s{s_t1}, s{s_t1}, 12")
    I(f"s_add_u32 s{s_t1}, s{s_t1}, {OTR}")
    I(f"v_lshl_add_u32 v26, v25, 7, s{s_t1}")
    I("v_lshrrev_b32 v27, 5, v1")
    I(f"s_lshl_b32 s{s_t2}, s{s_t0}, 1")
    I(f"v_add_lshl_u32 v27, v27, s{s_t2}, 1")
    I("v_and_b32 v25, 7, v25")
    I("v_xor_b32 v27, v27, v25")
    I("v_lshl_add_u32 v25, v27, 4, v26")
    I("v_xor_b32 v26, 16, v25")
    if args.otr == 1:
        I("v_lshrrev_b32 v27, 2, v1")
        I("v_and_b32 v28, 3, v1")
        I(f"s_lshl_b32 s{s_t2}, s{s_t0}, 2")
        I(f"v_add_u32 v28, s{s_t2}, v28")
        rowstep = 16
    else:
        I("v_lshrrev_b32 v27, 3, v1")
        I(f"s_lshl_b32 s{s_t2}, s{s_t0}, 4")
        I(f"v_add_u32 v27, s{s_t2}, v27")
        I("v_and_b32 v28, 7, v1")
        rowstep = 8
    I(f"s_and_b32 s{s_t2}, s{s_wave}, 1")
    I(f"s_lshl_b32 s{s_t3}, s{s_rb}, 1")
    I(f"s_add_u32 s{s_t2}, s{s_t2}, s{s_t3}")
    I(f"s_lshl_b32 s{s_t2}, s{s_t2}, 15")
    I(f"s_lshl_b32 s{s_t3}, s{s_cb}, 7")
    I(f"s_add_u32 s{s_t2}, s{s_t2}, s{s_t3}")
    I(f"v_lshl_add_u32 v16, v27, 10, s{s_t2}")
    I("v_lshl_add_u32 v16, v28, 4, v16")
    I(f"v_add_u32 v29, {rowstep*1024}, v16")
    I("v_and_b32 v30, 7, v27")
    I("v_xor_b32 v28, v28, v30")
    I(f"v_lshl_add_u32 v27, v27, 7, s{s_t1}")
    I("v_lshl_add_u32 v27, v28, 4, v27")
for r in range(0, 32, 2):
    I(f"v_mov_b64 v[{ACC+r}:{ACC+r+1}], 0")
if args.align:
    I(f"s_branch {P}_c_spin"); e(".p2align 12")
L(f"{P}_c_spin")
I("ds_read_b32 v24, v22")
I("s_waitcnt lgkmcnt(0)")
I(f"v_readfirstlane_b32 s{s_t0}, v24")
I("s_nop 0")
I(f"s_cmp_eq_u32 s{s_t0}, 0")
I(f"s_cbranch_scc1 {P}_c_spin")
stamp(5)
if "p2" in args.diag: stamp(1, True)
def hload(s):
    b = HR + 4 * (s % R)
    return [f"buffer_load_dwordx4 v[{b}:{b+3}], v9, {srd(sH)}, s{s_p} offen sc1",
            f"s_add_u32 s{s_p}, s{s_p}, 1024",
            f"s_cmp_eq_u32 s{s_p}, s{s_pend}",
            f"s_cselect_b32 s{s_p}, s{s_pbeg}, s{s_p}"]
for s in range(args.hpro):
    for x in hload(s): I(x)
issued = args.hpro
def mm2(s, nb):
    hb = HR + 4 * (s % R); wd = wdst(s)
    if "q16" in args.diag:
        a = ACC + 16 * nb + 8 * (s & 1)
        return (f"v_mfma_f32_16x16x32_bf16 v[{a}:{a+3}], v[{wd+4*nb}:{wd+4*nb+3}], v[{hb}:{hb+3}], v[{a}:{a+3}]\n"
                f"    v_mfma_f32_16x16x32_bf16 v[{a+4}:{a+7}], v[{wd+4-4*nb}:{wd+7-4*nb}], v[{hb}:{hb+3}], v[{a+4}:{a+7}]")
    if "qno" in args.diag: return "s_nop 0"
    return f"v_mfma_f32_32x32x16_bf16 v[{ACC+16*nb}:{ACC+16*nb+15}], v[{wd+4*nb}:{wd+4*nb+3}], v[{hb}:{hb+3}], v[{ACC+16*nb}:{ACC+16*nb+15}]"
for s in range(43):
    u = s + 2
    young = 1 if NPRE <= s + 1 < 43 else 0
    I(f"s_waitcnt vmcnt({issued - s - 1}) lgkmcnt({4*young})")
    if "p2" in args.diag and s in (0, 5, 11, 21, 32, 42): stamp({0:2, 5:3, 11:4, 21:5, 32:6, 42:7}[s], True)
    if u == wdone: I("s_barrier")
    wr = wreads(u, wdst(u)) if NPRE <= u < 43 else []
    I(mm2(s, 1))
    for r in wr[:2]: I(r)
    if issued < 43 and issued - R < s:
        for x in hload(issued): I(x)
        issued += 1
    if s < 43 - TN: I(mm2(s, 0))
    for r in wr[2:]: I(r)
    if issued < 43 and issued - R < s and issued - s - 1 < R - 1:
        for x in hload(issued): I(x)
        issued += 1
stamp(6)
if FIN: stamp(2, True)
tl = [mm2(s, 0) for s in range(43 - TN, 43)]
if tl: I(tl.pop(0))
I("s_nop 7")
I("s_nop 3")
for q in range(4):
    I(f"ds_write_b128 v17, v[{ACC+16+4*q}:{ACC+19+4*q}] offset:{q*1024}")
    if tl and q % 2 == 1: I(tl.pop(0))
for x in tl: I(x)
I("s_waitcnt lgkmcnt(0)")
if FIN: stamp(3, True)
I("s_barrier")
if FIN: stamp(4, True)
for q in range(4):
    I(f"ds_read_b128 v[{128+4*q}:{131+4*q}], v18 offset:{q*1024}")
I("s_nop 5")
for q in range(4):
    I(f"s_waitcnt lgkmcnt({3-q + (1 if args.otr and q >= 2 else 0)})")
    for p in range(2):
        I(f"v_pk_add_f32 v[{ACC+4*q+2*p}:{ACC+4*q+2*p+1}], v[{ACC+4*q+2*p}:{ACC+4*q+2*p+1}], v[{128+4*q+2*p}:{129+4*q+2*p}]")
    for p in range(2):
        I(f"v_cvt_pk_bf16_f32 v{144+2*q+p}, v{ACC+4*q+2*p}, v{ACC+4*q+2*p+1}")
    if q == 1:
        if args.otr: I("ds_write_b128 v25, v[144:147]")
        else: I(f"buffer_store_dwordx4 v[144:147], v16, {srd(sO)}, 0 offen {args.ost}")
if args.otr:
    I("ds_write_b128 v26, v[148:151]")
    if args.otr == 2:
        I("s_waitcnt lgkmcnt(0)")
        I("s_barrier")
        if FIN: stamp(5, True)
    I("ds_read_b128 v[152:155], v27")
    I(f"ds_read_b128 v[156:159], v27 offset:{rowstep*128}")
    I("s_waitcnt lgkmcnt(1)")
    I(f"buffer_store_dwordx4 v[152:155], v16, {srd(sO)}, 0 offen {args.ost}")
    I("s_waitcnt lgkmcnt(0)")
    I(f"buffer_store_dwordx4 v[156:159], v29, {srd(sO)}, 0 offen {args.ost}")
else:
    I(f"buffer_store_dwordx4 v[148:151], v16, {srd(sO)}, 0 offen offset:16 {args.ost}")
if "dirty" in args.diag:
    n = int(re.search(r"dirty(\d+)", args.diag).group(1))
    I(f"s_mov_b32 s{sH+2}, {64 << 20}")
    I(f"s_lshl_b32 s{s_t0}, s2, 2")
    I(f"s_add_u32 s{s_t0}, s{s_t0}, s{s_wave}")
    I(f"s_mul_i32 s{s_t0}, s{s_t0}, {n*1024}")
    I(f"s_add_u32 s{s_t0}, s{s_t0}, {16 << 20}")
    for i in range(n):
        I(f"buffer_store_dwordx4 v[144:147], v9, {srd(sH)}, s{s_t0} offen")
        I(f"s_add_u32 s{s_t0}, s{s_t0}, 1024")
if FIN: stamp(6, True)
if STAMPS: I("s_waitcnt vmcnt(0)")
stamp(7, True)
if args.amp and args.amp != "none" and not args.amp.startswith("L"): amp_block(args.amp, "c")
prof_store()
I("s_endpgm")
COLD_MARK = len(out)
L(f"{P}_c_lazy")
for i in range(8): I("s_barrier")
if ADAPT: I("s_mov_b64 exec, 1"); I("ds_add_u32 v22, v23 offset:8"); I("s_mov_b64 exec, -1")
I(f"s_branch {P}_c_epidone")
L(f"{P}_c_idle")
srd_tail(sX, XB); srd_tail(sW2, W2B)
prefetch_jobs()
I(f"s_branch {P}_c_epidone")
out += loader_tail
if args.align:
    cold = out[COLD_MARK:]; del out[COLD_MARK:]
    i = out.index("@COLD@"); out[i:i+1] = cold
L(f"{P}_codeend")

e('.section .rodata,"a"')
e(".p2align 6")
e(f".amdhsa_kernel {label}")
for l in ("next_free_vgpr 256", "next_free_sgpr 102", "accum_offset 256", "group_segment_fixed_size 0", "kernarg_size 56",
          "user_sgpr_count 2", "user_sgpr_kernarg_segment_ptr 1", "system_sgpr_workgroup_id_x 1", "float_denorm_mode_32 3"):
    e("  .amdhsa_" + l)
e(".end_amdhsa_kernel")

text = "\n".join(out) + "\n"
def symbols(t):
    with tempfile.TemporaryDirectory() as d:
        open(d + "/k.s", "w").write(t)
        subprocess.run(["clang", "-x", "assembler", "-target", "amdgcn-amd-amdhsa", "-mcpu=gfx950", "-c", d + "/k.s", "-o", d + "/k.o"], check=True)
        sym = subprocess.run(["llvm-objdump", "-t", d + "/k.o"], capture_output=True, text=True).stdout
    return {m.group(2): int(m.group(1), 16) for m in re.finditer(r"^([0-9a-f]{16}) .*\s(\S+)$", sym, re.M)}
a = symbols(text.replace("@CODELINES@", "100"))
assert a[f"{P}_codeend"] < 16384
sys.stderr.write(f"code {a[f'{P}_codeend']} B: loop@{a[f'{P}_l_loop']} compute@{a[f'{P}_compute']} cloop@{a[f'{P}_c_loop']} p2@{a[f'{P}_c_p2']} ltail@{a[f'{P}_l_tail']}\n")
open(args.o, "w").write(text)
```
